```python
import torch

def _softmax(x, axis=-1):
    return torch.softmax(x, dim=axis)
def _gelu(x):
    return torch.nn.functional.gelu(x, approximate="tanh")
def _silu(x):
    return torch.nn.functional.silu(x)
def _sigmoid(x):
    return torch.sigmoid(x)
def _layernorm(x, axis=-1, eps=1e-5):
    m = x.mean(dim=axis, keepdim=True)
    v = x.var(dim=axis, keepdim=True, unbiased=False)
    return (x - m) / torch.sqrt(v + eps)
def _scatter_add(tgt, idx, src, axis=0):
    return tgt.clone().index_add_(axis, idx, src)
def _segment_sum(src, seg, n):
    out = torch.zeros((n,) + src.shape[1:], dtype=src.dtype)
    return out.index_add_(0, seg, src)
def _pad(x, pw):
    flat = tuple(v for pair in reversed(pw) for v in pair)
    return torch.nn.functional.pad(x, flat)

kernel_name = 'concat_heads__sliding_block__ssm_conv_h3__prompt'

def setup_inputs():

    _w = (lambda a: (lambda t: t.to(torch.bfloat16) if t.is_floating_point() else t)(torch.as_tensor(a)))
    def _A_setup():
        B, S, D = 1, 2048, 512
        return {
            "x": _w((lambda *s: torch.randn(*s, dtype=torch.bfloat16) * 0.4)(B, S, D)),
            "wqkv": _w((lambda *s: torch.randn(*s, dtype=torch.bfloat16) * 0.4)(D, 3 * D)),
            "wo": _w((lambda *s: torch.randn(*s, dtype=torch.bfloat16) * 0.05)(D, D)),
        }
    _A_in = _A_setup()

    def _B_setup():
        B, S, D = 1, 2048, 512
        ks = 4
        return {
            "q": _w((lambda *s: torch.randn(*s, dtype=torch.bfloat16) * 0.05)(B, S, D)),
            "k": _w((lambda *s: torch.randn(*s, dtype=torch.bfloat16) * 1.6)(B, S, D)),
            "v": _w((lambda *s: torch.randn(*s, dtype=torch.bfloat16) * 1.6)(B, S, D)),
            "shift_k": _w((lambda *s: torch.randn(*s, dtype=torch.bfloat16) * 1.6)(D, ks) * 0.5),
            "ssm_k": _w((lambda *s: torch.randn(*s, dtype=torch.bfloat16) * 3.2)(D, S) * (1.0 / S ** 0.5)),
            "ssm_D": _w((lambda *s: torch.randn(*s, dtype=torch.bfloat16) * 1.6)(D)),
        }
    _B_in = _B_setup()

    return {
        "A_x": _A_in["x"],
        "A_wqkv": _A_in["wqkv"],
        "A_wo": _A_in["wo"],
        "B_q": _B_in["q"],
        "B_k": _B_in["k"],
        "B_v": _B_in["v"],
        "B_shift_k": _B_in["shift_k"],
        "B_ssm_k": _B_in["ssm_k"],
        "B_ssm_D": _B_in["ssm_D"],
    }

def reference(A_x, A_wqkv, A_wo, B_q, B_k, B_v, B_shift_k, B_ssm_k, B_ssm_D):
    def _A_ref(x, wqkv, wo):
        B, S, D = x.shape
        H = 32; Dh = D // H; W = 256
        qkv = (lambda x, *d: x.permute(*d))((x @ wqkv).reshape(B, S, 3, H, Dh), 2, 0, 3, 1, 4)
        q, k, v = qkv[0], qkv[1], qkv[2]
        scores = torch.einsum("bhqd,bhkd->bhqk", q, k) * (Dh ** -0.5)
        idx = torch.arange(S)
        mask = (idx[:, None] - idx[None, :] >= 0) & (idx[:, None] - idx[None, :] < W)
        scores = torch.where(mask[None, None], scores, -1e9)
        p = _softmax(scores, axis=-1)
        o = torch.einsum("bhqk,bhkd->bhqd", p, v)
        return (lambda x, *d: x.permute(*d))(o, 0, 2, 1, 3).reshape(B, S, D) @ wo

    def _B_ref(q, k, v, shift_k, ssm_k, ssm_D):
        B, S, D = q.shape
        ks = shift_k.shape[-1]
        k_pad = _pad(k, ((0, 0), (ks - 1, 0), (0, 0)))
        k_shift = torch.zeros_like(k)
        for t in range(ks):
            k_shift = k_shift + k_pad[:, t:t + S, :] * shift_k[:, ks - 1 - t][None, None, :]
        kv = k_shift * v
        L = 2 * S
        kv_pad = _pad(kv, ((0, 0), (0, S), (0, 0)))
        kf_pad = _pad(ssm_k, ((0, 0), (0, S)))
        kv_f = (lambda x, axes=(-2,-1): torch.fft.rfft2(x.float(), dim=axes))(kv_pad[:, None, :, :], axes=(1, 2))
        kf_f = (lambda x, axes=(-2,-1): torch.fft.rfft2(x.float(), dim=axes))(kf_pad[:, None, :], axes=(1, 2))
        kf_f = (lambda x, *d: x.permute(*d))(kf_f, 1, 2, 0)
        y_f = kv_f * kf_f[None, :, :, :]
        y = (lambda x, s, axes=(-2,-1): torch.fft.irfft2(x, s=s, dim=axes).to(torch.bfloat16))(y_f, (1, L), axes=(1, 2))[:, 0, :S, :]
        y = y + kv * ssm_D[None, None, :]
        return q * y

    a = _A_ref(A_x, A_wqkv, A_wo)
    b = _B_ref(B_q, B_k, B_v, B_shift_k, B_ssm_k, B_ssm_D)
    return torch.concatenate([a, b], axis=-1)
```

```python
import re

class Asm:
    def __init__(self):
        self.lines = []
        self.uid = 0
    def __call__(self, s=''):
        for l in s.split('\n'):
            l = l.strip()
            if l:
                self.lines.append(l)
    def label(self, base):
        self.uid += 1
        return f"L_{base}_{self.uid}"
    def text(self):
        out = []
        for l in self.lines:
            if l.endswith(':') or l.startswith('.') or l.startswith(';'):
                out.append(l)
            else:
                out.append('    ' + l)
        return '\n'.join(out) + '\n'

def vr(base, n=1, p='v'):
    return f"{p}{base}" if n == 1 else f"{p}[{base}:{base+n-1}]"
def ar(base, n=1):
    return vr(base, n, 'a')
def sr(base, n=1):
    return vr(base, n, 's')

_REG = re.compile(r'\b([vas])(\d+)\b|\b([vas])\[(\d+):(\d+)\]')
def regs_of(tok):
    out = set()
    for m in _REG.finditer(tok):
        if m.group(1):
            out.add((m.group(1), int(m.group(2))))
        else:
            for k in range(int(m.group(4)), int(m.group(5)) + 1):
                out.add((m.group(3), k))
    if re.search(r'\bvcc\b', tok):
        out.add(('s', 'vcc'))
    if re.search(r'\bexec\b', tok):
        out.add(('s', 'exec'))
    if re.search(r'\bm0\b', tok):
        out.add(('s', 'm0'))
    return out

TRANS = ('v_exp_f32', 'v_log_f32', 'v_rcp_f32', 'v_rsq_f32', 'v_sqrt_f32', 'v_sin_f32', 'v_cos_f32')

def parse(line):
    line = line.split(';')[0].split('//')[0].strip()
    if not line or line.endswith(':') or line.startswith('.'):
        return None
    parts = line.split(None, 1)
    op = parts[0]
    ops = [x.strip() for x in parts[1].split(',')] if len(parts) > 1 else []
    d = dict(op=op, line=line, dst=set(), src=set(), kind='other', passes=0, srcC=set(), srcAB=set())
    if op.startswith('v_mfma'):
        d['kind'] = 'mfma'
        d['passes'] = 8 if '32x32' in op else 4
        d['dst'] = regs_of(ops[0])
        d['srcAB'] = regs_of(ops[1]) | regs_of(ops[2])
        d['srcC'] = regs_of(ops[3])
        d['src'] = d['srcAB'] | d['srcC']
    elif op.startswith('v_cmp'):
        d['kind'] = 'valu'
        d['dst'] = regs_of(ops[0])
        d['src'] = set().union(*[regs_of(x) for x in ops[1:]])
        if op.startswith('v_cmpx'):
            d['dst'] |= {('s', 'exec')}
    elif op.startswith('v_readfirstlane') or op.startswith('v_readlane'):
        d['kind'] = 'valu'; d['rl'] = True
        d['dst'] = regs_of(ops[0]); d['src'] = set().union(*[regs_of(x) for x in ops[1:]])
    elif op.startswith('v_permlane'):
        d['kind'] = 'valu'; d['perm'] = True
        d['dst'] = regs_of(ops[0]) | regs_of(ops[1]); d['src'] = set(d['dst'])
    elif op.startswith('v_'):
        d['kind'] = 'valu'
        d['dst'] = regs_of(ops[0])
        d['src'] = set().union(*[regs_of(x) for x in ops[1:]]) if len(ops) > 1 else set()
        if op.startswith(('v_fmac', 'v_mac', 'v_dot2c', 'v_pk_fmac')):
            d['src'] |= d['dst']
        if op.startswith('v_cndmask') and len(ops) == 3:
            d['src'] |= {('s', 'vcc')}
        if op.startswith(('v_add_co', 'v_sub_co', 'v_addc_co', 'v_subb_co')):
            d['dst'] |= regs_of(ops[1])
        if any(op.startswith(t) for t in TRANS):
            d['trans'] = True
        if 'dpp' in op or 'row_shr' in line or 'row_shl' in line or 'quad_perm' in line:
            d['dpp'] = True
    elif op.startswith(('buffer_', 'global_', 'ds_')):
        d['kind'] = 'mem'
        isload = ('load' in op) or op.startswith('ds_read') or op.startswith('ds_bpermute')
        islds = ' lds' in line
        if op.startswith('buffer_'):
            if isload and not islds:
                d['dst'] = regs_of(ops[0]); d['src'] = set().union(*[regs_of(x) for x in ops[1:]])
            else:
                d['src'] = set().union(*[regs_of(x) for x in ops])
                if 'store' in op:
                    d['store_data'] = regs_of(ops[0])
                    d['wide'] = ('x4' in op or 'x3' in op)
                if 'atomic' in op and 'sc0' in line:
                    d['dst'] = regs_of(ops[0])
            if islds:
                d['src'] |= {('s', 'm0')}; d['ldsdma'] = True
            d['vmem'] = True
        elif op.startswith('ds_'):
            if isload:
                d['dst'] = regs_of(ops[0]); d['src'] = set().union(*[regs_of(x) for x in ops[1:]])
            else:
                d['src'] = set().union(*[regs_of(x) for x in ops])
        else:
            d['vmem'] = True
            if isload:
                d['dst'] = regs_of(ops[0]); d['src'] = set().union(*[regs_of(x) for x in ops[1:]])
            else:
                d['src'] = set().union(*[regs_of(x) for x in ops])
    elif op.startswith('s_'):
        d['kind'] = 'salu'
        if op in ('s_nop',):
            d['nop'] = int(ops[0], 0) + 1
        elif op.startswith(('s_cmp', 's_cbranch', 's_branch', 's_waitcnt', 's_barrier', 's_endpgm', 's_sleep', 's_setprio')):
            d['src'] = set().union(*[regs_of(x) for x in ops]) if ops else set()
        else:
            d['dst'] = regs_of(ops[0]) if ops else set()
            d['src'] = set().union(*[regs_of(x) for x in ops[1:]]) if len(ops) > 1 else set()
            if 'saveexec' in op:
                d['dst'] |= {('s', 'exec')}
    return d

def is_v(r):
    return r[0] in 'va'

def check_hazards(lines, verbose=True):
    ins = [p for p in (parse(l) for l in lines) if p]
    probs = []
    MF_VALU = {4: 8, 8: 12}
    MF_AB = {4: 8, 8: 12}
    MF_COVER = {4: 6, 8: 10}
    MF_WARC = {4: 3, 8: 7}
    for i, b in enumerate(ins):
        dist = 0
        for j in range(i - 1, max(-1, i - 40), -1):
            a = ins[j]
            need = 0; why = ''
            av = {r for r in a['dst'] if is_v(r)}
            asg = {r for r in a['dst'] if not is_v(r)}
            bsrcv = {r for r in b['src'] if is_v(r)}
            bdstv = {r for r in b['dst'] if is_v(r)}
            if a['kind'] == 'valu':
                if b['kind'] == 'mfma' and av & b['src']:
                    need, why = 2, 'valu->mfma'
                if b.get('perm') and av & b['src']:
                    need, why = max(need, 2), 'valu->permlane'
                if b.get('dpp') and av & b['src']:
                    need, why = max(need, 2), 'valu->dpp'
                if b.get('rl') and av & b['src']:
                    need, why = max(need, 1), 'valu->readlane'
                if a.get('trans') and b['kind'] in ('valu', 'mfma') and not b.get('trans') and av & b['src']:
                    need, why = max(need, 1), 'trans->valu'
                if asg:
                    if b.get('vmem') and asg & b['src']:
                        need, why = max(need, 5), 'valu sgpr->vmem'
                    if b['kind'] == 'valu' and asg & b['src']:
                        need, why = max(need, 2), 'valu sgpr->valu'
                    if b.get('rl') and asg & b['src']:
                        need, why = max(need, 4), 'valu sgpr->readlane'
                    if ('s', 'exec') in asg and b['kind'] == 'mfma':
                        need, why = max(need, 4), 'valu exec->mfma'
                    if b['kind'] == 'salu' and asg & b['src'] and not b['op'].startswith('s_cbranch'):
                        need, why = max(need, 1), 'valu sgpr->salu(pad)'
            if a['kind'] == 'mfma':
                p = a['passes']
                if b['kind'] == 'mfma':
                    if av & b['srcAB']:
                        need, why = MF_AB[p], 'mfma->mfma AB'
                    if av & b['srcC']:
                        if not (av == b['srcC'] and b['passes'] == p):
                            need, why = max(need, MF_COVER[p]), 'mfma->mfma C overlap'
                    if av & b['dst'] and not (av == b['srcC']):
                        if not (av == b['dst'] and av == b['srcC']):
                            need, why = max(need, MF_COVER[p]), 'mfma WAW mfma'
                elif b['kind'] in ('valu', 'mem'):
                    if av & (bsrcv | bdstv):
                        need, why = MF_VALU[p], 'mfma->valu/mem'
                    if b['kind'] == 'valu' and (a['srcC'] & bdstv):
                        need, why = max(need, MF_WARC[p]), 'mfma srcC WAR'
            if a.get('store_data') and a.get('wide') and b['kind'] == 'valu' and (a['store_data'] & bdstv):
                need, why = max(need, 2), 'wide store WAR'
            if a['kind'] == 'salu' and ('s', 'm0') in a['dst'] and b.get('ldsdma'):
                need, why = max(need, 1), 'm0->ldsdma'
            if need > dist:
                probs.append(f"HAZARD {why}: need {need} have {dist}\n    A: {a['line']}\n    B: {b['line']}")
            dist += a.get('nop', 1)
            if dist >= 20:
                break
    return probs


def split_instrs(text_or_list):
    if isinstance(text_or_list, str):
        text_or_list = text_or_list.split('\n')
    return [l.strip() for l in text_or_list if l.strip()]

def interleave(main, filler_groups, every=1, after=None, start=0):
    out = []
    gi = 0
    cnt = 0
    for ins in main:
        out.append(ins)
        if after is None or after(ins):
            cnt += 1
            if cnt > start and (cnt - start) % every == 0 and gi < len(filler_groups):
                out.extend(filler_groups[gi]); gi += 1
    while gi < len(filler_groups):
        out.extend(filler_groups[gi]); gi += 1
    return out

def chunks(lst, n):
    return [lst[i:i+n] for i in range(0, len(lst), n)]

class Cap:
    def __init__(self, a): self.a = a
    def __enter__(self):
        self.saved = self.a.lines; self.a.lines = []; return self
    def __exit__(self, *e):
        self.out = self.a.lines; self.a.lines = self.saved
```

```python
from asmlib import *
import gen as G
from gen import *

NEG = 0xf149f2ca

def attention(g):
    a = g.a
    S = [16, 32]; P = [48, 56]; CN = [64, 80]; O = [96, 112]; MD = 128; MK = 144
    QF = [224, 228]
    def Kf(t): return f"a[{4*t}:{4*t+3}]" if t < 8 else f"v[{232+4*(t-8)}:{235+4*(t-8)}]"
    def Vf(t, h): return f"a[{32+8*t+4*h}:{35+8*t+4*h}]" if t < 8 else f"v[{240+8*(t-8)+4*h}:{243+8*(t-8)+4*h}]"
    a("v_and_b32 v2, 31, v1\nv_lshrrev_b32 v3, 5, v1\nv_lshlrev_b32 v3, 2, v3\nv_sub_u32 v2, v2, v3")
    a(f"s_mov_b32 s{ST}, {hex(NEG)}\nv_mov_b32 v4, s{ST}\nv_mov_b32 v5, 0\nv_mov_b32 v6, -1\nv_mov_b32 v7, 0xffff")
    for i in range(4):
        for r in range(4):
            k = 8*i + r
            a(f"v_cmp_le_i32 vcc, {k}, v2\ns_nop 1\nv_cndmask_b32 v{MD+4*i+r}, v4, v5, vcc")
    for i in range(4):
        for rp in range(2):
            k = 8*i + 2*rp
            p = 2*i + rp
            a(f"v_cmp_le_i32 vcc, {k}, v2\ns_nop 1\nv_cndmask_b32 v{MK+p}, v5, v7, vcc")
            a(f"v_cmp_le_i32 vcc, {k+1}, v2\ns_nop 1\nv_cndmask_b32 v{MK+p}, v{MK+p}, v6, vcc")
    g.stamp('attn masks')
    def maxreduce(src, dst, init=None):
        if init is None:
            a(f"v_max3_f32 v{dst}, v{src}, v{src+1}, v{src+2}")
            rest = list(range(src+3, src+16))
        else:
            rest = list(range(src, src+16))
        while len(rest) >= 2:
            a(f"v_max3_f32 v{dst}, v{dst}, v{rest[0]}, v{rest[1]}"); rest = rest[2:]
        if rest: a(f"v_max_f32 v{dst}, v{dst}, v{rest[0]}")
    def finish_max(m, b, bias):
        a(f"v_mov_b32 v8, v{m}\ns_nop 1\nv_permlane32_swap_b32 v{m}, v8\ns_nop 1\nv_max_f32 v{m}, v{m}, v8")
        if bias: a(f"v_add_f32 v{m}, {bias}, v{m}")
        a(f"v_sub_f32 v{m}, 0, v{m}")
        for r in range(16): a(f"v_mov_b32 v{CN[b]+r}, v{m}")
    a(f"{MF32} v[{S[0]}:{S[0]+15}], {Kf(8)}, v[{QF[0]}:{QF[0]+3}], v[{MD}:{MD+15}]")
    a(f"{MF32} v[{S[1]}:{S[1]+15}], {Kf(8)}, v[{QF[1]}:{QF[1]+3}], 0")
    a(f"{MF32} v[{O[0]}:{O[0]+15}], {Kf(9)}, v[{QF[1]}:{QF[1]+3}], v[{MD}:{MD+15}]")
    a("s_nop 7\ns_nop 1")
    maxreduce(S[0], 10); maxreduce(S[1], 11); maxreduce(O[0], 11, init=11)
    a("s_mov_b32 s{0}, 0x42800000".format(ST))
    finish_max(10, 0, f"s{ST}"); finish_max(11, 1, f"s{ST}")
    Lmain = a.label('attn_main'); Ldone = a.label('attn_done'); Lfb = a.label('attn_fallback'); Lok = a.label('attn_ok')
    a(f"{Lmain}:")
    items = [(0, 8, 'D'), (1, 9, 'D'), (1, 8, None)]
    pairs = [[(0,7,None),(1,7,None),(0,6,None),(1,6,None)], [(0,5,None),(1,5,None),(0,4,None),(1,4,None)],
             [(0,3,None),(1,3,None),(0,2,None),(1,2,None)], [(0,1,None),(1,1,'F'),(0,0,'F')]]
    allitems = items + [x for p in pairs for x in p]
    first_pv = {0: True, 1: True}
    def smfma(n):
        b, t, m = allitems[n]
        return f"{MF32} v[{S[n&1]}:{S[n&1]+15}], {Kf(t)}, v[{QF[b]}:{QF[b]+3}], v[{CN[b]}:{CN[b]+15}]"
    pair_start = {}
    n = len(items)
    for pi, p in enumerate(pairs):
        pair_start[n] = pi; n += len(p)
    a(smfma(0))
    a("s_nop 7\ns_nop 3")
    for n, (b, t, m) in enumerate(allitems):
        s = S[n & 1]; p = P[n & 1]
        nxt = n + 1
        for r in range(8): a(f"v_exp_f32 v{s+r}, v{s+r}")
        if nxt < len(allitems):
            if nxt in pair_start:
                pi = pair_start[nxt]
                a(f"s_waitcnt vmcnt({6*(3-pi) + 4})")
            a(smfma(nxt))
        for r in range(8, 16): a(f"v_exp_f32 v{s+r}, v{s+r}")
        for r in range(8): a(f"v_cvt_pk_bf16_f32 v{p+r}, v{s+2*r}, v{s+2*r+1}")
        if m == 'D':
            for r in range(8): a(f"v_and_b32 v{p+r}, v{MK+r}, v{p+r}")
        elif m == 'F':
            for r in range(8): a(f"v_bfi_b32 v{p+r}, v{MK+r}, 0, v{p+r}")
        a("s_nop 1")
        c = "0" if first_pv[b] else f"v[{O[b]}:{O[b]+15}]"
        first_pv[b] = False
        a(f"{MF32} v[{O[b]}:{O[b]+15}], {Vf(t,0)}, v[{p}:{p+3}], {c}")
        a(f"{MF32} v[{O[b]}:{O[b]+15}], {Vf(t,1)}, v[{p+4}:{p+7}], v[{O[b]}:{O[b]+15}]")
        if nxt in pair_start:
            pi = pair_start[nxt]
            a(f"s_cmp_le_u32 s{S_NH}, {pi}\ns_cbranch_scc1 {Ldone}")
    a(f"{Ldone}:")
    g.stamp('attn main done')
    a("s_nop 7\ns_nop 3")
    for b in range(2):
        a(f"v_mov_b32 v{10+b}, v{O[b]+8}\nv_mov_b32 v8, v{O[b]+8}\ns_nop 1\nv_permlane32_swap_b32 v{10+b}, v8")
    a(f"s_mov_b32 s{ST}, 0x71800000")
    a(f"v_cmp_gt_f32 vcc, s{ST}, v10\ns_nop 4\ns_mov_b64 s[{ST+2}:{ST+3}], vcc")
    a(f"v_cmp_gt_f32 vcc, s{ST}, v11\ns_nop 4\ns_and_b64 s[{ST+2}:{ST+3}], s[{ST+2}:{ST+3}], vcc")
    a(f"s_cmp_lg_u32 s{S_FB}, 0\ns_cbranch_scc1 {Lok}")
    a(f"s_cmp_eq_u64 s[{ST+2}:{ST+3}], -1\ns_cbranch_scc0 {Lfb}")
    a(f"{Lok}:")
    a("s_waitcnt vmcnt(0)")
    a(f"s_lshl_b32 s{ST}, s{S_XCD}, 1\ns_and_b32 s{ST+1}, s{S_WAVE}, 1\ns_add_u32 s{ST}, s{ST}, s{ST+1}\ns_lshl_b32 s{ST}, s{ST}, 6")
    a(f"s_lshl_b32 s{ST+1}, s{S_I}, 1\ns_add_u32 s{ST}, s{ST}, s{ST+1}\ns_lshr_b32 s{ST+1}, s{S_WAVE}, 1\ns_add_u32 s{ST}, s{ST}, s{ST+1}\ns_lshl_b32 s{ST}, s{ST}, 3\ns_add_u32 s{ST}, s{ST}, {WS_F3}")
    g.post_flag(ST, 2, 4)
    a("v_bfe_u32 v2, v1, 4, 1\nv_lshlrev_b32 v2, 14, v2\nv_lshrrev_b32 v3, 5, v1\nv_and_b32 v4, 15, v1\nv_lshl_add_u32 v3, v3, 4, v4\nv_lshl_add_u32 v2, v3, 4, v2")
    a(f"s_lshl_b32 s{ST}, s{S_J}, 16\ns_lshr_b32 s{ST+1}, s{S_HEAD}, 1\ns_lshl_b32 s{ST+1}, s{ST+1}, 10\ns_add_u32 s{ST}, s{ST}, s{ST+1}\ns_and_b32 s{ST+1}, s{S_HEAD}, 1\ns_lshl_b32 s{ST+1}, s{ST+1}, 9\ns_add_u32 s{ST}, s{ST}, s{ST+1}\ns_add_u32 s{ST}, s{ST}, {WS_OF}")
    for b in range(2):
        a(f"v_rcp_f32 v{10+b}, v{10+b}")
    for b in range(2):
        for r in range(8): a(f"v_mul_f32 v{O[b]+r}, v{O[b]+r}, v{10+b}")
        for p in range(4): a(f"v_cvt_pk_bf16_f32 v{16+4*b+p}, v{O[b]+2*p}, v{O[b]+2*p+1}")
        a(f"s_add_u32 s{ST+1}, s{ST}, {b*32768}")
        a(f"buffer_store_dwordx4 v[{16+4*b}:{19+4*b}], v2, {WS}, s{ST+1} offen sc1")
    g.stamp('O stored')
    with Cap(a) as cap:
        a(f"{Lfb}:")
        a(f"s_mov_b32 s{ST}, {hex(NEG)}")
        for r in range(16): a(f"v_sub_f32 v{152+r}, s{ST}, v{MD+r}")
        a(f"v_mov_b32 v10, s{ST}\nv_mov_b32 v11, s{ST}")
        Lf = a.label('fb_done')
        seq = sorted(allitems, key=lambda x: -x[1])
        for (b, t, m) in seq:
            if t < 8 and (t % 2 == 1) and b == 0:
                a(f"s_cmp_le_u32 s{S_NH}, {(7-t)//2}\ns_cbranch_scc1 {Lf}")
            c = {None: "0", 'D': f"v[{MD}:{MD+15}]", 'F': "v[152:167]"}[m]
            a(f"{MF32} v[16:31], {Kf(t)}, v[{QF[b]}:{QF[b]+3}], {c}")
            a("s_nop 7\ns_nop 3")
            maxreduce(16, 10+b, init=10+b)
            a("s_nop 7")
        a(f"{Lf}:")
        finish_max(10, 0, None); finish_max(11, 1, None)
        a(f"s_mov_b32 s{S_FB}, 1\ns_branch {Lmain}")
    g.tail_blocks.append(cap.out)

def post(g):
    a = g.a
    a(f"s_lshl_b32 s{ST}, s{S_XCD}, 1\ns_lshr_b32 s{ST+1}, s{S_I}, 4\ns_add_u32 s{ST}, s{ST}, s{ST+1}\ns_lshl_b32 s{ST}, s{ST}, 6\ns_lshl_b32 s{ST+1}, s{S_WAVE}, 4\ns_add_u32 s{ST}, s{ST}, s{ST+1}\ns_lshl_b32 s{ST}, s{ST}, 3\ns_add_u32 s{ST}, s{ST}, {WS_F3}")
    a(f"v_lshlrev_b32 v2, 3, v1\nv_add_u32 v2, s{ST}, v2")
    g.set_exec_n(16)
    g.poll_issue(2, 4)
    a("s_mov_b64 exec, -1")
    a("s_waitcnt vmcnt(1)")
    a(f"s_lshl_b32 s{ST}, s{S_J}, 5\ns_add_u32 s{ST}, s{ST}, s{S_HEAD}\ns_lshl_b32 s{ST}, s{ST}, 3\ns_add_u32 s{ST}, s{ST}, {WS_F4}")
    g.post_flag(ST, 6, 8)
    g.set_exec_n(16)
    g.poll_check(2, 4, 'f3')
    a("s_mov_b64 exec, -1")
    g.stamp('f3 seen')
    a(f"s_lshl_b32 s{ST}, s{S_XCD}, 6\ns_lshl_b32 s{ST+1}, s{S_WAVE}, 4\ns_add_u32 s{ST}, s{ST}, s{ST+1}\ns_lshl_b32 s{ST}, s{ST}, 12\ns_lshl_b32 s{ST+1}, s{S_I}, 7\ns_add_u32 s{ST}, s{ST}, s{ST+1}\ns_add_u32 s{ST}, s{ST}, {WS_ZT}")
    a(f"v_lshrrev_b32 v2, 3, v1\nv_and_b32 v3, 7, v1\nv_lshlrev_b32 v4, 12, v2\nv_lshl_add_u32 v4, v3, 4, v4\ns_add_u32 s{ST+1}, s{ST}, {8*4096}")
    a(f"buffer_load_dwordx4 v[16:19], v4, {WS}, s{ST} offen sc1")
    a(f"buffer_load_dwordx4 v[20:23], v4, {WS}, s{ST+1} offen sc1")
    a(f"s_lshl_b32 s{ST}, s{S_J}, 8\ns_add_u32 s{ST}, s{ST}, {WS_F4}\nv_lshlrev_b32 v9, 3, v1\nv_add_u32 v9, s{ST}, v9")
    a(f"s_lshl_b32 s{ST}, s{S_WAVE}, 11\ns_add_u32 s{ST}, s{ST}, {TP}\nv_lshlrev_b32 v5, 4, v1\nv_add_u32 v5, s{ST}, v5")
    a(f"v_lshrrev_b32 v2, 4, v1\nv_bfe_u32 v3, v1, 2, 2\nv_lshl_add_u32 v2, v2, 4, v3\nv_lshlrev_b32 v2, 7, v2\nv_and_b32 v3, 3, v1\nv_lshl_add_u32 v2, v3, 3, v2\ns_lshl_b32 s{ST}, s{S_WAVE}, 5\ns_add_u32 s{ST}, s{ST}, {TP}\nv_add_u32 v6, s{ST}, v2")
    a(f"s_lshl_b32 s{ST}, s{S_I}, 6\ns_lshl_b32 s{ST+1}, s{S_WAVE}, 4\ns_add_u32 s{ST}, s{ST}, s{ST+1}\ns_lshl_b32 s{ST}, s{ST}, 11\ns_lshl_b32 s{ST+1}, s{S_XCD}, 7\ns_add_u32 s{ST}, s{ST}, s{ST+1}\ns_add_u32 s{ST+4}, s{ST}, 1024")
    a(f"v_and_b32 v2, 15, v1\nv_lshrrev_b32 v3, 4, v1\nv_lshlrev_b32 v2, 11, v2\nv_lshl_add_u32 v7, v3, 5, v2")
    a("s_waitcnt vmcnt(0)")
    a("ds_write_b128 v5, v[16:19]\nds_write_b128 v5, v[20:23] offset:1024")
    g.set_exec_n(32)
    g.poll_issue(9, 10)
    a("s_mov_b64 exec, -1")
    a("s_waitcnt lgkmcnt(0)\ns_barrier")
    for n in range(4): a(f"ds_read_b64_tr_b16 v[{24+2*n}:{25+2*n}], v6 offset:{512*n}")
    for i in range(8):
        a(f"v_lshlrev_b32 v{32+2*i}, 16, v{208+i}\nv_and_b32 v{33+2*i}, 0xffff0000, v{208+i}")
    a("s_waitcnt lgkmcnt(0)")
    for i in range(8):
        a(f"v_lshlrev_b32 v{48+2*i}, 16, v{24+i}\nv_and_b32 v{49+2*i}, 0xffff0000, v{24+i}")
    for i in range(16): a(f"v_mul_f32 v{32+i}, v{32+i}, v{48+i}")
    for i in range(8): a(f"v_cvt_pk_bf16_f32 v{24+i}, v{32+2*i}, v{33+2*i}")
    a(f"buffer_store_dwordx4 v[24:27], v7, {S4(SRD_OUT)}, s{ST+4} offen")
    a(f"buffer_store_dwordx4 v[28:31], v7, {S4(SRD_OUT)}, s{ST+4} offen offset:16")
    g.stamp('post done')

def outproj(g):
    a = g.a
    g.set_exec_n(32)
    g.poll_check(9, 10, 'f4')
    a("s_mov_b64 exec, -1")
    g.stamp('f4 seen')
    a(f"s_lshl_b32 s{ST}, s{S_J}, 2\ns_add_u32 s{ST}, s{ST}, s{S_WAVE}\ns_lshl_b32 s{ST}, s{ST}, 14\ns_add_u32 s{ST}, s{ST}, {WS_OF}")
    a("v_lshlrev_b32 v2, 4, v1")
    for m in range(16):
        if m % 4 == 0 and m: a(f"s_add_u32 s{ST}, s{ST}, 4096")
        a(f"buffer_load_dwordx4 a[{128+4*m}:{131+4*m}], v2, {WS}, s{ST} offen offset:{1024*(m%4)} sc1")
    a("v_lshrrev_b32 v3, 5, v1\nv_bfe_u32 v4, v1, 4, 1\nv_bfe_u32 v5, v1, 2, 2\nv_lshlrev_b32 v6, 4, v3\nv_lshl_add_u32 v6, v4, 2, v6\nv_add_u32 v6, v6, v5\nv_lshlrev_b32 v6, 7, v6")
    a("v_and_b32 v7, 3, v1\nv_lshl_add_u32 v6, v7, 3, v6\nv_lshrrev_b32 v5, 1, v5\nv_lshl_add_u32 v5, v4, 1, v5")
    for t in range(4):
        a(f"v_xor_b32 v7, {t}, v5\nv_lshl_add_u32 v{64+t}, v7, 5, v6")
    def reads(m, st):
        o = []
        for t in range(4):
            for e in range(2):
                o.append(f"ds_read_b64_tr_b16 v[{16+16*st+4*t+2*e}:{17+16*st+4*t+2*e}], v{64+t} offset:{m*4096 + e*1024}")
        return o
    a('\n'.join(reads(0, 0)))
    for m in range(16):
        st = m & 1
        if m < 15:
            a('\n'.join(reads(m+1, st ^ 1)))
            a(f"s_waitcnt vmcnt({15-m}) lgkmcnt(8)")
        else:
            a("s_waitcnt vmcnt(0) lgkmcnt(0)")
        for t in range(4):
            c = "0" if m == 0 else f"v[{48+4*t}:{51+4*t}]"
            a(f"{MF16} v[{48+4*t}:{51+4*t}], v[{16+16*st+4*t}:{19+16*st+4*t}], a[{128+4*m}:{131+4*m}], {c}")
    a(f"s_lshl_b32 s{ST}, s{S_J}, 6\ns_lshl_b32 s{ST+1}, s{S_WAVE}, 4\ns_add_u32 s{ST}, s{ST}, s{ST+1}\ns_lshl_b32 s{ST}, s{ST}, 11\ns_lshl_b32 s{ST+1}, s{S_P}, 7\ns_add_u32 s{ST}, s{ST}, s{ST+1}")
    a("v_and_b32 v2, 15, v1\nv_lshlrev_b32 v2, 11, v2\nv_bfe_u32 v3, v1, 4, 1\nv_lshl_add_u32 v2, v3, 5, v2\nv_lshrrev_b32 v3, 5, v1\nv_lshl_add_u32 v2, v3, 4, v2")
    a("s_nop 1")
    for t in range(4):
        a(f"v_cvt_pk_bf16_f32 v{16+2*t}, v{48+4*t}, v{49+4*t}\nv_cvt_pk_bf16_f32 v{17+2*t}, v{50+4*t}, v{51+4*t}")
    a("s_nop 1")
    a("v_permlane16_swap_b32 v16, v18\nv_permlane16_swap_b32 v17, v19\nv_permlane16_swap_b32 v20, v22\nv_permlane16_swap_b32 v21, v23")
    a("s_nop 1")
    a(f"buffer_store_dwordx4 v[16:19], v2, {S4(SRD_OUT)}, s{ST} offen")
    a(f"buffer_store_dwordx4 v[20:23], v2, {S4(SRD_OUT)}, s{ST} offen offset:64")
    g.stamp('end')
```

```python
import sys, argparse, struct
from asmlib import *

NAME = "concat_heads__sliding_block__ssm_conv_h3__prompt"

WS_F1, WS_F2, WS_F3, WS_F4 = 0x0000, 0x2000, 0x4000, 0x6000
WS_KVT = 0x100000
WS_ZT  = 0x300000
WS_KV  = 0x500000
WS_OF  = 0x900000
WS_STAMP = 0xB00000
WS_SIZE = 0xB40000
TZ   = 98304
TZC  = 4160
U    = TZ + 8*TZC
UC   = 4608
TP   = U + 2*UC
LDS_BYTES = TP + 8192
EX   = 65536
S_WAVE, S_XCD, S_I, S_J, S_P = 3, 4, 5, 6, 7
SRD_X, SRD_W, SRD_K, SRD_V, SRD_Q, SRD_H, SRD_WO, SRD_OUT, SRD_WS, SRD_DBG, SRD_SH = 8,12,16,20,24,28,32,36,40,44,48
S_T = 52
S_D = 54
S_TMO = 55
PTR = 56
S_XOFF, S_WOFF, S_M0B, S_NH = 80, 81, 82, 83
ST = 84
S_FB = 94
S_HEAD = 95
S_STAMP = 96
QSCALE = 0.25 * 1.4426950408889634
def f2u(x): return struct.unpack('<I', struct.pack('<f', x))[0]
def S4(b): return f"s[{b}:{b+3}]"
WS, DBG = S4(SRD_WS), S4(SRD_DBG)
MF32 = "v_mfma_f32_32x32x16_bf16"
MF16 = "v_mfma_f32_16x16x32_bf16"
ismf = lambda i: i.startswith('v_mfma')

class Gen:
    def __init__(self, stamps=False, upto='all', opts=None):
        self.a = Asm()
        self.stamps = stamps
        self.upto = upto
        self.nstamp = 0
        self.opts = opts or {}
        self.tail_blocks = []

    def srd(self, base, ptr, size):
        self.a(f"s_mov_b32 s{base}, s{ptr}\ns_mov_b32 s{base+1}, s{ptr+1}\ns_mov_b32 s{base+2}, {size}\ns_mov_b32 s{base+3}, 0x20000")

    def stamp(self, name=''):
        if not self.stamps: return
        a = self.a
        n = self.nstamp; self.nstamp += 1
        a(f"s_memtime s[{S_STAMP}:{S_STAMP+1}]")
        a("s_waitcnt lgkmcnt(0)")
        a(f"v_mov_b32 v12, s{S_STAMP}")
        a(f"v_accvgpr_write_b32 a{224+n}, v12")

    def dump_stamps(self):
        if not self.stamps: return
        a = self.a
        a(f"s_lshl_b32 s{ST}, s2, 2\ns_add_u32 s{ST}, s{ST}, s{S_WAVE}\ns_lshl_b32 s{ST}, s{ST}, 7\ns_add_u32 s{ST}, s{ST}, {WS_STAMP}")
        a(f"v_mov_b32 v3, s{ST}")
        a("s_mov_b64 exec, 1")
        for n in range(self.nstamp):
            a(f"v_accvgpr_read_b32 v2, a{224+n}")
            a("s_nop 1")
            a(f"buffer_store_dword v2, v3, {WS}, 0 offen offset:{4*n}")
            a("s_nop 1")
        a("s_mov_b64 exec, -1")

    def set_exec_n(self, nl):
        mask = (1 << nl) - 1
        self.a(f"s_mov_b32 exec_lo, {hex(mask & 0xffffffff)}\ns_mov_b32 exec_hi, {hex(mask >> 32)}")

    def poll_issue(self, voff, vtmp):
        self.a(f"buffer_load_dwordx2 v[{vtmp}:{vtmp+1}], v{voff}, {WS}, 0 offen sc1")

    def poll_check(self, voff, vtmp, name='poll'):
        a = self.a
        L = a.label(name); Ld = a.label(name+'_done'); Lc = a.label(name+'_chk')
        a(f"s_mov_b32 s{S_TMO}, 0\ns_branch {Lc}")
        a(f"{L}:")
        self.poll_issue(voff, vtmp)
        a(f"{Lc}:")
        a("s_waitcnt vmcnt(0)")
        a(f"v_cmp_ne_u64 vcc, s[{S_T}:{S_T+1}], v[{vtmp}:{vtmp+1}]")
        a(f"s_add_u32 s{S_TMO}, s{S_TMO}, 1")
        a("s_cbranch_vccz " + Ld)
        a(f"s_cmp_lt_u32 s{S_TMO}, 0x20000")
        a(f"s_cbranch_scc1 {L}")
        a(f"{Ld}:")

    def post_flag(self, soff_sgpr, vt0, vt2):
        a = self.a
        a(f"v_mov_b32 v{vt0}, s{soff_sgpr}\nv_mov_b32 v{vt2}, s{S_T}\nv_mov_b32 v{vt2+1}, s{S_T+1}")
        a("s_mov_b64 exec, 1")
        a(f"buffer_store_dwordx2 v[{vt2}:{vt2+1}], v{vt0}, {WS}, 0 offen sc1")
        a("s_mov_b64 exec, -1")

    def dma_groups(self, s):
        buf = s % 3
        G = []
        for inst in range(2):
            G.append([f"s_add_u32 m0, s{S_M0B}, {buf*32768 + inst*1024}",
                      f"s_add_u32 s{ST+9}, s{S_XOFF}, {s*128}",
                      f"buffer_load_dwordx4 v{100+inst}, {S4(SRD_X)}, s{ST+9} offen lds"])
        for sig in range(3):
            for inst in range(2):
                G.append([f"s_add_u32 m0, s{S_M0B}, {buf*32768 + 8192 + sig*8192 + inst*1024}",
                          f"s_add_u32 s{ST+9}, s{S_WOFF}, {s*64*3072 + sig*1024 + inst*8*3072}",
                          f"buffer_load_dwordx4 v{103 if sig==1 else 102}, {S4(SRD_W)}, s{ST+9} offen lds"])
        return G

    def startup(self):
        a = self.a
        a(f"s_load_dwordx16 s[{PTR}:{PTR+15}], s[0:1], 0")
        a(f"s_load_dwordx8 s[{PTR+16}:{PTR+23}], s[0:1], 64")
        a(f"s_memrealtime s[{S_T}:{S_T+1}]")
        if self.stamps: a(f"s_memtime s[{S_STAMP+2}:{S_STAMP+3}]")
        a("s_cmp_ge_u32 s2, 256\ns_cbranch_scc1 L_end")
        a("v_and_b32 v1, 63, v0\nv_lshrrev_b32 v2, 6, v0")
        a(f"s_and_b32 s{S_XCD}, s2, 7\ns_lshr_b32 s{S_I}, s2, 3")
        a(f"v_readfirstlane_b32 s{S_WAVE}, v2")
        a(f"s_lshr_b32 s{ST}, s{S_XCD}, 1\ns_lshl_b32 s{ST}, s{ST}, 3\ns_and_b32 s{ST+1}, s{S_I}, 7\ns_add_u32 s{S_J}, s{ST}, s{ST+1}")
        a(f"s_and_b32 s{ST}, s{S_XCD}, 1\ns_lshl_b32 s{ST}, s{ST}, 2\ns_lshr_b32 s{ST+1}, s{S_I}, 3\ns_add_u32 s{S_P}, s{ST}, s{ST+1}")
        a("v_and_b32 v4, 7, v1\nv_lshrrev_b32 v5, 3, v1")
        a(f"s_lshl_b32 s{ST}, s{S_I}, 6\ns_lshl_b32 s{ST+1}, s{S_WAVE}, 4\ns_add_u32 s{ST}, s{ST}, s{ST+1}\ns_lshl_b32 s{ST}, s{ST}, 10\ns_lshl_b32 s{ST+1}, s{S_XCD}, 7\ns_add_u32 s{ST}, s{ST}, s{ST+1}")
        a(f"v_lshlrev_b32 v6, 11, v5\nv_lshl_add_u32 v6, v4, 4, v6\nv_add_u32 v6, s{ST}, v6")
        a("v_subrev_u32 v7, 3072, v6\nv_subrev_u32 v8, 2048, v6\nv_subrev_u32 v9, 1024, v6")
        a(f"s_lshl_b32 s{ST}, s{S_XCD}, 9\nv_lshlrev_b32 v10, 6, v4\nv_add_u32 v10, s{ST}, v10")
        a("v_lshrrev_b32 v2, 4, v1\nv_xor_b32 v3, v4, v2\nv_lshlrev_b32 v3, 4, v3")
        a(f"s_lshl_b32 s{ST}, s{S_WAVE}, 14\nv_lshl_add_u32 v100, v5, 10, v3\nv_add_u32 v100, s{ST}, v100")
        a("v_xor_b32 v101, 64, v100\nv_add_u32 v101, 8192, v101")
        a("v_lshrrev_b32 v3, 1, v4\nv_and_b32 v2, 1, v2\nv_lshlrev_b32 v2, 1, v2\nv_xor_b32 v3, v3, v2\nv_lshlrev_b32 v3, 5, v3")
        a("v_and_b32 v2, 1, v4\nv_lshl_add_u32 v3, v2, 4, v3\nv_mul_u32_u24 v102, 3072, v5\nv_add_u32 v102, v102, v3\nv_xor_b32 v103, 32, v102")
        a(f"s_lshl_b32 s{S_XOFF}, s{S_J}, 16")
        a(f"s_mul_i32 s{S_WOFF}, s{S_WAVE}, {16*3072}\ns_lshl_b32 s{ST}, s{S_P}, 7\ns_add_u32 s{S_WOFF}, s{S_WOFF}, s{ST}")
        a(f"s_lshl_b32 s{S_M0B}, s{S_WAVE}, 11")
        a("s_waitcnt lgkmcnt(0)")
        self.srd(SRD_K, PTR+8, 2097152); self.srd(SRD_V, PTR+10, 2097152)
        self.srd(SRD_SH, PTR+12, 4096)
        self.srd(SRD_DBG, PTR+20, 256)
        Ln = a.label('nononce')
        a(f"s_or_b32 s{ST}, s2, s{S_WAVE}\ns_cmp_lg_u32 s{ST}, 0\ns_cbranch_scc1 {Ln}")
        a(f"s_or_b32 s{S_T+1}, s{S_T+1}, 0x80000000")
        a(f"v_mov_b32 v14, s{S_T}\nv_mov_b32 v15, s{S_T+1}\nv_mov_b32 v2, 0")
        a("s_mov_b64 exec, 1")
        a(f"buffer_store_dwordx2 v[14:15], v2, {DBG}, 0 offen sc1")
        a("s_mov_b64 exec, -1")
        a(f"{Ln}:")
        K, V, SH = S4(SRD_K), S4(SRD_V), S4(SRD_SH)
        a(f"buffer_load_dwordx4 v[16:19], v7, {K}, 0 offen")
        a(f"buffer_load_dwordx4 v[20:23], v8, {K}, 0 offen")
        a(f"buffer_load_dwordx4 v[24:27], v9, {K}, 0 offen")
        a(f"buffer_load_dwordx4 v[28:31], v6, {K}, 0 offen")
        a(f"buffer_load_dwordx4 v[32:35], v6, {K}, 0 offen offset:1024")
        a(f"buffer_load_dwordx4 v[36:39], v6, {V}, 0 offen")
        a(f"buffer_load_dwordx4 v[40:43], v6, {V}, 0 offen offset:1024")
        for i in range(4):
            a(f"buffer_load_dwordx4 v[{44+4*i}:{47+4*i}], v10, {SH}, 0 offen offset:{16*i}")
        self.srd(SRD_X, PTR+0, 2097152); self.srd(SRD_W, PTR+2, 1572864)
        for g in self.dma_groups(0): a('\n'.join(g))
        if self.stamps:
            a(f"v_mov_b32 v12, s{S_STAMP+2}\nv_accvgpr_write_b32 a{224}, v12"); self.nstamp = 1
        self.stamp('issued first loads')
        self.srd(SRD_WS, PTR+22, WS_SIZE)
        self.srd(SRD_Q, PTR+6, 2097152); self.srd(SRD_WO, PTR+4, 524288); self.srd(SRD_OUT, PTR+18, 4194304)
        a(f"s_lshl_b32 s{ST}, s{S_XCD}, 7\ns_lshl_b32 s{ST+1}, s{S_I}, 2\ns_add_u32 s{ST}, s{ST}, s{ST+1}")
        a(f"s_load_dword s{S_D}, s[{PTR+16}:{PTR+17}], s{ST}")
        a(f"s_min_u32 s{S_NH}, s{S_J}, 4\ns_lshl_b32 s{S_HEAD}, s{S_P}, 2\ns_add_u32 s{S_HEAD}, s{S_HEAD}, s{S_WAVE}\ns_mov_b32 s{S_FB}, 0")
        a(f"s_lshl_b32 s{ST}, s{S_XCD}, 6\ns_lshl_b32 s{ST+1}, s{S_I}, 1\ns_add_u32 s{ST}, s{ST}, s{ST+1}\ns_lshr_b32 s{ST+1}, s{S_WAVE}, 1\ns_add_u32 s{ST}, s{ST}, s{ST+1}")
        a(f"s_lshl_b32 s{ST}, s{ST}, 12")
        a(f"s_add_u32 s{SRD_H}, s{PTR+14}, s{ST}\ns_addc_u32 s{SRD_H+1}, s{PTR+15}, 0\ns_mov_b32 s{SRD_H+2}, 4096\ns_mov_b32 s{SRD_H+3}, 0x20000")
        a(f"s_and_b32 s{ST}, s{S_WAVE}, 1\ns_lshl_b32 s{ST}, s{ST}, 11\nv_lshlrev_b32 v13, 5, v1\nv_add_u32 v13, s{ST}, v13")
        a("v_subrev_u32 v11, 32, v13\nv_subrev_u32 v152, 16, v13\nv_mov_b32 v153, 4064")
        a("v_and_b32 v2, 31, v1\nv_lshrrev_b32 v3, 5, v1\nv_bfe_u32 v4, v2, 1, 3\nv_xor_b32 v3, v3, v4\nv_lshlrev_b32 v2, 7, v2")
        for kk in range(4):
            a(f"v_xor_b32 v4, {2*kk}, v3\nv_lshl_add_u32 v{104+kk}, v4, 4, v2\nv_add_u32 v{108+kk}, 0x10000, v{104+kk}")
        a("v_bfe_u32 v2, v1, 4, 1\nv_lshrrev_b32 v3, 5, v1\nv_bfe_u32 v4, v1, 2, 2")
        a("v_lshl_add_u32 v5, v3, 3, v4\nv_lshlrev_b32 v5, 7, v5")
        a("v_and_b32 v154, 3, v1\nv_lshl_add_u32 v5, v154, 3, v5")
        a(f"v_and_b32 v154, 2, v4\nv_xor_b32 v154, s{S_WAVE}, v154")
        a("v_lshl_add_u32 v113, v154, 5, v5\nv_add_u32 v113, 24576, v113")
        a("v_xor_b32 v154, v154, v2\nv_lshl_add_u32 v112, v154, 5, v5\nv_lshl_add_u32 v112, v2, 13, v112\nv_add_u32 v112, 8192, v112")
        a("v_add_u32 v114, 0x10000, v112\nv_add_u32 v115, 0x10000, v113")
        a("v_mov_b32 v160, 0\nv_mov_b32 v161, 0\nv_mov_b32 v162, 0\nv_mov_b32 v163, 0\nv_mov_b32 v134, 0\nv_mov_b32 v135, 0")
        a(f"v_lshrrev_b32 v2, 5, v1\nv_mul_u32_u24 v2, {UC}, v2\nv_and_b32 v3, 31, v1\nv_lshl_add_u32 v2, v3, 4, v2\nv_add_u32 v2, {U+4096}, v2")
        a("ds_write_b128 v2, v[160:163]")
        a(f"v_and_b32 v4, 7, v1\nv_lshrrev_b32 v5, 3, v1\ns_lshl_b32 s{ST}, s{S_WAVE}, 3\nv_add_u32 v2, s{ST}, v5\nv_sub_u32 v2, 31, v2")
        a("v_lshrrev_b32 v3, 2, v2\nv_xor_b32 v3, v3, v4\nv_lshlrev_b32 v3, 4, v3\nv_and_b32 v2, 3, v2\nv_lshl_add_u32 v3, v2, 2, v3\nv_lshl_add_u32 v3, v4, 10, v3")
        a(f"v_add_u32 v155, {TP}, v3")
        a(f"s_lshl_b32 s{ST}, s{S_WAVE}, 1\nv_xor_b32 v156, s{ST}, v4\nv_lshlrev_b32 v156, 4, v156\nv_lshl_add_u32 v156, v5, 7, v156")
        a(f"s_lshl_b32 s{ST+1}, s{S_WAVE}, 11\ns_add_u32 s{ST+1}, s{ST+1}, {TP}\nv_add_u32 v156, s{ST+1}, v156\nv_xor_b32 v157, 16, v156")
        a(f"s_lshl_b32 s{ST}, s{S_XCD}, 6\ns_lshl_b32 s{ST+1}, s{S_WAVE}, 4\ns_add_u32 s{ST}, s{ST}, s{ST+1}\ns_lshl_b32 s{ST}, s{ST}, 12")
        a(f"s_lshl_b32 s{ST+1}, s{S_I}, 7\ns_sub_u32 s{ST}, s{ST}, s{ST+1}\ns_add_u32 s{ST}, s{ST}, {WS_KVT + 1984*2}")
        a(f"v_lshlrev_b32 v158, 12, v5\nv_lshl_add_u32 v158, v4, 4, v158\nv_add_u32 v158, s{ST}, v158\nv_add_u32 v159, {8*4096}, v158")

    def pre(self):
        a = self.a
        a("s_waitcnt vmcnt(8)")
        self.stamp('pre data')
        LO = lambda d, s: f"v_lshlrev_b32 v{d}, 16, v{s}"
        HI = lambda d, s: f"v_and_b32 v{d}, 0xffff0000, v{s}"
        main = []
        for d in range(4):
            for par in range(2):
                un = LO if par == 0 else HI
                o = 60 + 14*par
                for r in range(5): main.append(un(o+r, 16+4*r+d))
                ch = 2*d+par
                main += [LO(o+5, 44+2*ch), HI(o+6, 44+2*ch), LO(o+7, 45+2*ch), HI(o+8, 45+2*ch), un(o+9, 36+d), un(o+10, 40+d)]
                main += [f"v_mul_f32 v{o+11}, v{o+5}, v{o+3}", f"v_mul_f32 v{o+12}, v{o+5}, v{o+4}",
                         f"v_fmac_f32 v{o+11}, v{o+6}, v{o+2}", f"v_fmac_f32 v{o+12}, v{o+6}, v{o+3}",
                         f"v_fmac_f32 v{o+11}, v{o+7}, v{o+1}", f"v_fmac_f32 v{o+12}, v{o+7}, v{o+2}",
                         f"v_fmac_f32 v{o+11}, v{o+8}, v{o}", f"v_fmac_f32 v{o+12}, v{o+8}, v{o+1}",
                         f"v_mul_f32 v{o+11}, v{o+11}, v{o+9}", f"v_mul_f32 v{o+12}, v{o+12}, v{o+10}",
                         f"v_cvt_pk_bf16_f32 v{92+ch}, v{o+12}, v{o+11}"]
        H = S4(SRD_H)
        hl = [[f"buffer_load_dwordx4 v[116:119], v11, {H}, 0 offen"], [f"buffer_load_dwordx4 v[120:123], v152, {H}, 0 offen"],
              [f"buffer_load_dwordx2 v[124:125], v13, {H}, 0 offen"], [f"buffer_load_dwordx4 v[126:129], v153, {H}, 0 offen"],
              [f"buffer_load_dwordx4 v[130:133], v153, {H}, 0 offen offset:16"]]
        fill = self.dma_groups(1) + self.dma_groups(2) + hl
        a('\n'.join(interleave(main, fill, every=8)))
        for ch in range(8):
            a(f"ds_write_b32 v155, v{92+ch} offset:{ch*128}")
        self.stamp('pre computed')
        a("s_waitcnt vmcnt(21) lgkmcnt(0)\ns_barrier")
        self.stamp('stage0 landed')
        a("ds_read_b128 v[16:19], v156\nds_read_b128 v[20:23], v157 offset:1024")
        self.qkv_reads(0, 0, 0)
        a("s_waitcnt lgkmcnt(7)")
        a(f"buffer_store_dwordx4 v[16:19], v158, {WS}, 0 offen sc1")
        a("s_waitcnt lgkmcnt(6)")
        a(f"buffer_store_dwordx4 v[20:23], v159, {WS}, 0 offen sc1")
        a("v_mov_b32 v3, 0")
        a(f"buffer_load_dwordx2 v[14:15], v3, {DBG}, 0 offen sc1")

    def toep_valu(self, D, E, F, G):
        o = []
        for i in range(8): o.append(f"v_alignbit_b32 v{E+i}, v{D[i+1]}, v{D[i]}, 16")
        for i in range(8): o.append(f"v_mov_b32 v{F+i}, v{D[i+1]}")
        for i in range(8): o.append(f"v_alignbit_b32 v{G+i}, v{D[i+2]}, v{D[i+1]}, 16")
        return o
    def toep_writes(self, D, E, F, G, vaddr):
        a = self.a
        a(f"ds_write_b128 v{vaddr}, v[{D[0]}:{D[0]+3}]")
        a(f"ds_write_b128 v{vaddr}, v[{D[4]}:{D[4]+3}] offset:16")
        for r, R in ((1, E), (2, F), (3, G)):
            a(f"ds_write_b128 v{vaddr}, v[{R}:{R+3}] offset:{r*TZC}")
            a(f"ds_write_b128 v{vaddr}, v[{R+4}:{R+7}] offset:{r*TZC+16}")

    def qkv_reads(self, s, kk, st):
        a = self.a
        buf = s % 3
        b = 60 + 16*st
        if buf < 2: xa, wqk, wv, base = 104+kk, 112, 113, buf*32768
        else:       xa, wqk, wv, base = 108+kk, 114, 115, 0
        a(f"ds_read_b128 v[{b}:{b+3}], v{xa} offset:{base}")
        a(f"ds_read_b64_tr_b16 v[{b+8}:{b+9}], v{wqk} offset:{base + kk*2048}")
        a(f"ds_read_b64_tr_b16 v[{b+10}:{b+11}], v{wqk} offset:{base + kk*2048 + 512}")
        a(f"ds_read_b128 v[{b+4}:{b+7}], v{xa} offset:{base + 4096}")
        a(f"ds_read_b64_tr_b16 v[{b+12}:{b+13}], v{wv} offset:{base + kk*2048}")
        a(f"ds_read_b64_tr_b16 v[{b+14}:{b+15}], v{wv} offset:{base + kk*2048 + 512}")
    def qkv_mfma(self, st, first=False):
        b = 60 + 16*st
        c = lambda r: "0" if first else f"v[{r}:{r+15}]"
        return [f"{MF32} v[160:175], v[{b+8}:{b+11}], v[{b}:{b+3}], {c(160)}",
                f"{MF32} v[176:191], v[{b+8}:{b+11}], v[{b+4}:{b+7}], {c(176)}",
                f"{MF32} v[192:207], v[{b}:{b+3}], v[{b+12}:{b+15}], {c(192)}",
                f"{MF32} v[208:223], v[{b+4}:{b+7}], v[{b+12}:{b+15}], {c(208)}"]

    def nonce_fix(self):
        a = self.a
        Lok = a.label('nonce_ok'); Lp = a.label('nonce_poll')
        a(f"v_readfirstlane_b32 s{S_T}, v14\nv_readfirstlane_b32 s{S_T+1}, v15")
        a("s_nop 0")
        a(f"s_cmp_lg_u32 s{S_T+1}, 0\ns_cbranch_scc1 {Lok}")
        a(f"s_mov_b32 s{S_TMO}, 0")
        a(f"{Lp}:")
        a(f"v_mov_b32 v3, 0\nbuffer_load_dwordx2 v[14:15], v3, {DBG}, 0 offen sc1")
        a("s_waitcnt vmcnt(0)")
        a(f"v_readfirstlane_b32 s{S_T}, v14\nv_readfirstlane_b32 s{S_T+1}, v15")
        a(f"s_add_u32 s{S_TMO}, s{S_TMO}, 1\ns_cmp_gt_u32 s{S_TMO}, 0x20000\ns_cbranch_scc1 {Lok}")
        a(f"s_cmp_eq_u32 s{S_T+1}, 0\ns_cbranch_scc1 {Lp}")
        a(f"{Lok}:")

    def qkv(self):
        a = self.a
        DA = [116,117,118,119,120,121,122,123,124,125]; DB = [126,127,128,129,130,131,132,133,134,135]
        tzA = self.toep_valu(DA, 136, 144, 92); tzB = self.toep_valu(DB, 224, 232, 240)
        aginit = ["v_and_b32 v2, 31, v1", "v_mov_b32 v3, 0", "v_mov_b32 v4, 0x3f803f80", "v_cmp_eq_u32 vcc, 16, v2", "s_nop 1", "v_cndmask_b32 v3, v3, v4, vcc", "s_nop 0"]
        aginit += [f"v_accvgpr_write_b32 a{r}, v3" for r in range(32, 96)]
        pending_dma = []
        vfill = []
        def emit_mfma(st, first=False):
            nonlocal pending_dma, vfill
            m = self.qkv_mfma(st, first)
            for i, ins in enumerate(m):
                a(ins)
                if i % 2 == 1 and pending_dma:
                    a('\n'.join(pending_dma.pop(0)))
                for _ in range(3):
                    if vfill: a(vfill.pop(0))
        for s in range(8):
            if s == 2: vfill = list(tzA) + list(tzB)
            if s == 3: vfill = vfill + list(aginit)
            self.qkv_reads(s, 1, 1)
            a("s_waitcnt lgkmcnt(6)")
            emit_mfma(0, first=(s == 0))
            self.qkv_reads(s, 2, 0)
            a("s_waitcnt lgkmcnt(6)")
            emit_mfma(1)
            self.qkv_reads(s, 3, 1)
            a("s_waitcnt lgkmcnt(6)")
            emit_mfma(0)
            assert not pending_dma
            if s == 2:
                while vfill: a(vfill.pop(0))
                a(f"s_lshr_b32 s{ST}, s{S_WAVE}, 1\ns_mul_i32 s{ST}, s{ST}, {4*TZC}\ns_and_b32 s{ST+1}, s{S_WAVE}, 1\ns_lshl_b32 s{ST+2}, s{ST+1}, 11\ns_add_u32 s{ST+2}, s{ST+2}, s{ST}\ns_add_u32 s{ST+2}, s{ST+2}, {TZ}")
                a(f"v_lshlrev_b32 v2, 5, v1\nv_add_u32 v2, s{ST+2}, v2")
                self.toep_writes(DA, 136, 144, 92, 2)
                L = a.label('tzB')
                a(f"s_cmp_lg_u32 s{ST+1}, 0\ns_cbranch_scc1 {L}")
                a(f"s_add_u32 s{ST}, s{ST}, {TZ + 4096}\nv_mov_b32 v3, s{ST}")
                a("s_mov_b64 exec, 1")
                self.toep_writes(DB, 224, 232, 240, 3)
                a("s_mov_b64 exec, -1")
                a(f"{L}:")
            if s < 7:
                n = {0: 16, 1: 11, 2: 8, 3: 9, 4: 8, 5: 8, 6: 0}[s]
                a(f"s_waitcnt vmcnt({n}) lgkmcnt(0)")
                a("s_barrier")
                if s == 2:
                    self.nonce_fix()
                    a(f"s_lshl_b32 s{ST}, s{S_XCD}, 2\ns_add_u32 s{ST}, s{ST}, s{S_WAVE}\ns_lshl_b32 s{ST}, s{ST}, 5\ns_add_u32 s{ST}, s{ST}, s{S_I}\ns_lshl_b32 s{ST}, s{ST}, 3\ns_add_u32 s{ST}, s{ST}, {WS_F1}")
                    self.post_flag(ST, 2, 4)
                if s + 3 < 8:
                    pending_dma = self.dma_groups(s + 3)
                if s == 6:
                    a(f"s_lshl_b32 s{ST}, s{S_XCD}, 2\ns_lshr_b32 s{ST+1}, s{S_I}, 3\ns_add_u32 s{ST}, s{ST}, s{ST+1}\ns_lshl_b32 s{ST}, s{ST}, 8\ns_add_u32 s{ST}, s{ST}, {WS_F1}")
                    a(f"v_lshlrev_b32 v2, 3, v1\nv_add_u32 v2, s{ST}, v2")
                    self.set_exec_n(32)
                    self.poll_issue(2, 4)
                    a("s_mov_b64 exec, -1")
                self.qkv_reads(s+1, 0, 0)
                self.stamp(f'step{s}')
            else:
                a("s_waitcnt lgkmcnt(0)")
            emit_mfma(1)
        while vfill: a(vfill.pop(0))
        self.stamp('qkv done')

    def qkv_epilogue(self):
        a = self.a
        self.set_exec_n(32)
        self.poll_check(2, 4, 'f1')
        a("s_mov_b64 exec, -1")
        a(f"s_lshl_b32 s{ST}, s{S_XCD}, 6\ns_lshl_b32 s{ST+1}, s{S_I}, 1\ns_add_u32 s{ST}, s{ST}, s{ST+1}\ns_lshr_b32 s{ST+1}, s{S_WAVE}, 1\ns_add_u32 s{ST}, s{ST}, s{ST+1}\ns_lshl_b32 s{ST}, s{ST}, 12")
        a(f"s_and_b32 s{ST+1}, s{S_WAVE}, 1\ns_lshl_b32 s{ST+1}, s{ST+1}, 10\ns_add_u32 s{ST}, s{ST}, s{ST+1}\ns_add_u32 s{ST}, s{ST}, {WS_KVT}")
        a(f"v_lshlrev_b32 v2, 4, v1\nv_add_u32 v3, s{ST}, v2")
        a(f"buffer_load_dwordx4 v[16:19], v3, {WS}, 0 offen sc1")
        a(f"buffer_load_dwordx4 v[20:23], v3, {WS}, 0 offen offset:2048 sc1")
        self.stamp('u issued')
        a(f"s_mov_b32 s{ST+2}, {hex(f2u(QSCALE))}")
        for b in range(2):
            acc = 160 + 16*b
            for p in range(4):
                a(f"v_cvt_pk_bf16_f32 v{232+4*b+p}, v{acc+8+2*p}, v{acc+8+2*p+1}")
        for b in range(2):
            acc = 192 + 16*b
            for p in range(8):
                a(f"v_cvt_pk_bf16_f32 v{240+8*b+p}, v{acc+2*p}, v{acc+2*p+1}")
        a(f"s_lshl_b32 s{ST}, s{S_HEAD}, 6\ns_lshl_b32 s{ST+1}, s{S_J}, 1\ns_add_u32 s{ST}, s{ST}, s{ST+1}\ns_lshl_b32 s{ST}, s{ST}, 11\ns_add_u32 s{ST}, s{ST}, {WS_KV}")
        a(f"s_add_u32 s{ST+1}, s{ST}, 2048")
        a(f"buffer_store_dwordx4 v[232:235], v2, {WS}, s{ST} offen sc1")
        a(f"buffer_store_dwordx4 v[236:239], v2, {WS}, s{ST+1} offen sc1")
        a("v_lshrrev_b32 v4, 5, v1\nv_and_b32 v5, 15, v1\nv_lshl_add_u32 v4, v4, 4, v5\nv_lshlrev_b32 v4, 4, v4")
        a("s_mov_b32 exec_lo, 0xffff\ns_mov_b32 exec_hi, 0xffff")
        for b in range(2):
            for h in range(2):
                a(f"buffer_store_dwordx4 v[{240+8*b+4*h}:{243+8*b+4*h}], v4, {WS}, s{ST+b} offen offset:{1024+512*h} sc1")
        a("s_mov_b64 exec, -1")
        for b in range(2):
            acc = 160 + 16*b
            for r in range(8):
                a(f"v_mul_f32 v{acc+r}, s{ST+2}, v{acc+r}")
            for p in range(4):
                a(f"v_cvt_pk_bf16_f32 v{224+4*b+p}, v{acc+2*p}, v{acc+2*p+1}")
        a("s_mov_b32 exec_lo, 0x10000\ns_mov_b32 exec_hi, 0x10000")
        for r in range(240, 256):
            a(f"v_mov_b32 v{r}, 0x3f803f80")
        a("s_mov_b64 exec, -1")
        a(f"s_lshr_b32 s{ST}, s{S_WAVE}, 1\ns_mul_i32 s{ST}, s{ST}, {UC}\ns_and_b32 s{ST+1}, s{S_WAVE}, 1\ns_lshl_b32 s{ST+1}, s{ST+1}, 10\ns_add_u32 s{ST}, s{ST}, s{ST+1}\ns_add_u32 s{ST}, s{ST}, {U}")
        a(f"v_add_u32 v3, s{ST}, v2")
        a("s_waitcnt vmcnt(6)")
        a("ds_write_b128 v3, v[16:19]\nds_write_b128 v3, v[20:23] offset:2048")
        a("s_waitcnt lgkmcnt(0)\ns_barrier")
        self.stamp('qkv epi done')

    def conv_reads(self, st, n):
        A = 16 + 64*st; B = 48 + 64*st
        o = []
        for i in range(8):
            o.append(f"ds_read_b128 v[{B+4*i}:{B+4*i+3}], v3 offset:{512*(7-i) + 64*n}")
            o.append(f"ds_read_b64 v[{A+4*i}:{A+4*i+1}], v2 offset:{512*i + 64*n}")
            o.append(f"ds_read_b64 v[{A+4*i+2}:{A+4*i+3}], v2 offset:{512*i + 64*n + 8}")
        return o
    def conv_mfmas(self, st, first):
        A = 16 + 64*st; B = 48 + 64*st
        o = []
        for i in range(8):
            for t in range(i, 8):
                acc = 144 + 4*t
                c = "0" if (first and i == 0) else f"v[{acc}:{acc+3}]"
                o.append(f"{MF16} v[{acc}:{acc+3}], v[{A+4*i}:{A+4*i+3}], v[{B+4*(t-i)}:{B+4*(t-i)+3}], {c}")
        return o

    def conv(self):
        a = self.a
        a("v_and_b32 v4, 15, v1\nv_lshrrev_b32 v5, 4, v1\nv_add_u32 v6, 1, v4\nv_and_b32 v7, 3, v6\nv_lshrrev_b32 v6, 2, v6")
        a(f"v_mul_u32_u24 v2, {TZC}, v7\nv_lshl_add_u32 v2, v6, 3, v2\nv_lshl_add_u32 v2, v5, 4, v2")
        a(f"s_lshr_b32 s{ST}, s{S_WAVE}, 1\ns_mul_i32 s{ST+1}, s{ST}, {4*TZC}\ns_and_b32 s{ST+2}, s{S_WAVE}, 1\ns_lshl_b32 s{ST+2}, s{ST+2}, 8\ns_add_u32 s{ST+1}, s{ST+1}, s{ST+2}\ns_add_u32 s{ST+1}, s{ST+1}, {TZ}")
        a(f"v_add_u32 v2, s{ST+1}, v2")
        a(f"s_mul_i32 s{ST+1}, s{ST}, {UC}\ns_add_u32 s{ST+1}, s{ST+1}, s{ST+2}\ns_add_u32 s{ST+1}, s{ST+1}, {U+480}")
        a(f"v_lshlrev_b32 v3, 4, v5\nv_lshlrev_b32 v6, 5, v4\nv_sub_u32 v3, v3, v6\nv_add_u32 v3, s{ST+1}, v3")
        a('\n'.join(self.conv_reads(0, 0)))
        a("v_and_b32 v6, 7, v1\nv_lshrrev_b32 v7, 1, v6\nv_xor_b32 v7, v7, v5\nv_lshlrev_b32 v7, 5, v7\nv_and_b32 v6, 1, v6\nv_lshl_add_u32 v7, v6, 4, v7\nv_lshrrev_b32 v6, 3, v1\nv_lshl_add_u32 v8, v6, 10, v7")
        a(f"s_lshl_b32 s{ST+3}, s{S_WAVE}, 17\ns_lshl_b32 s{ST+4}, s{S_P}, 7\ns_add_u32 s{ST+3}, s{ST+3}, s{ST+4}\ns_lshl_b32 s{ST+4}, s{S_WAVE}, 14")
        wo = [[f"s_add_u32 m0, s{ST+4}, {n*1024}", f"s_add_u32 s{ST+9}, s{ST+3}, {n*8192}", f"buffer_load_dwordx4 v8, {S4(SRD_WO)}, s{ST+9} offen lds"] for n in range(16)]
        a("s_waitcnt lgkmcnt(0)")
        for n in range(4):
            m = self.conv_mfmas(n & 1, n == 0)
            fill = [[r] for r in self.conv_reads((n+1) & 1, n+1)] if n < 3 else []
            if n == 0:
                seq = interleave(m, fill, every=1)
                seq = interleave(seq, wo, every=2, after=ismf)
            else:
                seq = interleave(m, fill, every=1)
            a('\n'.join(seq))
            if n == 1:
                a("s_waitcnt vmcnt(16)")
                a(f"s_lshl_b32 s{ST}, s{S_HEAD}, 5\ns_add_u32 s{ST}, s{ST}, s{S_J}\ns_lshl_b32 s{ST}, s{ST}, 3\ns_add_u32 s{ST}, s{ST}, {WS_F2}")
                self.post_flag(ST, 4, 6)
            if n == 2:
                a(f"s_lshl_b32 s{ST}, s{S_HEAD}, 5\ns_add_u32 s{ST}, s{ST}, s{S_J}\ns_sub_u32 s{ST}, s{ST}, s{S_NH}\ns_lshl_b32 s{ST}, s{ST}, 3\ns_add_u32 s{ST}, s{ST}, {WS_F2}")
                a(f"v_lshlrev_b32 v9, 3, v1\nv_add_u32 v9, s{ST}, v9")
                a(f"s_lshl_b32 s{ST+1}, 1, s{S_NH}\ns_sub_u32 s{ST+1}, s{ST+1}, 1\ns_or_b32 s{ST+2}, s{ST+1}, 0")
                L = a.label('nopoll')
                a(f"s_cmp_eq_u32 s{S_NH}, 0\ns_cbranch_scc1 {L}")
                a(f"s_mov_b32 exec_lo, s{ST+1}\ns_mov_b32 exec_hi, 0")
                self.poll_issue(9, 10)
                a("s_mov_b64 exec, -1")
                a(f"{L}:")
            if n < 3: a("s_waitcnt lgkmcnt(0)")
        self.stamp('conv mfma done')
        L = a.label('nopoll2')
        a(f"s_cmp_eq_u32 s{S_NH}, 0\ns_cbranch_scc1 {L}")
        a(f"s_lshl_b32 s{ST+1}, 1, s{S_NH}\ns_sub_u32 s{ST+1}, s{ST+1}, 1\ns_mov_b32 exec_lo, s{ST+1}\ns_mov_b32 exec_hi, 0")
        self.poll_check(9, 10, 'f2')
        a("s_mov_b64 exec, -1")
        a(f"{L}:")
        self.stamp('f2 seen')
        a(f"s_lshl_b32 s{ST}, s{S_HEAD}, 6\ns_lshl_b32 s{ST+1}, s{S_J}, 1\ns_add_u32 s{ST}, s{ST}, s{ST+1}\ns_lshl_b32 s{ST}, s{ST}, 11\ns_add_u32 s{ST}, s{ST}, {WS_KV - 8*2048}")
        a("v_lshlrev_b32 v4, 4, v1\nv_lshrrev_b32 v5, 5, v1\nv_and_b32 v6, 15, v1\nv_lshl_add_u32 v5, v5, 4, v6\nv_lshlrev_b32 v5, 4, v5")
        for p in range(4):
            for tau in (7-2*p, 6-2*p):
                a(f"s_add_u32 s{ST+1}, s{ST}, {tau*2048}")
                a(f"buffer_load_dwordx4 a[{4*tau}:{4*tau+3}], v4, {WS}, s{ST+1} offen sc1")
            a("s_mov_b32 exec_lo, 0xffff\ns_mov_b32 exec_hi, 0xffff")
            for tau in (7-2*p, 6-2*p):
                a(f"s_add_u32 s{ST+1}, s{ST}, {tau*2048}")
                a(f"buffer_load_dwordx4 a[{32+8*tau}:{35+8*tau}], v5, {WS}, s{ST+1} offen offset:1024 sc1")
                a(f"buffer_load_dwordx4 a[{36+8*tau}:{39+8*tau}], v5, {WS}, s{ST+1} offen offset:1536 sc1")
            a("s_mov_b64 exec, -1")
        a(f"s_lshl_b32 s{ST}, s{S_I}, 6\ns_lshl_b32 s{ST+1}, s{S_WAVE}, 4\ns_add_u32 s{ST}, s{ST}, s{ST+1}\ns_lshl_b32 s{ST}, s{ST}, 10\ns_lshl_b32 s{ST+1}, s{S_XCD}, 7\ns_add_u32 s{ST}, s{ST}, s{ST+1}")
        a(f"v_and_b32 v4, 15, v1\nv_lshrrev_b32 v5, 4, v1\nv_lshlrev_b32 v4, 10, v4\nv_lshl_add_u32 v4, v5, 5, v4")
        a(f"buffer_load_dwordx4 v[208:211], v4, {S4(SRD_Q)}, s{ST} offen")
        a(f"buffer_load_dwordx4 v[212:215], v4, {S4(SRD_Q)}, s{ST} offen offset:16")
        Lr1 = a.label('rho1'); Lj = a.label('rhojoin')
        a(f"s_lshl_b32 s{ST}, s{S_WAVE}, 12\ns_add_u32 s{ST}, s{ST}, {EX}\nv_lshlrev_b32 v4, 4, v1\nv_add_u32 v5, s{ST}, v4")
        a(f"s_xor_b32 s{ST}, s{S_WAVE}, 1\ns_lshl_b32 s{ST}, s{ST}, 12\ns_add_u32 s{ST}, s{ST}, {EX}\nv_add_u32 v6, s{ST}, v4")
        a(f"s_and_b32 s{ST+1}, s{S_WAVE}, 1\ns_cmp_lg_u32 s{ST+1}, 0\ns_cbranch_scc1 {Lr1}")
        for t in range(4): a(f"ds_write_b128 v5, v[{160+4*t}:{163+4*t}] offset:{1024*t}")
        a(f"s_branch {Lj}\n{Lr1}:")
        for t in range(4): a(f"ds_write_b128 v5, v[{144+4*t}:{147+4*t}] offset:{1024*t}")
        a("s_waitcnt lgkmcnt(0)")
        for r in range(16): a(f"v_mov_b32 v{144+r}, v{160+r}")
        a(f"{Lj}:")
        a(f"s_lshr_b32 s{ST}, s{S_WAVE}, 1\ns_mul_i32 s{ST}, s{ST}, {UC}\ns_lshl_b32 s{ST+2}, s{ST+1}, 11\ns_sub_u32 s{ST}, s{ST}, s{ST+2}\ns_add_u32 s{ST}, s{ST}, {U + 4088 - 1536}")
        a(f"v_and_b32 v7, 15, v1\nv_lshrrev_b32 v8, 4, v1\nv_lshlrev_b32 v9, 5, v7\nv_lshl_add_u32 v9, v8, 3, v9\nv_sub_u32 v10, s{ST}, v9")
        for tl in range(4): a(f"ds_read_b64 v[{176+2*tl}:{177+2*tl}], v10 offset:{512*(3-tl)}")
        a("s_waitcnt lgkmcnt(0)\ns_barrier")
        for t in range(4): a(f"ds_read_b128 v[{16+4*t}:{19+4*t}], v6 offset:{1024*t}")
        Ld = a.label('dsel')
        a(f"s_lshl_b32 s{ST}, s{S_D}, 16\ns_and_b32 s{ST+2}, s{S_D}, 0xffff0000\ns_cmp_lt_u32 s{S_WAVE}, 2\ns_cselect_b32 s{ST}, s{ST}, s{ST+2}")
        a(f"s_lshl_b32 s{ST+1}, s{S_WAVE}, 11\ns_add_u32 s{ST+1}, s{ST+1}, {TP}\nv_add_u32 v9, s{ST+1}, v9")
        for tl in range(4):
            lo, hi = 176+2*tl, 177+2*tl
            acc = 144 + 4*tl; px = 16 + 4*tl
            a(f"v_and_b32 v32, 0xffff0000, v{hi}\nv_lshlrev_b32 v33, 16, v{hi}\nv_and_b32 v34, 0xffff0000, v{lo}\nv_lshlrev_b32 v35, 16, v{lo}")
            for r in range(4): a(f"v_fmac_f32 v{acc+r}, s{ST}, v{32+r}")
            if tl == 0: a("s_waitcnt lgkmcnt(0)")
            for r in range(4): a(f"v_add_f32 v{acc+r}, v{acc+r}, v{px+r}")
            a(f"v_cvt_pk_bf16_f32 v{36+2*tl}, v{acc}, v{acc+1}\nv_cvt_pk_bf16_f32 v{37+2*tl}, v{acc+2}, v{acc+3}")
            a(f"ds_write_b64 v9, v[{36+2*tl}:{37+2*tl}] offset:{512*tl}")
        a(f"v_add_u32 v4, s{ST+1}, v4")
        a("s_waitcnt lgkmcnt(0)")
        a("ds_read_b128 v[16:19], v4\nds_read_b128 v[20:23], v4 offset:1024")
        a(f"s_lshl_b32 s{ST}, s{S_XCD}, 6\ns_lshl_b32 s{ST+1}, s{S_I}, 1\ns_add_u32 s{ST}, s{ST}, s{ST+1}\ns_lshr_b32 s{ST+1}, s{S_WAVE}, 1\ns_add_u32 s{ST}, s{ST}, s{ST+1}\ns_lshl_b32 s{ST}, s{ST}, 12")
        a(f"s_and_b32 s{ST+1}, s{S_WAVE}, 1\ns_lshl_b32 s{ST+1}, s{ST+1}, 11\ns_add_u32 s{ST}, s{ST}, s{ST+1}\ns_add_u32 s{ST}, s{ST}, {WS_ZT}")
        a("v_lshlrev_b32 v5, 4, v1")
        a("s_waitcnt lgkmcnt(0)")
        a(f"buffer_store_dwordx4 v[16:19], v5, {WS}, s{ST} offen sc1")
        a(f"buffer_store_dwordx4 v[20:23], v5, {WS}, s{ST} offen offset:1024 sc1")
        self.stamp('conv done')

    def finish(self):
        a = self.a
        self.dump_stamps()
        a("s_waitcnt vmcnt(0)")
        a("L_end:\ns_endpgm")
        for blk in self.tail_blocks:
            a.lines += blk

    def build(self):
        a = self.a
        self.startup()
        self.pre()
        self.qkv()
        self.qkv_epilogue()
        if self.upto == 'qkv':
            a(f"s_lshl_b32 s{ST}, s2, 2\ns_add_u32 s{ST}, s{ST}, s{S_WAVE}\ns_lshl_b32 s{ST}, s{ST}, 11\ns_add_u32 s{ST}, s{ST}, {WS_OF}")
            a(f"v_lshlrev_b32 v2, 4, v1")
            a(f"buffer_store_dwordx4 v[224:227], v2, {WS}, s{ST} offen")
            a(f"buffer_store_dwordx4 v[228:231], v2, {WS}, s{ST} offen offset:1024")
        else:
            self.conv()
            if self.upto != 'conv':
                import phases2
                phases2.attention(self)
                if self.upto != 'attn':
                    phases2.post(self)
                    phases2.outproj(self)
        self.finish()
        probs = check_hazards(a.lines)
        for p in probs[:12]: print(p, file=sys.stderr)
        hdr = open('cdna_kernels/' + NAME + '.s.ref').read().split('\n')
        cm = [l for l in hdr if l.startswith(';') and '@launch' not in l and 'Override' not in l and 'grid=ceil' not in l][:13]
        head = '\n'.join(cm) + f"\n; @launch grid=(256,1,1) block=(256,1,1) lds={LDS_BYTES}\n"
        head += f'.amdgcn_target "amdgcn-amd-amdhsa--gfx950"\n.text\n.globl {NAME}_kernel\n.p2align 8\n.type {NAME}_kernel,@function\n{NAME}_kernel:\n'
        tail = f'''.section .rodata,"a"
.p2align 6
.amdhsa_kernel {NAME}_kernel
  .amdhsa_next_free_vgpr 512
  .amdhsa_next_free_sgpr 102
  .amdhsa_accum_offset 256
  .amdhsa_group_segment_fixed_size 0
  .amdhsa_kernarg_size 96
  .amdhsa_user_sgpr_count 2
  .amdhsa_user_sgpr_kernarg_segment_ptr 1
  .amdhsa_system_sgpr_workgroup_id_x 1
.end_amdhsa_kernel
'''
        return head + a.text() + tail, len(probs)

if __name__ == '__main__':
    ap = argparse.ArgumentParser()
    ap.add_argument('-o', default='cdna_kernels/' + NAME + '.s')
    ap.add_argument('--stamps', action='store_true')
    ap.add_argument('--upto', default='all')
    args = ap.parse_args()
    g = Gen(stamps=args.stamps, upto=args.upto)
    txt, np_ = g.build()
    open(args.o, 'w').write(txt)
    print('wrote', args.o, 'lines', txt.count('\n'), 'hazards', np_)
```

```python
import re

class Asm:
    def __init__(self):
        self.lines = []
        self.uid = 0
    def __call__(self, s=''):
        for l in s.split('\n'):
            l = l.strip()
            if l:
                self.lines.append(l)
    def label(self, base):
        self.uid += 1
        return f"L_{base}_{self.uid}"
    def text(self):
        out = []
        for l in self.lines:
            if l.endswith(':') or l.startswith('.') or l.startswith(';'):
                out.append(l)
            else:
                out.append('    ' + l)
        return '\n'.join(out) + '\n'

def vr(base, n=1, p='v'):
    return f"{p}{base}" if n == 1 else f"{p}[{base}:{base+n-1}]"
def ar(base, n=1):
    return vr(base, n, 'a')
def sr(base, n=1):
    return vr(base, n, 's')

_REG = re.compile(r'\b([vas])(\d+)\b|\b([vas])\[(\d+):(\d+)\]')
def regs_of(tok):
    out = set()
    for m in _REG.finditer(tok):
        if m.group(1):
            out.add((m.group(1), int(m.group(2))))
        else:
            for k in range(int(m.group(4)), int(m.group(5)) + 1):
                out.add((m.group(3), k))
    if re.search(r'\bvcc\b', tok):
        out.add(('s', 'vcc'))
    if re.search(r'\bexec\b', tok):
        out.add(('s', 'exec'))
    if re.search(r'\bm0\b', tok):
        out.add(('s', 'm0'))
    return out

TRANS = ('v_exp_f32', 'v_log_f32', 'v_rcp_f32', 'v_rsq_f32', 'v_sqrt_f32', 'v_sin_f32', 'v_cos_f32')

def parse(line):
    line = line.split(';')[0].split('//')[0].strip()
    if not line or line.endswith(':') or line.startswith('.'):
        return None
    parts = line.split(None, 1)
    op = parts[0]
    ops = [x.strip() for x in parts[1].split(',')] if len(parts) > 1 else []
    d = dict(op=op, line=line, dst=set(), src=set(), kind='other', passes=0, srcC=set(), srcAB=set())
    if op.startswith('v_mfma'):
        d['kind'] = 'mfma'
        d['passes'] = 8 if '32x32' in op else 4
        d['dst'] = regs_of(ops[0])
        d['srcAB'] = regs_of(ops[1]) | regs_of(ops[2])
        d['srcC'] = regs_of(ops[3])
        d['src'] = d['srcAB'] | d['srcC']
    elif op.startswith('v_cmp'):
        d['kind'] = 'valu'
        d['dst'] = regs_of(ops[0])
        d['src'] = set().union(*[regs_of(x) for x in ops[1:]])
        if op.startswith('v_cmpx'):
            d['dst'] |= {('s', 'exec')}
    elif op.startswith('v_readfirstlane') or op.startswith('v_readlane'):
        d['kind'] = 'valu'; d['rl'] = True
        d['dst'] = regs_of(ops[0]); d['src'] = set().union(*[regs_of(x) for x in ops[1:]])
    elif op.startswith('v_permlane'):
        d['kind'] = 'valu'; d['perm'] = True
        d['dst'] = regs_of(ops[0]) | regs_of(ops[1]); d['src'] = set(d['dst'])
    elif op.startswith('v_'):
        d['kind'] = 'valu'
        d['dst'] = regs_of(ops[0])
        d['src'] = set().union(*[regs_of(x) for x in ops[1:]]) if len(ops) > 1 else set()
        if op.startswith(('v_fmac', 'v_mac', 'v_dot2c', 'v_pk_fmac')):
            d['src'] |= d['dst']
        if op.startswith('v_cndmask') and len(ops) == 3:
            d['src'] |= {('s', 'vcc')}
        if op.startswith(('v_add_co', 'v_sub_co', 'v_addc_co', 'v_subb_co')):
            d['dst'] |= regs_of(ops[1])
        if any(op.startswith(t) for t in TRANS):
            d['trans'] = True
        if 'dpp' in op or 'row_shr' in line or 'row_shl' in line or 'quad_perm' in line:
            d['dpp'] = True
    elif op.startswith(('buffer_', 'global_', 'ds_')):
        d['kind'] = 'mem'
        isload = ('load' in op) or op.startswith('ds_read') or op.startswith('ds_bpermute')
        islds = ' lds' in line
        if op.startswith('buffer_'):
            if isload and not islds:
                d['dst'] = regs_of(ops[0]); d['src'] = set().union(*[regs_of(x) for x in ops[1:]])
            else:
                d['src'] = set().union(*[regs_of(x) for x in ops])
                if 'store' in op:
                    d['store_data'] = regs_of(ops[0])
                    d['wide'] = ('x4' in op or 'x3' in op)
                if 'atomic' in op and 'sc0' in line:
                    d['dst'] = regs_of(ops[0])
            if islds:
                d['src'] |= {('s', 'm0')}; d['ldsdma'] = True
            d['vmem'] = True
        elif op.startswith('ds_'):
            if isload:
                d['dst'] = regs_of(ops[0]); d['src'] = set().union(*[regs_of(x) for x in ops[1:]])
            else:
                d['src'] = set().union(*[regs_of(x) for x in ops])
        else:
            d['vmem'] = True
            if isload:
                d['dst'] = regs_of(ops[0]); d['src'] = set().union(*[regs_of(x) for x in ops[1:]])
            else:
                d['src'] = set().union(*[regs_of(x) for x in ops])
    elif op.startswith('s_'):
        d['kind'] = 'salu'
        if op in ('s_nop',):
            d['nop'] = int(ops[0], 0) + 1
        elif op.startswith(('s_cmp', 's_cbranch', 's_branch', 's_waitcnt', 's_barrier', 's_endpgm', 's_sleep', 's_setprio')):
            d['src'] = set().union(*[regs_of(x) for x in ops]) if ops else set()
        else:
            d['dst'] = regs_of(ops[0]) if ops else set()
            d['src'] = set().union(*[regs_of(x) for x in ops[1:]]) if len(ops) > 1 else set()
            if 'saveexec' in op:
                d['dst'] |= {('s', 'exec')}
    return d

def is_v(r):
    return r[0] in 'va'

def check_hazards(lines, verbose=True):
    ins = [p for p in (parse(l) for l in lines) if p]
    probs = []
    MF_VALU = {4: 8, 8: 12}
    MF_AB = {4: 8, 8: 12}
    MF_COVER = {4: 6, 8: 10}
    MF_WARC = {4: 3, 8: 7}
    for i, b in enumerate(ins):
        dist = 0
        for j in range(i - 1, max(-1, i - 40), -1):
            a = ins[j]
            need = 0; why = ''
            av = {r for r in a['dst'] if is_v(r)}
            asg = {r for r in a['dst'] if not is_v(r)}
            bsrcv = {r for r in b['src'] if is_v(r)}
            bdstv = {r for r in b['dst'] if is_v(r)}
            if a['kind'] == 'valu':
                if b['kind'] == 'mfma' and av & b['src']:
                    need, why = 2, 'valu->mfma'
                if b.get('perm') and av & b['src']:
                    need, why = max(need, 2), 'valu->permlane'
                if b.get('dpp') and av & b['src']:
                    need, why = max(need, 2), 'valu->dpp'
                if b.get('rl') and av & b['src']:
                    need, why = max(need, 1), 'valu->readlane'
                if a.get('trans') and b['kind'] in ('valu', 'mfma') and not b.get('trans') and av & b['src']:
                    need, why = max(need, 1), 'trans->valu'
                if asg:
                    if b.get('vmem') and asg & b['src']:
                        need, why = max(need, 5), 'valu sgpr->vmem'
                    if b['kind'] == 'valu' and asg & b['src']:
                        need, why = max(need, 2), 'valu sgpr->valu'
                    if b.get('rl') and asg & b['src']:
                        need, why = max(need, 4), 'valu sgpr->readlane'
                    if ('s', 'exec') in asg and b['kind'] == 'mfma':
                        need, why = max(need, 4), 'valu exec->mfma'
                    if b['kind'] == 'salu' and asg & b['src'] and not b['op'].startswith('s_cbranch'):
                        need, why = max(need, 1), 'valu sgpr->salu(pad)'
            if a['kind'] == 'mfma':
                p = a['passes']
                if b['kind'] == 'mfma':
                    if av & b['srcAB']:
                        need, why = MF_AB[p], 'mfma->mfma AB'
                    if av & b['srcC']:
                        if not (av == b['srcC'] and b['passes'] == p):
                            need, why = max(need, MF_COVER[p]), 'mfma->mfma C overlap'
                    if av & b['dst'] and not (av == b['srcC']):
                        if not (av == b['dst'] and av == b['srcC']):
                            need, why = max(need, MF_COVER[p]), 'mfma WAW mfma'
                elif b['kind'] in ('valu', 'mem'):
                    if av & (bsrcv | bdstv):
                        need, why = MF_VALU[p], 'mfma->valu/mem'
                    if b['kind'] == 'valu' and (a['srcC'] & bdstv):
                        need, why = max(need, MF_WARC[p]), 'mfma srcC WAR'
            if a['op'].startswith('v_dot2') and (av & (bsrcv | bdstv)):
                if b['op'] == a['op'] and not (av & (regs_of(b['line'].split(',')[1]) | regs_of(b['line'].split(',')[2]))):
                    pass
                else:
                    need, why = max(need, 3), 'dot->other'
            if a.get('store_data') and a.get('wide') and b['kind'] == 'valu' and (a['store_data'] & bdstv):
                need, why = max(need, 2), 'wide store WAR'
            if a['kind'] == 'salu' and ('s', 'm0') in a['dst'] and b.get('ldsdma'):
                need, why = max(need, 1), 'm0->ldsdma'
            if need > dist:
                probs.append(f"HAZARD {why}: need {need} have {dist}\n    A: {a['line']}\n    B: {b['line']}")
            dist += a.get('nop', 1)
            if dist >= 20:
                break
    return probs


def split_instrs(text_or_list):
    if isinstance(text_or_list, str):
        text_or_list = text_or_list.split('\n')
    return [l.strip() for l in text_or_list if l.strip()]

def interleave(main, filler_groups, every=1, after=None, start=0):
    out = []
    gi = 0
    cnt = 0
    for ins in main:
        out.append(ins)
        if after is None or after(ins):
            cnt += 1
            if cnt > start and (cnt - start) % every == 0 and gi < len(filler_groups):
                out.extend(filler_groups[gi]); gi += 1
    while gi < len(filler_groups):
        out.extend(filler_groups[gi]); gi += 1
    return out

def chunks(lst, n):
    return [lst[i:i+n] for i in range(0, len(lst), n)]

class Cap:
    def __init__(self, a): self.a = a
    def __enter__(self):
        self.saved = self.a.lines; self.a.lines = []; return self
    def __exit__(self, *e):
        self.out = self.a.lines; self.a.lines = self.saved


VMEM_RE = re.compile(r'^(buffer_|global_)')
def resolve_vmcnt(lines):
    out = []
    for i, l in enumerate(lines):
        m = re.search(r'vmcnt\(@(\w+)\)', l)
        if m:
            tag = m.group(1); n = 0; found = False
            for j in range(i - 1, -1, -1):
                x = lines[j]
                if VMEM_RE.match(x):
                    tags = re.findall(r'@(\w+)', x.split(';', 1)[1]) if ';' in x else []
                    if tag in tags:
                        found = True; break
                    if 'cond' not in tags: n += 1
            assert found, f"tag {tag} not found for line {i}: {l}"
            assert n <= 63, (tag, n)
            l = l.replace(f'vmcnt(@{tag})', f'vmcnt({n})') + f'   ; waits @{tag}'
        out.append(l)
    return out
```

```python
import sys, argparse, struct
from asmlib import *

NAME = "concat_heads__sliding_block__ssm_conv_h3__prompt"
WS_F1, WS_F2, WS_F3, WS_F5 = 0x0000, 0x2000, 0x4000, 0x8000
WS_KVT = 0x100000; WS_ZT = 0x300000; WS_KV = 0x500000; WS_OF = 0x900000
WS_STAMP = 0xB00000; WS_SIZE = 0xB40000
TZ = 98304; TZC = 4160
U = TZ + 8*TZC; UC = 4608
TP = U + 2*UC
WSH = TP + 8192
LDS_BYTES = WSH + 1024
EX = 65536
S_WAVE, S_XCD, S_I, S_J, S_P = 3, 4, 5, 6, 7
SRD_X, SRD_W, SRD_K, SRD_V, SRD_Q, SRD_H, SRD_WO, SRD_OUT, SRD_WS, SRD_DBG, SRD_SH = 8,12,16,20,24,28,32,36,40,44,48
S_T = 52; S_D = 54; S_TMO = 55
PTR = 56
S_HT = 64
S_XOFF, S_WOFF, S_M0B, S_NH = 80, 81, 82, 83
ST = 84
S_FB = 94; S_HEAD = 95
S_SEL0, S_SEL1 = 96, 97
S_M0W = 98
QSCALE = 0.25 * 1.4426950408889634
def f2u(x): return struct.unpack('<I', struct.pack('<f', x))[0]
def S4(b): return f"s[{b}:{b+3}]"
WS, DBG = S4(SRD_WS), S4(SRD_DBG)
MF32 = "v_mfma_f32_32x32x16_bf16"; MF16 = "v_mfma_f32_16x16x32_bf16"
NEG = 0xf149f2ca
A_S = [16, 32]; A_P = [48, 56]; A_CN = [64, 80]; A_O = [96, 112]; A_MD = 184; A_MK = 200; A_QF = [224, 228]
J = '\n'.join

class Gen:
    STAMP_REGS = [16, 18, 20, 22, 48, 50, 56, 58, 60, 62, 72, 74, 76, 78]
    def __init__(self, stamps=None, exp=''):
        self.a = Asm(); self.stamps = stamps or []; self.exp = exp.split(',')
        self.stamp_slots = []; self.tail_blocks = []
        self.NT = 'nt ' if 'nt' in self.exp else ''
        self.DNT = ' nt' if 'dmant' in self.exp else ''
        self.PNT = ' nt' if 'pfnt' in self.exp else ''

    def srd(self, base, ptr, size):
        return [f"s_mov_b32 s{base}, s{ptr}", f"s_mov_b32 s{base+1}, s{ptr+1}", f"s_mov_b32 s{base+2}, {size}", f"s_mov_b32 s{base+3}, 0x20000"]
    def stamp(self, name):
        if name not in self.stamps: return
        n = len(self.stamp_slots)
        if n >= len(self.STAMP_REGS): return
        r = self.STAMP_REGS[n]; self.stamp_slots.append(name)
        self.a(f"s_memtime s[{r}:{r+1}]")
    def dump_stamps(self):
        if not self.stamp_slots: return
        a = self.a
        a("s_waitcnt lgkmcnt(0)")
        a(f"s_lshl_b32 s{ST}, s2, 2\ns_add_u32 s{ST}, s{ST}, s{S_WAVE}\ns_lshl_b32 s{ST}, s{ST}, 7\ns_add_u32 s{ST}, s{ST}, {WS_STAMP}")
        a(f"v_mov_b32 v3, s{ST}\ns_mov_b64 exec, 1")
        for n, r in enumerate([100] + self.STAMP_REGS[:len(self.stamp_slots)]):
            a(f"v_mov_b32 v2, s{r}\nbuffer_store_dword v2, v3, {WS}, 0 offen offset:{4*n}\ns_nop 1")
        a("s_mov_b64 exec, -1")
    def exec_n(self, nl):
        mask = (1 << nl) - 1
        return [f"s_mov_b32 exec_lo, {hex(mask & 0xffffffff)}", f"s_mov_b32 exec_hi, {hex(mask >> 32)}"]
    def poll_ld(self, voff, vtmp, tag=''):
        return f"buffer_load_dwordx2 v[{vtmp}:{vtmp+1}], v{voff}, {WS}, 0 offen sc1" + (f" ; @{tag}" if tag else "")
    def poll_check(self, voff, vtmp, name):
        a = self.a
        L = a.label(name); Ld = a.label(name+'_done'); Lc = a.label(name+'_chk')
        a(f"s_mov_b32 s{S_TMO}, 0\ns_branch {Lc}")
        a(f"{L}:")
        a(self.poll_ld(voff, vtmp, 'cond'))
        a("s_waitcnt vmcnt(0)")
        a(f"{Lc}:")
        a(f"v_cmp_ne_u64 vcc, s[{S_T}:{S_T+1}], v[{vtmp}:{vtmp+1}]")
        a(f"s_add_u32 s{S_TMO}, s{S_TMO}, 1")
        a("s_cbranch_vccz " + Ld)
        a(f"s_cmp_lt_u32 s{S_TMO}, 0x20000")
        a(f"s_cbranch_scc1 {L}")
        a(f"{Ld}:")
    def flag_instrs(self, soff_sgpr, vt0, vt2, tag='flag'):
        return [f"v_mov_b32 v{vt0}, s{soff_sgpr}", f"v_mov_b32 v{vt2}, s{S_T}", f"v_mov_b32 v{vt2+1}, s{S_T+1}", "s_mov_b64 exec, 1",
                f"buffer_store_dwordx2 v[{vt2}:{vt2+1}], v{vt0}, {WS}, 0 offen sc1 ; @{tag}", "s_mov_b64 exec, -1"]
    def dma_groups(self, s):
        buf = s % 3
        X, W = S4(SRD_X), S4(SRD_W)
        t = f" ; @dma{s}"
        lds = "nt lds" if self.DNT else "lds"
        return [[f"s_add_u32 m0, s{S_M0B}, {buf*32768}", f"s_add_u32 s{ST+9}, s{S_XOFF}, {s*128}", f"buffer_load_dwordx4 v100, {X}, s{ST+9} offen {lds}" + t],
                [f"buffer_load_dwordx4 v101, {X}, s{ST+9} offen offset:1024 {lds}" + t],
                [f"s_add_u32 m0, s{S_M0W}, {buf*32768}", f"s_add_u32 s{ST+8}, s{S_WOFF}, {s*64*3072}", f"buffer_load_dwordx4 v102, {W}, s{ST+8} offen {lds}" + t],
                [f"buffer_load_dwordx4 v103, {W}, s{ST+8} offen offset:1024 {lds}" + t],
                [f"buffer_load_dwordx4 v102, {W}, s{ST+8} offen offset:2048 {lds}" + t, f"s_add_u32 m0, s{S_M0W}, {buf*32768 + 3072}"],
                ["s_nop 0", f"buffer_load_dwordx4 v248, {W}, s{ST+8} offen {lds}" + t] if s == 0 else [f"buffer_load_dwordx4 v248, {W}, s{ST+8} offen {lds}" + t],
                [f"buffer_load_dwordx4 v249, {W}, s{ST+8} offen offset:1024 {lds}" + t],
                [f"buffer_load_dwordx4 v248, {W}, s{ST+8} offen offset:2048 {lds}" + t]]
    def of_store_addr(self, v, t0, sreg):
        return [f"v_bfe_u32 v{v}, v1, 4, 1", f"v_lshlrev_b32 v{v}, 14, v{v}", f"v_lshrrev_b32 v{t0}, 5, v1", f"v_lshlrev_b32 v{t0}, 8, v{t0}", f"v_add_u32 v{v}, v{v}, v{t0}",
                f"v_and_b32 v{t0}, 15, v1", f"v_lshl_add_u32 v{v}, v{t0}, 4, v{v}",
                f"s_lshl_b32 s{sreg}, s{S_J}, 16", f"s_lshr_b32 s{ST+1}, s{S_HEAD}, 1", f"s_lshl_b32 s{ST+1}, s{ST+1}, 10", f"s_add_u32 s{sreg}, s{sreg}, s{ST+1}",
                f"s_and_b32 s{ST+1}, s{S_HEAD}, 1", f"s_lshl_b32 s{ST+1}, s{ST+1}, 9", f"s_add_u32 s{sreg}, s{sreg}, s{ST+1}", f"s_add_u32 s{sreg}, s{sreg}, {WS_OF}"]

    def startup(self):
        a = self.a
        a("L_entry:")
        a(f"s_load_dwordx16 s[{PTR}:{PTR+15}], s[0:1], 0")
        a(f"s_load_dwordx8 s[{PTR+16}:{PTR+23}], s[0:1], 64")
        a(f"s_memrealtime s[{S_T}:{S_T+1}]")
        if self.stamps: a("s_memtime s[100:101]")
        if 'dbgt' in self.exp: a("s_memtime s[100:101]\ns_memrealtime s[78:79]") if False else None
        if 'dbgt' in self.exp: a("s_memtime s[100:101]")
        a("s_cmp_ge_u32 s2, 256\ns_cbranch_scc1 L_end")
        a("s_getpc_b64 s[8:9]\nL_pc:")
        a("s_sub_u32 s8, s8, (L_pc - L_entry)\ns_subb_u32 s9, s9, 0\ns_mov_b32 s10, (L_codeend - L_entry)\ns_mov_b32 s11, 0x20000")
        a(f"s_lshr_b32 s{S_I}, s2, 3\ns_and_b32 s{ST}, s{S_I}, 7\ns_lshl_b32 s{ST}, s{ST}, 12\nv_lshlrev_b32 v2, 4, v0")
        a(f"buffer_load_dwordx4 v[216:219], v2, s[8:11], s{ST} offen")
        a("v_and_b32 v1, 63, v0\nv_lshrrev_b32 v2, 6, v0")
        a(f"s_and_b32 s{S_XCD}, s2, 7")
        a(f"v_readfirstlane_b32 s{S_WAVE}, v2")
        a("v_and_b32 v4, 7, v1\nv_lshrrev_b32 v5, 3, v1")
        a(f"s_lshl_b32 s{ST}, s{S_I}, 6\ns_lshl_b32 s{ST+2}, s{S_XCD}, 7\ns_lshl_b32 s{ST+1}, s{S_WAVE}, 4\ns_add_u32 s{ST}, s{ST}, s{ST+1}\ns_lshl_b32 s{ST}, s{ST}, 10\ns_add_u32 s{ST}, s{ST}, s{ST+2}")
        a(f"v_lshlrev_b32 v6, 11, v5\nv_lshl_add_u32 v6, v4, 4, v6\nv_add_u32 v6, s{ST}, v6")
        a("v_subrev_u32 v7, 3072, v6\nv_subrev_u32 v8, 2048, v6\nv_subrev_u32 v9, 1024, v6")
        a(f"s_lshr_b32 s{ST}, s{S_XCD}, 1\ns_lshl_b32 s{ST}, s{ST}, 3\ns_and_b32 s{ST+1}, s{S_I}, 7\ns_add_u32 s{S_J}, s{ST}, s{ST+1}")
        a(f"s_and_b32 s{ST}, s{S_XCD}, 1\ns_lshl_b32 s{ST}, s{ST}, 2\ns_lshr_b32 s{ST+1}, s{S_I}, 3\ns_add_u32 s{S_P}, s{ST}, s{ST+1}")
        a(f"s_lshl_b32 s{ST}, s{S_XCD}, 9\nv_lshlrev_b32 v10, 4, v1\nv_add_u32 v10, s{ST}, v10")
        a("v_lshrrev_b32 v2, 4, v1\nv_xor_b32 v3, v4, v2\nv_lshlrev_b32 v3, 4, v3")
        a(f"s_lshl_b32 s{ST}, s{S_WAVE}, 14\nv_lshl_add_u32 v100, v5, 10, v3\nv_add_u32 v100, s{ST}, v100")
        a(f"v_xor_b32 v101, 64, v100\nv_add_u32 v101, {8192-1024}, v101")
        a("v_lshrrev_b32 v3, 1, v4\nv_and_b32 v2, 1, v2\nv_lshlrev_b32 v2, 1, v2\nv_xor_b32 v3, v3, v2\nv_lshlrev_b32 v3, 5, v3")
        a("v_and_b32 v2, 1, v4\nv_lshl_add_u32 v3, v2, 4, v3\nv_mul_u32_u24 v102, 3072, v5\nv_add_u32 v102, v102, v3\nv_xor_b32 v103, 32, v102")
        a("v_add_u32 v248, 24576, v102\nv_add_u32 v249, 24576, v103")
        a(f"s_lshl_b32 s{S_XOFF}, s{S_J}, 16")
        a(f"s_mul_i32 s{S_WOFF}, s{S_WAVE}, {16*3072}\ns_lshl_b32 s{ST}, s{S_P}, 7\ns_add_u32 s{S_WOFF}, s{S_WOFF}, s{ST}")
        a(f"s_lshl_b32 s{S_M0B}, s{S_WAVE}, 11\ns_mul_i32 s{S_M0W}, s{S_WAVE}, 6144\ns_add_u32 s{S_M0W}, s{S_M0W}, 8192")
        a("s_waitcnt lgkmcnt(0)")
        a(J(self.srd(SRD_K, PTR+8, 2097152) + self.srd(SRD_V, PTR+10, 2097152)))
        Ln = a.label('nononce')
        a(f"s_or_b32 s{ST}, s2, s{S_WAVE}\ns_cmp_lg_u32 s{ST}, 0\ns_cbranch_scc1 {Ln}")
        a(J(self.srd(SRD_DBG, PTR+20, 256)))
        a(f"s_or_b32 s{S_T+1}, s{S_T+1}, 0x80000000")
        a(f"v_mov_b32 v14, s{S_T}\nv_mov_b32 v15, s{S_T+1}\nv_mov_b32 v2, 0\ns_mov_b64 exec, 1")
        a(f"buffer_store_dwordx2 v[14:15], v2, {DBG}, 0 offen sc1 ; @cond")
        a(f"s_mov_b64 exec, -1\n{Ln}:")
        K, V = S4(SRD_K), S4(SRD_V)
        for d, v, srd, off in ((28,6,K,0),(32,6,K,1024),(24,9,K,0),(20,8,K,0),(16,7,K,0),(36,6,V,0),(40,6,V,1024)):
            a(f"buffer_load_dwordx4 v[{d}:{d+3}], v{v}, {srd}, 0 offen offset:{off} {self.NT}; @kv")
        a(J(self.srd(SRD_X, PTR+0, 2097152) + self.srd(SRD_W, PTR+2, 1572864) + self.srd(SRD_SH, PTR+12, 4096)))
        a(f"s_mov_b32 m0, {WSH}\ns_mov_b32 exec_hi, 0")
        a(f"buffer_load_dwordx4 v10, {S4(SRD_SH)}, 0 offen lds ; @kv")
        a("s_mov_b32 exec_hi, -1")
        for g in self.dma_groups(0): a(J(g))
        if 'pf' in self.exp: self.xw_prefetch_addr()
        if 'pf' in self.exp: a(J(self.xw_prefetch(0)))
        if 'pf' in self.exp and 'pf2' not in self.exp: a(J(self.xw_prefetch(1)))
        self.stamp('issued')
        a(J(self.srd(SRD_WS, PTR+22, WS_SIZE) + self.srd(SRD_DBG, PTR+20, 256) + self.srd(SRD_Q, PTR+6, 2097152) + self.srd(SRD_WO, PTR+4, 524288) + self.srd(SRD_OUT, PTR+18, 4194304)))
        a(f"s_lshl_b32 s{ST}, s{S_XCD}, 7\ns_lshl_b32 s{ST+1}, s{S_I}, 2\ns_add_u32 s{ST}, s{ST}, s{ST+1}")
        a(f"s_load_dword s{S_D}, s[{PTR+16}:{PTR+17}], s{ST}")
        a(f"s_lshl_b32 s{ST}, s{S_XCD}, 6\ns_lshl_b32 s{ST+1}, s{S_I}, 1\ns_add_u32 s{ST}, s{ST}, s{ST+1}\ns_lshr_b32 s{ST+1}, s{S_WAVE}, 1\ns_add_u32 s{ST+3}, s{ST}, s{ST+1}")
        a(f"s_lshl_b32 s{ST}, s{ST+3}, 12")
        a(f"s_add_u32 s{SRD_H}, s{PTR+14}, s{ST}\ns_addc_u32 s{SRD_H+1}, s{PTR+15}, 0\ns_mov_b32 s{SRD_H+2}, 4096\ns_mov_b32 s{SRD_H+3}, 0x20000")
        a(f"s_load_dwordx8 s[{S_HT}:{S_HT+7}], s[{SRD_H}:{SRD_H+1}], 4064")
        a(f"s_min_u32 s{S_NH}, s{S_J}, 4\ns_lshl_b32 s{S_HEAD}, s{S_P}, 2\ns_add_u32 s{S_HEAD}, s{S_HEAD}, s{S_WAVE}\ns_mov_b32 s{S_FB}, 0")
        a(f"s_mov_b32 s{S_SEL0}, 0x05040100\ns_mov_b32 s{S_SEL1}, 0x07060302")
        a(f"s_and_b32 s{ST}, s{S_WAVE}, 1\ns_lshl_b32 s{ST}, s{ST}, 11\nv_lshlrev_b32 v13, 5, v1\nv_add_u32 v13, s{ST}, v13")
        a("v_subrev_u32 v11, 32, v13\nv_subrev_u32 v152, 16, v13")
        a("v_and_b32 v2, 31, v1\nv_lshrrev_b32 v3, 5, v1\nv_bfe_u32 v4, v2, 1, 3\nv_xor_b32 v3, v3, v4\nv_lshlrev_b32 v2, 7, v2")
        for kk in range(4):
            a(f"v_xor_b32 v4, {2*kk}, v3\nv_lshl_add_u32 v{104+kk}, v4, 4, v2\nv_add_u32 v{108+kk}, 0x10000, v{104+kk}")
        a("v_bfe_u32 v2, v1, 4, 1\nv_lshrrev_b32 v3, 5, v1\nv_bfe_u32 v4, v1, 2, 2")
        a("v_mul_u32_u24 v5, 3072, v3\nv_lshl_add_u32 v5, v4, 7, v5")
        a("v_and_b32 v154, 3, v1\nv_lshl_add_u32 v5, v154, 3, v5")
        a(f"v_and_b32 v154, 2, v4\nv_xor_b32 v154, s{S_WAVE}, v154")
        a(f"v_lshl_add_u32 v113, v154, 5, v5\nv_add_u32 v113, {8192+2048}, v113")
        a("v_xor_b32 v154, v154, v2\nv_lshl_add_u32 v112, v154, 5, v5\nv_lshl_add_u32 v112, v2, 10, v112\nv_add_u32 v112, 8192, v112")
        a("v_add_u32 v114, 0x10000, v112\nv_add_u32 v115, 0x10000, v113")
        a("v_mov_b32 v160, 0\nv_mov_b32 v161, 0\nv_mov_b32 v162, 0\nv_mov_b32 v163, 0")
        a(f"v_lshrrev_b32 v2, 5, v1\nv_mul_u32_u24 v2, {UC}, v2\nv_and_b32 v3, 31, v1\nv_lshl_add_u32 v2, v3, 4, v2\nv_add_u32 v2, {U+4096}, v2")
        a("ds_write_b128 v2, v[160:163]")
        a(f"v_and_b32 v4, 7, v1\nv_lshrrev_b32 v5, 3, v1\ns_lshl_b32 s{ST}, s{S_WAVE}, 3\nv_add_u32 v2, s{ST}, v5\nv_sub_u32 v2, 31, v2")
        a("v_lshrrev_b32 v3, 2, v2\nv_xor_b32 v3, v3, v4\nv_lshlrev_b32 v3, 4, v3\nv_and_b32 v2, 3, v2\nv_lshl_add_u32 v3, v2, 2, v3\nv_lshl_add_u32 v3, v4, 10, v3")
        a(f"v_add_u32 v155, {TP}, v3")
        a(f"v_lshlrev_b32 v153, 6, v4\nv_add_u32 v153, {WSH}, v153")
        a(f"s_lshl_b32 s{ST}, s{S_WAVE}, 1\nv_xor_b32 v156, s{ST}, v4\nv_lshlrev_b32 v156, 4, v156\nv_lshl_add_u32 v156, v5, 7, v156")
        a(f"s_lshl_b32 s{ST+1}, s{S_WAVE}, 11\ns_add_u32 s{ST+1}, s{ST+1}, {TP}\nv_add_u32 v156, s{ST+1}, v156\nv_xor_b32 v157, 16, v156")
        a(f"s_lshl_b32 s{ST}, s{S_XCD}, 6\ns_lshl_b32 s{ST+1}, s{S_WAVE}, 4\ns_add_u32 s{ST}, s{ST}, s{ST+1}\ns_lshl_b32 s{ST}, s{ST}, 12")
        a(f"s_lshl_b32 s{ST+1}, s{S_I}, 7\ns_sub_u32 s{ST}, s{ST}, s{ST+1}\ns_add_u32 s{ST}, s{ST}, {WS_KVT + 1984*2}")
        a(f"v_lshlrev_b32 v158, 12, v5\nv_lshl_add_u32 v158, v4, 4, v158\nv_add_u32 v158, s{ST}, v158\nv_add_u32 v159, {8*4096}, v158")
        a(f"s_lshl_b32 s{ST}, s{ST+3}, 12\ns_and_b32 s{ST+1}, s{S_WAVE}, 1\ns_lshl_b32 s{ST+1}, s{ST+1}, 10\ns_add_u32 s{ST}, s{ST}, s{ST+1}\ns_add_u32 s{ST}, s{ST}, {WS_KVT}")
        a(f"v_lshlrev_b32 v6, 4, v1\nv_add_u32 v7, s{ST}, v6")
        a(f"s_lshr_b32 s{ST}, s{S_WAVE}, 1\ns_mul_i32 s{ST+2}, s{ST}, {UC}\ns_add_u32 s{ST+2}, s{ST+2}, s{ST+1}\ns_add_u32 s{ST+2}, s{ST+2}, {U}\nv_add_u32 v8, s{ST+2}, v6")
        a(f"s_mul_i32 s{ST}, s{ST}, {4*TZC}\ns_lshl_b32 s{ST+2}, s{ST+1}, 1\ns_add_u32 s{ST+2}, s{ST+2}, s{ST}\ns_add_u32 s{ST+2}, s{ST+2}, {TZ}")
        a(f"v_lshlrev_b32 v154, 5, v1\nv_add_u32 v154, s{ST+2}, v154\ns_add_u32 s{ST}, s{ST}, {TZ + 4096}\nv_mov_b32 v12, s{ST}")
        a("v_and_b32 v2, 31, v1\nv_mov_b32 v3, 0\nv_mov_b32 v4, 0x3f803f80\nv_cmp_eq_u32 vcc, 16, v2\ns_nop 1\nv_cndmask_b32 v3, v3, v4, vcc\ns_nop 0")
        for r in range(32, 96): a(f"v_accvgpr_write_b32 a{r}, v3")
        a("v_mov_b32 v164, -1\nv_mov_b32 v165, -1\nv_mov_b32 v166, -1\nv_mov_b32 v167, -1")
        a(J(self.of_store_addr(9, 2, ST+7)))
        a("s_waitcnt lgkmcnt(0)")
        for i in range(8): a(f"v_mov_b32 v{126+i}, s{S_HT+i}")
        a("v_mov_b32 v134, 0\nv_mov_b32 v135, 0")
        DB = list(range(126, 136))
        a(J(self.toep_valu(DB, 224, 232, 240)))
        a("s_mov_b64 exec, 1"); a(J(self.toep_writes(DB, 224, 232, 240, 12))); a("s_mov_b64 exec, -1")

    def xw_prefetch_addr(self):
        a = self.a
        a(f"s_lshr_b32 s{ST}, s{S_XCD}, 1\ns_lshl_b32 s{ST}, s{ST}, 9\ns_lshl_b32 s{ST+1}, s{S_I}, 4\ns_add_u32 s{ST}, s{ST}, s{ST+1}\ns_lshl_b32 s{ST+1}, s{S_WAVE}, 2\ns_add_u32 s{ST}, s{ST}, s{ST+1}\ns_lshl_b32 s{ST}, s{ST}, 10")
        a(f"v_lshrrev_b32 v2, 3, v1\nv_lshlrev_b32 v2, 10, v2\nv_and_b32 v3, 7, v1\nv_lshl_add_u32 v2, v3, 6, v2\nv_add_u32 v250, s{ST}, v2")
        a(f"s_lshl_b32 s{ST}, s{S_I}, 3\ns_lshl_b32 s{ST+1}, s{S_WAVE}, 1\ns_add_u32 s{ST}, s{ST}, s{ST+1}\ns_mul_i32 s{ST}, s{ST}, 3072\ns_and_b32 s{ST+1}, s{S_XCD}, 1\ns_lshl_b32 s{ST+1}, s{ST+1}, 9\ns_add_u32 s{ST}, s{ST}, s{ST+1}")
        a("v_subrev_u32 v2, 24, v1\nv_ashrrev_i32 v3, 31, v2\nv_and_b32 v4, 24, v3\nv_add_u32 v2, v2, v4\nv_not_b32 v3, v3\nv_and_b32 v3, 3072, v3")
        a(f"v_lshrrev_b32 v4, 3, v2\nv_lshl_add_u32 v3, v4, 10, v3\nv_and_b32 v2, 7, v2\nv_lshl_add_u32 v3, v2, 6, v3\nv_add_u32 v251, s{ST}, v3")
    def xw_prefetch(self, ph):
        return ["s_mov_b32 exec_hi, 0", f"buffer_load_dword v252, v250, {S4(SRD_X)}, 0 offen offset:{512*ph}{self.PNT} ; @pf",
                "s_mov_b32 exec_hi, 0xffff", f"s_mov_b32 s{ST}, {256*3072*ph}", f"buffer_load_dword v253, v251, {S4(SRD_W)}, s{ST} offen{self.PNT} ; @pf", "s_mov_b32 exec_hi, -1"]

    def toep_valu(self, D, E, F, G):
        o = [f"v_alignbit_b32 v{E+i}, v{D[i+1]}, v{D[i]}, 16" for i in range(8)]
        o += [f"v_mov_b32 v{F+i}, v{D[i+1]}" for i in range(8)]
        o += [f"v_alignbit_b32 v{G+i}, v{D[i+2]}, v{D[i+1]}, 16" for i in range(8)]
        return o
    def toep_writes(self, D, E, F, G, vaddr):
        o = [f"ds_write_b128 v{vaddr}, v[{D[0]}:{D[0]+3}]", f"ds_write_b128 v{vaddr}, v[{D[4]}:{D[4]+3}] offset:16"]
        for r, R in ((1, E), (2, F), (3, G)):
            o += [f"ds_write_b128 v{vaddr}, v[{R}:{R+3}] offset:{r*TZC}", f"ds_write_b128 v{vaddr}, v[{R+4}:{R+7}] offset:{r*TZC+16}"]
        return o

    def pre(self):
        a = self.a
        a("s_waitcnt vmcnt(@kv)")
        self.stamp('predata')
        for i in range(4): a(f"ds_read_b128 v[{44+4*i}:{47+4*i}], v153 offset:{16*i}")
        main = []
        for d in range(4):
            for par in range(2):
                sel = f"s{S_SEL1 if par else S_SEL0}"; ch = 2*d + par; o = 60 + 8*(ch % 4)
                r = lambda row: 16 + 4*(row+3) + d
                un = (lambda dst, src: f"v_lshlrev_b32 v{dst}, 16, v{src}") if par == 0 else (lambda dst, src: f"v_and_b32 v{dst}, 0xffff0000, v{src}")
                main.append([f"v_perm_b32 v{o}, v{r(-1)}, v{r(0)}, {sel}", f"v_perm_b32 v{o+1}, v{r(0)}, v{r(1)}, {sel}",
                             f"v_perm_b32 v{o+2}, v{r(-3)}, v{r(-2)}, {sel}", f"v_perm_b32 v{o+3}, v{r(-2)}, v{r(-1)}, {sel}",
                             un(o+4, 36+d), un(o+5, 40+d),
                             f"v_dot2_f32_bf16 v{o+6}, v{o}, v{44+2*ch}, 0", f"v_dot2_f32_bf16 v{o+7}, v{o+1}, v{44+2*ch}, 0",
                             f"v_dot2_f32_bf16 v{o+6}, v{o+2}, v{45+2*ch}, v{o+6}", f"v_dot2_f32_bf16 v{o+7}, v{o+3}, v{45+2*ch}, v{o+7}",
                             f"v_mul_f32 v{o+6}, v{o+6}, v{o+4}", f"v_mul_f32 v{o+7}, v{o+7}, v{o+5}", f"v_cvt_pk_bf16_f32 v{92+ch}, v{o+7}, v{o+6}"])
        seq = []
        for k in range(0, 8, 2):
            A, B = main[k], main[k+1]
            seq += A[:6] + B[:6]
            if k == 0: seq.append("s_waitcnt lgkmcnt(0)")
            seq += A[6:10] + B[6:10] + A[10:12] + B[10:12] + [A[12], B[12]]
        a(J(interleave(seq, self.dma_groups(1), every=12)))
        for ch in range(8): a(f"ds_write_b32 v155, v{92+ch} offset:{ch*128}")
        self.stamp('precomp')
        a("s_waitcnt vmcnt(@dma0) lgkmcnt(0)\ns_barrier")
        self.stamp('stage0')
        a("ds_read_b128 v[16:19], v156\nds_read_b128 v[20:23], v157 offset:1024")
        self.qkv_reads(0, 0, 0)
        a(f"buffer_store_dwordx4 v[164:167], v9, {WS}, s{ST+7} offen sc1 ; @st0")
        a(f"s_add_u32 s{ST+7}, s{ST+7}, 32768")
        a("s_waitcnt lgkmcnt(7)")
        a(f"buffer_store_dwordx4 v[16:19], v158, {WS}, 0 offen sc1 ; @st0")
        a(f"buffer_store_dwordx4 v[164:167], v9, {WS}, s{ST+7} offen sc1 ; @st0")
        a("s_waitcnt lgkmcnt(6)")
        a(f"buffer_store_dwordx4 v[20:23], v159, {WS}, 0 offen sc1 ; @st0")
        a("v_mov_b32 v3, 0")
        a(f"buffer_load_dwordx2 v[14:15], v3, {DBG}, 0 offen sc1 ; @nonce")

    def qkv_reads(self, s, kk, st):
        a = self.a
        buf = s % 3; b = 60 + 16*st
        if buf < 2: xa, wqk, wv, base = 104+kk, 112, 113, buf*32768
        else:       xa, wqk, wv, base = 108+kk, 114, 115, 0
        a(f"ds_read_b128 v[{b}:{b+3}], v{xa} offset:{base}")
        a(f"ds_read_b64_tr_b16 v[{b+8}:{b+9}], v{wqk} offset:{base + kk*6144}")
        a(f"ds_read_b64_tr_b16 v[{b+10}:{b+11}], v{wqk} offset:{base + kk*6144 + 512}")
        a(f"ds_read_b128 v[{b+4}:{b+7}], v{xa} offset:{base + 4096}")
        a(f"ds_read_b64_tr_b16 v[{b+12}:{b+13}], v{wv} offset:{base + kk*6144}")
        a(f"ds_read_b64_tr_b16 v[{b+14}:{b+15}], v{wv} offset:{base + kk*6144 + 512}")
    def qkv_mfma(self, st, first=False):
        b = 60 + 16*st
        c = lambda r: "0" if first else f"v[{r}:{r+15}]"
        return [f"{MF32} v[160:175], v[{b+8}:{b+11}], v[{b}:{b+3}], {c(160)}", f"{MF32} v[176:191], v[{b+8}:{b+11}], v[{b+4}:{b+7}], {c(176)}",
                f"{MF32} v[192:207], v[{b}:{b+3}], v[{b+12}:{b+15}], {c(192)}", f"{MF32} v[208:223], v[{b+4}:{b+7}], v[{b+12}:{b+15}], {c(208)}"]
    def nonce_fix(self):
        a = self.a
        Lok = a.label('nonce_ok'); Lp = a.label('nonce_poll')
        a(f"v_readfirstlane_b32 s{S_T}, v14\nv_readfirstlane_b32 s{S_T+1}, v15\ns_nop 0")
        a(f"s_cmp_lg_u32 s{S_T+1}, 0\ns_cbranch_scc1 {Lok}\ns_mov_b32 s{S_TMO}, 0\n{Lp}:")
        a(f"v_mov_b32 v3, 0\nbuffer_load_dwordx2 v[14:15], v3, {DBG}, 0 offen sc1 ; @cond")
        a("s_waitcnt vmcnt(0)")
        a(f"v_readfirstlane_b32 s{S_T}, v14\nv_readfirstlane_b32 s{S_T+1}, v15")
        a(f"s_add_u32 s{S_TMO}, s{S_TMO}, 1\ns_cmp_gt_u32 s{S_TMO}, 0x20000\ns_cbranch_scc1 {Lok}")
        a(f"s_cmp_eq_u32 s{S_T+1}, 0\ns_cbranch_scc1 {Lp}\n{Lok}:")

    def qkv(self):
        a = self.a
        DA = list(range(116, 126)); H = S4(SRD_H)
        tzA = self.toep_valu(DA, 136, 144, 92)
        pend = self.dma_groups(2); vfill = []
        if 'pf2' in self.exp: pend = pend + [self.xw_prefetch(1)]
        def emit_mfma(st, first=False, nv=3):
            nonlocal pend, vfill
            for i, ins in enumerate(self.qkv_mfma(st, first)):
                a(ins)
                if i % 2 == 1 and pend: a(J(pend.pop(0)))
                for _ in range(nv):
                    if vfill: a(vfill.pop(0))
        for s in range(8):
            self.qkv_reads(s, 1, 1)
            if s == 7:
                a("ds_write_b128 v8, v[16:19]\nds_write_b128 v8, v[20:23] offset:2048")
                a("s_waitcnt lgkmcnt(8)")
            else: a("s_waitcnt lgkmcnt(6)")
            emit_mfma(0, first=(s == 0))
            self.qkv_reads(s, 2, 0)
            if s == 7:
                assert not vfill
                a(J(self.toep_writes(DA, 136, 144, 92, 154)))
                a("s_waitcnt lgkmcnt(14)")
            else: a("s_waitcnt lgkmcnt(6)")
            emit_mfma(1)
            self.qkv_reads(s, 3, 1)
            a("s_waitcnt lgkmcnt(6)")
            emit_mfma(0)
            if s < 7:
                while pend: a(J(pend.pop(0)))
                a(f"s_waitcnt vmcnt(@dma{s+1}) lgkmcnt(0)" if s < 6 else "s_waitcnt vmcnt(0) lgkmcnt(0)")
                a("s_barrier")
                if s == 1:
                    self.nonce_fix()
                    a(f"s_lshl_b32 s{ST}, s{S_XCD}, 2\ns_add_u32 s{ST}, s{ST}, s{S_WAVE}\ns_lshl_b32 s{ST}, s{ST}, 5\ns_add_u32 s{ST}, s{ST}, s{S_I}\ns_lshl_b32 s{ST}, s{ST}, 3\ns_add_u32 s{ST}, s{ST}, {WS_F1}")
                    a(J(self.flag_instrs(ST, 2, 4)))
                    a(f"s_lshl_b32 s{ST}, s{S_J}, 5\ns_add_u32 s{ST}, s{ST}, s{S_HEAD}\ns_lshl_b32 s{ST}, s{ST}, 3\ns_add_u32 s{ST}, s{ST}, {WS_F5}")
                    a(J(self.flag_instrs(ST, 2, 4)))
                if s + 3 < 8: pend = self.dma_groups(s + 3)
                if s == 3:
                    a(f"s_lshl_b32 s{ST}, s{S_XCD}, 2\ns_lshr_b32 s{ST+1}, s{S_I}, 3\ns_add_u32 s{ST}, s{ST}, s{ST+1}\ns_lshl_b32 s{ST}, s{ST}, 8\ns_add_u32 s{ST}, s{ST}, {WS_F1}")
                    a(f"v_lshlrev_b32 v2, 3, v1\nv_add_u32 v2, s{ST}, v2")
                    a(J(self.exec_n(32) + [self.poll_ld(2, 4, 'pf1'), "s_mov_b64 exec, -1"]))
                if s == 4:
                    a("s_waitcnt vmcnt(@pf1)")
                    a(J(self.exec_n(32)))
                    self.poll_check(2, 4, 'f1')
                    a("s_mov_b64 exec, -1")
                    pend = [[f"buffer_load_dwordx4 v[16:19], v7, {WS}, 0 offen sc1 ; @u"], [f"buffer_load_dwordx4 v[20:23], v7, {WS}, 0 offen offset:2048 sc1 ; @u"]] + pend + \
                           [[f"buffer_load_dwordx4 v[116:119], v11, {H}, 0 offen {self.NT}; @h"], [f"buffer_load_dwordx4 v[120:123], v152, {H}, 0 offen {self.NT}; @h"], [f"buffer_load_dwordx2 v[124:125], v13, {H}, 0 offen {self.NT}; @h"]]
                if s == 6: vfill = list(tzA)
                self.qkv_reads(s+1, 0, 0)
                self.stamp(f'b{s}')
            else:
                a("s_waitcnt lgkmcnt(0)\ns_barrier")
                self.stamp('b7')
                self.conv_addr()
                a(J(self.conv_reads_mixed_first()))
            emit_mfma(1)
        assert not vfill and not pend

    def conv_addr(self):
        a = self.a
        a("v_and_b32 v4, 15, v1\nv_lshrrev_b32 v5, 4, v1\nv_add_u32 v9, 1, v4\nv_and_b32 v10, 3, v9\nv_lshrrev_b32 v9, 2, v9")
        a(f"v_mul_u32_u24 v2, {TZC}, v10\nv_lshl_add_u32 v2, v9, 3, v2\nv_lshl_add_u32 v2, v5, 4, v2")
        a(f"s_lshr_b32 s{ST}, s{S_WAVE}, 1\ns_mul_i32 s{ST+1}, s{ST}, {4*TZC}\ns_and_b32 s{ST+2}, s{S_WAVE}, 1\ns_lshl_b32 s{ST+2}, s{ST+2}, 8\ns_add_u32 s{ST+1}, s{ST+1}, s{ST+2}\ns_add_u32 s{ST+1}, s{ST+1}, {TZ}")
        a(f"v_add_u32 v2, s{ST+1}, v2")
        a(f"s_mul_i32 s{ST+1}, s{ST}, {UC}\ns_add_u32 s{ST+1}, s{ST+1}, s{ST+2}\ns_add_u32 s{ST+1}, s{ST+1}, {U+480}")
        a(f"v_lshlrev_b32 v3, 4, v5\nv_lshlrev_b32 v9, 5, v4\nv_sub_u32 v3, v3, v9\nv_add_u32 v3, s{ST+1}, v3")
    def conv_reads(self, st, n):
        A = 16 + 64*st; B = 48 + 64*st; o = []
        for i in range(8):
            o.append(f"ds_read_b128 v[{B+4*i}:{B+4*i+3}], v3 offset:{512*(7-i) + 64*n}")
            o.append(f"ds_read_b64 v[{A+4*i}:{A+4*i+1}], v2 offset:{512*i + 64*n}")
            o.append(f"ds_read_b64 v[{A+4*i+2}:{A+4*i+3}], v2 offset:{512*i + 64*n + 8}")
        return o
    def conv_reads_mixed_first(self):
        o = self.conv_reads(0, 0)
        self.deferred = [x for x in o if 'v[76:79]' in x]
        return [x for x in o if 'v[76:79]' not in x]
    def conv_mfmas(self, st, first):
        A = 16 + 64*st; B = 48 + 64*st; o = []
        for i in range(8):
            for t in range(i, 8):
                acc = 144 + 4*t
                c = "0" if (first and i == 0) else f"v[{acc}:{acc+3}]"
                o.append(f"{MF16} v[{acc}:{acc+3}], v[{A+4*i}:{A+4*i+3}], v[{B+4*(t-i)}:{B+4*(t-i)+3}], {c}")
        return o
    def qkv_epilogue(self):
        a = self.a
        self.stamp('qkvdone')
        a(f"s_mov_b32 s{ST+2}, {hex(f2u(QSCALE))}")
        a(f"s_lshl_b32 s{ST}, s{S_HEAD}, 6\ns_lshl_b32 s{ST+1}, s{S_J}, 1\ns_add_u32 s{ST}, s{ST}, s{ST+1}\ns_lshl_b32 s{ST}, s{ST}, 11\ns_add_u32 s{ST}, s{ST}, {WS_KV}")
        a(f"s_add_u32 s{ST+1}, s{ST}, 2048")
        a("v_lshrrev_b32 v4, 5, v1\nv_and_b32 v5, 15, v1\nv_lshl_add_u32 v4, v4, 4, v5\nv_lshlrev_b32 v4, 4, v4\ns_nop 4")
        a(J(self.deferred))
        for b in range(2):
            acc = 160 + 16*b
            for p in range(4): a(f"v_cvt_pk_bf16_f32 v{232+4*b+p}, v{acc+8+2*p}, v{acc+8+2*p+1}")
        a(f"buffer_store_dwordx4 v[232:235], v6, {WS}, s{ST} offen sc1 ; @kvst")
        for p in range(8): a(f"v_cvt_pk_bf16_f32 v{240+p}, v{192+2*p}, v{192+2*p+1}")
        a(f"buffer_store_dwordx4 v[236:239], v6, {WS}, s{ST+1} offen sc1 ; @kvst")
        for p in range(8): a(f"v_cvt_pk_bf16_f32 v{248+p}, v{208+2*p}, v{208+2*p+1}")
        a("s_mov_b32 exec_lo, 0xffff\ns_mov_b32 exec_hi, 0xffff")
        for b in range(2):
            for h in range(2): a(f"buffer_store_dwordx4 v[{240+8*b+4*h}:{243+8*b+4*h}], v4, {WS}, s{ST+b} offen offset:{1024+512*h} sc1 ; @kvst")
        a("s_mov_b64 exec, -1")
        for b in range(2):
            acc = 160 + 16*b
            for r in range(8): a(f"v_mul_f32 v{acc+r}, s{ST+2}, v{acc+r}")
            for p in range(4): a(f"v_cvt_pk_bf16_f32 v{224+4*b+p}, v{acc+2*p}, v{acc+2*p+1}")
        a("s_mov_b32 exec_lo, 0x10000\ns_mov_b32 exec_hi, 0x10000")
        for r in range(240, 256): a(f"v_mov_b32 v{r}, 0x3f803f80")
        a("s_mov_b64 exec, -1")
    def mask_fill(self):
        o = ["v_and_b32 v176, 31, v1", "v_lshrrev_b32 v177, 5, v1", "v_lshlrev_b32 v177, 2, v177", "v_sub_u32 v176, v176, v177", f"v_mov_b32 v178, {hex(NEG)}"]
        for i in range(4):
            for r in range(4):
                k = 8*i + r
                o += [f"v_subrev_u32 v177, {k}, v176", "v_ashrrev_i32 v177, 31, v177", f"v_and_b32 v{A_MD+4*i+r}, v177, v178"]
        for p in range(8):
            k = 8*(p//2) + 2*(p % 2)
            o += [f"v_subrev_u32 v177, {k}, v176", "v_ashrrev_i32 v179, 31, v177", "v_subrev_u32 v177, 1, v177", "v_ashrrev_i32 v177, 31, v177",
                  "v_and_b32 v179, 0xffff, v179", "v_and_b32 v177, 0xffff0000, v177", "v_or_b32 v177, v177, v179", f"v_not_b32 v{A_MK+p}, v177"]
        return o
    def halo_groups(self, p):
        g = []
        for tau in (7-2*p, 6-2*p):
            g.append([f"s_add_u32 s{ST+6}, s{ST+5}, {tau*2048}", f"buffer_load_dwordx4 a[{4*tau}:{4*tau+3}], v216, {WS}, s{ST+6} offen sc1 ; @pair{p}"])
            g.append([f"s_add_u32 s{ST+6}, s{ST+5}, {tau*2048}", "s_mov_b32 exec_lo, 0xffff", "s_mov_b32 exec_hi, 0xffff",
                      f"buffer_load_dwordx4 a[{32+8*tau}:{35+8*tau}], v217, {WS}, s{ST+6} offen offset:1024 sc1 ; @pair{p}",
                      f"buffer_load_dwordx4 a[{36+8*tau}:{39+8*tau}], v217, {WS}, s{ST+6} offen offset:1536 sc1 ; @pair{p}", "s_mov_b64 exec, -1"])
        return g
    def conv(self):
        a = self.a
        a("v_lshrrev_b32 v5, 4, v1\nv_and_b32 v9, 7, v1\nv_lshrrev_b32 v10, 1, v9\nv_xor_b32 v10, v10, v5\nv_lshlrev_b32 v10, 5, v10\nv_and_b32 v9, 1, v9\nv_lshl_add_u32 v10, v9, 4, v10\nv_lshrrev_b32 v9, 3, v1\nv_lshl_add_u32 v8, v9, 10, v10")
        a(f"s_lshl_b32 s{ST+3}, s{S_WAVE}, 17\ns_lshl_b32 s{ST+4}, s{S_P}, 7\ns_add_u32 s{ST+3}, s{ST+3}, s{ST+4}\ns_lshl_b32 s{ST+4}, s{S_WAVE}, 14")
        wo = [[f"s_add_u32 m0, s{ST+4}, {n*1024}", f"s_add_u32 s{ST+9}, s{ST+3}, {n*8192}", f"buffer_load_dwordx4 v8, {S4(SRD_WO)}, s{ST+9} offen lds ; @wo"] for n in range(16)]
        f2post = [f"s_lshl_b32 s{ST}, s{S_HEAD}, 5", f"s_add_u32 s{ST}, s{ST}, s{S_J}", f"s_lshl_b32 s{ST}, s{ST}, 3", f"s_add_u32 s{ST}, s{ST}, {WS_F2}"] + self.flag_instrs(ST, 4, 6)
        masks = self.mask_fill()
        masks += [f"s_lshl_b32 s{ST+5}, s{S_HEAD}, 6", f"s_lshl_b32 s{ST+6}, s{S_J}, 1", f"s_add_u32 s{ST+5}, s{ST+5}, s{ST+6}", f"s_lshl_b32 s{ST+5}, s{ST+5}, 11", f"s_add_u32 s{ST+5}, s{ST+5}, {WS_KV - 8*2048}",
                  "v_lshlrev_b32 v216, 4, v1", "v_lshrrev_b32 v177, 5, v1", "v_and_b32 v179, 15, v1", "v_lshl_add_u32 v177, v177, 4, v179", "v_lshlrev_b32 v217, 4, v177"]
        a("s_waitcnt lgkmcnt(0)")
        self.stamp('convstart')
        nwo = 0
        for n in range(4):
            m = self.conv_mfmas(n & 1, n == 0)
            rd = self.conv_reads((n+1) & 1, n+1) if n < 3 else []
            for i, ins in enumerate(m):
                gi = 36*n + i
                a(ins)
                if rd: a(rd.pop(0))
                elif masks: a(masks.pop(0))
                if masks and i % 2 == 0: a(masks.pop(0))
                if gi % 8 == 4 and nwo < 16: a(J(wo[nwo])); nwo += 1
                if gi == 58:
                    a("s_waitcnt vmcnt(@kvst)"); a(J(f2post))
                if gi == 110:
                    a(f"s_lshl_b32 s{ST}, s{S_HEAD}, 5\ns_add_u32 s{ST}, s{ST}, s{S_J}\ns_sub_u32 s{ST}, s{ST}, s{S_NH}\ns_lshl_b32 s{ST}, s{ST}, 3\ns_add_u32 s{ST}, s{ST}, {WS_F2}")
                    a(f"v_lshlrev_b32 v9, 3, v1\nv_add_u32 v9, s{ST}, v9")
                    a(f"s_lshl_b32 s{ST+1}, 1, s{S_NH}\ns_sub_u32 s{ST+1}, s{ST+1}, 1\ns_max_u32 s{ST+1}, s{ST+1}, 1")
                    a(f"s_mov_b32 exec_lo, s{ST+1}\ns_mov_b32 exec_hi, 0"); a(self.poll_ld(9, 10, 'pf2')); a("s_mov_b64 exec, -1")
            if n < 3: a("s_waitcnt lgkmcnt(0)")
        while masks: a(masks.pop(0))
        assert nwo == 16
        self.stamp('convmfma')
        L = a.label('nopoll2')
        a("s_waitcnt vmcnt(@pf2)")
        a(f"s_cmp_eq_u32 s{S_NH}, 0\ns_cbranch_scc1 {L}")
        a(f"s_lshl_b32 s{ST+1}, 1, s{S_NH}\ns_sub_u32 s{ST+1}, s{ST+1}, 1\ns_mov_b32 exec_lo, s{ST+1}\ns_mov_b32 exec_hi, 0")
        self.poll_check(9, 10, 'f2')
        a(f"s_mov_b64 exec, -1\n{L}:")
        self.stamp('f2seen')
        with Cap(a) as cap: self.conv_epilogue()
        halo = self.halo_groups(0)
        out = []; cnt = 8; blocked = 0
        for ins in cap.out:
            if ins.startswith(';#noint'): blocked = 1; continue
            if ins.startswith(';#int'): blocked = 0; continue
            out.append(ins)
            if not blocked and not ins.endswith(':'):
                cnt += 1
                if cnt >= 6 and halo and not ins.startswith('s_cmp'): out += halo.pop(0); cnt = 0
        assert not halo
        a(J(out))
    def conv_epilogue(self):
        a = self.a
        Lr1 = a.label('rho1'); Lj = a.label('rhojoin')
        a(f"s_lshl_b32 s{ST}, s{S_WAVE}, 12\ns_add_u32 s{ST}, s{ST}, {EX}\nv_lshlrev_b32 v4, 4, v1\nv_add_u32 v5, s{ST}, v4")
        a(f"s_xor_b32 s{ST}, s{S_WAVE}, 1\ns_lshl_b32 s{ST}, s{ST}, 12\ns_add_u32 s{ST}, s{ST}, {EX}\nv_add_u32 v6, s{ST}, v4")
        a.lines.append(";#noint")
        a(f"s_and_b32 s{ST+1}, s{S_WAVE}, 1\ns_cmp_lg_u32 s{ST+1}, 0\ns_cbranch_scc1 {Lr1}")
        for t in range(4): a(f"ds_write_b128 v5, v[{160+4*t}:{163+4*t}] offset:{1024*t}")
        a(f"s_branch {Lj}\n{Lr1}:")
        for t in range(4): a(f"ds_write_b128 v5, v[{144+4*t}:{147+4*t}] offset:{1024*t}")
        a("s_waitcnt lgkmcnt(0)")
        for r in range(16): a(f"v_mov_b32 v{144+r}, v{160+r}")
        a(f"{Lj}:")
        a.lines.append(";#int")
        a(f"s_lshr_b32 s{ST}, s{S_WAVE}, 1\ns_mul_i32 s{ST}, s{ST}, {UC}\ns_lshl_b32 s{ST+2}, s{ST+1}, 11\ns_sub_u32 s{ST}, s{ST}, s{ST+2}\ns_add_u32 s{ST}, s{ST}, {U + 4088 - 1536}")
        a(f"v_and_b32 v7, 15, v1\nv_lshrrev_b32 v8, 4, v1\nv_lshlrev_b32 v9, 5, v7\nv_lshl_add_u32 v9, v8, 3, v9\nv_sub_u32 v10, s{ST}, v9")
        for tl in range(4): a(f"ds_read_b64 v[{176+2*tl}:{177+2*tl}], v10 offset:{512*(3-tl)}")
        a(f"s_lshl_b32 s{ST}, s{S_D}, 16\ns_and_b32 s{ST+2}, s{S_D}, 0xffff0000\ns_cmp_lt_u32 s{S_WAVE}, 2\ns_cselect_b32 s{ST}, s{ST}, s{ST+2}")
        a(f"s_lshl_b32 s{ST+1}, s{S_WAVE}, 11\ns_add_u32 s{ST+1}, s{ST+1}, {TP}\nv_add_u32 v9, s{ST+1}, v9")
        a("s_waitcnt lgkmcnt(0)\ns_barrier")
        for t in range(4): a(f"ds_read_b128 v[{16+4*t}:{19+4*t}], v6 offset:{1024*t}")
        for tl in range(4):
            lo, hi = 176+2*tl, 177+2*tl
            acc = 144 + 4*tl; px = 16 + 4*tl
            a(f"v_and_b32 v32, 0xffff0000, v{hi}\nv_lshlrev_b32 v33, 16, v{hi}\nv_and_b32 v34, 0xffff0000, v{lo}\nv_lshlrev_b32 v35, 16, v{lo}")
            for r in range(4): a(f"v_fmac_f32 v{acc+r}, s{ST}, v{32+r}")
            if tl == 0: a("s_waitcnt lgkmcnt(0)")
            for r in range(4): a(f"v_add_f32 v{acc+r}, v{acc+r}, v{px+r}")
            a(f"v_cvt_pk_bf16_f32 v{36+2*tl}, v{acc}, v{acc+1}\nv_cvt_pk_bf16_f32 v{37+2*tl}, v{acc+2}, v{acc+3}")
            a(f"ds_write_b64 v9, v[{36+2*tl}:{37+2*tl}] offset:{512*tl}")
        a(f"v_add_u32 v4, s{ST+1}, v4")
        a("s_waitcnt lgkmcnt(0)")
        a("ds_read_b128 v[208:211], v4\nds_read_b128 v[212:215], v4 offset:1024")
        a(f"s_lshl_b32 s{ST}, s{S_XCD}, 6\ns_lshl_b32 s{ST+1}, s{S_I}, 1\ns_add_u32 s{ST}, s{ST}, s{ST+1}\ns_lshr_b32 s{ST+1}, s{S_WAVE}, 1\ns_add_u32 s{ST}, s{ST}, s{ST+1}\ns_lshl_b32 s{ST}, s{ST}, 12")
        a(f"s_and_b32 s{ST+1}, s{S_WAVE}, 1\ns_lshl_b32 s{ST+1}, s{ST+1}, 11\ns_add_u32 s{ST+7}, s{ST}, s{ST+1}\ns_add_u32 s{ST+7}, s{ST+7}, {WS_ZT}")

    def attention(self):
        a = self.a
        S, P, CN, O, MD, MK, QF = A_S, A_P, A_CN, A_O, A_MD, A_MK, A_QF
        def Kf(t): return f"a[{4*t}:{4*t+3}]" if t < 8 else f"v[{232+4*(t-8)}:{235+4*(t-8)}]"
        def Vf(t, h): return f"a[{32+8*t+4*h}:{35+8*t+4*h}]" if t < 8 else f"v[{240+8*(t-8)+4*h}:{243+8*(t-8)+4*h}]"
        def maxreduce(src, dst, init=None):
            o = []
            if init is None: o.append(f"v_max3_f32 v{dst}, v{src}, v{src+1}, v{src+2}"); rest = list(range(src+3, src+16))
            else: rest = list(range(src, src+16))
            while len(rest) >= 2: o.append(f"v_max3_f32 v{dst}, v{dst}, v{rest[0]}, v{rest[1]}"); rest = rest[2:]
            if rest: o.append(f"v_max_f32 v{dst}, v{dst}, v{rest[0]}")
            return o
        def finish_max(m, b, bias, tmp):
            o = [f"v_mov_b32 v{tmp}, v{m}", "s_nop 1", f"v_permlane32_swap_b32 v{m}, v{tmp}", "s_nop 1", f"v_max_f32 v{m}, v{m}, v{tmp}"]
            if bias: o.append(f"v_add_f32 v{m}, {bias}, v{m}")
            o.append(f"v_sub_f32 v{m}, 0, v{m}")
            return o + [f"v_mov_b32 v{CN[b]+r}, v{m}" for r in range(16)]
        a(f"{MF32} v[{S[0]}:{S[0]+15}], {Kf(8)}, v[{QF[0]}:{QF[0]+3}], v[{MD}:{MD+15}]")
        a(f"{MF32} v[{S[1]}:{S[1]+15}], {Kf(8)}, v[{QF[1]}:{QF[1]+3}], 0")
        a(f"{MF32} v[{O[0]}:{O[0]+15}], {Kf(9)}, v[{QF[1]}:{QF[1]+3}], v[{MD}:{MD+15}]")
        a("s_waitcnt lgkmcnt(0)\nv_lshlrev_b32 v5, 4, v1")
        a(f"buffer_store_dwordx4 v[208:211], v5, {WS}, s{ST+7} offen sc1 ; @zst")
        a(f"buffer_store_dwordx4 v[212:215], v5, {WS}, s{ST+7} offen offset:1024 sc1 ; @zst")
        a(f"s_lshl_b32 s{ST}, s{S_XCD}, 1\ns_and_b32 s{ST+1}, s{S_WAVE}, 1\ns_add_u32 s{ST}, s{ST}, s{ST+1}\ns_lshl_b32 s{ST}, s{ST}, 6")
        a(f"s_lshl_b32 s{ST+1}, s{S_I}, 1\ns_add_u32 s{ST}, s{ST}, s{ST+1}\ns_lshr_b32 s{ST+1}, s{S_WAVE}, 1\ns_add_u32 s{ST}, s{ST}, s{ST+1}\ns_lshl_b32 s{ST}, s{ST}, 3\ns_add_u32 s{ST+7}, s{ST}, {WS_F3}")
        a(f"s_lshl_b32 s{ST}, s{S_XCD}, 1\ns_lshr_b32 s{ST+1}, s{S_I}, 4\ns_add_u32 s{ST}, s{ST}, s{ST+1}\ns_lshl_b32 s{ST}, s{ST}, 6\ns_lshl_b32 s{ST+1}, s{S_WAVE}, 4\ns_add_u32 s{ST}, s{ST}, s{ST+1}\ns_lshl_b32 s{ST}, s{ST}, 3\ns_add_u32 s{ST}, s{ST}, {WS_F3}")
        a(f"v_lshlrev_b32 v219, 3, v1\nv_add_u32 v218, s{ST}, v219")
        a(f"s_lshl_b32 s{ST}, s{S_J}, 8\ns_add_u32 s{ST}, s{ST}, {WS_F5}\nv_add_u32 v219, s{ST}, v219")
        a(f"s_lshl_b32 s{ST}, s{S_I}, 6\ns_lshl_b32 s{ST+1}, s{S_WAVE}, 4\ns_add_u32 s{ST}, s{ST}, s{ST+1}\ns_lshl_b32 s{ST}, s{ST}, 10\ns_lshl_b32 s{ST+1}, s{S_XCD}, 7\ns_add_u32 s{ST+8}, s{ST}, s{ST+1}")
        a("v_and_b32 v4, 15, v1\nv_lshrrev_b32 v5, 4, v1\nv_lshlrev_b32 v4, 10, v4\nv_lshl_add_u32 v220, v5, 5, v4")
        a("v_mov_b32 v152, 0\nv_mov_b32 v153, 0\nv_mov_b32 v154, 0\nv_mov_b32 v155, 0")
        a(f"s_mov_b32 s{ST}, 0x42800000")
        mx = maxreduce(S[0], 10) + maxreduce(S[1], 11) + maxreduce(O[0], 11, init=11) + finish_max(10, 0, f"s{ST}", 8) + finish_max(11, 1, f"s{ST}", 9)
        fill = self.halo_groups(1)
        out = []; cnt = 0
        for k, ins in enumerate(mx):
            out.append(ins)
            nxt = mx[k+1] if k+1 < len(mx) else ''
            if ins.startswith('v_') and not nxt.startswith(('s_nop', 'v_permlane')) and not ins.startswith('v_permlane'):
                cnt += 1
                if cnt % 10 == 0 and fill: out += fill.pop(0)
        for gset in fill: out += gset
        a(J(out))
        self.stamp('attnstart')
        Lmain = a.label('attn_main'); Ldone = a.label('attn_done'); Lfb = a.label('attn_fallback'); Lok = a.label('attn_ok'); Lj0 = a.label('attn_j0')
        a(f"{Lmain}:")
        items = [(0, 8, 'D'), (1, 9, 'D'), (1, 8, None)]
        pairs = [[(0,7,None),(1,7,None),(0,6,None),(1,6,None)], [(0,5,None),(1,5,None),(0,4,None),(1,4,None)],
                 [(0,3,None),(1,3,None),(0,2,None),(1,2,None)], [(0,1,None),(1,1,'F'),(0,0,'F')]]
        allitems = items + [x for p in pairs for x in p]
        first_pv = {0: True, 1: True}
        def smfma(n):
            b, t, m = allitems[n]
            return f"{MF32} v[{S[n&1]}:{S[n&1]+15}], {Kf(t)}, v[{QF[b]}:{QF[b]+3}], v[{CN[b]}:{CN[b]+15}]"
        pair_start = {}; n = len(items)
        for pi, p in enumerate(pairs): pair_start[n] = pi; n += len(p)
        late = {0: self.halo_groups(2)[:2], 1: self.halo_groups(2)[2:], 3: self.halo_groups(3)[:2], 4: self.halo_groups(3)[2:],
                2: [[f"buffer_load_dwordx4 v[168:171], v220, {S4(SRD_Q)}, s{ST+8} offen {self.NT}; @q"], [f"buffer_load_dwordx4 v[172:175], v220, {S4(SRD_Q)}, s{ST+8} offen offset:16 {self.NT}; @q"]],
                15: [self.exec_n(16) + [self.poll_ld(218, 152, 'pf3'), "s_mov_b64 exec, -1"], self.exec_n(32) + [self.poll_ld(219, 154, 'pf5'), "s_mov_b64 exec, -1"]]}
        a(smfma(0)); a("s_nop 7\ns_nop 3")
        pvp = []; N = len(allitems)
        for n, (b, t, m) in enumerate(allitems):
            s = S[n & 1]; p = P[n & 1]; nxt = n + 1
            lg = list(late.get(n, []))
            ex = lambda r0, r1: [a(f"v_exp_f32 v{s+r}, v{s+r}") for r in range(r0, r1)]
            ex(0, 2)
            if pvp: a(pvp[0])
            ex(2, 5)
            if pvp: a(pvp[1])
            pvp = []
            if lg: a(J(lg.pop(0)))
            ex(5, 9)
            if nxt < N:
                if nxt in pair_start:
                    pi = pair_start[nxt]
                    a(f"s_waitcnt vmcnt(@pair{pi})")
                    if pi == 1: a(J(self.flag_instrs(ST+7, 2, 4)))
                a(smfma(nxt))
            ex(9, 13)
            if lg: a(J(lg.pop(0)))
            ex(13, 16)
            for r in range(8): a(f"v_cvt_pk_bf16_f32 v{p+r}, v{s+2*r}, v{s+2*r+1}")
            if m == 'D':
                for r in range(8): a(f"v_and_b32 v{p+r}, v{MK+r}, v{p+r}")
            elif m == 'F':
                for r in range(8): a(f"v_bfi_b32 v{p+r}, v{MK+r}, 0, v{p+r}")
            c = "0" if first_pv[b] else f"v[{O[b]}:{O[b]+15}]"
            first_pv[b] = False
            pv = [f"{MF32} v[{O[b]}:{O[b]+15}], {Vf(t,0)}, v[{p}:{p+3}], {c}", f"{MF32} v[{O[b]}:{O[b]+15}], {Vf(t,1)}, v[{p+4}:{p+7}], v[{O[b]}:{O[b]+15}]"]
            if nxt in pair_start or nxt == N:
                a("s_nop 1"); a(pv[0]); a(pv[1])
                if nxt in pair_start:
                    pi = pair_start[nxt]
                    a(f"s_cmp_le_u32 s{S_NH}, {pi}\ns_cbranch_scc1 {Lj0 if pi == 0 else Ldone}")
            else: pvp = pv
        a(f"{Ldone}:")
        self.stamp('attndone')
        a("s_nop 7\ns_nop 3")
        for b in range(2): a(f"v_mov_b32 v{10+b}, v{O[b]+8}\nv_mov_b32 v8, v{O[b]+8}\ns_nop 1\nv_permlane32_swap_b32 v{10+b}, v8")
        a(f"s_mov_b32 s{ST}, 0x71800000")
        a(f"v_cmp_gt_f32 vcc, s{ST}, v10\ns_nop 4\ns_mov_b64 s[{ST+2}:{ST+3}], vcc")
        a(f"v_cmp_gt_f32 vcc, s{ST}, v11\ns_nop 4\ns_and_b64 s[{ST+2}:{ST+3}], s[{ST+2}:{ST+3}], vcc")
        a(f"s_cmp_lg_u32 s{S_FB}, 0\ns_cbranch_scc1 {Lok}")
        a(f"s_cmp_eq_u64 s[{ST+2}:{ST+3}], -1\ns_cbranch_scc0 {Lfb}\n{Lok}:")
        with Cap(a) as cap:
            a(f"{Lj0}:")
            a("s_waitcnt vmcnt(0)"); a(J(self.flag_instrs(ST+7, 2, 4))); a(f"s_branch {Ldone}")
            a(f"{Lfb}:")
            a(f"s_mov_b32 s{ST}, {hex(NEG)}")
            for r in range(16): a(f"v_sub_f32 v{128+r}, s{ST}, v{MD+r}")
            a(f"v_mov_b32 v10, s{ST}\nv_mov_b32 v11, s{ST}\ns_waitcnt vmcnt(0)")
            Lf = a.label('fb_done')
            for (b, t, m) in sorted(allitems, key=lambda x: -x[1]):
                if t < 8 and (t % 2 == 1) and b == 0: a(f"s_cmp_le_u32 s{S_NH}, {(7-t)//2}\ns_cbranch_scc1 {Lf}")
                c = {None: "0", 'D': f"v[{MD}:{MD+15}]", 'F': "v[128:143]"}[m]
                a(f"{MF32} v[16:31], {Kf(t)}, v[{QF[b]}:{QF[b]+3}], {c}\ns_nop 7\ns_nop 3")
                a(J(maxreduce(16, 10+b, init=10+b))); a("s_nop 7")
            a(f"{Lf}:")
            a(J(finish_max(10, 0, None, 8) + finish_max(11, 1, None, 9)))
            a(f"s_mov_b32 s{S_FB}, 1\ns_branch {Lmain}")
        self.tail_blocks.append(cap.out)

    def tail(self):
        a = self.a
        O = A_O
        a("s_waitcnt vmcnt(0)")
        a(J(self.exec_n(16))); self.poll_check(218, 152, 'f3'); a("s_mov_b64 exec, -1")
        a(f"s_lshl_b32 s{ST}, s{S_XCD}, 6\ns_lshl_b32 s{ST+1}, s{S_WAVE}, 4\ns_add_u32 s{ST}, s{ST}, s{ST+1}\ns_lshl_b32 s{ST}, s{ST}, 12\ns_lshl_b32 s{ST+1}, s{S_I}, 7\ns_add_u32 s{ST}, s{ST}, s{ST+1}\ns_add_u32 s{ST+5}, s{ST}, {WS_ZT}")
        a(f"v_lshrrev_b32 v6, 3, v1\nv_and_b32 v3, 7, v1\nv_lshlrev_b32 v24, 12, v6\nv_lshl_add_u32 v24, v3, 4, v24\ns_add_u32 s{ST+6}, s{ST+5}, {8*4096}")
        a(f"buffer_load_dwordx4 v[156:159], v24, {WS}, s{ST+5} offen sc1 ; @z")
        a(f"buffer_load_dwordx4 v[160:163], v24, {WS}, s{ST+6} offen sc1 ; @z")
        self.stamp('f3seen')
        a(J(self.of_store_addr(2, 3, ST)))
        for b in range(2): a(f"v_rcp_f32 v{10+b}, v{10+b}")
        for b in range(2):
            for r in range(8): a(f"v_mul_f32 v{O[b]+r}, v{O[b]+r}, v{10+b}")
            for p in range(4): a(f"v_cvt_pk_bf16_f32 v{16+4*b+p}, v{O[b]+2*p}, v{O[b]+2*p+1}")
            a(f"s_add_u32 s{ST+1}, s{ST}, {b*32768}")
            if b == 0:
                pass
            a(f"buffer_store_dwordx4 v[{16+4*b}:{19+4*b}], v2, {WS}, s{ST+1} offen sc1 ; @ost")
        self.stamp('ostored')
        a(J(self.exec_n(32))); self.poll_check(219, 154, 'f5'); a("s_mov_b64 exec, -1")
        a(f"s_lshl_b32 s{ST}, s{S_WAVE}, 11\ns_add_u32 s{ST}, s{ST}, {TP}\nv_lshlrev_b32 v25, 4, v1\nv_add_u32 v25, s{ST}, v25")
        a(f"v_lshrrev_b32 v6, 4, v1\nv_bfe_u32 v3, v1, 2, 2\nv_lshl_add_u32 v6, v6, 4, v3\nv_lshlrev_b32 v6, 7, v6\nv_and_b32 v3, 3, v1\nv_lshl_add_u32 v6, v3, 3, v6\ns_lshl_b32 s{ST}, s{S_WAVE}, 5\ns_add_u32 s{ST}, s{ST}, {TP}\nv_add_u32 v26, s{ST}, v6")
        a(f"s_lshl_b32 s{ST}, s{S_I}, 6\ns_lshl_b32 s{ST+1}, s{S_WAVE}, 4\ns_add_u32 s{ST}, s{ST}, s{ST+1}\ns_lshl_b32 s{ST}, s{ST}, 11\ns_lshl_b32 s{ST+1}, s{S_XCD}, 7\ns_add_u32 s{ST}, s{ST}, s{ST+1}\ns_add_u32 s{ST+4}, s{ST}, 1024")
        a(f"v_and_b32 v6, 15, v1\nv_lshrrev_b32 v3, 4, v1\nv_lshlrev_b32 v6, 11, v6\nv_lshl_add_u32 v27, v3, 5, v6")
        for i in range(8): a(f"v_lshlrev_b32 v{32+2*i}, 16, v{168+i}\nv_and_b32 v{33+2*i}, 0xffff0000, v{168+i}")
        a("v_lshrrev_b32 v3, 5, v1\nv_bfe_u32 v4, v1, 4, 1\nv_bfe_u32 v5, v1, 2, 2\nv_lshlrev_b32 v6, 4, v3\nv_lshl_add_u32 v6, v4, 2, v6\nv_add_u32 v6, v6, v5\nv_lshlrev_b32 v6, 7, v6")
        a("v_and_b32 v7, 3, v1\nv_lshl_add_u32 v6, v7, 3, v6\nv_lshrrev_b32 v5, 1, v5\nv_lshl_add_u32 v5, v4, 1, v5")
        for t in range(4): a(f"v_xor_b32 v7, {t}, v5\nv_lshl_add_u32 v{84+t}, v7, 5, v6")
        a(f"s_lshl_b32 s{ST+5}, s{S_J}, 2\ns_add_u32 s{ST+5}, s{ST+5}, s{S_WAVE}\ns_lshl_b32 s{ST+5}, s{ST+5}, 14\ns_add_u32 s{ST+5}, s{ST+5}, {WS_OF}\nv_lshlrev_b32 v2, 4, v1")
        a("s_waitcnt vmcnt(@z)")
        a("ds_write_b128 v25, v[156:159]\nds_write_b128 v25, v[160:163] offset:1024")
        a("s_waitcnt lgkmcnt(0)\ns_barrier")
        self.stamp('zlds')
        for n in range(4): a(f"ds_read_b64_tr_b16 v[{48+2*n}:{49+2*n}], v26 offset:{512*n}")
        OF = 96
        def ofld(m, tag=True):
            return [f"s_add_u32 s{ST+6}, s{ST+5}, {(m//4)*4096}", f"buffer_load_dwordx4 v[{OF+4*m}:{OF+4*m+3}], v2, {WS}, s{ST+6} offen offset:{1024*(m%4)} sc1" + (f" ; @of{m}" if tag else " ; @cond")]
        a("s_waitcnt lgkmcnt(0)")
        comp = []
        for i in range(8): comp += [f"v_lshlrev_b32 v{64+2*i}, 16, v{48+i}", f"v_and_b32 v{65+2*i}, 0xffff0000, v{48+i}"]
        comp += [f"v_mul_f32 v{32+i}, v{32+i}, v{64+i}" for i in range(16)]
        comp += [f"v_cvt_pk_bf16_f32 v{16+i}, v{32+2*i}, v{33+2*i}" for i in range(8)]
        a(J(interleave(comp, [ofld(m) for m in range(16)], every=3)))
        a(f"buffer_store_dwordx4 v[16:19], v27, {S4(SRD_OUT)}, s{ST+4} offen ; @bst")
        a(f"buffer_store_dwordx4 v[20:23], v27, {S4(SRD_OUT)}, s{ST+4} offen offset:16 ; @bst")
        self.stamp('ofissued')
        def reads(m, st): return [f"ds_read_b64_tr_b16 v[{24+16*st+4*t+2*e}:{25+16*st+4*t+2*e}], v{84+t} offset:{m*4096 + e*1024}" for t in range(4) for e in range(2)]
        a(J(reads(0, 0)))
        a(f"s_mov_b32 s{S_TMO}, 0")
        for m in range(16):
            st = m & 1; r = OF + 4*m
            Lc = a.label(f'ofchk{m}'); Lr = a.label(f'ofretry{m}')
            a(f"s_waitcnt vmcnt(@of{m})")
            a(f"{Lc}:")
            a(f"v_max3_u32 v3, v{r}, v{r+1}, v{r+2}\nv_max_u32 v3, v3, v{r+3}\nv_cmp_eq_u32 vcc, -1, v3")
            if m < 15: a(J(reads(m+1, st ^ 1)))
            else: a("s_nop 4")
            a(f"s_cbranch_vccnz {Lr}")
            a(f"{Lc}_ok:")
            a("s_waitcnt lgkmcnt(8)" if m < 15 else "s_waitcnt lgkmcnt(0)")
            for t in range(4):
                c = "0" if m == 0 else f"v[{64+4*t}:{67+4*t}]"
                a(f"{MF16} v[{64+4*t}:{67+4*t}], v[{24+16*st+4*t}:{27+16*st+4*t}], v[{r}:{r+3}], {c}")
            with Cap(a) as cap:
                a(f"{Lr}:")
                a(f"s_add_u32 s{S_TMO}, s{S_TMO}, 1\ns_cmp_gt_u32 s{S_TMO}, 0x20000\ns_cbranch_scc1 {Lc}_ok")
                a(J(ofld(m, False))); a("s_waitcnt vmcnt(0)")
                a(f"v_max3_u32 v3, v{r}, v{r+1}, v{r+2}\nv_max_u32 v3, v3, v{r+3}\nv_cmp_eq_u32 vcc, -1, v3\ns_nop 4\ns_cbranch_vccnz {Lr}\ns_branch {Lc}_ok")
            self.tail_blocks.append(cap.out)
        a(f"s_lshl_b32 s{ST}, s{S_J}, 6\ns_lshl_b32 s{ST+1}, s{S_WAVE}, 4\ns_add_u32 s{ST}, s{ST}, s{ST+1}\ns_lshl_b32 s{ST}, s{ST}, 11\ns_lshl_b32 s{ST+1}, s{S_P}, 7\ns_add_u32 s{ST}, s{ST}, s{ST+1}")
        a("v_and_b32 v2, 15, v1\nv_lshlrev_b32 v2, 11, v2\nv_bfe_u32 v3, v1, 4, 1\nv_lshl_add_u32 v2, v3, 5, v2\nv_lshrrev_b32 v3, 5, v1\nv_lshl_add_u32 v2, v3, 4, v2\ns_nop 1")
        for t in range(4): a(f"v_cvt_pk_bf16_f32 v{8+2*t}, v{64+4*t}, v{65+4*t}\nv_cvt_pk_bf16_f32 v{9+2*t}, v{66+4*t}, v{67+4*t}")
        a("s_nop 1\nv_permlane16_swap_b32 v8, v10\nv_permlane16_swap_b32 v9, v11\nv_permlane16_swap_b32 v12, v14\nv_permlane16_swap_b32 v13, v15\ns_nop 1")
        a(f"buffer_store_dwordx4 v[8:11], v2, {S4(SRD_OUT)}, s{ST} offen")
        a(f"buffer_store_dwordx4 v[12:15], v2, {S4(SRD_OUT)}, s{ST} offen offset:64")
        self.stamp('end')

    def build(self):
        a = self.a
        self.startup(); self.pre(); self.qkv(); self.qkv_epilogue(); self.conv(); self.attention(); self.tail()
        self.dump_stamps()
        if 'dbgt' in self.exp:
            L = a.label('dbgskip')
            a(f"s_memrealtime s[84:85]\ns_memtime s[86:87]\ns_waitcnt vmcnt(0) lgkmcnt(0)")
            a(f"s_cmp_lg_u32 s{S_WAVE}, 0\ns_cbranch_scc1 {L}")
            a(f"s_and_b32 s88, s2, 63\ns_cmp_lg_u32 s88, 0\ns_cbranch_scc1 {L}")
            a(f"s_sub_u32 s84, s84, s{S_T}\ns_sub_u32 s86, s86, s100\ns_lshr_b32 s88, s2, 6\ns_lshl_b32 s88, s88, 3\ns_add_u32 s88, s88, 8")
            a(f"v_mov_b32 v2, s84\nv_mov_b32 v3, s86\nv_mov_b32 v4, s88\ns_mov_b64 exec, 1")
            a(f"buffer_store_dwordx2 v[2:3], v4, {DBG}, 0 offen\ns_mov_b64 exec, -1\n{L}:")
        a("L_end:\ns_endpgm")
        a.lines = resolve_vmcnt(a.lines)
        for blk in self.tail_blocks: a.lines += blk
        a("L_codeend:")
        probs = check_hazards(a.lines)
        for p in probs[:12]: print(p, file=sys.stderr)
        hdr = open('cdna_kernels/' + NAME + '.s.ref').read().split('\n')
        cm = [l for l in hdr if l.startswith(';') and '@launch' not in l and 'Override' not in l and 'grid=ceil' not in l][:13]
        head = J(cm) + f"\n; @launch grid=(256,1,1) block=(256,1,1) lds={LDS_BYTES}\n"
        head += f'.amdgcn_target "amdgcn-amd-amdhsa--gfx950"\n.text\n.globl {NAME}_kernel\n.p2align 8\n.type {NAME}_kernel,@function\n{NAME}_kernel:\n'
        tail = f'''.section .rodata,"a"
.p2align 6
.amdhsa_kernel {NAME}_kernel
  .amdhsa_next_free_vgpr 512
  .amdhsa_next_free_sgpr 102
  .amdhsa_accum_offset 256
  .amdhsa_group_segment_fixed_size 0
  .amdhsa_kernarg_size 96
  .amdhsa_user_sgpr_count 2
  .amdhsa_user_sgpr_kernarg_segment_ptr 1
  .amdhsa_system_sgpr_workgroup_id_x 1
.end_amdhsa_kernel
'''
        return head + a.text() + tail, len(probs), self.stamp_slots

if __name__ == '__main__':
    ap = argparse.ArgumentParser()
    ap.add_argument('-o', default='cdna_kernels/' + NAME + '.s')
    ap.add_argument('--stamps', default=''); ap.add_argument('--exp', default='')
    args = ap.parse_args()
    g = Gen(stamps=[x for x in args.stamps.split(',') if x], exp=args.exp)
    txt, np_, slots = g.build()
    open(args.o, 'w').write(txt)
    print('wrote', args.o, 'lines', txt.count('\n'), 'hazards', np_, 'stamps', slots)
```

```python
import sys, argparse, struct
from asmlib import *

NAME = "concat_heads__sliding_block__ssm_conv_h3__prompt"
WS_F1, WS_F2, WS_F3, WS_F5 = 0x0000, 0x2000, 0x4000, 0x8000
WS_KVT = 0x100000; WS_ZT = 0x300000; WS_KV = 0x500000; WS_OF = 0x900000
WS_STAMP = 0xB00000; WS_SIZE = 0xB40000
TZ = 98304; TZC = 4160
U = TZ + 8*TZC; UC = 4608
TP = U + 2*UC
WSH = TP + 8192
LDS_BYTES = WSH + 1024
EX = 65536
S_WAVE, S_XCD, S_I, S_J, S_P = 3, 4, 5, 6, 7
SRD_X, SRD_W, SRD_K, SRD_V, SRD_Q, SRD_H, SRD_WO, SRD_OUT, SRD_WS, SRD_DBG, SRD_SH = 8,12,16,20,24,28,32,36,40,44,48
S_T = 52; S_D = 54; S_TMO = 55
PTR = 56
S_HT = 64
S_XOFF, S_WOFF, S_M0B, S_NH = 80, 81, 82, 83
ST = 84
S_FB = 94; S_HEAD = 95
S_SEL0, S_SEL1 = 96, 97
S_M0W = 98
QSCALE = 0.25 * 1.4426950408889634
def f2u(x): return struct.unpack('<I', struct.pack('<f', x))[0]
def S4(b): return f"s[{b}:{b+3}]"
WS, DBG = S4(SRD_WS), S4(SRD_DBG)
MF32 = "v_mfma_f32_32x32x16_bf16"; MF16 = "v_mfma_f32_16x16x32_bf16"
NEG = 0xf149f2ca
A_S = [16, 32]; A_P = [48, 56]; A_CN = [64, 80]; A_O = [96, 112]; A_MD = 184; A_MK = 200; A_QF = [224, 228]
J = '\n'.join

class Gen:
    STAMP_REGS = [16, 18, 20, 22, 48, 50, 56, 58, 60, 62, 72, 74, 76, 78]
    def __init__(self, stamps=None, exp=''):
        self.a = Asm(); self.stamps = stamps or []; self.exp = exp.split(',')
        self.stamp_slots = []; self.tail_blocks = []
        self.NT = 'nt ' if 'nt' in self.exp else ''
        self.DNT = ' nt' if 'dmant' in self.exp else ''
        self.PNT = ' nt' if 'pfnt' in self.exp else ''

    def srd(self, base, ptr, size):
        return [f"s_mov_b32 s{base}, s{ptr}", f"s_mov_b32 s{base+1}, s{ptr+1}", f"s_mov_b32 s{base+2}, {size}", f"s_mov_b32 s{base+3}, 0x20000"]
    def stamp(self, name):
        if name not in self.stamps: return
        n = len(self.stamp_slots)
        if n >= len(self.STAMP_REGS): return
        r = self.STAMP_REGS[n]; self.stamp_slots.append(name)
        self.a(f"s_memtime s[{r}:{r+1}]")
    def dump_stamps(self):
        if not self.stamp_slots or 'dbgs' in self.exp: return
        a = self.a
        a("s_waitcnt lgkmcnt(0)")
        a(f"s_lshl_b32 s{ST}, s2, 2\ns_add_u32 s{ST}, s{ST}, s{S_WAVE}\ns_lshl_b32 s{ST}, s{ST}, 7\ns_add_u32 s{ST}, s{ST}, {WS_STAMP}")
        a(f"v_mov_b32 v3, s{ST}\ns_mov_b64 exec, 1")
        for n, r in enumerate([100] + self.STAMP_REGS[:len(self.stamp_slots)]):
            a(f"v_mov_b32 v2, s{r}\nbuffer_store_dword v2, v3, {WS}, 0 offen offset:{4*n}\ns_nop 1")
        a("s_mov_b64 exec, -1")
    def exec_n(self, nl):
        mask = (1 << nl) - 1
        return [f"s_mov_b32 exec_lo, {hex(mask & 0xffffffff)}", f"s_mov_b32 exec_hi, {hex(mask >> 32)}"]
    def poll_ld(self, voff, vtmp, tag=''):
        return f"buffer_load_dwordx2 v[{vtmp}:{vtmp+1}], v{voff}, {WS}, 0 offen sc1" + (f" ; @{tag}" if tag else "")
    def poll_check(self, voff, vtmp, name):
        a = self.a
        L = a.label(name); Ld = a.label(name+'_done'); Lc = a.label(name+'_chk')
        a(f"s_mov_b32 s{S_TMO}, 0\ns_branch {Lc}")
        a(f"{L}:")
        a(self.poll_ld(voff, vtmp, 'cond'))
        a("s_waitcnt vmcnt(0)")
        a(f"{Lc}:")
        a(f"v_cmp_ne_u64 vcc, s[{S_T}:{S_T+1}], v[{vtmp}:{vtmp+1}]")
        a(f"s_add_u32 s{S_TMO}, s{S_TMO}, 1")
        a("s_cbranch_vccz " + Ld)
        a(f"s_cmp_lt_u32 s{S_TMO}, 0x20000")
        a(f"s_cbranch_scc1 {L}")
        a(f"{Ld}:")
    def flag_instrs(self, soff_sgpr, vt0, vt2, tag='flag'):
        return [f"v_mov_b32 v{vt0}, s{soff_sgpr}", f"v_mov_b32 v{vt2}, s{S_T}", f"v_mov_b32 v{vt2+1}, s{S_T+1}", "s_mov_b64 exec, 1",
                f"buffer_store_dwordx2 v[{vt2}:{vt2+1}], v{vt0}, {WS}, 0 offen sc1 ; @{tag}", "s_mov_b64 exec, -1"]
    def dma_groups(self, s):
        buf = s % 3
        X, W = S4(SRD_X), S4(SRD_W)
        t = f" ; @dma{s}"
        lds = "nt lds" if self.DNT else "lds"
        return [[f"s_add_u32 m0, s{S_M0B}, {buf*32768}", f"s_add_u32 s{ST+9}, s{S_XOFF}, {s*128}", f"buffer_load_dwordx4 v100, {X}, s{ST+9} offen {lds}" + t],
                [f"buffer_load_dwordx4 v101, {X}, s{ST+9} offen offset:1024 {lds}" + t],
                [f"s_add_u32 m0, s{S_M0W}, {buf*32768}", f"s_add_u32 s{ST+8}, s{S_WOFF}, {s*64*3072}", f"buffer_load_dwordx4 v102, {W}, s{ST+8} offen {lds}" + t],
                [f"buffer_load_dwordx4 v103, {W}, s{ST+8} offen offset:1024 {lds}" + t],
                [f"buffer_load_dwordx4 v102, {W}, s{ST+8} offen offset:2048 {lds}" + t, f"s_add_u32 m0, s{S_M0W}, {buf*32768 + 3072}"],
                ["s_nop 0", f"buffer_load_dwordx4 v248, {W}, s{ST+8} offen {lds}" + t] if s == 0 else [f"buffer_load_dwordx4 v248, {W}, s{ST+8} offen {lds}" + t],
                [f"buffer_load_dwordx4 v249, {W}, s{ST+8} offen offset:1024 {lds}" + t],
                [f"buffer_load_dwordx4 v248, {W}, s{ST+8} offen offset:2048 {lds}" + t]]
    def of_store_addr(self, v, t0, sreg):
        return [f"v_bfe_u32 v{v}, v1, 4, 1", f"v_lshlrev_b32 v{v}, 14, v{v}", f"v_lshrrev_b32 v{t0}, 5, v1", f"v_lshlrev_b32 v{t0}, 8, v{t0}", f"v_add_u32 v{v}, v{v}, v{t0}",
                f"v_and_b32 v{t0}, 15, v1", f"v_lshl_add_u32 v{v}, v{t0}, 4, v{v}",
                f"s_lshl_b32 s{sreg}, s{S_J}, 16", f"s_lshr_b32 s{ST+1}, s{S_HEAD}, 1", f"s_lshl_b32 s{ST+1}, s{ST+1}, 10", f"s_add_u32 s{sreg}, s{sreg}, s{ST+1}",
                f"s_and_b32 s{ST+1}, s{S_HEAD}, 1", f"s_lshl_b32 s{ST+1}, s{ST+1}, 9", f"s_add_u32 s{sreg}, s{sreg}, s{ST+1}", f"s_add_u32 s{sreg}, s{sreg}, {WS_OF}"]

    def startup(self):
        a = self.a
        a("L_entry:")
        a(f"s_load_dwordx16 s[{PTR}:{PTR+15}], s[0:1], 0")
        a(f"s_load_dwordx8 s[{PTR+16}:{PTR+23}], s[0:1], 64")
        a(f"s_memrealtime s[{S_T}:{S_T+1}]")
        if self.stamps: a("s_memtime s[100:101]")
        if 'dbgt' in self.exp: a("s_memtime s[100:101]\ns_memrealtime s[78:79]") if False else None
        if 'dbgt' in self.exp: a("s_memtime s[100:101]")
        a("s_cmp_ge_u32 s2, 256\ns_cbranch_scc1 L_end")
        a("s_getpc_b64 s[8:9]\nL_pc:")
        a("s_sub_u32 s8, s8, (L_pc - L_entry)\ns_subb_u32 s9, s9, 0\ns_mov_b32 s10, (L_codeend - L_entry)\ns_mov_b32 s11, 0x20000")
        a(f"s_lshr_b32 s{S_I}, s2, 3\ns_and_b32 s{ST}, s{S_I}, 7\ns_lshl_b32 s{ST}, s{ST}, 12\nv_lshlrev_b32 v2, 4, v0")
        a(f"buffer_load_dwordx4 v[216:219], v2, s[8:11], s{ST} offen")
        a("v_and_b32 v1, 63, v0\nv_lshrrev_b32 v2, 6, v0")
        a(f"s_and_b32 s{S_XCD}, s2, 7")
        a(f"v_readfirstlane_b32 s{S_WAVE}, v2")
        a("v_and_b32 v4, 7, v1\nv_lshrrev_b32 v5, 3, v1")
        a(f"s_lshl_b32 s{ST}, s{S_I}, 6\ns_lshl_b32 s{ST+2}, s{S_XCD}, 7\ns_lshl_b32 s{ST+1}, s{S_WAVE}, 4\ns_add_u32 s{ST}, s{ST}, s{ST+1}\ns_lshl_b32 s{ST}, s{ST}, 10\ns_add_u32 s{ST}, s{ST}, s{ST+2}")
        a(f"v_lshlrev_b32 v6, 11, v5\nv_lshl_add_u32 v6, v4, 4, v6\nv_add_u32 v6, s{ST}, v6")
        a("v_subrev_u32 v7, 3072, v6\nv_subrev_u32 v8, 2048, v6\nv_subrev_u32 v9, 1024, v6")
        a(f"s_lshr_b32 s{ST}, s{S_XCD}, 1\ns_lshl_b32 s{ST}, s{ST}, 3\ns_and_b32 s{ST+1}, s{S_I}, 7\ns_add_u32 s{S_J}, s{ST}, s{ST+1}")
        a(f"s_and_b32 s{ST}, s{S_XCD}, 1\ns_lshl_b32 s{ST}, s{ST}, 2\ns_lshr_b32 s{ST+1}, s{S_I}, 3\ns_add_u32 s{S_P}, s{ST}, s{ST+1}")
        a(f"s_lshl_b32 s{ST}, s{S_XCD}, 9\nv_lshlrev_b32 v10, 4, v1\nv_add_u32 v10, s{ST}, v10")
        a("v_lshrrev_b32 v2, 4, v1\nv_xor_b32 v3, v4, v2\nv_lshlrev_b32 v3, 4, v3")
        a(f"s_lshl_b32 s{ST}, s{S_WAVE}, 14\nv_lshl_add_u32 v100, v5, 10, v3\nv_add_u32 v100, s{ST}, v100")
        a(f"v_xor_b32 v101, 64, v100\nv_add_u32 v101, {8192-1024}, v101")
        a("v_lshrrev_b32 v3, 1, v4\nv_and_b32 v2, 1, v2\nv_lshlrev_b32 v2, 1, v2\nv_xor_b32 v3, v3, v2\nv_lshlrev_b32 v3, 5, v3")
        a("v_and_b32 v2, 1, v4\nv_lshl_add_u32 v3, v2, 4, v3\nv_mul_u32_u24 v102, 3072, v5\nv_add_u32 v102, v102, v3\nv_xor_b32 v103, 32, v102")
        a("v_add_u32 v248, 24576, v102\nv_add_u32 v249, 24576, v103")
        a(f"s_lshl_b32 s{S_XOFF}, s{S_J}, 16")
        a(f"s_mul_i32 s{S_WOFF}, s{S_WAVE}, {16*3072}\ns_lshl_b32 s{ST}, s{S_P}, 7\ns_add_u32 s{S_WOFF}, s{S_WOFF}, s{ST}")
        a(f"s_lshl_b32 s{S_M0B}, s{S_WAVE}, 11\ns_mul_i32 s{S_M0W}, s{S_WAVE}, 6144\ns_add_u32 s{S_M0W}, s{S_M0W}, 8192")
        a("s_waitcnt lgkmcnt(0)")
        a(J(self.srd(SRD_K, PTR+8, 2097152) + self.srd(SRD_V, PTR+10, 2097152)))
        Ln = a.label('nononce')
        a(f"s_or_b32 s{ST}, s2, s{S_WAVE}\ns_cmp_lg_u32 s{ST}, 0\ns_cbranch_scc1 {Ln}")
        a(J(self.srd(SRD_DBG, PTR+20, 256)))
        a(f"s_or_b32 s{S_T+1}, s{S_T+1}, 0x80000000")
        a(f"v_mov_b32 v14, s{S_T}\nv_mov_b32 v15, s{S_T+1}\nv_mov_b32 v2, 0\ns_mov_b64 exec, 1")
        a(f"buffer_store_dwordx2 v[14:15], v2, {DBG}, 0 offen sc1 ; @cond")
        a(f"s_mov_b64 exec, -1\n{Ln}:")
        K, V = S4(SRD_K), S4(SRD_V)
        for d, v, srd, off in ((28,6,K,0),(32,6,K,1024),(24,9,K,0),(20,8,K,0),(16,7,K,0),(36,6,V,0),(40,6,V,1024)):
            a(f"buffer_load_dwordx4 v[{d}:{d+3}], v{v}, {srd}, 0 offen offset:{off} {self.NT}; @kv")
        a(J(self.srd(SRD_X, PTR+0, 2097152) + self.srd(SRD_W, PTR+2, 1572864) + self.srd(SRD_SH, PTR+12, 4096)))
        a(f"s_mov_b32 m0, {WSH}\ns_mov_b32 exec_hi, 0")
        a(f"buffer_load_dwordx4 v10, {S4(SRD_SH)}, 0 offen lds ; @kv")
        a("s_mov_b32 exec_hi, -1")
        for g in self.dma_groups(0): a(J(g))
        if 'pf' in self.exp: self.xw_prefetch_addr()
        if 'pf' in self.exp: a(J(self.xw_prefetch(0)))
        if 'pf' in self.exp and 'pf2' not in self.exp: a(J(self.xw_prefetch(1)))
        self.stamp('issued')
        a(J(self.srd(SRD_WS, PTR+22, WS_SIZE) + self.srd(SRD_DBG, PTR+20, 256) + self.srd(SRD_Q, PTR+6, 2097152) + self.srd(SRD_WO, PTR+4, 524288) + self.srd(SRD_OUT, PTR+18, 4194304)))
        a(f"s_lshl_b32 s{ST}, s{S_XCD}, 7\ns_lshl_b32 s{ST+1}, s{S_I}, 2\ns_add_u32 s{ST}, s{ST}, s{ST+1}")
        a(f"s_load_dword s{S_D}, s[{PTR+16}:{PTR+17}], s{ST}")
        a(f"s_lshl_b32 s{ST}, s{S_XCD}, 6\ns_lshl_b32 s{ST+1}, s{S_I}, 1\ns_add_u32 s{ST}, s{ST}, s{ST+1}\ns_lshr_b32 s{ST+1}, s{S_WAVE}, 1\ns_add_u32 s{ST+3}, s{ST}, s{ST+1}")
        a(f"s_lshl_b32 s{ST}, s{ST+3}, 12")
        a(f"s_add_u32 s{SRD_H}, s{PTR+14}, s{ST}\ns_addc_u32 s{SRD_H+1}, s{PTR+15}, 0\ns_mov_b32 s{SRD_H+2}, 4096\ns_mov_b32 s{SRD_H+3}, 0x20000")
        a(f"s_load_dwordx8 s[{S_HT}:{S_HT+7}], s[{SRD_H}:{SRD_H+1}], 4064")
        a(f"s_min_u32 s{S_NH}, s{S_J}, 4\ns_lshl_b32 s{S_HEAD}, s{S_P}, 2\ns_add_u32 s{S_HEAD}, s{S_HEAD}, s{S_WAVE}\ns_mov_b32 s{S_FB}, 0")
        a(f"s_mov_b32 s{S_SEL0}, 0x05040100\ns_mov_b32 s{S_SEL1}, 0x07060302")
        a(f"s_and_b32 s{ST}, s{S_WAVE}, 1\ns_lshl_b32 s{ST}, s{ST}, 11\nv_lshlrev_b32 v13, 5, v1\nv_add_u32 v13, s{ST}, v13")
        a("v_subrev_u32 v11, 32, v13\nv_subrev_u32 v152, 16, v13")
        a("v_and_b32 v2, 31, v1\nv_lshrrev_b32 v3, 5, v1\nv_bfe_u32 v4, v2, 1, 3\nv_xor_b32 v3, v3, v4\nv_lshlrev_b32 v2, 7, v2")
        for kk in range(4):
            a(f"v_xor_b32 v4, {2*kk}, v3\nv_lshl_add_u32 v{104+kk}, v4, 4, v2\nv_add_u32 v{108+kk}, 0x10000, v{104+kk}")
        a("v_bfe_u32 v2, v1, 4, 1\nv_lshrrev_b32 v3, 5, v1\nv_bfe_u32 v4, v1, 2, 2")
        a("v_mul_u32_u24 v5, 3072, v3\nv_lshl_add_u32 v5, v4, 7, v5")
        a("v_and_b32 v154, 3, v1\nv_lshl_add_u32 v5, v154, 3, v5")
        a(f"v_and_b32 v154, 2, v4\nv_xor_b32 v154, s{S_WAVE}, v154")
        a(f"v_lshl_add_u32 v113, v154, 5, v5\nv_add_u32 v113, {8192+2048}, v113")
        a("v_xor_b32 v154, v154, v2\nv_lshl_add_u32 v112, v154, 5, v5\nv_lshl_add_u32 v112, v2, 10, v112\nv_add_u32 v112, 8192, v112")
        a("v_add_u32 v114, 0x10000, v112\nv_add_u32 v115, 0x10000, v113")
        a("v_mov_b32 v160, 0\nv_mov_b32 v161, 0\nv_mov_b32 v162, 0\nv_mov_b32 v163, 0")
        a(f"v_lshrrev_b32 v2, 5, v1\nv_mul_u32_u24 v2, {UC}, v2\nv_and_b32 v3, 31, v1\nv_lshl_add_u32 v2, v3, 4, v2\nv_add_u32 v2, {U+4096}, v2")
        a("ds_write_b128 v2, v[160:163]")
        a(f"v_and_b32 v4, 7, v1\nv_lshrrev_b32 v5, 3, v1\ns_lshl_b32 s{ST}, s{S_WAVE}, 3\nv_add_u32 v2, s{ST}, v5\nv_sub_u32 v2, 31, v2")
        a("v_lshrrev_b32 v3, 2, v2\nv_xor_b32 v3, v3, v4\nv_lshlrev_b32 v3, 4, v3\nv_and_b32 v2, 3, v2\nv_lshl_add_u32 v3, v2, 2, v3\nv_lshl_add_u32 v3, v4, 10, v3")
        a(f"v_add_u32 v155, {TP}, v3")
        a(f"v_lshlrev_b32 v153, 6, v4\nv_add_u32 v153, {WSH}, v153")
        a(f"s_lshl_b32 s{ST}, s{S_WAVE}, 1\nv_xor_b32 v156, s{ST}, v4\nv_lshlrev_b32 v156, 4, v156\nv_lshl_add_u32 v156, v5, 7, v156")
        a(f"s_lshl_b32 s{ST+1}, s{S_WAVE}, 11\ns_add_u32 s{ST+1}, s{ST+1}, {TP}\nv_add_u32 v156, s{ST+1}, v156\nv_xor_b32 v157, 16, v156")
        a(f"s_lshl_b32 s{ST}, s{S_XCD}, 6\ns_lshl_b32 s{ST+1}, s{S_WAVE}, 4\ns_add_u32 s{ST}, s{ST}, s{ST+1}\ns_lshl_b32 s{ST}, s{ST}, 12")
        a(f"s_lshl_b32 s{ST+1}, s{S_I}, 7\ns_sub_u32 s{ST}, s{ST}, s{ST+1}\ns_add_u32 s{ST}, s{ST}, {WS_KVT + 1984*2}")
        a(f"v_lshlrev_b32 v158, 12, v5\nv_lshl_add_u32 v158, v4, 4, v158\nv_add_u32 v158, s{ST}, v158\nv_add_u32 v159, {8*4096}, v158")
        a(f"s_lshl_b32 s{ST}, s{ST+3}, 12\ns_and_b32 s{ST+1}, s{S_WAVE}, 1\ns_lshl_b32 s{ST+1}, s{ST+1}, 10\ns_add_u32 s{ST}, s{ST}, s{ST+1}\ns_add_u32 s{ST}, s{ST}, {WS_KVT}")
        a(f"v_lshlrev_b32 v6, 4, v1\nv_add_u32 v7, s{ST}, v6")
        a(f"s_lshr_b32 s{ST}, s{S_WAVE}, 1\ns_mul_i32 s{ST+2}, s{ST}, {UC}\ns_add_u32 s{ST+2}, s{ST+2}, s{ST+1}\ns_add_u32 s{ST+2}, s{ST+2}, {U}\nv_add_u32 v8, s{ST+2}, v6")
        a(f"s_mul_i32 s{ST}, s{ST}, {4*TZC}\ns_lshl_b32 s{ST+2}, s{ST+1}, 1\ns_add_u32 s{ST+2}, s{ST+2}, s{ST}\ns_add_u32 s{ST+2}, s{ST+2}, {TZ}")
        a(f"v_lshlrev_b32 v154, 5, v1\nv_add_u32 v154, s{ST+2}, v154\ns_add_u32 s{ST}, s{ST}, {TZ + 4096}\nv_mov_b32 v12, s{ST}")
        a("v_and_b32 v2, 31, v1\nv_mov_b32 v3, 0\nv_mov_b32 v4, 0x3f803f80\nv_cmp_eq_u32 vcc, 16, v2\ns_nop 1\nv_cndmask_b32 v3, v3, v4, vcc\ns_nop 0")
        for r in range(32, 96): a(f"v_accvgpr_write_b32 a{r}, v3")
        a("v_mov_b32 v164, -1\nv_mov_b32 v165, -1\nv_mov_b32 v166, -1\nv_mov_b32 v167, -1")
        a(J(self.of_store_addr(9, 2, ST+7)))
        a("s_waitcnt lgkmcnt(0)")
        for i in range(8): a(f"v_mov_b32 v{126+i}, s{S_HT+i}")
        a("v_mov_b32 v134, 0\nv_mov_b32 v135, 0")
        DB = list(range(126, 136))
        a(J(self.toep_valu(DB, 224, 232, 240)))
        a("s_mov_b64 exec, 1"); a(J(self.toep_writes(DB, 224, 232, 240, 12))); a("s_mov_b64 exec, -1")

    def xw_prefetch_addr(self):
        a = self.a
        a(f"s_lshr_b32 s{ST}, s{S_XCD}, 1\ns_lshl_b32 s{ST}, s{ST}, 9\ns_lshl_b32 s{ST+1}, s{S_I}, 4\ns_add_u32 s{ST}, s{ST}, s{ST+1}\ns_lshl_b32 s{ST+1}, s{S_WAVE}, 2\ns_add_u32 s{ST}, s{ST}, s{ST+1}\ns_lshl_b32 s{ST}, s{ST}, 10")
        a(f"v_lshrrev_b32 v2, 3, v1\nv_lshlrev_b32 v2, 10, v2\nv_and_b32 v3, 7, v1\nv_lshl_add_u32 v2, v3, 6, v2\nv_add_u32 v250, s{ST}, v2")
        a(f"s_lshl_b32 s{ST}, s{S_I}, 3\ns_lshl_b32 s{ST+1}, s{S_WAVE}, 1\ns_add_u32 s{ST}, s{ST}, s{ST+1}\ns_mul_i32 s{ST}, s{ST}, 3072\ns_and_b32 s{ST+1}, s{S_XCD}, 1\ns_lshl_b32 s{ST+1}, s{ST+1}, 9\ns_add_u32 s{ST}, s{ST}, s{ST+1}")
        a("v_subrev_u32 v2, 24, v1\nv_ashrrev_i32 v3, 31, v2\nv_and_b32 v4, 24, v3\nv_add_u32 v2, v2, v4\nv_not_b32 v3, v3\nv_and_b32 v3, 3072, v3")
        a(f"v_lshrrev_b32 v4, 3, v2\nv_lshl_add_u32 v3, v4, 10, v3\nv_and_b32 v2, 7, v2\nv_lshl_add_u32 v3, v2, 6, v3\nv_add_u32 v251, s{ST}, v3")
    def xw_prefetch(self, ph):
        return ["s_mov_b32 exec_hi, 0", f"buffer_load_dword v252, v250, {S4(SRD_X)}, 0 offen offset:{512*ph}{self.PNT} ; @pf",
                "s_mov_b32 exec_hi, 0xffff", f"s_mov_b32 s{ST}, {256*3072*ph}", f"buffer_load_dword v253, v251, {S4(SRD_W)}, s{ST} offen{self.PNT} ; @pf", "s_mov_b32 exec_hi, -1"]

    def toep_valu(self, D, E, F, G):
        o = [f"v_alignbit_b32 v{E+i}, v{D[i+1]}, v{D[i]}, 16" for i in range(8)]
        o += [f"v_mov_b32 v{F+i}, v{D[i+1]}" for i in range(8)]
        o += [f"v_alignbit_b32 v{G+i}, v{D[i+2]}, v{D[i+1]}, 16" for i in range(8)]
        return o
    def toep_writes(self, D, E, F, G, vaddr):
        o = [f"ds_write_b128 v{vaddr}, v[{D[0]}:{D[0]+3}]", f"ds_write_b128 v{vaddr}, v[{D[4]}:{D[4]+3}] offset:16"]
        for r, R in ((1, E), (2, F), (3, G)):
            o += [f"ds_write_b128 v{vaddr}, v[{R}:{R+3}] offset:{r*TZC}", f"ds_write_b128 v{vaddr}, v[{R+4}:{R+7}] offset:{r*TZC+16}"]
        return o

    def pre(self):
        a = self.a
        a("s_waitcnt vmcnt(@kv)")
        self.stamp('predata')
        for i in range(4): a(f"ds_read_b128 v[{44+4*i}:{47+4*i}], v153 offset:{16*i}")
        main = []
        for d in range(4):
            for par in range(2):
                sel = f"s{S_SEL1 if par else S_SEL0}"; ch = 2*d + par; o = 60 + 8*(ch % 4)
                r = lambda row: 16 + 4*(row+3) + d
                un = (lambda dst, src: f"v_lshlrev_b32 v{dst}, 16, v{src}") if par == 0 else (lambda dst, src: f"v_and_b32 v{dst}, 0xffff0000, v{src}")
                main.append([f"v_perm_b32 v{o}, v{r(-1)}, v{r(0)}, {sel}", f"v_perm_b32 v{o+1}, v{r(0)}, v{r(1)}, {sel}",
                             f"v_perm_b32 v{o+2}, v{r(-3)}, v{r(-2)}, {sel}", f"v_perm_b32 v{o+3}, v{r(-2)}, v{r(-1)}, {sel}",
                             un(o+4, 36+d), un(o+5, 40+d),
                             f"v_dot2_f32_bf16 v{o+6}, v{o}, v{44+2*ch}, 0", f"v_dot2_f32_bf16 v{o+7}, v{o+1}, v{44+2*ch}, 0",
                             f"v_dot2_f32_bf16 v{o+6}, v{o+2}, v{45+2*ch}, v{o+6}", f"v_dot2_f32_bf16 v{o+7}, v{o+3}, v{45+2*ch}, v{o+7}",
                             f"v_mul_f32 v{o+6}, v{o+6}, v{o+4}", f"v_mul_f32 v{o+7}, v{o+7}, v{o+5}", f"v_cvt_pk_bf16_f32 v{92+ch}, v{o+7}, v{o+6}"])
        seq = []
        for k in range(0, 8, 2):
            A, B = main[k], main[k+1]
            seq += A[:6] + B[:6]
            if k == 0: seq.append("s_waitcnt lgkmcnt(0)")
            seq += A[6:10] + B[6:10] + A[10:12] + B[10:12] + [A[12], B[12]]
        a(J(interleave(seq, self.dma_groups(1), every=12)))
        for ch in range(8): a(f"ds_write_b32 v155, v{92+ch} offset:{ch*128}")
        self.stamp('precomp')
        a("s_waitcnt vmcnt(@dma0) lgkmcnt(0)\ns_barrier")
        self.stamp('stage0')
        a("ds_read_b128 v[16:19], v156\nds_read_b128 v[20:23], v157 offset:1024")
        self.qkv_reads(0, 0, 0)
        a(f"buffer_store_dwordx4 v[164:167], v9, {WS}, s{ST+7} offen sc1 ; @st0")
        a(f"s_add_u32 s{ST+7}, s{ST+7}, 32768")
        a("s_waitcnt lgkmcnt(7)")
        a(f"buffer_store_dwordx4 v[16:19], v158, {WS}, 0 offen sc1 ; @st0")
        a(f"buffer_store_dwordx4 v[164:167], v9, {WS}, s{ST+7} offen sc1 ; @st0")
        a("s_waitcnt lgkmcnt(6)")
        a(f"buffer_store_dwordx4 v[20:23], v159, {WS}, 0 offen sc1 ; @st0")
        a("v_mov_b32 v3, 0")
        a(f"buffer_load_dwordx2 v[14:15], v3, {DBG}, 0 offen sc1 ; @nonce")

    def qkv_reads(self, s, kk, st):
        a = self.a
        buf = s % 3; b = 60 + 16*st
        if buf < 2: xa, wqk, wv, base = 104+kk, 112, 113, buf*32768
        else:       xa, wqk, wv, base = 108+kk, 114, 115, 0
        a(f"ds_read_b128 v[{b}:{b+3}], v{xa} offset:{base}")
        a(f"ds_read_b64_tr_b16 v[{b+8}:{b+9}], v{wqk} offset:{base + kk*6144}")
        a(f"ds_read_b64_tr_b16 v[{b+10}:{b+11}], v{wqk} offset:{base + kk*6144 + 512}")
        a(f"ds_read_b128 v[{b+4}:{b+7}], v{xa} offset:{base + 4096}")
        a(f"ds_read_b64_tr_b16 v[{b+12}:{b+13}], v{wv} offset:{base + kk*6144}")
        a(f"ds_read_b64_tr_b16 v[{b+14}:{b+15}], v{wv} offset:{base + kk*6144 + 512}")
    def qkv_mfma(self, st, first=False):
        b = 60 + 16*st
        c = lambda r: "0" if first else f"v[{r}:{r+15}]"
        return [f"{MF32} v[160:175], v[{b+8}:{b+11}], v[{b}:{b+3}], {c(160)}", f"{MF32} v[176:191], v[{b+8}:{b+11}], v[{b+4}:{b+7}], {c(176)}",
                f"{MF32} v[192:207], v[{b}:{b+3}], v[{b+12}:{b+15}], {c(192)}", f"{MF32} v[208:223], v[{b+4}:{b+7}], v[{b+12}:{b+15}], {c(208)}"]
    def nonce_fix(self):
        a = self.a
        Lok = a.label('nonce_ok'); Lp = a.label('nonce_poll')
        a(f"v_readfirstlane_b32 s{S_T}, v14\nv_readfirstlane_b32 s{S_T+1}, v15\ns_nop 0")
        a(f"s_cmp_lg_u32 s{S_T+1}, 0\ns_cbranch_scc1 {Lok}\ns_mov_b32 s{S_TMO}, 0\n{Lp}:")
        a(f"v_mov_b32 v3, 0\nbuffer_load_dwordx2 v[14:15], v3, {DBG}, 0 offen sc1 ; @cond")
        a("s_waitcnt vmcnt(0)")
        a(f"v_readfirstlane_b32 s{S_T}, v14\nv_readfirstlane_b32 s{S_T+1}, v15")
        a(f"s_add_u32 s{S_TMO}, s{S_TMO}, 1\ns_cmp_gt_u32 s{S_TMO}, 0x20000\ns_cbranch_scc1 {Lok}")
        a(f"s_cmp_eq_u32 s{S_T+1}, 0\ns_cbranch_scc1 {Lp}\n{Lok}:")

    def qkv(self):
        a = self.a
        DA = list(range(116, 126)); H = S4(SRD_H)
        tzA = self.toep_valu(DA, 136, 144, 92)
        pend = self.dma_groups(2); vfill = []
        if 'pf2' in self.exp: pend = pend + [self.xw_prefetch(1)]
        def emit_mfma(st, first=False, nv=3):
            nonlocal pend, vfill
            for i, ins in enumerate(self.qkv_mfma(st, first)):
                a(ins)
                if i % 2 == 1 and pend: a(J(pend.pop(0)))
                for _ in range(nv):
                    if vfill: a(vfill.pop(0))
        for s in range(8):
            self.qkv_reads(s, 1, 1)
            if s == 7:
                a("ds_write_b128 v8, v[16:19]\nds_write_b128 v8, v[20:23] offset:2048")
                a("s_waitcnt lgkmcnt(8)")
            else: a("s_waitcnt lgkmcnt(6)")
            emit_mfma(0, first=(s == 0))
            self.qkv_reads(s, 2, 0)
            if s == 7:
                assert not vfill
                a(J(self.toep_writes(DA, 136, 144, 92, 154)))
                a("s_waitcnt lgkmcnt(14)")
            else: a("s_waitcnt lgkmcnt(6)")
            emit_mfma(1)
            self.qkv_reads(s, 3, 1)
            a("s_waitcnt lgkmcnt(6)")
            emit_mfma(0)
            if s < 7:
                while pend: a(J(pend.pop(0)))
                a(f"s_waitcnt vmcnt(@dma{s+1}) lgkmcnt(0)" if s < 6 else "s_waitcnt vmcnt(0) lgkmcnt(0)")
                a("s_barrier")
                if s == 1:
                    self.nonce_fix()
                    a(f"s_lshl_b32 s{ST}, s{S_XCD}, 2\ns_add_u32 s{ST}, s{ST}, s{S_WAVE}\ns_lshl_b32 s{ST}, s{ST}, 5\ns_add_u32 s{ST}, s{ST}, s{S_I}\ns_lshl_b32 s{ST}, s{ST}, 3\ns_add_u32 s{ST}, s{ST}, {WS_F1}")
                    a(J(self.flag_instrs(ST, 2, 4)))
                    a(f"s_lshl_b32 s{ST}, s{S_J}, 5\ns_add_u32 s{ST}, s{ST}, s{S_HEAD}\ns_lshl_b32 s{ST}, s{ST}, 3\ns_add_u32 s{ST}, s{ST}, {WS_F5}")
                    a(J(self.flag_instrs(ST, 2, 4)))
                if s + 3 < 8: pend = self.dma_groups(s + 3)
                if s == 3:
                    a(f"s_lshl_b32 s{ST}, s{S_XCD}, 2\ns_lshr_b32 s{ST+1}, s{S_I}, 3\ns_add_u32 s{ST}, s{ST}, s{ST+1}\ns_lshl_b32 s{ST}, s{ST}, 8\ns_add_u32 s{ST}, s{ST}, {WS_F1}")
                    a(f"v_lshlrev_b32 v2, 3, v1\nv_add_u32 v2, s{ST}, v2")
                    a(J(self.exec_n(32) + [self.poll_ld(2, 4, 'pf1'), "s_mov_b64 exec, -1"]))
                if s == 4:
                    a("s_waitcnt vmcnt(@pf1)")
                    a(J(self.exec_n(32)))
                    self.poll_check(2, 4, 'f1')
                    a("s_mov_b64 exec, -1")
                    pend = [[f"buffer_load_dwordx4 v[16:19], v7, {WS}, 0 offen sc1 ; @u"], [f"buffer_load_dwordx4 v[20:23], v7, {WS}, 0 offen offset:2048 sc1 ; @u"]] + pend + \
                           [[f"buffer_load_dwordx4 v[116:119], v11, {H}, 0 offen {self.NT}; @h"], [f"buffer_load_dwordx4 v[120:123], v152, {H}, 0 offen {self.NT}; @h"], [f"buffer_load_dwordx2 v[124:125], v13, {H}, 0 offen {self.NT}; @h"]]
                if s == 6: vfill = list(tzA)
                self.qkv_reads(s+1, 0, 0)
                self.stamp(f'b{s}')
            else:
                a("s_waitcnt lgkmcnt(0)\ns_barrier")
                self.stamp('b7')
                self.conv_addr()
                a(J(self.conv_reads_mixed_first()))
            emit_mfma(1)
        assert not vfill and not pend

    def conv_addr(self):
        a = self.a
        a("v_and_b32 v4, 15, v1\nv_lshrrev_b32 v5, 4, v1\nv_add_u32 v9, 1, v4\nv_and_b32 v10, 3, v9\nv_lshrrev_b32 v9, 2, v9")
        a(f"v_mul_u32_u24 v2, {TZC}, v10\nv_lshl_add_u32 v2, v9, 3, v2\nv_lshl_add_u32 v2, v5, 4, v2")
        a(f"s_lshr_b32 s{ST}, s{S_WAVE}, 1\ns_mul_i32 s{ST+1}, s{ST}, {4*TZC}\ns_and_b32 s{ST+2}, s{S_WAVE}, 1\ns_lshl_b32 s{ST+2}, s{ST+2}, 8\ns_add_u32 s{ST+1}, s{ST+1}, s{ST+2}\ns_add_u32 s{ST+1}, s{ST+1}, {TZ}")
        a(f"v_add_u32 v2, s{ST+1}, v2")
        a(f"s_mul_i32 s{ST+1}, s{ST}, {UC}\ns_add_u32 s{ST+1}, s{ST+1}, s{ST+2}\ns_add_u32 s{ST+1}, s{ST+1}, {U+480}")
        a(f"v_lshlrev_b32 v3, 4, v5\nv_lshlrev_b32 v9, 5, v4\nv_sub_u32 v3, v3, v9\nv_add_u32 v3, s{ST+1}, v3")
    def conv_reads(self, st, n):
        A = 16 + 64*st; B = 48 + 64*st; o = []
        for i in range(8):
            o.append(f"ds_read_b128 v[{B+4*i}:{B+4*i+3}], v3 offset:{512*(7-i) + 64*n}")
            o.append(f"ds_read_b64 v[{A+4*i}:{A+4*i+1}], v2 offset:{512*i + 64*n}")
            o.append(f"ds_read_b64 v[{A+4*i+2}:{A+4*i+3}], v2 offset:{512*i + 64*n + 8}")
        return o
    def conv_reads_mixed_first(self):
        o = self.conv_reads(0, 0)
        self.deferred = [x for x in o if 'v[76:79]' in x]
        return [x for x in o if 'v[76:79]' not in x]
    def conv_mfmas(self, st, first):
        A = 16 + 64*st; B = 48 + 64*st; o = []
        for i in range(8):
            for t in range(i, 8):
                acc = 144 + 4*t
                c = "0" if (first and i == 0) else f"v[{acc}:{acc+3}]"
                o.append(f"{MF16} v[{acc}:{acc+3}], v[{A+4*i}:{A+4*i+3}], v[{B+4*(t-i)}:{B+4*(t-i)+3}], {c}")
        return o
    def qkv_epilogue(self):
        a = self.a
        self.stamp('qkvdone')
        a(f"s_mov_b32 s{ST+2}, {hex(f2u(QSCALE))}")
        a(f"s_lshl_b32 s{ST}, s{S_HEAD}, 6\ns_lshl_b32 s{ST+1}, s{S_J}, 1\ns_add_u32 s{ST}, s{ST}, s{ST+1}\ns_lshl_b32 s{ST}, s{ST}, 11\ns_add_u32 s{ST}, s{ST}, {WS_KV}")
        a(f"s_add_u32 s{ST+1}, s{ST}, 2048")
        a("v_lshrrev_b32 v4, 5, v1\nv_and_b32 v5, 15, v1\nv_lshl_add_u32 v4, v4, 4, v5\nv_lshlrev_b32 v4, 4, v4\ns_nop 4")
        a(J(self.deferred))
        for b in range(2):
            acc = 160 + 16*b
            for p in range(4): a(f"v_cvt_pk_bf16_f32 v{232+4*b+p}, v{acc+8+2*p}, v{acc+8+2*p+1}")
        a(f"buffer_store_dwordx4 v[232:235], v6, {WS}, s{ST} offen sc1 ; @kvst")
        for p in range(8): a(f"v_cvt_pk_bf16_f32 v{240+p}, v{192+2*p}, v{192+2*p+1}")
        a(f"buffer_store_dwordx4 v[236:239], v6, {WS}, s{ST+1} offen sc1 ; @kvst")
        for p in range(8): a(f"v_cvt_pk_bf16_f32 v{248+p}, v{208+2*p}, v{208+2*p+1}")
        a("s_mov_b32 exec_lo, 0xffff\ns_mov_b32 exec_hi, 0xffff")
        for b in range(2):
            for h in range(2): a(f"buffer_store_dwordx4 v[{240+8*b+4*h}:{243+8*b+4*h}], v4, {WS}, s{ST+b} offen offset:{1024+512*h} sc1 ; @kvst")
        a("s_mov_b64 exec, -1")
        for b in range(2):
            acc = 160 + 16*b
            for r in range(8): a(f"v_mul_f32 v{acc+r}, s{ST+2}, v{acc+r}")
            for p in range(4): a(f"v_cvt_pk_bf16_f32 v{224+4*b+p}, v{acc+2*p}, v{acc+2*p+1}")
        a("s_mov_b32 exec_lo, 0x10000\ns_mov_b32 exec_hi, 0x10000")
        for r in range(240, 256): a(f"v_mov_b32 v{r}, 0x3f803f80")
        a("s_mov_b64 exec, -1")
    def mask_fill(self):
        o = ["v_and_b32 v176, 31, v1", "v_lshrrev_b32 v177, 5, v1", "v_lshlrev_b32 v177, 2, v177", "v_sub_u32 v176, v176, v177", f"v_mov_b32 v178, {hex(NEG)}"]
        for i in range(4):
            for r in range(4):
                k = 8*i + r
                o += [f"v_subrev_u32 v177, {k}, v176", "v_ashrrev_i32 v177, 31, v177", f"v_and_b32 v{A_MD+4*i+r}, v177, v178"]
        for p in range(8):
            k = 8*(p//2) + 2*(p % 2)
            o += [f"v_subrev_u32 v177, {k}, v176", "v_ashrrev_i32 v179, 31, v177", "v_subrev_u32 v177, 1, v177", "v_ashrrev_i32 v177, 31, v177",
                  "v_and_b32 v179, 0xffff, v179", "v_and_b32 v177, 0xffff0000, v177", "v_or_b32 v177, v177, v179", f"v_not_b32 v{A_MK+p}, v177"]
        return o
    def halo_groups(self, p):
        g = []
        for tau in (7-2*p, 6-2*p):
            g.append([f"s_add_u32 s{ST+6}, s{ST+5}, {tau*2048}", f"buffer_load_dwordx4 a[{4*tau}:{4*tau+3}], v216, {WS}, s{ST+6} offen sc1 ; @pair{p}"])
            g.append([f"s_add_u32 s{ST+6}, s{ST+5}, {tau*2048}", "s_mov_b32 exec_lo, 0xffff", "s_mov_b32 exec_hi, 0xffff",
                      f"buffer_load_dwordx4 a[{32+8*tau}:{35+8*tau}], v217, {WS}, s{ST+6} offen offset:1024 sc1 ; @pair{p}",
                      f"buffer_load_dwordx4 a[{36+8*tau}:{39+8*tau}], v217, {WS}, s{ST+6} offen offset:1536 sc1 ; @pair{p}", "s_mov_b64 exec, -1"])
        return g
    def conv(self):
        a = self.a
        a("v_lshrrev_b32 v5, 4, v1\nv_and_b32 v9, 7, v1\nv_lshrrev_b32 v10, 1, v9\nv_xor_b32 v10, v10, v5\nv_lshlrev_b32 v10, 5, v10\nv_and_b32 v9, 1, v9\nv_lshl_add_u32 v10, v9, 4, v10\nv_lshrrev_b32 v9, 3, v1\nv_lshl_add_u32 v8, v9, 10, v10")
        a(f"s_lshl_b32 s{ST+3}, s{S_WAVE}, 17\ns_lshl_b32 s{ST+4}, s{S_P}, 7\ns_add_u32 s{ST+3}, s{ST+3}, s{ST+4}\ns_lshl_b32 s{ST+4}, s{S_WAVE}, 14")
        wo = [[f"s_add_u32 m0, s{ST+4}, {n*1024}", f"s_add_u32 s{ST+9}, s{ST+3}, {n*8192}", f"buffer_load_dwordx4 v8, {S4(SRD_WO)}, s{ST+9} offen lds ; @wo"] for n in range(16)]
        f2post = [f"s_lshl_b32 s{ST}, s{S_HEAD}, 5", f"s_add_u32 s{ST}, s{ST}, s{S_J}", f"s_lshl_b32 s{ST}, s{ST}, 3", f"s_add_u32 s{ST}, s{ST}, {WS_F2}"] + self.flag_instrs(ST, 4, 6)
        masks = self.mask_fill()
        masks += [f"s_lshl_b32 s{ST+5}, s{S_HEAD}, 6", f"s_lshl_b32 s{ST+6}, s{S_J}, 1", f"s_add_u32 s{ST+5}, s{ST+5}, s{ST+6}", f"s_lshl_b32 s{ST+5}, s{ST+5}, 11", f"s_add_u32 s{ST+5}, s{ST+5}, {WS_KV - 8*2048}",
                  "v_lshlrev_b32 v216, 4, v1", "v_lshrrev_b32 v177, 5, v1", "v_and_b32 v179, 15, v1", "v_lshl_add_u32 v177, v177, 4, v179", "v_lshlrev_b32 v217, 4, v177"]
        a("s_waitcnt lgkmcnt(0)")
        self.stamp('convstart')
        nwo = 0
        for n in range(4):
            m = self.conv_mfmas(n & 1, n == 0)
            rd = self.conv_reads((n+1) & 1, n+1) if n < 3 else []
            for i, ins in enumerate(m):
                gi = 36*n + i
                a(ins)
                if rd: a(rd.pop(0))
                elif masks: a(masks.pop(0))
                if masks and i % 2 == 0: a(masks.pop(0))
                if gi % 8 == 4 and nwo < 16: a(J(wo[nwo])); nwo += 1
                if gi == 58:
                    a("s_waitcnt vmcnt(@kvst)"); a(J(f2post))
                if gi == 110:
                    a(f"s_lshl_b32 s{ST}, s{S_HEAD}, 5\ns_add_u32 s{ST}, s{ST}, s{S_J}\ns_sub_u32 s{ST}, s{ST}, s{S_NH}\ns_lshl_b32 s{ST}, s{ST}, 3\ns_add_u32 s{ST}, s{ST}, {WS_F2}")
                    a(f"v_lshlrev_b32 v9, 3, v1\nv_add_u32 v9, s{ST}, v9")
                    a(f"s_lshl_b32 s{ST+1}, 1, s{S_NH}\ns_sub_u32 s{ST+1}, s{ST+1}, 1\ns_max_u32 s{ST+1}, s{ST+1}, 1")
                    a(f"s_mov_b32 exec_lo, s{ST+1}\ns_mov_b32 exec_hi, 0"); a(self.poll_ld(9, 10, 'pf2')); a("s_mov_b64 exec, -1")
            if n < 3: a("s_waitcnt lgkmcnt(0)")
        while masks: a(masks.pop(0))
        assert nwo == 16
        self.stamp('convmfma')
        L = a.label('nopoll2')
        a("s_waitcnt vmcnt(@pf2)")
        a(f"s_cmp_eq_u32 s{S_NH}, 0\ns_cbranch_scc1 {L}")
        a(f"s_lshl_b32 s{ST+1}, 1, s{S_NH}\ns_sub_u32 s{ST+1}, s{ST+1}, 1\ns_mov_b32 exec_lo, s{ST+1}\ns_mov_b32 exec_hi, 0")
        self.poll_check(9, 10, 'f2')
        a(f"s_mov_b64 exec, -1\n{L}:")
        self.stamp('f2seen')
        with Cap(a) as cap: self.conv_epilogue()
        halo = self.halo_groups(0)
        out = []; cnt = 8; blocked = 0
        for ins in cap.out:
            if ins.startswith(';#noint'): blocked = 1; continue
            if ins.startswith(';#int'): blocked = 0; continue
            out.append(ins)
            if not blocked and not ins.endswith(':'):
                cnt += 1
                if cnt >= 6 and halo and not ins.startswith('s_cmp'): out += halo.pop(0); cnt = 0
        assert not halo
        a(J(out))
    def conv_epilogue(self):
        a = self.a
        Lr1 = a.label('rho1'); Lj = a.label('rhojoin')
        a(f"s_lshl_b32 s{ST}, s{S_WAVE}, 12\ns_add_u32 s{ST}, s{ST}, {EX}\nv_lshlrev_b32 v4, 4, v1\nv_add_u32 v5, s{ST}, v4")
        a(f"s_xor_b32 s{ST}, s{S_WAVE}, 1\ns_lshl_b32 s{ST}, s{ST}, 12\ns_add_u32 s{ST}, s{ST}, {EX}\nv_add_u32 v6, s{ST}, v4")
        a.lines.append(";#noint")
        a(f"s_and_b32 s{ST+1}, s{S_WAVE}, 1\ns_cmp_lg_u32 s{ST+1}, 0\ns_cbranch_scc1 {Lr1}")
        for t in range(4): a(f"ds_write_b128 v5, v[{160+4*t}:{163+4*t}] offset:{1024*t}")
        a(f"s_branch {Lj}\n{Lr1}:")
        for t in range(4): a(f"ds_write_b128 v5, v[{144+4*t}:{147+4*t}] offset:{1024*t}")
        a("s_waitcnt lgkmcnt(0)")
        for r in range(16): a(f"v_mov_b32 v{144+r}, v{160+r}")
        a(f"{Lj}:")
        a.lines.append(";#int")
        a(f"s_lshr_b32 s{ST}, s{S_WAVE}, 1\ns_mul_i32 s{ST}, s{ST}, {UC}\ns_lshl_b32 s{ST+2}, s{ST+1}, 11\ns_sub_u32 s{ST}, s{ST}, s{ST+2}\ns_add_u32 s{ST}, s{ST}, {U + 4088 - 1536}")
        a(f"v_and_b32 v7, 15, v1\nv_lshrrev_b32 v8, 4, v1\nv_lshlrev_b32 v9, 5, v7\nv_lshl_add_u32 v9, v8, 3, v9\nv_sub_u32 v10, s{ST}, v9")
        for tl in range(4): a(f"ds_read_b64 v[{176+2*tl}:{177+2*tl}], v10 offset:{512*(3-tl)}")
        a(f"s_lshl_b32 s{ST}, s{S_D}, 16\ns_and_b32 s{ST+2}, s{S_D}, 0xffff0000\ns_cmp_lt_u32 s{S_WAVE}, 2\ns_cselect_b32 s{ST}, s{ST}, s{ST+2}")
        a(f"s_lshl_b32 s{ST+1}, s{S_WAVE}, 11\ns_add_u32 s{ST+1}, s{ST+1}, {TP}\nv_add_u32 v9, s{ST+1}, v9")
        a("s_waitcnt lgkmcnt(0)\ns_barrier")
        for t in range(4): a(f"ds_read_b128 v[{16+4*t}:{19+4*t}], v6 offset:{1024*t}")
        for tl in range(4):
            lo, hi = 176+2*tl, 177+2*tl
            acc = 144 + 4*tl; px = 16 + 4*tl
            a(f"v_and_b32 v32, 0xffff0000, v{hi}\nv_lshlrev_b32 v33, 16, v{hi}\nv_and_b32 v34, 0xffff0000, v{lo}\nv_lshlrev_b32 v35, 16, v{lo}")
            for r in range(4): a(f"v_fmac_f32 v{acc+r}, s{ST}, v{32+r}")
            if tl == 0: a("s_waitcnt lgkmcnt(0)")
            for r in range(4): a(f"v_add_f32 v{acc+r}, v{acc+r}, v{px+r}")
            a(f"v_cvt_pk_bf16_f32 v{36+2*tl}, v{acc}, v{acc+1}\nv_cvt_pk_bf16_f32 v{37+2*tl}, v{acc+2}, v{acc+3}")
            a(f"ds_write_b64 v9, v[{36+2*tl}:{37+2*tl}] offset:{512*tl}")
        a(f"v_add_u32 v4, s{ST+1}, v4")
        a("s_waitcnt lgkmcnt(0)")
        a("ds_read_b128 v[208:211], v4\nds_read_b128 v[212:215], v4 offset:1024")
        a(f"s_lshl_b32 s{ST}, s{S_XCD}, 6\ns_lshl_b32 s{ST+1}, s{S_I}, 1\ns_add_u32 s{ST}, s{ST}, s{ST+1}\ns_lshr_b32 s{ST+1}, s{S_WAVE}, 1\ns_add_u32 s{ST}, s{ST}, s{ST+1}\ns_lshl_b32 s{ST}, s{ST}, 12")
        a(f"s_and_b32 s{ST+1}, s{S_WAVE}, 1\ns_lshl_b32 s{ST+1}, s{ST+1}, 11\ns_add_u32 s{ST+7}, s{ST}, s{ST+1}\ns_add_u32 s{ST+7}, s{ST+7}, {WS_ZT}")

    def attention(self):
        a = self.a
        S, P, CN, O, MD, MK, QF = A_S, A_P, A_CN, A_O, A_MD, A_MK, A_QF
        def Kf(t): return f"a[{4*t}:{4*t+3}]" if t < 8 else f"v[{232+4*(t-8)}:{235+4*(t-8)}]"
        def Vf(t, h): return f"a[{32+8*t+4*h}:{35+8*t+4*h}]" if t < 8 else f"v[{240+8*(t-8)+4*h}:{243+8*(t-8)+4*h}]"
        def maxreduce(src, dst, init=None):
            o = []
            if init is None: o.append(f"v_max3_f32 v{dst}, v{src}, v{src+1}, v{src+2}"); rest = list(range(src+3, src+16))
            else: rest = list(range(src, src+16))
            while len(rest) >= 2: o.append(f"v_max3_f32 v{dst}, v{dst}, v{rest[0]}, v{rest[1]}"); rest = rest[2:]
            if rest: o.append(f"v_max_f32 v{dst}, v{dst}, v{rest[0]}")
            return o
        def finish_max(m, b, bias, tmp):
            o = [f"v_mov_b32 v{tmp}, v{m}", "s_nop 1", f"v_permlane32_swap_b32 v{m}, v{tmp}", "s_nop 1", f"v_max_f32 v{m}, v{m}, v{tmp}"]
            if bias: o.append(f"v_add_f32 v{m}, {bias}, v{m}")
            o.append(f"v_sub_f32 v{m}, 0, v{m}")
            return o + [f"v_mov_b32 v{CN[b]+r}, v{m}" for r in range(16)]
        a(f"{MF32} v[{S[0]}:{S[0]+15}], {Kf(8)}, v[{QF[0]}:{QF[0]+3}], v[{MD}:{MD+15}]")
        a(f"{MF32} v[{S[1]}:{S[1]+15}], {Kf(8)}, v[{QF[1]}:{QF[1]+3}], 0")
        a(f"{MF32} v[{O[0]}:{O[0]+15}], {Kf(9)}, v[{QF[1]}:{QF[1]+3}], v[{MD}:{MD+15}]")
        a("s_waitcnt lgkmcnt(0)\nv_lshlrev_b32 v5, 4, v1")
        a(f"buffer_store_dwordx4 v[208:211], v5, {WS}, s{ST+7} offen sc1 ; @zst")
        a(f"buffer_store_dwordx4 v[212:215], v5, {WS}, s{ST+7} offen offset:1024 sc1 ; @zst")
        a(f"s_lshl_b32 s{ST}, s{S_XCD}, 1\ns_and_b32 s{ST+1}, s{S_WAVE}, 1\ns_add_u32 s{ST}, s{ST}, s{ST+1}\ns_lshl_b32 s{ST}, s{ST}, 6")
        a(f"s_lshl_b32 s{ST+1}, s{S_I}, 1\ns_add_u32 s{ST}, s{ST}, s{ST+1}\ns_lshr_b32 s{ST+1}, s{S_WAVE}, 1\ns_add_u32 s{ST}, s{ST}, s{ST+1}\ns_lshl_b32 s{ST}, s{ST}, 3\ns_add_u32 s{ST+7}, s{ST}, {WS_F3}")
        a(f"s_lshl_b32 s{ST}, s{S_XCD}, 1\ns_lshr_b32 s{ST+1}, s{S_I}, 4\ns_add_u32 s{ST}, s{ST}, s{ST+1}\ns_lshl_b32 s{ST}, s{ST}, 6\ns_lshl_b32 s{ST+1}, s{S_WAVE}, 4\ns_add_u32 s{ST}, s{ST}, s{ST+1}\ns_lshl_b32 s{ST}, s{ST}, 3\ns_add_u32 s{ST}, s{ST}, {WS_F3}")
        a(f"v_lshlrev_b32 v219, 3, v1\nv_add_u32 v218, s{ST}, v219")
        a(f"s_lshl_b32 s{ST}, s{S_J}, 8\ns_add_u32 s{ST}, s{ST}, {WS_F5}\nv_add_u32 v219, s{ST}, v219")
        a(f"s_lshl_b32 s{ST}, s{S_I}, 6\ns_lshl_b32 s{ST+1}, s{S_WAVE}, 4\ns_add_u32 s{ST}, s{ST}, s{ST+1}\ns_lshl_b32 s{ST}, s{ST}, 10\ns_lshl_b32 s{ST+1}, s{S_XCD}, 7\ns_add_u32 s{ST+8}, s{ST}, s{ST+1}")
        a("v_and_b32 v4, 15, v1\nv_lshrrev_b32 v5, 4, v1\nv_lshlrev_b32 v4, 10, v4\nv_lshl_add_u32 v220, v5, 5, v4")
        a("v_mov_b32 v152, 0\nv_mov_b32 v153, 0\nv_mov_b32 v154, 0\nv_mov_b32 v155, 0")
        a(f"s_mov_b32 s{ST}, 0x42800000")
        mx = maxreduce(S[0], 10) + maxreduce(S[1], 11) + maxreduce(O[0], 11, init=11) + finish_max(10, 0, f"s{ST}", 8) + finish_max(11, 1, f"s{ST}", 9)
        fill = self.halo_groups(1)
        out = []; cnt = 0
        for k, ins in enumerate(mx):
            out.append(ins)
            nxt = mx[k+1] if k+1 < len(mx) else ''
            if ins.startswith('v_') and not nxt.startswith(('s_nop', 'v_permlane')) and not ins.startswith('v_permlane'):
                cnt += 1
                if cnt % 10 == 0 and fill: out += fill.pop(0)
        for gset in fill: out += gset
        a(J(out))
        self.stamp('attnstart')
        Lmain = a.label('attn_main'); Ldone = a.label('attn_done'); Lfb = a.label('attn_fallback'); Lok = a.label('attn_ok'); Lj0 = a.label('attn_j0')
        a(f"{Lmain}:")
        items = [(0, 8, 'D'), (1, 9, 'D'), (1, 8, None)]
        pairs = [[(0,7,None),(1,7,None),(0,6,None),(1,6,None)], [(0,5,None),(1,5,None),(0,4,None),(1,4,None)],
                 [(0,3,None),(1,3,None),(0,2,None),(1,2,None)], [(0,1,None),(1,1,'F'),(0,0,'F')]]
        allitems = items + [x for p in pairs for x in p]
        first_pv = {0: True, 1: True}
        def smfma(n):
            b, t, m = allitems[n]
            return f"{MF32} v[{S[n&1]}:{S[n&1]+15}], {Kf(t)}, v[{QF[b]}:{QF[b]+3}], v[{CN[b]}:{CN[b]+15}]"
        pair_start = {}; n = len(items)
        for pi, p in enumerate(pairs): pair_start[n] = pi; n += len(p)
        late = {0: self.halo_groups(2)[:2], 1: self.halo_groups(2)[2:], 3: self.halo_groups(3)[:2], 4: self.halo_groups(3)[2:],
                2: [[f"buffer_load_dwordx4 v[168:171], v220, {S4(SRD_Q)}, s{ST+8} offen {self.NT}; @q"], [f"buffer_load_dwordx4 v[172:175], v220, {S4(SRD_Q)}, s{ST+8} offen offset:16 {self.NT}; @q"]],
                15: [self.exec_n(16) + [self.poll_ld(218, 152, 'pf3'), "s_mov_b64 exec, -1"], self.exec_n(32) + [self.poll_ld(219, 154, 'pf5'), "s_mov_b64 exec, -1"]]}
        a(smfma(0)); a("s_nop 7\ns_nop 3")
        pvp = []; N = len(allitems)
        for n, (b, t, m) in enumerate(allitems):
            s = S[n & 1]; p = P[n & 1]; nxt = n + 1
            lg = list(late.get(n, []))
            ex = lambda r0, r1: [a(f"v_exp_f32 v{s+r}, v{s+r}") for r in range(r0, r1)]
            ex(0, 2)
            if pvp: a(pvp[0])
            ex(2, 5)
            if pvp: a(pvp[1])
            pvp = []
            if lg: a(J(lg.pop(0)))
            ex(5, 9)
            if nxt < N:
                if nxt in pair_start:
                    pi = pair_start[nxt]
                    a(f"s_waitcnt vmcnt(@pair{pi})")
                    if pi == 1: a(J(self.flag_instrs(ST+7, 2, 4)))
                a(smfma(nxt))
            ex(9, 13)
            if lg: a(J(lg.pop(0)))
            ex(13, 16)
            for r in range(8): a(f"v_cvt_pk_bf16_f32 v{p+r}, v{s+2*r}, v{s+2*r+1}")
            if m == 'D':
                for r in range(8): a(f"v_and_b32 v{p+r}, v{MK+r}, v{p+r}")
            elif m == 'F':
                for r in range(8): a(f"v_bfi_b32 v{p+r}, v{MK+r}, 0, v{p+r}")
            c = "0" if first_pv[b] else f"v[{O[b]}:{O[b]+15}]"
            first_pv[b] = False
            pv = [f"{MF32} v[{O[b]}:{O[b]+15}], {Vf(t,0)}, v[{p}:{p+3}], {c}", f"{MF32} v[{O[b]}:{O[b]+15}], {Vf(t,1)}, v[{p+4}:{p+7}], v[{O[b]}:{O[b]+15}]"]
            if nxt in pair_start or nxt == N:
                a("s_nop 1"); a(pv[0]); a(pv[1])
                if nxt in pair_start:
                    pi = pair_start[nxt]
                    a(f"s_cmp_le_u32 s{S_NH}, {pi}\ns_cbranch_scc1 {Lj0 if pi == 0 else Ldone}")
            else: pvp = pv
        a(f"{Ldone}:")
        self.stamp('attndone')
        a("s_nop 7\ns_nop 3")
        for b in range(2): a(f"v_mov_b32 v{10+b}, v{O[b]+8}\nv_mov_b32 v8, v{O[b]+8}\ns_nop 1\nv_permlane32_swap_b32 v{10+b}, v8")
        a(f"s_mov_b32 s{ST}, 0x71800000")
        a(f"v_cmp_gt_f32 vcc, s{ST}, v10\ns_nop 4\ns_mov_b64 s[{ST+2}:{ST+3}], vcc")
        a(f"v_cmp_gt_f32 vcc, s{ST}, v11\ns_nop 4\ns_and_b64 s[{ST+2}:{ST+3}], s[{ST+2}:{ST+3}], vcc")
        a(f"s_cmp_lg_u32 s{S_FB}, 0\ns_cbranch_scc1 {Lok}")
        a(f"s_cmp_eq_u64 s[{ST+2}:{ST+3}], -1\ns_cbranch_scc0 {Lfb}\n{Lok}:")
        with Cap(a) as cap:
            a(f"{Lj0}:")
            a("s_waitcnt vmcnt(0)"); a(J(self.flag_instrs(ST+7, 2, 4))); a(f"s_branch {Ldone}")
            a(f"{Lfb}:")
            a(f"s_mov_b32 s{ST}, {hex(NEG)}")
            for r in range(16): a(f"v_sub_f32 v{128+r}, s{ST}, v{MD+r}")
            a(f"v_mov_b32 v10, s{ST}\nv_mov_b32 v11, s{ST}\ns_waitcnt vmcnt(0)")
            Lf = a.label('fb_done')
            for (b, t, m) in sorted(allitems, key=lambda x: -x[1]):
                if t < 8 and (t % 2 == 1) and b == 0: a(f"s_cmp_le_u32 s{S_NH}, {(7-t)//2}\ns_cbranch_scc1 {Lf}")
                c = {None: "0", 'D': f"v[{MD}:{MD+15}]", 'F': "v[128:143]"}[m]
                a(f"{MF32} v[16:31], {Kf(t)}, v[{QF[b]}:{QF[b]+3}], {c}\ns_nop 7\ns_nop 3")
                a(J(maxreduce(16, 10+b, init=10+b))); a("s_nop 7")
            a(f"{Lf}:")
            a(J(finish_max(10, 0, None, 8) + finish_max(11, 1, None, 9)))
            a(f"s_mov_b32 s{S_FB}, 1\ns_branch {Lmain}")
        self.tail_blocks.append(cap.out)

    def tail(self):
        a = self.a
        O = A_O
        a("s_waitcnt vmcnt(0)")
        a(J(self.exec_n(16))); self.poll_check(218, 152, 'f3'); a("s_mov_b64 exec, -1")
        a(f"s_lshl_b32 s{ST}, s{S_XCD}, 6\ns_lshl_b32 s{ST+1}, s{S_WAVE}, 4\ns_add_u32 s{ST}, s{ST}, s{ST+1}\ns_lshl_b32 s{ST}, s{ST}, 12\ns_lshl_b32 s{ST+1}, s{S_I}, 7\ns_add_u32 s{ST}, s{ST}, s{ST+1}\ns_add_u32 s{ST+5}, s{ST}, {WS_ZT}")
        a(f"v_lshrrev_b32 v6, 3, v1\nv_and_b32 v3, 7, v1\nv_lshlrev_b32 v24, 12, v6\nv_lshl_add_u32 v24, v3, 4, v24\ns_add_u32 s{ST+6}, s{ST+5}, {8*4096}")
        a(f"buffer_load_dwordx4 v[156:159], v24, {WS}, s{ST+5} offen sc1 ; @z")
        a(f"buffer_load_dwordx4 v[160:163], v24, {WS}, s{ST+6} offen sc1 ; @z")
        self.stamp('f3seen')
        a(J(self.of_store_addr(2, 3, ST)))
        for b in range(2): a(f"v_rcp_f32 v{10+b}, v{10+b}")
        for b in range(2):
            for r in range(8): a(f"v_mul_f32 v{O[b]+r}, v{O[b]+r}, v{10+b}")
            for p in range(4): a(f"v_cvt_pk_bf16_f32 v{16+4*b+p}, v{O[b]+2*p}, v{O[b]+2*p+1}")
            a(f"s_add_u32 s{ST+1}, s{ST}, {b*32768}")
            if b == 0:
                pass
            a(f"buffer_store_dwordx4 v[{16+4*b}:{19+4*b}], v2, {WS}, s{ST+1} offen sc1 ; @ost")
        self.stamp('ostored')
        a(J(self.exec_n(32))); self.poll_check(219, 154, 'f5'); a("s_mov_b64 exec, -1")
        a(f"s_lshl_b32 s{ST}, s{S_WAVE}, 11\ns_add_u32 s{ST}, s{ST}, {TP}\nv_lshlrev_b32 v25, 4, v1\nv_add_u32 v25, s{ST}, v25")
        a(f"v_lshrrev_b32 v6, 4, v1\nv_bfe_u32 v3, v1, 2, 2\nv_lshl_add_u32 v6, v6, 4, v3\nv_lshlrev_b32 v6, 7, v6\nv_and_b32 v3, 3, v1\nv_lshl_add_u32 v6, v3, 3, v6\ns_lshl_b32 s{ST}, s{S_WAVE}, 5\ns_add_u32 s{ST}, s{ST}, {TP}\nv_add_u32 v26, s{ST}, v6")
        a(f"s_lshl_b32 s{ST}, s{S_I}, 6\ns_lshl_b32 s{ST+1}, s{S_WAVE}, 4\ns_add_u32 s{ST}, s{ST}, s{ST+1}\ns_lshl_b32 s{ST}, s{ST}, 11\ns_lshl_b32 s{ST+1}, s{S_XCD}, 7\ns_add_u32 s{ST}, s{ST}, s{ST+1}\ns_add_u32 s{ST+4}, s{ST}, 1024")
        a(f"v_and_b32 v6, 15, v1\nv_lshrrev_b32 v3, 4, v1\nv_lshlrev_b32 v6, 11, v6\nv_lshl_add_u32 v27, v3, 5, v6")
        for i in range(8): a(f"v_lshlrev_b32 v{32+2*i}, 16, v{168+i}\nv_and_b32 v{33+2*i}, 0xffff0000, v{168+i}")
        a("v_lshrrev_b32 v3, 5, v1\nv_bfe_u32 v4, v1, 4, 1\nv_bfe_u32 v5, v1, 2, 2\nv_lshlrev_b32 v6, 4, v3\nv_lshl_add_u32 v6, v4, 2, v6\nv_add_u32 v6, v6, v5\nv_lshlrev_b32 v6, 7, v6")
        a("v_and_b32 v7, 3, v1\nv_lshl_add_u32 v6, v7, 3, v6\nv_lshrrev_b32 v5, 1, v5\nv_lshl_add_u32 v5, v4, 1, v5")
        for t in range(4): a(f"v_xor_b32 v7, {t}, v5\nv_lshl_add_u32 v{84+t}, v7, 5, v6")
        a(f"s_lshl_b32 s{ST+5}, s{S_J}, 2\ns_add_u32 s{ST+5}, s{ST+5}, s{S_WAVE}\ns_lshl_b32 s{ST+5}, s{ST+5}, 14\ns_add_u32 s{ST+5}, s{ST+5}, {WS_OF}\nv_lshlrev_b32 v2, 4, v1")
        a("s_waitcnt vmcnt(@z)")
        a("ds_write_b128 v25, v[156:159]\nds_write_b128 v25, v[160:163] offset:1024")
        a("s_waitcnt lgkmcnt(0)\ns_barrier")
        self.stamp('zlds')
        for n in range(4): a(f"ds_read_b64_tr_b16 v[{48+2*n}:{49+2*n}], v26 offset:{512*n}")
        OF = 96
        def ofld(m, tag=True):
            return [f"s_add_u32 s{ST+6}, s{ST+5}, {(m//4)*4096}", f"buffer_load_dwordx4 v[{OF+4*m}:{OF+4*m+3}], v2, {WS}, s{ST+6} offen offset:{1024*(m%4)} sc1" + (f" ; @of{m}" if tag else " ; @cond")]
        a("s_waitcnt lgkmcnt(0)")
        comp = []
        for i in range(8): comp += [f"v_lshlrev_b32 v{64+2*i}, 16, v{48+i}", f"v_and_b32 v{65+2*i}, 0xffff0000, v{48+i}"]
        comp += [f"v_mul_f32 v{32+i}, v{32+i}, v{64+i}" for i in range(16)]
        comp += [f"v_cvt_pk_bf16_f32 v{16+i}, v{32+2*i}, v{33+2*i}" for i in range(8)]
        a(J(interleave(comp, [ofld(m) for m in range(16)], every=3)))
        a(f"buffer_store_dwordx4 v[16:19], v27, {S4(SRD_OUT)}, s{ST+4} offen ; @bst")
        a(f"buffer_store_dwordx4 v[20:23], v27, {S4(SRD_OUT)}, s{ST+4} offen offset:16 ; @bst")
        self.stamp('ofissued')
        def reads(m, st): return [f"ds_read_b64_tr_b16 v[{24+16*st+4*t+2*e}:{25+16*st+4*t+2*e}], v{84+t} offset:{m*4096 + e*1024}" for t in range(4) for e in range(2)]
        a(J(reads(0, 0)))
        a(f"s_mov_b32 s{S_TMO}, 0")
        for m in range(16):
            st = m & 1; r = OF + 4*m
            Lc = a.label(f'ofchk{m}'); Lr = a.label(f'ofretry{m}')
            a(f"s_waitcnt vmcnt(@of{m})")
            a(f"{Lc}:")
            a(f"v_max3_u32 v3, v{r}, v{r+1}, v{r+2}\nv_max_u32 v3, v3, v{r+3}\nv_cmp_eq_u32 vcc, -1, v3")
            if m < 15: a(J(reads(m+1, st ^ 1)))
            else: a("s_nop 4")
            a(f"s_cbranch_vccnz {Lr}")
            a(f"{Lc}_ok:")
            a("s_waitcnt lgkmcnt(8)" if m < 15 else "s_waitcnt lgkmcnt(0)")
            for t in range(4):
                c = "0" if m == 0 else f"v[{64+4*t}:{67+4*t}]"
                a(f"{MF16} v[{64+4*t}:{67+4*t}], v[{24+16*st+4*t}:{27+16*st+4*t}], v[{r}:{r+3}], {c}")
            with Cap(a) as cap:
                a(f"{Lr}:")
                a(f"s_add_u32 s{S_TMO}, s{S_TMO}, 1\ns_cmp_gt_u32 s{S_TMO}, 0x20000\ns_cbranch_scc1 {Lc}_ok")
                a(J(ofld(m, False))); a("s_waitcnt vmcnt(0)")
                a(f"v_max3_u32 v3, v{r}, v{r+1}, v{r+2}\nv_max_u32 v3, v3, v{r+3}\nv_cmp_eq_u32 vcc, -1, v3\ns_nop 4\ns_cbranch_vccnz {Lr}\ns_branch {Lc}_ok")
            self.tail_blocks.append(cap.out)
        a(f"s_lshl_b32 s{ST}, s{S_J}, 6\ns_lshl_b32 s{ST+1}, s{S_WAVE}, 4\ns_add_u32 s{ST}, s{ST}, s{ST+1}\ns_lshl_b32 s{ST}, s{ST}, 11\ns_lshl_b32 s{ST+1}, s{S_P}, 7\ns_add_u32 s{ST}, s{ST}, s{ST+1}")
        a("v_and_b32 v2, 15, v1\nv_lshlrev_b32 v2, 11, v2\nv_bfe_u32 v3, v1, 4, 1\nv_lshl_add_u32 v2, v3, 5, v2\nv_lshrrev_b32 v3, 5, v1\nv_lshl_add_u32 v2, v3, 4, v2\ns_nop 1")
        for t in range(4): a(f"v_cvt_pk_bf16_f32 v{8+2*t}, v{64+4*t}, v{65+4*t}\nv_cvt_pk_bf16_f32 v{9+2*t}, v{66+4*t}, v{67+4*t}")
        a("s_nop 1\nv_permlane16_swap_b32 v8, v10\nv_permlane16_swap_b32 v9, v11\nv_permlane16_swap_b32 v12, v14\nv_permlane16_swap_b32 v13, v15\ns_nop 1")
        a(f"buffer_store_dwordx4 v[8:11], v2, {S4(SRD_OUT)}, s{ST} offen")
        a(f"buffer_store_dwordx4 v[12:15], v2, {S4(SRD_OUT)}, s{ST} offen offset:64")
        self.stamp('end')

    def build(self):
        a = self.a
        self.startup(); self.pre(); self.qkv(); self.qkv_epilogue(); self.conv(); self.attention(); self.tail()
        self.dump_stamps()
        if 'dbgs' in self.exp:
            L = a.label('dbgskip')
            a("s_waitcnt vmcnt(0) lgkmcnt(0)")
            a(f"s_cmp_lg_u32 s{S_WAVE}, 1\ns_cbranch_scc1 {L}\ns_cmp_lg_u32 s2, 109\ns_cbranch_scc1 {L}")
            a("v_mov_b32 v4, 8\ns_mov_b64 exec, 1")
            for n, r in enumerate(self.STAMP_REGS[:len(self.stamp_slots)][:14]):
                a(f"s_sub_u32 s84, s{r}, s100\nv_mov_b32 v2, s84\nbuffer_store_dword v2, v4, {DBG}, 0 offen offset:{4*n}\ns_nop 1")
            a(f"s_mov_b64 exec, -1\n{L}:")
        if 'dbgt' in self.exp:
            L = a.label('dbgskip')
            a(f"s_memrealtime s[84:85]\ns_memtime s[86:87]\ns_waitcnt vmcnt(0) lgkmcnt(0)")
            a(f"s_cmp_lg_u32 s{S_WAVE}, 0\ns_cbranch_scc1 {L}")
            a(f"s_and_b32 s88, s2, 63\ns_cmp_lg_u32 s88, 0\ns_cbranch_scc1 {L}")
            a(f"s_sub_u32 s84, s84, s{S_T}\ns_sub_u32 s86, s86, s100\ns_lshr_b32 s88, s2, 6\ns_lshl_b32 s88, s88, 3\ns_add_u32 s88, s88, 8")
            a(f"v_mov_b32 v2, s84\nv_mov_b32 v3, s86\nv_mov_b32 v4, s88\ns_mov_b64 exec, 1")
            a(f"buffer_store_dwordx2 v[2:3], v4, {DBG}, 0 offen\ns_mov_b64 exec, -1\n{L}:")
        a("L_end:\ns_endpgm")
        a.lines = resolve_vmcnt(a.lines)
        for blk in self.tail_blocks: a.lines += blk
        a("L_codeend:")
        probs = check_hazards(a.lines)
        for p in probs[:12]: print(p, file=sys.stderr)
        hdr = open('cdna_kernels/' + NAME + '.s.ref').read().split('\n')
        cm = [l for l in hdr if l.startswith(';') and '@launch' not in l and 'Override' not in l and 'grid=ceil' not in l][:13]
        head = J(cm) + f"\n; @launch grid=(256,1,1) block=(256,1,1) lds={LDS_BYTES}\n"
        head += f'.amdgcn_target "amdgcn-amd-amdhsa--gfx950"\n.text\n.globl {NAME}_kernel\n.p2align 8\n.type {NAME}_kernel,@function\n{NAME}_kernel:\n'
        tail = f'''.section .rodata,"a"
.p2align 6
.amdhsa_kernel {NAME}_kernel
  .amdhsa_next_free_vgpr 512
  .amdhsa_next_free_sgpr 102
  .amdhsa_accum_offset 256
  .amdhsa_group_segment_fixed_size 0
  .amdhsa_kernarg_size 96
  .amdhsa_user_sgpr_count 2
  .amdhsa_user_sgpr_kernarg_segment_ptr 1
  .amdhsa_system_sgpr_workgroup_id_x 1
.end_amdhsa_kernel
'''
        return head + a.text() + tail, len(probs), self.stamp_slots

if __name__ == '__main__':
    ap = argparse.ArgumentParser()
    ap.add_argument('-o', default='cdna_kernels/' + NAME + '.s')
    ap.add_argument('--stamps', default=''); ap.add_argument('--exp', default='')
    args = ap.parse_args()
    g = Gen(stamps=[x for x in args.stamps.split(',') if x], exp=args.exp)
    txt, np_, slots = g.build()
    open(args.o, 'w').write(txt)
    print('wrote', args.o, 'lines', txt.count('\n'), 'hazards', np_, 'stamps', slots)
```

```python
import sys, argparse, struct
from asmlib import *

NAME = "concat_heads__sliding_block__ssm_conv_h3__prompt"
WS_F1, WS_F2, WS_F3, WS_F5 = 0x0000, 0x2000, 0x4000, 0x8000
WS_KVT = 0x100000; WS_ZT = 0x300000; WS_KV = 0x500000; WS_OF = 0x900000
WS_STAMP = 0xB00000; WS_SIZE = 0xB40000
TZ = 98304; TZC = 4160
U = TZ + 8*TZC; UC = 4608
TP = U + 2*UC
WSH = TP + 8192
LDS_BYTES = WSH + 1024
EX = 65536
S_WAVE, S_XCD, S_I, S_J, S_P = 3, 4, 5, 6, 7
SRD_X, SRD_W, SRD_K, SRD_V, SRD_Q, SRD_H, SRD_WO, SRD_OUT, SRD_WS, SRD_DBG, SRD_SH = 8,12,16,20,24,28,32,36,40,44,48
S_T = 52; S_D = 54; S_TMO = 55
PTR = 56
S_HT = 64
S_XOFF, S_WOFF, S_M0B, S_NH = 80, 81, 82, 83
ST = 84
S_FB = 94; S_HEAD = 95
S_SEL0, S_SEL1 = 96, 97
S_M0W = 98
QSCALE = 0.25 * 1.4426950408889634
def f2u(x): return struct.unpack('<I', struct.pack('<f', x))[0]
def S4(b): return f"s[{b}:{b+3}]"
WS, DBG = S4(SRD_WS), S4(SRD_DBG)
MF32 = "v_mfma_f32_32x32x16_bf16"; MF16 = "v_mfma_f32_16x16x32_bf16"
NEG = 0xf149f2ca
A_S = [16, 32]; A_P = [48, 56]; A_CN = [64, 80]; A_O = [96, 112]; A_MD = 184; A_MK = 200; A_QF = [224, 228]
J = '\n'.join

class Gen:
    STAMP_REGS = [16, 18, 20, 22, 48, 50, 56, 58, 60, 62, 72, 74, 76, 78]
    def __init__(self, stamps=None, exp=''):
        self.a = Asm(); self.stamps = stamps or []; self.exp = exp.split(',')
        self.stamp_slots = []; self.tail_blocks = []
        self.NT = 'nt ' if 'nt' in self.exp else ''
        self.DNT = ' nt' if 'dmant' in self.exp else ''
        self.PNT = ' nt' if 'pfnt' in self.exp else ''

    def srd(self, base, ptr, size):
        return [f"s_mov_b32 s{base}, s{ptr}", f"s_mov_b32 s{base+1}, s{ptr+1}", f"s_mov_b32 s{base+2}, {size}", f"s_mov_b32 s{base+3}, 0x20000"]
    def stamp(self, name):
        if name not in self.stamps: return
        n = len(self.stamp_slots)
        if n >= len(self.STAMP_REGS): return
        r = self.STAMP_REGS[n]; self.stamp_slots.append(name)
        self.a(f"s_memtime s[{r}:{r+1}]")
    def dump_stamps(self):
        if not self.stamp_slots or 'dbgs' in self.exp: return
        a = self.a
        a("s_waitcnt lgkmcnt(0)")
        a(f"s_lshl_b32 s{ST}, s2, 2\ns_add_u32 s{ST}, s{ST}, s{S_WAVE}\ns_lshl_b32 s{ST}, s{ST}, 7\ns_add_u32 s{ST}, s{ST}, {WS_STAMP}")
        a(f"v_mov_b32 v3, s{ST}\ns_mov_b64 exec, 1")
        for n, r in enumerate([100] + self.STAMP_REGS[:len(self.stamp_slots)]):
            a(f"v_mov_b32 v2, s{r}\nbuffer_store_dword v2, v3, {WS}, 0 offen offset:{4*n}\ns_nop 1")
        a("s_mov_b64 exec, -1")
    def exec_n(self, nl):
        mask = (1 << nl) - 1
        return [f"s_mov_b32 exec_lo, {hex(mask & 0xffffffff)}", f"s_mov_b32 exec_hi, {hex(mask >> 32)}"]
    def poll_ld(self, voff, vtmp, tag=''):
        return f"buffer_load_dwordx2 v[{vtmp}:{vtmp+1}], v{voff}, {WS}, 0 offen sc1" + (f" ; @{tag}" if tag else "")
    def poll_check(self, voff, vtmp, name):
        a = self.a
        L = a.label(name); Ld = a.label(name+'_done'); Lc = a.label(name+'_chk')
        a(f"s_mov_b32 s{S_TMO}, 0\ns_branch {Lc}")
        a(f"{L}:")
        a(self.poll_ld(voff, vtmp, 'cond'))
        a("s_waitcnt vmcnt(0)")
        a(f"{Lc}:")
        a(f"v_cmp_ne_u64 vcc, s[{S_T}:{S_T+1}], v[{vtmp}:{vtmp+1}]")
        a(f"s_add_u32 s{S_TMO}, s{S_TMO}, 1")
        a("s_cbranch_vccz " + Ld)
        a(f"s_cmp_lt_u32 s{S_TMO}, 0x20000")
        a(f"s_cbranch_scc1 {L}")
        a(f"{Ld}:")
    def flag_instrs(self, soff_sgpr, vt0, vt2, tag='flag'):
        return [f"v_mov_b32 v{vt0}, s{soff_sgpr}", f"v_mov_b32 v{vt2}, s{S_T}", f"v_mov_b32 v{vt2+1}, s{S_T+1}", "s_mov_b64 exec, 1",
                f"buffer_store_dwordx2 v[{vt2}:{vt2+1}], v{vt0}, {WS}, 0 offen sc1 ; @{tag}", "s_mov_b64 exec, -1"]
    def dma_groups(self, s):
        buf = s % 3
        X, W = S4(SRD_X), S4(SRD_W)
        t = f" ; @dma{s}"
        lds = "nt lds" if self.DNT else "lds"
        return [[f"s_add_u32 m0, s{S_M0B}, {buf*32768}", f"s_add_u32 s{ST+9}, s{S_XOFF}, {s*128}", f"buffer_load_dwordx4 v100, {X}, s{ST+9} offen {lds}" + t],
                [f"buffer_load_dwordx4 v101, {X}, s{ST+9} offen offset:1024 {lds}" + t],
                [f"s_add_u32 m0, s{S_M0W}, {buf*32768}", f"s_add_u32 s{ST+8}, s{S_WOFF}, {s*64*3072}", f"buffer_load_dwordx4 v102, {W}, s{ST+8} offen {lds}" + t],
                [f"buffer_load_dwordx4 v103, {W}, s{ST+8} offen offset:1024 {lds}" + t],
                [f"buffer_load_dwordx4 v102, {W}, s{ST+8} offen offset:2048 {lds}" + t, f"s_add_u32 m0, s{S_M0W}, {buf*32768 + 3072}"],
                ["s_nop 0", f"buffer_load_dwordx4 v248, {W}, s{ST+8} offen {lds}" + t] if s == 0 else [f"buffer_load_dwordx4 v248, {W}, s{ST+8} offen {lds}" + t],
                [f"buffer_load_dwordx4 v249, {W}, s{ST+8} offen offset:1024 {lds}" + t],
                [f"buffer_load_dwordx4 v248, {W}, s{ST+8} offen offset:2048 {lds}" + t]]
    def of_store_addr(self, v, t0, sreg):
        return [f"v_bfe_u32 v{v}, v1, 4, 1", f"v_lshlrev_b32 v{v}, 14, v{v}", f"v_lshrrev_b32 v{t0}, 5, v1", f"v_lshlrev_b32 v{t0}, 8, v{t0}", f"v_add_u32 v{v}, v{v}, v{t0}",
                f"v_and_b32 v{t0}, 15, v1", f"v_lshl_add_u32 v{v}, v{t0}, 4, v{v}",
                f"s_lshl_b32 s{sreg}, s{S_J}, 16", f"s_lshr_b32 s{ST+1}, s{S_HEAD}, 1", f"s_lshl_b32 s{ST+1}, s{ST+1}, 10", f"s_add_u32 s{sreg}, s{sreg}, s{ST+1}",
                f"s_and_b32 s{ST+1}, s{S_HEAD}, 1", f"s_lshl_b32 s{ST+1}, s{ST+1}, 9", f"s_add_u32 s{sreg}, s{sreg}, s{ST+1}", f"s_add_u32 s{sreg}, s{sreg}, {WS_OF}"]

    def startup(self):
        a = self.a
        a("L_entry:")
        a(f"s_load_dwordx16 s[{PTR}:{PTR+15}], s[0:1], 0")
        a(f"s_load_dwordx8 s[{PTR+16}:{PTR+23}], s[0:1], 64")
        a(f"s_memrealtime s[{S_T}:{S_T+1}]")
        if self.stamps: a("s_memtime s[100:101]")
        if 'dbgt' in self.exp: a("s_memtime s[100:101]\ns_memrealtime s[78:79]") if False else None
        if 'dbgt' in self.exp: a("s_memtime s[100:101]")
        a("s_cmp_ge_u32 s2, 256\ns_cbranch_scc1 L_end")
        a("s_getpc_b64 s[8:9]\nL_pc:")
        a("s_sub_u32 s8, s8, (L_pc - L_entry)\ns_subb_u32 s9, s9, 0\ns_mov_b32 s10, (L_codeend - L_entry)\ns_mov_b32 s11, 0x20000")
        a(f"s_lshr_b32 s{S_I}, s2, 3\ns_and_b32 s{ST}, s{S_I}, 7\ns_lshl_b32 s{ST}, s{ST}, 12\nv_lshlrev_b32 v2, 4, v0")
        a(f"buffer_load_dwordx4 v[216:219], v2, s[8:11], s{ST} offen")
        a("v_and_b32 v1, 63, v0\nv_lshrrev_b32 v2, 6, v0")
        a(f"s_and_b32 s{S_XCD}, s2, 7")
        a(f"v_readfirstlane_b32 s{S_WAVE}, v2")
        a("v_and_b32 v4, 7, v1\nv_lshrrev_b32 v5, 3, v1")
        a(f"s_lshl_b32 s{ST}, s{S_I}, 6\ns_lshl_b32 s{ST+2}, s{S_XCD}, 7\ns_lshl_b32 s{ST+1}, s{S_WAVE}, 4\ns_add_u32 s{ST}, s{ST}, s{ST+1}\ns_lshl_b32 s{ST}, s{ST}, 10\ns_add_u32 s{ST}, s{ST}, s{ST+2}")
        a(f"v_lshlrev_b32 v6, 11, v5\nv_lshl_add_u32 v6, v4, 4, v6\nv_add_u32 v6, s{ST}, v6")
        a("v_subrev_u32 v7, 3072, v6\nv_subrev_u32 v8, 2048, v6\nv_subrev_u32 v9, 1024, v6")
        a(f"s_lshr_b32 s{ST}, s{S_XCD}, 1\ns_lshl_b32 s{ST}, s{ST}, 3\ns_and_b32 s{ST+1}, s{S_I}, 7\ns_add_u32 s{S_J}, s{ST}, s{ST+1}")
        a(f"s_and_b32 s{ST}, s{S_XCD}, 1\ns_lshl_b32 s{ST}, s{ST}, 2\ns_lshr_b32 s{ST+1}, s{S_I}, 3\ns_add_u32 s{S_P}, s{ST}, s{ST+1}")
        a(f"s_lshl_b32 s{ST}, s{S_XCD}, 9\nv_lshlrev_b32 v10, 4, v1\nv_add_u32 v10, s{ST}, v10")
        a("v_lshrrev_b32 v2, 4, v1\nv_xor_b32 v3, v4, v2\nv_lshlrev_b32 v3, 4, v3")
        a(f"s_lshl_b32 s{ST}, s{S_WAVE}, 14\nv_lshl_add_u32 v100, v5, 10, v3\nv_add_u32 v100, s{ST}, v100")
        a(f"v_xor_b32 v101, 64, v100\nv_add_u32 v101, {8192-1024}, v101")
        a("v_lshrrev_b32 v3, 1, v4\nv_and_b32 v2, 1, v2\nv_lshlrev_b32 v2, 1, v2\nv_xor_b32 v3, v3, v2\nv_lshlrev_b32 v3, 5, v3")
        a("v_and_b32 v2, 1, v4\nv_lshl_add_u32 v3, v2, 4, v3\nv_mul_u32_u24 v102, 3072, v5\nv_add_u32 v102, v102, v3\nv_xor_b32 v103, 32, v102")
        a("v_add_u32 v248, 24576, v102\nv_add_u32 v249, 24576, v103")
        a(f"s_lshl_b32 s{S_XOFF}, s{S_J}, 16")
        a(f"s_mul_i32 s{S_WOFF}, s{S_WAVE}, {16*3072}\ns_lshl_b32 s{ST}, s{S_P}, 7\ns_add_u32 s{S_WOFF}, s{S_WOFF}, s{ST}")
        a(f"s_lshl_b32 s{S_M0B}, s{S_WAVE}, 11\ns_mul_i32 s{S_M0W}, s{S_WAVE}, 6144\ns_add_u32 s{S_M0W}, s{S_M0W}, 8192")
        if 'early' in self.exp: a("s_memtime s[90:91]")
        a("s_waitcnt lgkmcnt(0)")
        if 'early' in self.exp:
            a("s_memtime s[92:93]\ns_waitcnt lgkmcnt(0)\nv_mov_b32 v12, s90\nv_accvgpr_write_b32 a200, v12\nv_mov_b32 v12, s92\nv_accvgpr_write_b32 a201, v12")
        a(J(self.srd(SRD_K, PTR+8, 2097152) + self.srd(SRD_V, PTR+10, 2097152)))
        Ln = a.label('nononce')
        a(f"s_or_b32 s{ST}, s2, s{S_WAVE}\ns_cmp_lg_u32 s{ST}, 0\ns_cbranch_scc1 {Ln}")
        a(J(self.srd(SRD_DBG, PTR+20, 256)))
        a(f"s_or_b32 s{S_T+1}, s{S_T+1}, 0x80000000")
        a(f"v_mov_b32 v14, s{S_T}\nv_mov_b32 v15, s{S_T+1}\nv_mov_b32 v2, 0\ns_mov_b64 exec, 1")
        a(f"buffer_store_dwordx2 v[14:15], v2, {DBG}, 0 offen sc1 ; @cond")
        a(f"s_mov_b64 exec, -1\n{Ln}:")
        K, V = S4(SRD_K), S4(SRD_V)
        for d, v, srd, off in ((28,6,K,0),(32,6,K,1024),(24,9,K,0),(20,8,K,0),(16,7,K,0),(36,6,V,0),(40,6,V,1024)):
            a(f"buffer_load_dwordx4 v[{d}:{d+3}], v{v}, {srd}, 0 offen offset:{off} {self.NT}; @kv")
        a(J(self.srd(SRD_X, PTR+0, 2097152) + self.srd(SRD_W, PTR+2, 1572864) + self.srd(SRD_SH, PTR+12, 4096)))
        a(f"s_mov_b32 m0, {WSH}\ns_mov_b32 exec_hi, 0")
        a(f"buffer_load_dwordx4 v10, {S4(SRD_SH)}, 0 offen lds ; @kv")
        a("s_mov_b32 exec_hi, -1")
        for g in self.dma_groups(0): a(J(g))
        if 'pf' in self.exp: self.xw_prefetch_addr()
        if 'pf' in self.exp: a(J(self.xw_prefetch(0)))
        if 'pf' in self.exp and 'pf2' not in self.exp: a(J(self.xw_prefetch(1)))
        self.stamp('issued')
        a(J(self.srd(SRD_WS, PTR+22, WS_SIZE) + self.srd(SRD_DBG, PTR+20, 256) + self.srd(SRD_Q, PTR+6, 2097152) + self.srd(SRD_WO, PTR+4, 524288) + self.srd(SRD_OUT, PTR+18, 4194304)))
        a(f"s_lshl_b32 s{ST}, s{S_XCD}, 7\ns_lshl_b32 s{ST+1}, s{S_I}, 2\ns_add_u32 s{ST}, s{ST}, s{ST+1}")
        a(f"s_load_dword s{S_D}, s[{PTR+16}:{PTR+17}], s{ST}")
        a(f"s_lshl_b32 s{ST}, s{S_XCD}, 6\ns_lshl_b32 s{ST+1}, s{S_I}, 1\ns_add_u32 s{ST}, s{ST}, s{ST+1}\ns_lshr_b32 s{ST+1}, s{S_WAVE}, 1\ns_add_u32 s{ST+3}, s{ST}, s{ST+1}")
        a(f"s_lshl_b32 s{ST}, s{ST+3}, 12")
        a(f"s_add_u32 s{SRD_H}, s{PTR+14}, s{ST}\ns_addc_u32 s{SRD_H+1}, s{PTR+15}, 0\ns_mov_b32 s{SRD_H+2}, 4096\ns_mov_b32 s{SRD_H+3}, 0x20000")
        a(f"s_load_dwordx8 s[{S_HT}:{S_HT+7}], s[{SRD_H}:{SRD_H+1}], 4064")
        a(f"s_min_u32 s{S_NH}, s{S_J}, 4\ns_lshl_b32 s{S_HEAD}, s{S_P}, 2\ns_add_u32 s{S_HEAD}, s{S_HEAD}, s{S_WAVE}\ns_mov_b32 s{S_FB}, 0")
        a(f"s_mov_b32 s{S_SEL0}, 0x05040100\ns_mov_b32 s{S_SEL1}, 0x07060302")
        a(f"s_and_b32 s{ST}, s{S_WAVE}, 1\ns_lshl_b32 s{ST}, s{ST}, 11\nv_lshlrev_b32 v13, 5, v1\nv_add_u32 v13, s{ST}, v13")
        a("v_subrev_u32 v11, 32, v13\nv_subrev_u32 v152, 16, v13")
        a("v_and_b32 v2, 31, v1\nv_lshrrev_b32 v3, 5, v1\nv_bfe_u32 v4, v2, 1, 3\nv_xor_b32 v3, v3, v4\nv_lshlrev_b32 v2, 7, v2")
        for kk in range(4):
            a(f"v_xor_b32 v4, {2*kk}, v3\nv_lshl_add_u32 v{104+kk}, v4, 4, v2\nv_add_u32 v{108+kk}, 0x10000, v{104+kk}")
        a("v_bfe_u32 v2, v1, 4, 1\nv_lshrrev_b32 v3, 5, v1\nv_bfe_u32 v4, v1, 2, 2")
        a("v_mul_u32_u24 v5, 3072, v3\nv_lshl_add_u32 v5, v4, 7, v5")
        a("v_and_b32 v154, 3, v1\nv_lshl_add_u32 v5, v154, 3, v5")
        a(f"v_and_b32 v154, 2, v4\nv_xor_b32 v154, s{S_WAVE}, v154")
        a(f"v_lshl_add_u32 v113, v154, 5, v5\nv_add_u32 v113, {8192+2048}, v113")
        a("v_xor_b32 v154, v154, v2\nv_lshl_add_u32 v112, v154, 5, v5\nv_lshl_add_u32 v112, v2, 10, v112\nv_add_u32 v112, 8192, v112")
        a("v_add_u32 v114, 0x10000, v112\nv_add_u32 v115, 0x10000, v113")
        a("v_mov_b32 v160, 0\nv_mov_b32 v161, 0\nv_mov_b32 v162, 0\nv_mov_b32 v163, 0")
        a(f"v_lshrrev_b32 v2, 5, v1\nv_mul_u32_u24 v2, {UC}, v2\nv_and_b32 v3, 31, v1\nv_lshl_add_u32 v2, v3, 4, v2\nv_add_u32 v2, {U+4096}, v2")
        a("ds_write_b128 v2, v[160:163]")
        a(f"v_and_b32 v4, 7, v1\nv_lshrrev_b32 v5, 3, v1\ns_lshl_b32 s{ST}, s{S_WAVE}, 3\nv_add_u32 v2, s{ST}, v5\nv_sub_u32 v2, 31, v2")
        a("v_lshrrev_b32 v3, 2, v2\nv_xor_b32 v3, v3, v4\nv_lshlrev_b32 v3, 4, v3\nv_and_b32 v2, 3, v2\nv_lshl_add_u32 v3, v2, 2, v3\nv_lshl_add_u32 v3, v4, 10, v3")
        a(f"v_add_u32 v155, {TP}, v3")
        a(f"v_lshlrev_b32 v153, 6, v4\nv_add_u32 v153, {WSH}, v153")
        a(f"s_lshl_b32 s{ST}, s{S_WAVE}, 1\nv_xor_b32 v156, s{ST}, v4\nv_lshlrev_b32 v156, 4, v156\nv_lshl_add_u32 v156, v5, 7, v156")
        a(f"s_lshl_b32 s{ST+1}, s{S_WAVE}, 11\ns_add_u32 s{ST+1}, s{ST+1}, {TP}\nv_add_u32 v156, s{ST+1}, v156\nv_xor_b32 v157, 16, v156")
        a(f"s_lshl_b32 s{ST}, s{S_XCD}, 6\ns_lshl_b32 s{ST+1}, s{S_WAVE}, 4\ns_add_u32 s{ST}, s{ST}, s{ST+1}\ns_lshl_b32 s{ST}, s{ST}, 12")
        a(f"s_lshl_b32 s{ST+1}, s{S_I}, 7\ns_sub_u32 s{ST}, s{ST}, s{ST+1}\ns_add_u32 s{ST}, s{ST}, {WS_KVT + 1984*2}")
        a(f"v_lshlrev_b32 v158, 12, v5\nv_lshl_add_u32 v158, v4, 4, v158\nv_add_u32 v158, s{ST}, v158\nv_add_u32 v159, {8*4096}, v158")
        a(f"s_lshl_b32 s{ST}, s{ST+3}, 12\ns_and_b32 s{ST+1}, s{S_WAVE}, 1\ns_lshl_b32 s{ST+1}, s{ST+1}, 10\ns_add_u32 s{ST}, s{ST}, s{ST+1}\ns_add_u32 s{ST}, s{ST}, {WS_KVT}")
        a(f"v_lshlrev_b32 v6, 4, v1\nv_add_u32 v7, s{ST}, v6")
        a(f"s_lshr_b32 s{ST}, s{S_WAVE}, 1\ns_mul_i32 s{ST+2}, s{ST}, {UC}\ns_add_u32 s{ST+2}, s{ST+2}, s{ST+1}\ns_add_u32 s{ST+2}, s{ST+2}, {U}\nv_add_u32 v8, s{ST+2}, v6")
        a(f"s_mul_i32 s{ST}, s{ST}, {4*TZC}\ns_lshl_b32 s{ST+2}, s{ST+1}, 1\ns_add_u32 s{ST+2}, s{ST+2}, s{ST}\ns_add_u32 s{ST+2}, s{ST+2}, {TZ}")
        a(f"v_lshlrev_b32 v154, 5, v1\nv_add_u32 v154, s{ST+2}, v154\ns_add_u32 s{ST}, s{ST}, {TZ + 4096}\nv_mov_b32 v12, s{ST}")
        a("v_and_b32 v2, 31, v1\nv_mov_b32 v3, 0\nv_mov_b32 v4, 0x3f803f80\nv_cmp_eq_u32 vcc, 16, v2\ns_nop 1\nv_cndmask_b32 v3, v3, v4, vcc\ns_nop 0")
        for r in range(32, 96): a(f"v_accvgpr_write_b32 a{r}, v3")
        a("v_mov_b32 v164, -1\nv_mov_b32 v165, -1\nv_mov_b32 v166, -1\nv_mov_b32 v167, -1")
        a(J(self.of_store_addr(9, 2, ST+7)))
        a("s_waitcnt lgkmcnt(0)")
        for i in range(8): a(f"v_mov_b32 v{126+i}, s{S_HT+i}")
        a("v_mov_b32 v134, 0\nv_mov_b32 v135, 0")
        DB = list(range(126, 136))
        a(J(self.toep_valu(DB, 224, 232, 240)))
        a("s_mov_b64 exec, 1"); a(J(self.toep_writes(DB, 224, 232, 240, 12))); a("s_mov_b64 exec, -1")

    def xw_prefetch_addr(self):
        a = self.a
        a(f"s_lshr_b32 s{ST}, s{S_XCD}, 1\ns_lshl_b32 s{ST}, s{ST}, 9\ns_lshl_b32 s{ST+1}, s{S_I}, 4\ns_add_u32 s{ST}, s{ST}, s{ST+1}\ns_lshl_b32 s{ST+1}, s{S_WAVE}, 2\ns_add_u32 s{ST}, s{ST}, s{ST+1}\ns_lshl_b32 s{ST}, s{ST}, 10")
        a(f"v_lshrrev_b32 v2, 3, v1\nv_lshlrev_b32 v2, 10, v2\nv_and_b32 v3, 7, v1\nv_lshl_add_u32 v2, v3, 6, v2\nv_add_u32 v250, s{ST}, v2")
        a(f"s_lshl_b32 s{ST}, s{S_I}, 3\ns_lshl_b32 s{ST+1}, s{S_WAVE}, 1\ns_add_u32 s{ST}, s{ST}, s{ST+1}\ns_mul_i32 s{ST}, s{ST}, 3072\ns_and_b32 s{ST+1}, s{S_XCD}, 1\ns_lshl_b32 s{ST+1}, s{ST+1}, 9\ns_add_u32 s{ST}, s{ST}, s{ST+1}")
        a("v_subrev_u32 v2, 24, v1\nv_ashrrev_i32 v3, 31, v2\nv_and_b32 v4, 24, v3\nv_add_u32 v2, v2, v4\nv_not_b32 v3, v3\nv_and_b32 v3, 3072, v3")
        a(f"v_lshrrev_b32 v4, 3, v2\nv_lshl_add_u32 v3, v4, 10, v3\nv_and_b32 v2, 7, v2\nv_lshl_add_u32 v3, v2, 6, v3\nv_add_u32 v251, s{ST}, v3")
    def xw_prefetch(self, ph):
        return ["s_mov_b32 exec_hi, 0", f"buffer_load_dword v252, v250, {S4(SRD_X)}, 0 offen offset:{512*ph}{self.PNT} ; @pf",
                "s_mov_b32 exec_hi, 0xffff", f"s_mov_b32 s{ST}, {256*3072*ph}", f"buffer_load_dword v253, v251, {S4(SRD_W)}, s{ST} offen{self.PNT} ; @pf", "s_mov_b32 exec_hi, -1"]

    def toep_valu(self, D, E, F, G):
        o = [f"v_alignbit_b32 v{E+i}, v{D[i+1]}, v{D[i]}, 16" for i in range(8)]
        o += [f"v_mov_b32 v{F+i}, v{D[i+1]}" for i in range(8)]
        o += [f"v_alignbit_b32 v{G+i}, v{D[i+2]}, v{D[i+1]}, 16" for i in range(8)]
        return o
    def toep_writes(self, D, E, F, G, vaddr):
        o = [f"ds_write_b128 v{vaddr}, v[{D[0]}:{D[0]+3}]", f"ds_write_b128 v{vaddr}, v[{D[4]}:{D[4]+3}] offset:16"]
        for r, R in ((1, E), (2, F), (3, G)):
            o += [f"ds_write_b128 v{vaddr}, v[{R}:{R+3}] offset:{r*TZC}", f"ds_write_b128 v{vaddr}, v[{R+4}:{R+7}] offset:{r*TZC+16}"]
        return o

    def pre(self):
        a = self.a
        a("s_waitcnt vmcnt(@kv)")
        self.stamp('predata')
        for i in range(4): a(f"ds_read_b128 v[{44+4*i}:{47+4*i}], v153 offset:{16*i}")
        main = []
        for d in range(4):
            for par in range(2):
                sel = f"s{S_SEL1 if par else S_SEL0}"; ch = 2*d + par; o = 60 + 8*(ch % 4)
                r = lambda row: 16 + 4*(row+3) + d
                un = (lambda dst, src: f"v_lshlrev_b32 v{dst}, 16, v{src}") if par == 0 else (lambda dst, src: f"v_and_b32 v{dst}, 0xffff0000, v{src}")
                main.append([f"v_perm_b32 v{o}, v{r(-1)}, v{r(0)}, {sel}", f"v_perm_b32 v{o+1}, v{r(0)}, v{r(1)}, {sel}",
                             f"v_perm_b32 v{o+2}, v{r(-3)}, v{r(-2)}, {sel}", f"v_perm_b32 v{o+3}, v{r(-2)}, v{r(-1)}, {sel}",
                             un(o+4, 36+d), un(o+5, 40+d),
                             f"v_dot2_f32_bf16 v{o+6}, v{o}, v{44+2*ch}, 0", f"v_dot2_f32_bf16 v{o+7}, v{o+1}, v{44+2*ch}, 0",
                             f"v_dot2_f32_bf16 v{o+6}, v{o+2}, v{45+2*ch}, v{o+6}", f"v_dot2_f32_bf16 v{o+7}, v{o+3}, v{45+2*ch}, v{o+7}",
                             f"v_mul_f32 v{o+6}, v{o+6}, v{o+4}", f"v_mul_f32 v{o+7}, v{o+7}, v{o+5}", f"v_cvt_pk_bf16_f32 v{92+ch}, v{o+7}, v{o+6}"])
        seq = []
        for k in range(0, 8, 2):
            A, B = main[k], main[k+1]
            seq += A[:6] + B[:6]
            if k == 0: seq.append("s_waitcnt lgkmcnt(0)")
            seq += A[6:10] + B[6:10] + A[10:12] + B[10:12] + [A[12], B[12]]
        a(J(interleave(seq, self.dma_groups(1), every=12)))
        for ch in range(8): a(f"ds_write_b32 v155, v{92+ch} offset:{ch*128}")
        self.stamp('precomp')
        a("s_waitcnt vmcnt(@dma0) lgkmcnt(0)\ns_barrier")
        self.stamp('stage0')
        a("ds_read_b128 v[16:19], v156\nds_read_b128 v[20:23], v157 offset:1024")
        self.qkv_reads(0, 0, 0)
        a(f"buffer_store_dwordx4 v[164:167], v9, {WS}, s{ST+7} offen sc1 ; @st0")
        a(f"s_add_u32 s{ST+7}, s{ST+7}, 32768")
        a("s_waitcnt lgkmcnt(7)")
        a(f"buffer_store_dwordx4 v[16:19], v158, {WS}, 0 offen sc1 ; @st0")
        a(f"buffer_store_dwordx4 v[164:167], v9, {WS}, s{ST+7} offen sc1 ; @st0")
        a("s_waitcnt lgkmcnt(6)")
        a(f"buffer_store_dwordx4 v[20:23], v159, {WS}, 0 offen sc1 ; @st0")
        a("v_mov_b32 v3, 0")
        a(f"buffer_load_dwordx2 v[14:15], v3, {DBG}, 0 offen sc1 ; @nonce")

    def qkv_reads(self, s, kk, st):
        a = self.a
        if 'noreads' in self.exp and s >= 1: return
        buf = s % 3; b = 60 + 16*st
        if buf < 2: xa, wqk, wv, base = 104+kk, 112, 113, buf*32768
        else:       xa, wqk, wv, base = 108+kk, 114, 115, 0
        a(f"ds_read_b128 v[{b}:{b+3}], v{xa} offset:{base}")
        a(f"ds_read_b64_tr_b16 v[{b+8}:{b+9}], v{wqk} offset:{base + kk*6144}")
        a(f"ds_read_b64_tr_b16 v[{b+10}:{b+11}], v{wqk} offset:{base + kk*6144 + 512}")
        a(f"ds_read_b128 v[{b+4}:{b+7}], v{xa} offset:{base + 4096}")
        a(f"ds_read_b64_tr_b16 v[{b+12}:{b+13}], v{wv} offset:{base + kk*6144}")
        a(f"ds_read_b64_tr_b16 v[{b+14}:{b+15}], v{wv} offset:{base + kk*6144 + 512}")
    def qkv_mfma(self, st, first=False):
        b = 60 + 16*st
        c = lambda r: "0" if first else f"v[{r}:{r+15}]"
        return [f"{MF32} v[160:175], v[{b+8}:{b+11}], v[{b}:{b+3}], {c(160)}", f"{MF32} v[176:191], v[{b+8}:{b+11}], v[{b+4}:{b+7}], {c(176)}",
                f"{MF32} v[192:207], v[{b}:{b+3}], v[{b+12}:{b+15}], {c(192)}", f"{MF32} v[208:223], v[{b+4}:{b+7}], v[{b+12}:{b+15}], {c(208)}"]
    def nonce_fix(self):
        a = self.a
        Lok = a.label('nonce_ok'); Lp = a.label('nonce_poll')
        a(f"v_readfirstlane_b32 s{S_T}, v14\nv_readfirstlane_b32 s{S_T+1}, v15\ns_nop 0")
        a(f"s_cmp_lg_u32 s{S_T+1}, 0\ns_cbranch_scc1 {Lok}\ns_mov_b32 s{S_TMO}, 0\n{Lp}:")
        a(f"v_mov_b32 v3, 0\nbuffer_load_dwordx2 v[14:15], v3, {DBG}, 0 offen sc1 ; @cond")
        a("s_waitcnt vmcnt(0)")
        a(f"v_readfirstlane_b32 s{S_T}, v14\nv_readfirstlane_b32 s{S_T+1}, v15")
        a(f"s_add_u32 s{S_TMO}, s{S_TMO}, 1\ns_cmp_gt_u32 s{S_TMO}, 0x20000\ns_cbranch_scc1 {Lok}")
        a(f"s_cmp_eq_u32 s{S_T+1}, 0\ns_cbranch_scc1 {Lp}\n{Lok}:")

    def qkv(self):
        a = self.a
        DA = list(range(116, 126)); H = S4(SRD_H)
        tzA = self.toep_valu(DA, 136, 144, 92)
        pend = self.dma_groups(2); vfill = []
        if 'pf2' in self.exp: pend = pend + [self.xw_prefetch(1)]
        def emit_mfma(st, first=False, nv=3):
            nonlocal pend, vfill
            for i, ins in enumerate(self.qkv_mfma(st, first)):
                a(ins)
                if i % 2 == 1 and pend: a(J(pend.pop(0)))
                for _ in range(nv):
                    if vfill: a(vfill.pop(0))
        for s in range(8):
            self.qkv_reads(s, 1, 1)
            if s == 7:
                a("ds_write_b128 v8, v[16:19]\nds_write_b128 v8, v[20:23] offset:2048")
                a("s_waitcnt lgkmcnt(8)")
            else: a("s_waitcnt lgkmcnt(6)")
            emit_mfma(0, first=(s == 0))
            self.qkv_reads(s, 2, 0)
            if s == 7:
                assert not vfill
                a(J(self.toep_writes(DA, 136, 144, 92, 154)))
                a("s_waitcnt lgkmcnt(14)")
            else: a("s_waitcnt lgkmcnt(6)")
            emit_mfma(1)
            self.qkv_reads(s, 3, 1)
            a("s_waitcnt lgkmcnt(6)")
            emit_mfma(0)
            if s < 7:
                while pend: a(J(pend.pop(0)))
                a(f"s_waitcnt vmcnt(@dma{s+1}) lgkmcnt(0)" if s < 6 else "s_waitcnt vmcnt(0) lgkmcnt(0)")
                if 'nobar' not in self.exp or s in (0, 6): a("s_barrier")
                if s == 1:
                    self.nonce_fix()
                    a(f"s_lshl_b32 s{ST}, s{S_XCD}, 2\ns_add_u32 s{ST}, s{ST}, s{S_WAVE}\ns_lshl_b32 s{ST}, s{ST}, 5\ns_add_u32 s{ST}, s{ST}, s{S_I}\ns_lshl_b32 s{ST}, s{ST}, 3\ns_add_u32 s{ST}, s{ST}, {WS_F1}")
                    a(J(self.flag_instrs(ST, 2, 4)))
                    a(f"s_lshl_b32 s{ST}, s{S_J}, 5\ns_add_u32 s{ST}, s{ST}, s{S_HEAD}\ns_lshl_b32 s{ST}, s{ST}, 3\ns_add_u32 s{ST}, s{ST}, {WS_F5}")
                    a(J(self.flag_instrs(ST, 2, 4)))
                if s + 3 < 8: pend = self.dma_groups(s + 3) if 'nodma' not in self.exp else [[f"buffer_load_dword v252, v250, {S4(SRD_X)}, 0 offen ; @dma{s+3}"]]
                if s == 3:
                    a(f"s_lshl_b32 s{ST}, s{S_XCD}, 2\ns_lshr_b32 s{ST+1}, s{S_I}, 3\ns_add_u32 s{ST}, s{ST}, s{ST+1}\ns_lshl_b32 s{ST}, s{ST}, 8\ns_add_u32 s{ST}, s{ST}, {WS_F1}")
                    a(f"v_lshlrev_b32 v2, 3, v1\nv_add_u32 v2, s{ST}, v2")
                    a(J(self.exec_n(32) + [self.poll_ld(2, 4, 'pf1'), "s_mov_b64 exec, -1"]))
                if s == 4:
                    a("s_waitcnt vmcnt(@pf1)")
                    a(J(self.exec_n(32)))
                    self.poll_check(2, 4, 'f1')
                    a("s_mov_b64 exec, -1")
                    pend = [[f"buffer_load_dwordx4 v[16:19], v7, {WS}, 0 offen sc1 ; @u"], [f"buffer_load_dwordx4 v[20:23], v7, {WS}, 0 offen offset:2048 sc1 ; @u"]] + pend + \
                           [[f"buffer_load_dwordx4 v[116:119], v11, {H}, 0 offen {self.NT}; @h"], [f"buffer_load_dwordx4 v[120:123], v152, {H}, 0 offen {self.NT}; @h"], [f"buffer_load_dwordx2 v[124:125], v13, {H}, 0 offen {self.NT}; @h"]]
                if s == 6: vfill = list(tzA)
                self.qkv_reads(s+1, 0, 0)
                self.stamp(f'b{s}')
            else:
                a("s_waitcnt lgkmcnt(0)\ns_barrier")
                self.stamp('b7')
                self.conv_addr()
                a(J(self.conv_reads_mixed_first()))
            emit_mfma(1)
        assert not vfill and not pend

    def conv_addr(self):
        a = self.a
        a("v_and_b32 v4, 15, v1\nv_lshrrev_b32 v5, 4, v1\nv_add_u32 v9, 1, v4\nv_and_b32 v10, 3, v9\nv_lshrrev_b32 v9, 2, v9")
        a(f"v_mul_u32_u24 v2, {TZC}, v10\nv_lshl_add_u32 v2, v9, 3, v2\nv_lshl_add_u32 v2, v5, 4, v2")
        a(f"s_lshr_b32 s{ST}, s{S_WAVE}, 1\ns_mul_i32 s{ST+1}, s{ST}, {4*TZC}\ns_and_b32 s{ST+2}, s{S_WAVE}, 1\ns_lshl_b32 s{ST+2}, s{ST+2}, 8\ns_add_u32 s{ST+1}, s{ST+1}, s{ST+2}\ns_add_u32 s{ST+1}, s{ST+1}, {TZ}")
        a(f"v_add_u32 v2, s{ST+1}, v2")
        a(f"s_mul_i32 s{ST+1}, s{ST}, {UC}\ns_add_u32 s{ST+1}, s{ST+1}, s{ST+2}\ns_add_u32 s{ST+1}, s{ST+1}, {U+480}")
        a(f"v_lshlrev_b32 v3, 4, v5\nv_lshlrev_b32 v9, 5, v4\nv_sub_u32 v3, v3, v9\nv_add_u32 v3, s{ST+1}, v3")
    def conv_reads(self, st, n):
        A = 16 + 64*st; B = 48 + 64*st; o = []
        for i in range(8):
            o.append(f"ds_read_b128 v[{B+4*i}:{B+4*i+3}], v3 offset:{512*(7-i) + 64*n}")
            o.append(f"ds_read_b64 v[{A+4*i}:{A+4*i+1}], v2 offset:{512*i + 64*n}")
            o.append(f"ds_read_b64 v[{A+4*i+2}:{A+4*i+3}], v2 offset:{512*i + 64*n + 8}")
        return o
    def conv_reads_mixed_first(self):
        o = self.conv_reads(0, 0)
        self.deferred = [x for x in o if 'v[76:79]' in x]
        return [x for x in o if 'v[76:79]' not in x]
    def conv_mfmas(self, st, first):
        A = 16 + 64*st; B = 48 + 64*st; o = []
        for i in range(8):
            for t in range(i, 8):
                acc = 144 + 4*t
                c = "0" if (first and i == 0) else f"v[{acc}:{acc+3}]"
                o.append(f"{MF16} v[{acc}:{acc+3}], v[{A+4*i}:{A+4*i+3}], v[{B+4*(t-i)}:{B+4*(t-i)+3}], {c}")
        return o
    def qkv_epilogue(self):
        a = self.a
        self.stamp('qkvdone')
        a(f"s_mov_b32 s{ST+2}, {hex(f2u(QSCALE))}")
        a(f"s_lshl_b32 s{ST}, s{S_HEAD}, 6\ns_lshl_b32 s{ST+1}, s{S_J}, 1\ns_add_u32 s{ST}, s{ST}, s{ST+1}\ns_lshl_b32 s{ST}, s{ST}, 11\ns_add_u32 s{ST}, s{ST}, {WS_KV}")
        a(f"s_add_u32 s{ST+1}, s{ST}, 2048")
        a("v_lshrrev_b32 v4, 5, v1\nv_and_b32 v5, 15, v1\nv_lshl_add_u32 v4, v4, 4, v5\nv_lshlrev_b32 v4, 4, v4\ns_nop 4")
        a(J(self.deferred))
        for b in range(2):
            acc = 160 + 16*b
            for p in range(4): a(f"v_cvt_pk_bf16_f32 v{232+4*b+p}, v{acc+8+2*p}, v{acc+8+2*p+1}")
        a(f"buffer_store_dwordx4 v[232:235], v6, {WS}, s{ST} offen sc1 ; @kvst")
        for p in range(8): a(f"v_cvt_pk_bf16_f32 v{240+p}, v{192+2*p}, v{192+2*p+1}")
        a(f"buffer_store_dwordx4 v[236:239], v6, {WS}, s{ST+1} offen sc1 ; @kvst")
        for p in range(8): a(f"v_cvt_pk_bf16_f32 v{248+p}, v{208+2*p}, v{208+2*p+1}")
        a("s_mov_b32 exec_lo, 0xffff\ns_mov_b32 exec_hi, 0xffff")
        for b in range(2):
            for h in range(2): a(f"buffer_store_dwordx4 v[{240+8*b+4*h}:{243+8*b+4*h}], v4, {WS}, s{ST+b} offen offset:{1024+512*h} sc1 ; @kvst")
        a("s_mov_b64 exec, -1")
        for b in range(2):
            acc = 160 + 16*b
            for r in range(8): a(f"v_mul_f32 v{acc+r}, s{ST+2}, v{acc+r}")
            for p in range(4): a(f"v_cvt_pk_bf16_f32 v{224+4*b+p}, v{acc+2*p}, v{acc+2*p+1}")
        a("s_mov_b32 exec_lo, 0x10000\ns_mov_b32 exec_hi, 0x10000")
        for r in range(240, 256): a(f"v_mov_b32 v{r}, 0x3f803f80")
        a("s_mov_b64 exec, -1")
    def mask_fill(self):
        o = ["v_and_b32 v176, 31, v1", "v_lshrrev_b32 v177, 5, v1", "v_lshlrev_b32 v177, 2, v177", "v_sub_u32 v176, v176, v177", f"v_mov_b32 v178, {hex(NEG)}"]
        for i in range(4):
            for r in range(4):
                k = 8*i + r
                o += [f"v_subrev_u32 v177, {k}, v176", "v_ashrrev_i32 v177, 31, v177", f"v_and_b32 v{A_MD+4*i+r}, v177, v178"]
        for p in range(8):
            k = 8*(p//2) + 2*(p % 2)
            o += [f"v_subrev_u32 v177, {k}, v176", "v_ashrrev_i32 v179, 31, v177", "v_subrev_u32 v177, 1, v177", "v_ashrrev_i32 v177, 31, v177",
                  "v_and_b32 v179, 0xffff, v179", "v_and_b32 v177, 0xffff0000, v177", "v_or_b32 v177, v177, v179", f"v_not_b32 v{A_MK+p}, v177"]
        return o
    def halo_groups(self, p):
        g = []
        for tau in (7-2*p, 6-2*p):
            g.append([f"s_add_u32 s{ST+6}, s{ST+5}, {tau*2048}", f"buffer_load_dwordx4 a[{4*tau}:{4*tau+3}], v216, {WS}, s{ST+6} offen sc1 ; @pair{p}"])
            g.append([f"s_add_u32 s{ST+6}, s{ST+5}, {tau*2048}", "s_mov_b32 exec_lo, 0xffff", "s_mov_b32 exec_hi, 0xffff",
                      f"buffer_load_dwordx4 a[{32+8*tau}:{35+8*tau}], v217, {WS}, s{ST+6} offen offset:1024 sc1 ; @pair{p}",
                      f"buffer_load_dwordx4 a[{36+8*tau}:{39+8*tau}], v217, {WS}, s{ST+6} offen offset:1536 sc1 ; @pair{p}", "s_mov_b64 exec, -1"])
        return g
    def conv(self):
        a = self.a
        a("v_lshrrev_b32 v5, 4, v1\nv_and_b32 v9, 7, v1\nv_lshrrev_b32 v10, 1, v9\nv_xor_b32 v10, v10, v5\nv_lshlrev_b32 v10, 5, v10\nv_and_b32 v9, 1, v9\nv_lshl_add_u32 v10, v9, 4, v10\nv_lshrrev_b32 v9, 3, v1\nv_lshl_add_u32 v8, v9, 10, v10")
        a(f"s_lshl_b32 s{ST+3}, s{S_WAVE}, 17\ns_lshl_b32 s{ST+4}, s{S_P}, 7\ns_add_u32 s{ST+3}, s{ST+3}, s{ST+4}\ns_lshl_b32 s{ST+4}, s{S_WAVE}, 14")
        wo = [[f"s_add_u32 m0, s{ST+4}, {n*1024}", f"s_add_u32 s{ST+9}, s{ST+3}, {n*8192}", f"buffer_load_dwordx4 v8, {S4(SRD_WO)}, s{ST+9} offen lds ; @wo"] for n in range(16)]
        f2post = [f"s_lshl_b32 s{ST}, s{S_HEAD}, 5", f"s_add_u32 s{ST}, s{ST}, s{S_J}", f"s_lshl_b32 s{ST}, s{ST}, 3", f"s_add_u32 s{ST}, s{ST}, {WS_F2}"] + self.flag_instrs(ST, 4, 6)
        masks = self.mask_fill()
        masks += [f"s_lshl_b32 s{ST+5}, s{S_HEAD}, 6", f"s_lshl_b32 s{ST+6}, s{S_J}, 1", f"s_add_u32 s{ST+5}, s{ST+5}, s{ST+6}", f"s_lshl_b32 s{ST+5}, s{ST+5}, 11", f"s_add_u32 s{ST+5}, s{ST+5}, {WS_KV - 8*2048}",
                  "v_lshlrev_b32 v216, 4, v1", "v_lshrrev_b32 v177, 5, v1", "v_and_b32 v179, 15, v1", "v_lshl_add_u32 v177, v177, 4, v179", "v_lshlrev_b32 v217, 4, v177"]
        a("s_waitcnt lgkmcnt(0)")
        self.stamp('convstart')
        nwo = 0
        for n in range(4):
            m = self.conv_mfmas(n & 1, n == 0)
            rd = self.conv_reads((n+1) & 1, n+1) if n < 3 else []
            for i, ins in enumerate(m):
                gi = 36*n + i
                a(ins)
                if rd: a(rd.pop(0))
                elif masks: a(masks.pop(0))
                if masks and i % 2 == 0: a(masks.pop(0))
                if gi % 8 == 4 and nwo < 16: a(J(wo[nwo])); nwo += 1
                if gi == 58:
                    a("s_waitcnt vmcnt(@kvst)"); a(J(f2post))
                if gi == 110:
                    a(f"s_lshl_b32 s{ST}, s{S_HEAD}, 5\ns_add_u32 s{ST}, s{ST}, s{S_J}\ns_sub_u32 s{ST}, s{ST}, s{S_NH}\ns_lshl_b32 s{ST}, s{ST}, 3\ns_add_u32 s{ST}, s{ST}, {WS_F2}")
                    a(f"v_lshlrev_b32 v9, 3, v1\nv_add_u32 v9, s{ST}, v9")
                    a(f"s_lshl_b32 s{ST+1}, 1, s{S_NH}\ns_sub_u32 s{ST+1}, s{ST+1}, 1\ns_max_u32 s{ST+1}, s{ST+1}, 1")
                    a(f"s_mov_b32 exec_lo, s{ST+1}\ns_mov_b32 exec_hi, 0"); a(self.poll_ld(9, 10, 'pf2')); a("s_mov_b64 exec, -1")
            if n < 3: a("s_waitcnt lgkmcnt(0)")
        while masks: a(masks.pop(0))
        assert nwo == 16
        self.stamp('convmfma')
        L = a.label('nopoll2')
        a("s_waitcnt vmcnt(@pf2)")
        a(f"s_cmp_eq_u32 s{S_NH}, 0\ns_cbranch_scc1 {L}")
        a(f"s_lshl_b32 s{ST+1}, 1, s{S_NH}\ns_sub_u32 s{ST+1}, s{ST+1}, 1\ns_mov_b32 exec_lo, s{ST+1}\ns_mov_b32 exec_hi, 0")
        self.poll_check(9, 10, 'f2')
        a(f"s_mov_b64 exec, -1\n{L}:")
        self.stamp('f2seen')
        with Cap(a) as cap: self.conv_epilogue()
        halo = self.halo_groups(0)
        out = []; cnt = 8; blocked = 0
        for ins in cap.out:
            if ins.startswith(';#noint'): blocked = 1; continue
            if ins.startswith(';#int'): blocked = 0; continue
            out.append(ins)
            if not blocked and not ins.endswith(':'):
                cnt += 1
                if cnt >= 6 and halo and not ins.startswith('s_cmp'): out += halo.pop(0); cnt = 0
        assert not halo
        a(J(out))
    def conv_epilogue(self):
        a = self.a
        Lr1 = a.label('rho1'); Lj = a.label('rhojoin')
        a(f"s_lshl_b32 s{ST}, s{S_WAVE}, 12\ns_add_u32 s{ST}, s{ST}, {EX}\nv_lshlrev_b32 v4, 4, v1\nv_add_u32 v5, s{ST}, v4")
        a(f"s_xor_b32 s{ST}, s{S_WAVE}, 1\ns_lshl_b32 s{ST}, s{ST}, 12\ns_add_u32 s{ST}, s{ST}, {EX}\nv_add_u32 v6, s{ST}, v4")
        a.lines.append(";#noint")
        a(f"s_and_b32 s{ST+1}, s{S_WAVE}, 1\ns_cmp_lg_u32 s{ST+1}, 0\ns_cbranch_scc1 {Lr1}")
        for t in range(4): a(f"ds_write_b128 v5, v[{160+4*t}:{163+4*t}] offset:{1024*t}")
        a(f"s_branch {Lj}\n{Lr1}:")
        for t in range(4): a(f"ds_write_b128 v5, v[{144+4*t}:{147+4*t}] offset:{1024*t}")
        a("s_waitcnt lgkmcnt(0)")
        for r in range(16): a(f"v_mov_b32 v{144+r}, v{160+r}")
        a(f"{Lj}:")
        a.lines.append(";#int")
        a(f"s_lshr_b32 s{ST}, s{S_WAVE}, 1\ns_mul_i32 s{ST}, s{ST}, {UC}\ns_lshl_b32 s{ST+2}, s{ST+1}, 11\ns_sub_u32 s{ST}, s{ST}, s{ST+2}\ns_add_u32 s{ST}, s{ST}, {U + 4088 - 1536}")
        a(f"v_and_b32 v7, 15, v1\nv_lshrrev_b32 v8, 4, v1\nv_lshlrev_b32 v9, 5, v7\nv_lshl_add_u32 v9, v8, 3, v9\nv_sub_u32 v10, s{ST}, v9")
        for tl in range(4): a(f"ds_read_b64 v[{176+2*tl}:{177+2*tl}], v10 offset:{512*(3-tl)}")
        a(f"s_lshl_b32 s{ST}, s{S_D}, 16\ns_and_b32 s{ST+2}, s{S_D}, 0xffff0000\ns_cmp_lt_u32 s{S_WAVE}, 2\ns_cselect_b32 s{ST}, s{ST}, s{ST+2}")
        a(f"s_lshl_b32 s{ST+1}, s{S_WAVE}, 11\ns_add_u32 s{ST+1}, s{ST+1}, {TP}\nv_add_u32 v9, s{ST+1}, v9")
        a("s_waitcnt lgkmcnt(0)\ns_barrier")
        for t in range(4): a(f"ds_read_b128 v[{16+4*t}:{19+4*t}], v6 offset:{1024*t}")
        for tl in range(4):
            lo, hi = 176+2*tl, 177+2*tl
            acc = 144 + 4*tl; px = 16 + 4*tl
            a(f"v_and_b32 v32, 0xffff0000, v{hi}\nv_lshlrev_b32 v33, 16, v{hi}\nv_and_b32 v34, 0xffff0000, v{lo}\nv_lshlrev_b32 v35, 16, v{lo}")
            for r in range(4): a(f"v_fmac_f32 v{acc+r}, s{ST}, v{32+r}")
            if tl == 0: a("s_waitcnt lgkmcnt(0)")
            for r in range(4): a(f"v_add_f32 v{acc+r}, v{acc+r}, v{px+r}")
            a(f"v_cvt_pk_bf16_f32 v{36+2*tl}, v{acc}, v{acc+1}\nv_cvt_pk_bf16_f32 v{37+2*tl}, v{acc+2}, v{acc+3}")
            a(f"ds_write_b64 v9, v[{36+2*tl}:{37+2*tl}] offset:{512*tl}")
        a(f"v_add_u32 v4, s{ST+1}, v4")
        a("s_waitcnt lgkmcnt(0)")
        a("ds_read_b128 v[208:211], v4\nds_read_b128 v[212:215], v4 offset:1024")
        a(f"s_lshl_b32 s{ST}, s{S_XCD}, 6\ns_lshl_b32 s{ST+1}, s{S_I}, 1\ns_add_u32 s{ST}, s{ST}, s{ST+1}\ns_lshr_b32 s{ST+1}, s{S_WAVE}, 1\ns_add_u32 s{ST}, s{ST}, s{ST+1}\ns_lshl_b32 s{ST}, s{ST}, 12")
        a(f"s_and_b32 s{ST+1}, s{S_WAVE}, 1\ns_lshl_b32 s{ST+1}, s{ST+1}, 11\ns_add_u32 s{ST+7}, s{ST}, s{ST+1}\ns_add_u32 s{ST+7}, s{ST+7}, {WS_ZT}")

    def attention(self):
        a = self.a
        S, P, CN, O, MD, MK, QF = A_S, A_P, A_CN, A_O, A_MD, A_MK, A_QF
        def Kf(t): return f"a[{4*t}:{4*t+3}]" if t < 8 else f"v[{232+4*(t-8)}:{235+4*(t-8)}]"
        def Vf(t, h): return f"a[{32+8*t+4*h}:{35+8*t+4*h}]" if t < 8 else f"v[{240+8*(t-8)+4*h}:{243+8*(t-8)+4*h}]"
        def maxreduce(src, dst, init=None):
            o = []
            if init is None: o.append(f"v_max3_f32 v{dst}, v{src}, v{src+1}, v{src+2}"); rest = list(range(src+3, src+16))
            else: rest = list(range(src, src+16))
            while len(rest) >= 2: o.append(f"v_max3_f32 v{dst}, v{dst}, v{rest[0]}, v{rest[1]}"); rest = rest[2:]
            if rest: o.append(f"v_max_f32 v{dst}, v{dst}, v{rest[0]}")
            return o
        def finish_max(m, b, bias, tmp):
            o = [f"v_mov_b32 v{tmp}, v{m}", "s_nop 1", f"v_permlane32_swap_b32 v{m}, v{tmp}", "s_nop 1", f"v_max_f32 v{m}, v{m}, v{tmp}"]
            if bias: o.append(f"v_add_f32 v{m}, {bias}, v{m}")
            o.append(f"v_sub_f32 v{m}, 0, v{m}")
            return o + [f"v_mov_b32 v{CN[b]+r}, v{m}" for r in range(16)]
        a(f"{MF32} v[{S[0]}:{S[0]+15}], {Kf(8)}, v[{QF[0]}:{QF[0]+3}], v[{MD}:{MD+15}]")
        a(f"{MF32} v[{S[1]}:{S[1]+15}], {Kf(8)}, v[{QF[1]}:{QF[1]+3}], 0")
        a(f"{MF32} v[{O[0]}:{O[0]+15}], {Kf(9)}, v[{QF[1]}:{QF[1]+3}], v[{MD}:{MD+15}]")
        a("s_waitcnt lgkmcnt(0)\nv_lshlrev_b32 v5, 4, v1")
        a(f"buffer_store_dwordx4 v[208:211], v5, {WS}, s{ST+7} offen sc1 ; @zst")
        a(f"buffer_store_dwordx4 v[212:215], v5, {WS}, s{ST+7} offen offset:1024 sc1 ; @zst")
        a(f"s_lshl_b32 s{ST}, s{S_XCD}, 1\ns_and_b32 s{ST+1}, s{S_WAVE}, 1\ns_add_u32 s{ST}, s{ST}, s{ST+1}\ns_lshl_b32 s{ST}, s{ST}, 6")
        a(f"s_lshl_b32 s{ST+1}, s{S_I}, 1\ns_add_u32 s{ST}, s{ST}, s{ST+1}\ns_lshr_b32 s{ST+1}, s{S_WAVE}, 1\ns_add_u32 s{ST}, s{ST}, s{ST+1}\ns_lshl_b32 s{ST}, s{ST}, 3\ns_add_u32 s{ST+7}, s{ST}, {WS_F3}")
        a(f"s_lshl_b32 s{ST}, s{S_XCD}, 1\ns_lshr_b32 s{ST+1}, s{S_I}, 4\ns_add_u32 s{ST}, s{ST}, s{ST+1}\ns_lshl_b32 s{ST}, s{ST}, 6\ns_lshl_b32 s{ST+1}, s{S_WAVE}, 4\ns_add_u32 s{ST}, s{ST}, s{ST+1}\ns_lshl_b32 s{ST}, s{ST}, 3\ns_add_u32 s{ST}, s{ST}, {WS_F3}")
        a(f"v_lshlrev_b32 v219, 3, v1\nv_add_u32 v218, s{ST}, v219")
        a(f"s_lshl_b32 s{ST}, s{S_J}, 8\ns_add_u32 s{ST}, s{ST}, {WS_F5}\nv_add_u32 v219, s{ST}, v219")
        a(f"s_lshl_b32 s{ST}, s{S_I}, 6\ns_lshl_b32 s{ST+1}, s{S_WAVE}, 4\ns_add_u32 s{ST}, s{ST}, s{ST+1}\ns_lshl_b32 s{ST}, s{ST}, 10\ns_lshl_b32 s{ST+1}, s{S_XCD}, 7\ns_add_u32 s{ST+8}, s{ST}, s{ST+1}")
        a("v_and_b32 v4, 15, v1\nv_lshrrev_b32 v5, 4, v1\nv_lshlrev_b32 v4, 10, v4\nv_lshl_add_u32 v220, v5, 5, v4")
        a("v_mov_b32 v152, 0\nv_mov_b32 v153, 0\nv_mov_b32 v154, 0\nv_mov_b32 v155, 0")
        a(f"s_mov_b32 s{ST}, 0x42800000")
        mx = maxreduce(S[0], 10) + maxreduce(S[1], 11) + maxreduce(O[0], 11, init=11) + finish_max(10, 0, f"s{ST}", 8) + finish_max(11, 1, f"s{ST}", 9)
        fill = self.halo_groups(1)
        out = []; cnt = 0
        for k, ins in enumerate(mx):
            out.append(ins)
            nxt = mx[k+1] if k+1 < len(mx) else ''
            if ins.startswith('v_') and not nxt.startswith(('s_nop', 'v_permlane')) and not ins.startswith('v_permlane'):
                cnt += 1
                if cnt % 10 == 0 and fill: out += fill.pop(0)
        for gset in fill: out += gset
        a(J(out))
        self.stamp('attnstart')
        Lmain = a.label('attn_main'); Ldone = a.label('attn_done'); Lfb = a.label('attn_fallback'); Lok = a.label('attn_ok'); Lj0 = a.label('attn_j0')
        a(f"{Lmain}:")
        items = [(0, 8, 'D'), (1, 9, 'D'), (1, 8, None)]
        pairs = [[(0,7,None),(1,7,None),(0,6,None),(1,6,None)], [(0,5,None),(1,5,None),(0,4,None),(1,4,None)],
                 [(0,3,None),(1,3,None),(0,2,None),(1,2,None)], [(0,1,None),(1,1,'F'),(0,0,'F')]]
        allitems = items + [x for p in pairs for x in p]
        first_pv = {0: True, 1: True}
        def smfma(n):
            b, t, m = allitems[n]
            return f"{MF32} v[{S[n&1]}:{S[n&1]+15}], {Kf(t)}, v[{QF[b]}:{QF[b]+3}], v[{CN[b]}:{CN[b]+15}]"
        pair_start = {}; n = len(items)
        for pi, p in enumerate(pairs): pair_start[n] = pi; n += len(p)
        late = {0: self.halo_groups(2)[:2], 1: self.halo_groups(2)[2:], 3: self.halo_groups(3)[:2], 4: self.halo_groups(3)[2:],
                2: [[f"buffer_load_dwordx4 v[168:171], v220, {S4(SRD_Q)}, s{ST+8} offen {self.NT}; @q"], [f"buffer_load_dwordx4 v[172:175], v220, {S4(SRD_Q)}, s{ST+8} offen offset:16 {self.NT}; @q"]],
                15: [self.exec_n(16) + [self.poll_ld(218, 152, 'pf3'), "s_mov_b64 exec, -1"], self.exec_n(32) + [self.poll_ld(219, 154, 'pf5'), "s_mov_b64 exec, -1"]]}
        a(smfma(0)); a("s_nop 7\ns_nop 3")
        pvp = []; N = len(allitems)
        for n, (b, t, m) in enumerate(allitems):
            s = S[n & 1]; p = P[n & 1]; nxt = n + 1
            lg = list(late.get(n, []))
            ex = lambda r0, r1: [a(f"v_exp_f32 v{s+r}, v{s+r}") for r in range(r0, r1)]
            ex(0, 2)
            if pvp: a(pvp[0])
            ex(2, 5)
            if pvp: a(pvp[1])
            pvp = []
            if lg: a(J(lg.pop(0)))
            ex(5, 9)
            if nxt < N:
                if nxt in pair_start:
                    pi = pair_start[nxt]
                    a(f"s_waitcnt vmcnt(@pair{pi})")
                    if pi == 1: a(J(self.flag_instrs(ST+7, 2, 4)))
                a(smfma(nxt))
            ex(9, 13)
            if lg: a(J(lg.pop(0)))
            ex(13, 16)
            for r in range(8): a(f"v_cvt_pk_bf16_f32 v{p+r}, v{s+2*r}, v{s+2*r+1}")
            if m == 'D':
                for r in range(8): a(f"v_and_b32 v{p+r}, v{MK+r}, v{p+r}")
            elif m == 'F':
                for r in range(8): a(f"v_bfi_b32 v{p+r}, v{MK+r}, 0, v{p+r}")
            c = "0" if first_pv[b] else f"v[{O[b]}:{O[b]+15}]"
            first_pv[b] = False
            pv = [f"{MF32} v[{O[b]}:{O[b]+15}], {Vf(t,0)}, v[{p}:{p+3}], {c}", f"{MF32} v[{O[b]}:{O[b]+15}], {Vf(t,1)}, v[{p+4}:{p+7}], v[{O[b]}:{O[b]+15}]"]
            if nxt in pair_start or nxt == N:
                a("s_nop 1"); a(pv[0]); a(pv[1])
                if nxt in pair_start:
                    pi = pair_start[nxt]
                    a(f"s_cmp_le_u32 s{S_NH}, {pi}\ns_cbranch_scc1 {Lj0 if pi == 0 else Ldone}")
            else: pvp = pv
        a(f"{Ldone}:")
        self.stamp('attndone')
        a("s_nop 7\ns_nop 3")
        for b in range(2): a(f"v_mov_b32 v{10+b}, v{O[b]+8}\nv_mov_b32 v8, v{O[b]+8}\ns_nop 1\nv_permlane32_swap_b32 v{10+b}, v8")
        a(f"s_mov_b32 s{ST}, 0x71800000")
        a(f"v_cmp_gt_f32 vcc, s{ST}, v10\ns_nop 4\ns_mov_b64 s[{ST+2}:{ST+3}], vcc")
        a(f"v_cmp_gt_f32 vcc, s{ST}, v11\ns_nop 4\ns_and_b64 s[{ST+2}:{ST+3}], s[{ST+2}:{ST+3}], vcc")
        a(f"s_cmp_lg_u32 s{S_FB}, 0\ns_cbranch_scc1 {Lok}")
        a(f"s_cmp_eq_u64 s[{ST+2}:{ST+3}], -1\ns_cbranch_scc0 {Lfb}\n{Lok}:")
        with Cap(a) as cap:
            a(f"{Lj0}:")
            a("s_waitcnt vmcnt(0)"); a(J(self.flag_instrs(ST+7, 2, 4))); a(f"s_branch {Ldone}")
            a(f"{Lfb}:")
            a(f"s_mov_b32 s{ST}, {hex(NEG)}")
            for r in range(16): a(f"v_sub_f32 v{128+r}, s{ST}, v{MD+r}")
            a(f"v_mov_b32 v10, s{ST}\nv_mov_b32 v11, s{ST}\ns_waitcnt vmcnt(0)")
            Lf = a.label('fb_done')
            for (b, t, m) in sorted(allitems, key=lambda x: -x[1]):
                if t < 8 and (t % 2 == 1) and b == 0: a(f"s_cmp_le_u32 s{S_NH}, {(7-t)//2}\ns_cbranch_scc1 {Lf}")
                c = {None: "0", 'D': f"v[{MD}:{MD+15}]", 'F': "v[128:143]"}[m]
                a(f"{MF32} v[16:31], {Kf(t)}, v[{QF[b]}:{QF[b]+3}], {c}\ns_nop 7\ns_nop 3")
                a(J(maxreduce(16, 10+b, init=10+b))); a("s_nop 7")
            a(f"{Lf}:")
            a(J(finish_max(10, 0, None, 8) + finish_max(11, 1, None, 9)))
            a(f"s_mov_b32 s{S_FB}, 1\ns_branch {Lmain}")
        self.tail_blocks.append(cap.out)

    def tail(self):
        a = self.a
        O = A_O
        a("s_waitcnt vmcnt(0)")
        a(J(self.exec_n(16))); self.poll_check(218, 152, 'f3'); a("s_mov_b64 exec, -1")
        a(f"s_lshl_b32 s{ST}, s{S_XCD}, 6\ns_lshl_b32 s{ST+1}, s{S_WAVE}, 4\ns_add_u32 s{ST}, s{ST}, s{ST+1}\ns_lshl_b32 s{ST}, s{ST}, 12\ns_lshl_b32 s{ST+1}, s{S_I}, 7\ns_add_u32 s{ST}, s{ST}, s{ST+1}\ns_add_u32 s{ST+5}, s{ST}, {WS_ZT}")
        a(f"v_lshrrev_b32 v6, 3, v1\nv_and_b32 v3, 7, v1\nv_lshlrev_b32 v24, 12, v6\nv_lshl_add_u32 v24, v3, 4, v24\ns_add_u32 s{ST+6}, s{ST+5}, {8*4096}")
        a(f"buffer_load_dwordx4 v[156:159], v24, {WS}, s{ST+5} offen sc1 ; @z")
        a(f"buffer_load_dwordx4 v[160:163], v24, {WS}, s{ST+6} offen sc1 ; @z")
        self.stamp('f3seen')
        a(J(self.of_store_addr(2, 3, ST)))
        for b in range(2): a(f"v_rcp_f32 v{10+b}, v{10+b}")
        for b in range(2):
            for r in range(8): a(f"v_mul_f32 v{O[b]+r}, v{O[b]+r}, v{10+b}")
            for p in range(4): a(f"v_cvt_pk_bf16_f32 v{16+4*b+p}, v{O[b]+2*p}, v{O[b]+2*p+1}")
            a(f"s_add_u32 s{ST+1}, s{ST}, {b*32768}")
            if b == 0:
                pass
            a(f"buffer_store_dwordx4 v[{16+4*b}:{19+4*b}], v2, {WS}, s{ST+1} offen sc1 ; @ost")
        self.stamp('ostored')
        a(J(self.exec_n(32))); self.poll_check(219, 154, 'f5'); a("s_mov_b64 exec, -1")
        a(f"s_lshl_b32 s{ST}, s{S_WAVE}, 11\ns_add_u32 s{ST}, s{ST}, {TP}\nv_lshlrev_b32 v25, 4, v1\nv_add_u32 v25, s{ST}, v25")
        a(f"v_lshrrev_b32 v6, 4, v1\nv_bfe_u32 v3, v1, 2, 2\nv_lshl_add_u32 v6, v6, 4, v3\nv_lshlrev_b32 v6, 7, v6\nv_and_b32 v3, 3, v1\nv_lshl_add_u32 v6, v3, 3, v6\ns_lshl_b32 s{ST}, s{S_WAVE}, 5\ns_add_u32 s{ST}, s{ST}, {TP}\nv_add_u32 v26, s{ST}, v6")
        a(f"s_lshl_b32 s{ST}, s{S_I}, 6\ns_lshl_b32 s{ST+1}, s{S_WAVE}, 4\ns_add_u32 s{ST}, s{ST}, s{ST+1}\ns_lshl_b32 s{ST}, s{ST}, 11\ns_lshl_b32 s{ST+1}, s{S_XCD}, 7\ns_add_u32 s{ST}, s{ST}, s{ST+1}\ns_add_u32 s{ST+4}, s{ST}, 1024")
        a(f"v_and_b32 v6, 15, v1\nv_lshrrev_b32 v3, 4, v1\nv_lshlrev_b32 v6, 11, v6\nv_lshl_add_u32 v27, v3, 5, v6")
        for i in range(8): a(f"v_lshlrev_b32 v{32+2*i}, 16, v{168+i}\nv_and_b32 v{33+2*i}, 0xffff0000, v{168+i}")
        a("v_lshrrev_b32 v3, 5, v1\nv_bfe_u32 v4, v1, 4, 1\nv_bfe_u32 v5, v1, 2, 2\nv_lshlrev_b32 v6, 4, v3\nv_lshl_add_u32 v6, v4, 2, v6\nv_add_u32 v6, v6, v5\nv_lshlrev_b32 v6, 7, v6")
        a("v_and_b32 v7, 3, v1\nv_lshl_add_u32 v6, v7, 3, v6\nv_lshrrev_b32 v5, 1, v5\nv_lshl_add_u32 v5, v4, 1, v5")
        for t in range(4): a(f"v_xor_b32 v7, {t}, v5\nv_lshl_add_u32 v{84+t}, v7, 5, v6")
        a(f"s_lshl_b32 s{ST+5}, s{S_J}, 2\ns_add_u32 s{ST+5}, s{ST+5}, s{S_WAVE}\ns_lshl_b32 s{ST+5}, s{ST+5}, 14\ns_add_u32 s{ST+5}, s{ST+5}, {WS_OF}\nv_lshlrev_b32 v2, 4, v1")
        a("s_waitcnt vmcnt(@z)")
        a("ds_write_b128 v25, v[156:159]\nds_write_b128 v25, v[160:163] offset:1024")
        a("s_waitcnt lgkmcnt(0)\ns_barrier")
        self.stamp('zlds')
        for n in range(4): a(f"ds_read_b64_tr_b16 v[{48+2*n}:{49+2*n}], v26 offset:{512*n}")
        OF = 96
        def ofld(m, tag=True):
            return [f"s_add_u32 s{ST+6}, s{ST+5}, {(m//4)*4096}", f"buffer_load_dwordx4 v[{OF+4*m}:{OF+4*m+3}], v2, {WS}, s{ST+6} offen offset:{1024*(m%4)} sc1" + (f" ; @of{m}" if tag else " ; @cond")]
        a("s_waitcnt lgkmcnt(0)")
        comp = []
        for i in range(8): comp += [f"v_lshlrev_b32 v{64+2*i}, 16, v{48+i}", f"v_and_b32 v{65+2*i}, 0xffff0000, v{48+i}"]
        comp += [f"v_mul_f32 v{32+i}, v{32+i}, v{64+i}" for i in range(16)]
        comp += [f"v_cvt_pk_bf16_f32 v{16+i}, v{32+2*i}, v{33+2*i}" for i in range(8)]
        a(J(interleave(comp, [ofld(m) for m in range(16)], every=3)))
        a(f"buffer_store_dwordx4 v[16:19], v27, {S4(SRD_OUT)}, s{ST+4} offen ; @bst")
        a(f"buffer_store_dwordx4 v[20:23], v27, {S4(SRD_OUT)}, s{ST+4} offen offset:16 ; @bst")
        self.stamp('ofissued')
        def reads(m, st): return [f"ds_read_b64_tr_b16 v[{24+16*st+4*t+2*e}:{25+16*st+4*t+2*e}], v{84+t} offset:{m*4096 + e*1024}" for t in range(4) for e in range(2)]
        a(J(reads(0, 0)))
        a(f"s_mov_b32 s{S_TMO}, 0")
        for m in range(16):
            st = m & 1; r = OF + 4*m
            Lc = a.label(f'ofchk{m}'); Lr = a.label(f'ofretry{m}')
            a(f"s_waitcnt vmcnt(@of{m})")
            a(f"{Lc}:")
            a(f"v_max3_u32 v3, v{r}, v{r+1}, v{r+2}\nv_max_u32 v3, v3, v{r+3}\nv_cmp_eq_u32 vcc, -1, v3")
            if m < 15: a(J(reads(m+1, st ^ 1)))
            else: a("s_nop 4")
            a(f"s_cbranch_vccnz {Lr}")
            a(f"{Lc}_ok:")
            a("s_waitcnt lgkmcnt(8)" if m < 15 else "s_waitcnt lgkmcnt(0)")
            for t in range(4):
                c = "0" if m == 0 else f"v[{64+4*t}:{67+4*t}]"
                a(f"{MF16} v[{64+4*t}:{67+4*t}], v[{24+16*st+4*t}:{27+16*st+4*t}], v[{r}:{r+3}], {c}")
            with Cap(a) as cap:
                a(f"{Lr}:")
                a(f"s_add_u32 s{S_TMO}, s{S_TMO}, 1\ns_cmp_gt_u32 s{S_TMO}, 0x20000\ns_cbranch_scc1 {Lc}_ok")
                a(J(ofld(m, False))); a("s_waitcnt vmcnt(0)")
                a(f"v_max3_u32 v3, v{r}, v{r+1}, v{r+2}\nv_max_u32 v3, v3, v{r+3}\nv_cmp_eq_u32 vcc, -1, v3\ns_nop 4\ns_cbranch_vccnz {Lr}\ns_branch {Lc}_ok")
            self.tail_blocks.append(cap.out)
        a(f"s_lshl_b32 s{ST}, s{S_J}, 6\ns_lshl_b32 s{ST+1}, s{S_WAVE}, 4\ns_add_u32 s{ST}, s{ST}, s{ST+1}\ns_lshl_b32 s{ST}, s{ST}, 11\ns_lshl_b32 s{ST+1}, s{S_P}, 7\ns_add_u32 s{ST}, s{ST}, s{ST+1}")
        a("v_and_b32 v2, 15, v1\nv_lshlrev_b32 v2, 11, v2\nv_bfe_u32 v3, v1, 4, 1\nv_lshl_add_u32 v2, v3, 5, v2\nv_lshrrev_b32 v3, 5, v1\nv_lshl_add_u32 v2, v3, 4, v2\ns_nop 1")
        for t in range(4): a(f"v_cvt_pk_bf16_f32 v{8+2*t}, v{64+4*t}, v{65+4*t}\nv_cvt_pk_bf16_f32 v{9+2*t}, v{66+4*t}, v{67+4*t}")
        a("s_nop 1\nv_permlane16_swap_b32 v8, v10\nv_permlane16_swap_b32 v9, v11\nv_permlane16_swap_b32 v12, v14\nv_permlane16_swap_b32 v13, v15\ns_nop 1")
        a(f"buffer_store_dwordx4 v[8:11], v2, {S4(SRD_OUT)}, s{ST} offen")
        a(f"buffer_store_dwordx4 v[12:15], v2, {S4(SRD_OUT)}, s{ST} offen offset:64")
        self.stamp('end')

    def build(self):
        a = self.a
        self.startup(); self.pre(); self.qkv(); self.qkv_epilogue(); self.conv(); self.attention(); self.tail()
        self.dump_stamps()
        if 'dbgs' in self.exp:
            L = a.label('dbgskip')
            a("s_waitcnt vmcnt(0) lgkmcnt(0)")
            a(f"s_cmp_lg_u32 s{S_WAVE}, 1\ns_cbranch_scc1 {L}\ns_cmp_lg_u32 s2, 109\ns_cbranch_scc1 {L}")
            a("v_mov_b32 v4, 8\ns_mov_b64 exec, 1")
            k0 = 0
            if 'early' in self.exp:
                for k0, r in enumerate((200, 201)):
                    a(f"v_accvgpr_read_b32 v2, a{r}\ns_nop 1\nv_subrev_u32 v2, s100, v2\nbuffer_store_dword v2, v4, {DBG}, 0 offen offset:{4*k0}\ns_nop 1")
                k0 = 2
            for n, r in enumerate(self.STAMP_REGS[:len(self.stamp_slots)][:14-k0]):
                a(f"s_sub_u32 s84, s{r}, s100\nv_mov_b32 v2, s84\nbuffer_store_dword v2, v4, {DBG}, 0 offen offset:{4*(n+k0)}\ns_nop 1")
            a(f"s_mov_b64 exec, -1\n{L}:")
        if 'dbgt' in self.exp:
            L = a.label('dbgskip')
            a(f"s_memrealtime s[84:85]\ns_memtime s[86:87]\ns_waitcnt vmcnt(0) lgkmcnt(0)")
            a(f"s_cmp_lg_u32 s{S_WAVE}, 0\ns_cbranch_scc1 {L}")
            a(f"s_and_b32 s88, s2, 63\ns_cmp_lg_u32 s88, 0\ns_cbranch_scc1 {L}")
            a(f"s_sub_u32 s84, s84, s{S_T}\ns_sub_u32 s86, s86, s100\ns_lshr_b32 s88, s2, 6\ns_lshl_b32 s88, s88, 3\ns_add_u32 s88, s88, 8")
            a(f"v_mov_b32 v2, s84\nv_mov_b32 v3, s86\nv_mov_b32 v4, s88\ns_mov_b64 exec, 1")
            a(f"buffer_store_dwordx2 v[2:3], v4, {DBG}, 0 offen\ns_mov_b64 exec, -1\n{L}:")
        a("L_end:\ns_endpgm")
        a.lines = resolve_vmcnt(a.lines)
        for blk in self.tail_blocks: a.lines += blk
        a("L_codeend:")
        probs = check_hazards(a.lines)
        for p in probs[:12]: print(p, file=sys.stderr)
        hdr = open('cdna_kernels/' + NAME + '.s.ref').read().split('\n')
        cm = [l for l in hdr if l.startswith(';') and '@launch' not in l and 'Override' not in l and 'grid=ceil' not in l][:13]
        head = J(cm) + f"\n; @launch grid=(256,1,1) block=(256,1,1) lds={LDS_BYTES}\n"
        head += f'.amdgcn_target "amdgcn-amd-amdhsa--gfx950"\n.text\n.globl {NAME}_kernel\n.p2align 8\n.type {NAME}_kernel,@function\n{NAME}_kernel:\n'
        tail = f'''.section .rodata,"a"
.p2align 6
.amdhsa_kernel {NAME}_kernel
  .amdhsa_next_free_vgpr 512
  .amdhsa_next_free_sgpr 102
  .amdhsa_accum_offset 256
  .amdhsa_group_segment_fixed_size 0
  .amdhsa_kernarg_size 96
  .amdhsa_user_sgpr_count 2
  .amdhsa_user_sgpr_kernarg_segment_ptr 1
  .amdhsa_system_sgpr_workgroup_id_x 1
.end_amdhsa_kernel
'''
        return head + a.text() + tail, len(probs), self.stamp_slots

if __name__ == '__main__':
    ap = argparse.ArgumentParser()
    ap.add_argument('-o', default='cdna_kernels/' + NAME + '.s')
    ap.add_argument('--stamps', default=''); ap.add_argument('--exp', default='')
    args = ap.parse_args()
    g = Gen(stamps=[x for x in args.stamps.split(',') if x], exp=args.exp)
    txt, np_, slots = g.build()
    open(args.o, 'w').write(txt)
    print('wrote', args.o, 'lines', txt.count('\n'), 'hazards', np_, 'stamps', slots)
```

```python
import sys, argparse, struct
from asmlib import *

NAME = "concat_heads__sliding_block__ssm_conv_h3__prompt"
WS_F1, WS_F2, WS_F3, WS_F5 = 0x0000, 0x2000, 0x4000, 0x8000
WS_KVT = 0x100000; WS_ZT = 0x300000; WS_KV = 0x500000; WS_OF = 0x900000
WS_STAMP = 0xB00000; WS_SIZE = 0xB40000
TZ = 98304; TZC = 4160
U = TZ + 8*TZC; UC = 4608
TP = U + 2*UC
WSH = TP + 8192
LDS_BYTES = WSH + 1024
EX = 65536
S_WAVE, S_XCD, S_I, S_J, S_P = 3, 4, 5, 6, 7
SRD_X, SRD_W, SRD_K, SRD_V, SRD_Q, SRD_H, SRD_WO, SRD_OUT, SRD_WS, SRD_DBG, SRD_SH = 8,12,16,20,24,28,32,36,40,44,48
S_T = 52; S_D = 54; S_TMO = 55
PTR = 56
S_HT = 64
S_XOFF, S_WOFF, S_M0B, S_NH = 80, 81, 82, 83
ST = 84
S_FB = 94; S_HEAD = 95
S_SEL0, S_SEL1 = 96, 97
S_M0W = 98
QSCALE = 0.25 * 1.4426950408889634
def f2u(x): return struct.unpack('<I', struct.pack('<f', x))[0]
def S4(b): return f"s[{b}:{b+3}]"
WS, DBG = S4(SRD_WS), S4(SRD_DBG)
MF32 = "v_mfma_f32_32x32x16_bf16"; MF16 = "v_mfma_f32_16x16x32_bf16"
NEG = 0xf149f2ca
A_S = [16, 32]; A_P = [48, 56]; A_CN = [64, 80]; A_O = [96, 112]; A_MD = 184; A_MK = 200; A_QF = [224, 228]
J = '\n'.join

class Gen:
    STAMP_REGS = [16, 18, 20, 22, 48, 50, 56, 58, 60, 62, 72, 74, 76, 78]
    def __init__(self, stamps=None, exp=''):
        self.a = Asm(); self.stamps = stamps or []; self.exp = exp.split(',')
        self.stamp_slots = []; self.tail_blocks = []
        self.NT = 'nt ' if 'nt' in self.exp else ''
        self.DNT = ' nt' if 'dmant' in self.exp else ''
        self.PNT = ' nt' if 'pfnt' in self.exp else ''

    def srd(self, base, ptr, size):
        return [f"s_mov_b32 s{base}, s{ptr}", f"s_mov_b32 s{base+1}, s{ptr+1}", f"s_mov_b32 s{base+2}, {size}", f"s_mov_b32 s{base+3}, 0x20000"]
    def stamp(self, name):
        if name not in self.stamps: return
        n = len(self.stamp_slots)
        if n >= len(self.STAMP_REGS): return
        r = self.STAMP_REGS[n]; self.stamp_slots.append(name)
        self.a(f"s_memtime s[{r}:{r+1}]")
    def dump_stamps(self):
        if not self.stamp_slots or 'dbgs' in self.exp: return
        a = self.a
        a("s_waitcnt lgkmcnt(0)")
        a(f"s_lshl_b32 s{ST}, s2, 2\ns_add_u32 s{ST}, s{ST}, s{S_WAVE}\ns_lshl_b32 s{ST}, s{ST}, 7\ns_add_u32 s{ST}, s{ST}, {WS_STAMP}")
        a(f"v_mov_b32 v3, s{ST}\ns_mov_b64 exec, 1")
        for n, r in enumerate([100] + self.STAMP_REGS[:len(self.stamp_slots)]):
            a(f"v_mov_b32 v2, s{r}\nbuffer_store_dword v2, v3, {WS}, 0 offen offset:{4*n}\ns_nop 1")
        a("s_mov_b64 exec, -1")
    def exec_n(self, nl):
        mask = (1 << nl) - 1
        return [f"s_mov_b32 exec_lo, {hex(mask & 0xffffffff)}", f"s_mov_b32 exec_hi, {hex(mask >> 32)}"]
    def poll_ld(self, voff, vtmp, tag=''):
        return f"buffer_load_dwordx2 v[{vtmp}:{vtmp+1}], v{voff}, {WS}, 0 offen sc1" + (f" ; @{tag}" if tag else "")
    def poll_check(self, voff, vtmp, name):
        a = self.a
        L = a.label(name); Ld = a.label(name+'_done'); Lc = a.label(name+'_chk')
        a(f"s_mov_b32 s{S_TMO}, 0\ns_branch {Lc}")
        a(f"{L}:")
        a(self.poll_ld(voff, vtmp, 'cond'))
        a("s_waitcnt vmcnt(0)")
        a(f"{Lc}:")
        a(f"v_cmp_ne_u64 vcc, s[{S_T}:{S_T+1}], v[{vtmp}:{vtmp+1}]")
        a(f"s_add_u32 s{S_TMO}, s{S_TMO}, 1")
        a("s_cbranch_vccz " + Ld)
        a(f"s_cmp_lt_u32 s{S_TMO}, 0x20000")
        a(f"s_cbranch_scc1 {L}")
        a(f"{Ld}:")
    def flag_instrs(self, soff_sgpr, vt0, vt2, tag='flag'):
        return [f"v_mov_b32 v{vt0}, s{soff_sgpr}", f"v_mov_b32 v{vt2}, s{S_T}", f"v_mov_b32 v{vt2+1}, s{S_T+1}", "s_mov_b64 exec, 1",
                f"buffer_store_dwordx2 v[{vt2}:{vt2+1}], v{vt0}, {WS}, 0 offen sc1 ; @{tag}", "s_mov_b64 exec, -1"]
    def dma_groups(self, s):
        buf = s % 3
        X, W = S4(SRD_X), S4(SRD_W)
        t = f" ; @dma{s}"
        lds = "nt lds" if self.DNT else "lds"
        return [[f"s_add_u32 m0, s{S_M0B}, {buf*32768}", f"s_add_u32 s{ST+9}, s{S_XOFF}, {s*128}", f"buffer_load_dwordx4 v100, {X}, s{ST+9} offen {lds}" + t],
                [f"buffer_load_dwordx4 v101, {X}, s{ST+9} offen offset:1024 {lds}" + t],
                [f"s_add_u32 m0, s{S_M0W}, {buf*32768}", f"s_add_u32 s{ST+8}, s{S_WOFF}, {s*64*3072}", f"buffer_load_dwordx4 v102, {W}, s{ST+8} offen {lds}" + t],
                [f"buffer_load_dwordx4 v103, {W}, s{ST+8} offen offset:1024 {lds}" + t],
                [f"buffer_load_dwordx4 v102, {W}, s{ST+8} offen offset:2048 {lds}" + t, f"s_add_u32 m0, s{S_M0W}, {buf*32768 + 3072}"],
                ["s_nop 0", f"buffer_load_dwordx4 v248, {W}, s{ST+8} offen {lds}" + t] if s == 0 else [f"buffer_load_dwordx4 v248, {W}, s{ST+8} offen {lds}" + t],
                [f"buffer_load_dwordx4 v249, {W}, s{ST+8} offen offset:1024 {lds}" + t],
                [f"buffer_load_dwordx4 v248, {W}, s{ST+8} offen offset:2048 {lds}" + t]]
    def of_store_addr(self, v, t0, sreg):
        return [f"v_bfe_u32 v{v}, v1, 4, 1", f"v_lshlrev_b32 v{v}, 14, v{v}", f"v_lshrrev_b32 v{t0}, 5, v1", f"v_lshlrev_b32 v{t0}, 8, v{t0}", f"v_add_u32 v{v}, v{v}, v{t0}",
                f"v_and_b32 v{t0}, 15, v1", f"v_lshl_add_u32 v{v}, v{t0}, 4, v{v}",
                f"s_lshl_b32 s{sreg}, s{S_J}, 16", f"s_lshr_b32 s{ST+1}, s{S_HEAD}, 1", f"s_lshl_b32 s{ST+1}, s{ST+1}, 10", f"s_add_u32 s{sreg}, s{sreg}, s{ST+1}",
                f"s_and_b32 s{ST+1}, s{S_HEAD}, 1", f"s_lshl_b32 s{ST+1}, s{ST+1}, 9", f"s_add_u32 s{sreg}, s{sreg}, s{ST+1}", f"s_add_u32 s{sreg}, s{sreg}, {WS_OF}"]

    def startup(self):
        a = self.a
        a("L_entry:")
        a(f"s_load_dwordx16 s[{PTR}:{PTR+15}], s[0:1], 0")
        a(f"s_load_dwordx8 s[{PTR+16}:{PTR+23}], s[0:1], 64")
        a(f"s_memrealtime s[{S_T}:{S_T+1}]")
        if self.stamps: a("s_memtime s[100:101]")
        if 'dbgt' in self.exp: a("s_memtime s[100:101]\ns_memrealtime s[78:79]") if False else None
        if 'dbgt' in self.exp: a("s_memtime s[100:101]")
        a("s_cmp_ge_u32 s2, 256\ns_cbranch_scc1 L_end")
        a("s_getpc_b64 s[8:9]\nL_pc:")
        a("s_sub_u32 s8, s8, (L_pc - L_entry)\ns_subb_u32 s9, s9, 0\ns_mov_b32 s10, (L_codeend - L_entry)\ns_mov_b32 s11, 0x20000")
        a(f"s_lshr_b32 s{S_I}, s2, 3\ns_and_b32 s{ST}, s{S_I}, 7\ns_lshl_b32 s{ST}, s{ST}, 12\nv_lshlrev_b32 v2, 4, v0")
        a(f"buffer_load_dwordx4 v[216:219], v2, s[8:11], s{ST} offen")
        a("v_and_b32 v1, 63, v0\nv_lshrrev_b32 v2, 6, v0")
        a(f"s_and_b32 s{S_XCD}, s2, 7")
        a(f"v_readfirstlane_b32 s{S_WAVE}, v2")
        a("v_and_b32 v4, 7, v1\nv_lshrrev_b32 v5, 3, v1")
        a(f"s_lshl_b32 s{ST}, s{S_I}, 6\ns_lshl_b32 s{ST+2}, s{S_XCD}, 7\ns_lshl_b32 s{ST+1}, s{S_WAVE}, 4\ns_add_u32 s{ST}, s{ST}, s{ST+1}\ns_lshl_b32 s{ST}, s{ST}, 10\ns_add_u32 s{ST}, s{ST}, s{ST+2}")
        a(f"v_lshlrev_b32 v6, 11, v5\nv_lshl_add_u32 v6, v4, 4, v6\nv_add_u32 v6, s{ST}, v6")
        a("v_subrev_u32 v7, 3072, v6\nv_subrev_u32 v8, 2048, v6\nv_subrev_u32 v9, 1024, v6")
        a(f"s_lshr_b32 s{ST}, s{S_XCD}, 1\ns_lshl_b32 s{ST}, s{ST}, 3\ns_and_b32 s{ST+1}, s{S_I}, 7\ns_add_u32 s{S_J}, s{ST}, s{ST+1}")
        a(f"s_and_b32 s{ST}, s{S_XCD}, 1\ns_lshl_b32 s{ST}, s{ST}, 2\ns_lshr_b32 s{ST+1}, s{S_I}, 3\ns_add_u32 s{S_P}, s{ST}, s{ST+1}")
        a(f"s_lshl_b32 s{ST}, s{S_XCD}, 9\nv_lshlrev_b32 v10, 4, v1\nv_add_u32 v10, s{ST}, v10")
        a("v_lshrrev_b32 v2, 4, v1\nv_xor_b32 v3, v4, v2\nv_lshlrev_b32 v3, 4, v3")
        a(f"s_lshl_b32 s{ST}, s{S_WAVE}, 14\nv_lshl_add_u32 v100, v5, 10, v3\nv_add_u32 v100, s{ST}, v100")
        a(f"v_xor_b32 v101, 64, v100\nv_add_u32 v101, {8192-1024}, v101")
        a("v_lshrrev_b32 v3, 1, v4\nv_and_b32 v2, 1, v2\nv_lshlrev_b32 v2, 1, v2\nv_xor_b32 v3, v3, v2\nv_lshlrev_b32 v3, 5, v3")
        a("v_and_b32 v2, 1, v4\nv_lshl_add_u32 v3, v2, 4, v3\nv_mul_u32_u24 v102, 3072, v5\nv_add_u32 v102, v102, v3\nv_xor_b32 v103, 32, v102")
        a("v_add_u32 v248, 24576, v102\nv_add_u32 v249, 24576, v103")
        a(f"s_lshl_b32 s{S_XOFF}, s{S_J}, 16")
        a(f"s_mul_i32 s{S_WOFF}, s{S_WAVE}, {16*3072}\ns_lshl_b32 s{ST}, s{S_P}, 7\ns_add_u32 s{S_WOFF}, s{S_WOFF}, s{ST}")
        a(f"s_lshl_b32 s{S_M0B}, s{S_WAVE}, 11\ns_mul_i32 s{S_M0W}, s{S_WAVE}, 6144\ns_add_u32 s{S_M0W}, s{S_M0W}, 8192")
        if 'early' in self.exp: a("s_memtime s[90:91]")
        a("s_waitcnt lgkmcnt(0)")
        if 'early' in self.exp:
            a("s_memtime s[92:93]\ns_waitcnt lgkmcnt(0)\nv_mov_b32 v12, s90\nv_accvgpr_write_b32 a200, v12\nv_mov_b32 v12, s92\nv_accvgpr_write_b32 a201, v12")
        a(J(self.srd(SRD_K, PTR+8, 2097152) + self.srd(SRD_V, PTR+10, 2097152)))
        Ln = a.label('nononce')
        a(f"s_or_b32 s{ST}, s2, s{S_WAVE}\ns_cmp_lg_u32 s{ST}, 0\ns_cbranch_scc1 {Ln}")
        a(J(self.srd(SRD_DBG, PTR+20, 256)))
        a(f"s_or_b32 s{S_T+1}, s{S_T+1}, 0x80000000")
        a(f"v_mov_b32 v14, s{S_T}\nv_mov_b32 v15, s{S_T+1}\nv_mov_b32 v2, 0\ns_mov_b64 exec, 1")
        a(f"buffer_store_dwordx2 v[14:15], v2, {DBG}, 0 offen sc1 ; @cond")
        a(f"s_mov_b64 exec, -1\n{Ln}:")
        K, V = S4(SRD_K), S4(SRD_V)
        if 'tlb' in self.exp:
            a(f"s_lshl_b32 s{ST}, s{S_WAVE}, 1\ns_mov_b32 s{ST+4}, s{PTR+10}\ns_mov_b32 s{ST+5}, s{PTR+11}")
            a(f"s_cmp_eq_u32 s{S_WAVE}, 1\ns_cselect_b32 s{ST+4}, s{PTR+0}, s{ST+4}\ns_cselect_b32 s{ST+5}, s{PTR+1}, s{ST+5}")
            a(f"s_cmp_eq_u32 s{S_WAVE}, 2\ns_cselect_b32 s{ST+4}, s{PTR+2}, s{ST+4}\ns_cselect_b32 s{ST+5}, s{PTR+3}, s{ST+5}")
            a(f"s_cmp_eq_u32 s{S_WAVE}, 3\ns_cselect_b32 s{ST+4}, s{PTR+14}, s{ST+4}\ns_cselect_b32 s{ST+5}, s{PTR+15}, s{ST+5}")
            a(f"s_mov_b32 s{ST+6}, 4096\ns_mov_b32 s{ST+7}, 0x20000\nv_mov_b32 v12, 0\ns_mov_b64 exec, 1")
            a(f"buffer_load_dword v252, v12, s[{ST+4}:{ST+7}], 0 offen\ns_mov_b64 exec, -1")
        for d, v, srd, off in ((28,6,K,0),(32,6,K,1024),(24,9,K,0),(20,8,K,0),(16,7,K,0),(36,6,V,0),(40,6,V,1024)):
            a(f"buffer_load_dwordx4 v[{d}:{d+3}], v{v}, {srd}, 0 offen offset:{off} {self.NT}; @kv")
        if 'early' in self.exp: a("s_memtime s[90:91]\ns_waitcnt lgkmcnt(0)\nv_mov_b32 v12, s90\nv_accvgpr_write_b32 a202, v12")
        a(J(self.srd(SRD_X, PTR+0, 2097152) + self.srd(SRD_W, PTR+2, 1572864) + self.srd(SRD_SH, PTR+12, 4096)))
        a(f"s_mov_b32 m0, {WSH}\ns_mov_b32 exec_hi, 0")
        a(f"buffer_load_dwordx4 v10, {S4(SRD_SH)}, 0 offen lds ; @kv")
        a("s_mov_b32 exec_hi, -1")
        for g in self.dma_groups(0): a(J(g))
        if 'pf' in self.exp: self.xw_prefetch_addr()
        if 'pf' in self.exp: a(J(self.xw_prefetch(0)))
        if 'pf' in self.exp and 'pf2' not in self.exp: a(J(self.xw_prefetch(1)))
        self.stamp('issued')
        a(J(self.srd(SRD_WS, PTR+22, WS_SIZE) + self.srd(SRD_DBG, PTR+20, 256) + self.srd(SRD_Q, PTR+6, 2097152) + self.srd(SRD_WO, PTR+4, 524288) + self.srd(SRD_OUT, PTR+18, 4194304)))
        a(f"s_lshl_b32 s{ST}, s{S_XCD}, 7\ns_lshl_b32 s{ST+1}, s{S_I}, 2\ns_add_u32 s{ST}, s{ST}, s{ST+1}")
        a(f"s_load_dword s{S_D}, s[{PTR+16}:{PTR+17}], s{ST}")
        a(f"s_lshl_b32 s{ST}, s{S_XCD}, 6\ns_lshl_b32 s{ST+1}, s{S_I}, 1\ns_add_u32 s{ST}, s{ST}, s{ST+1}\ns_lshr_b32 s{ST+1}, s{S_WAVE}, 1\ns_add_u32 s{ST+3}, s{ST}, s{ST+1}")
        a(f"s_lshl_b32 s{ST}, s{ST+3}, 12")
        a(f"s_add_u32 s{SRD_H}, s{PTR+14}, s{ST}\ns_addc_u32 s{SRD_H+1}, s{PTR+15}, 0\ns_mov_b32 s{SRD_H+2}, 4096\ns_mov_b32 s{SRD_H+3}, 0x20000")
        a(f"s_load_dwordx8 s[{S_HT}:{S_HT+7}], s[{SRD_H}:{SRD_H+1}], 4064")
        a(f"s_min_u32 s{S_NH}, s{S_J}, 4\ns_lshl_b32 s{S_HEAD}, s{S_P}, 2\ns_add_u32 s{S_HEAD}, s{S_HEAD}, s{S_WAVE}\ns_mov_b32 s{S_FB}, 0")
        a(f"s_mov_b32 s{S_SEL0}, 0x05040100\ns_mov_b32 s{S_SEL1}, 0x07060302")
        a(f"s_and_b32 s{ST}, s{S_WAVE}, 1\ns_lshl_b32 s{ST}, s{ST}, 11\nv_lshlrev_b32 v13, 5, v1\nv_add_u32 v13, s{ST}, v13")
        a("v_subrev_u32 v11, 32, v13\nv_subrev_u32 v152, 16, v13")
        a("v_and_b32 v2, 31, v1\nv_lshrrev_b32 v3, 5, v1\nv_bfe_u32 v4, v2, 1, 3\nv_xor_b32 v3, v3, v4\nv_lshlrev_b32 v2, 7, v2")
        for kk in range(4):
            a(f"v_xor_b32 v4, {2*kk}, v3\nv_lshl_add_u32 v{104+kk}, v4, 4, v2\nv_add_u32 v{108+kk}, 0x10000, v{104+kk}")
        a("v_bfe_u32 v2, v1, 4, 1\nv_lshrrev_b32 v3, 5, v1\nv_bfe_u32 v4, v1, 2, 2")
        a("v_mul_u32_u24 v5, 3072, v3\nv_lshl_add_u32 v5, v4, 7, v5")
        a("v_and_b32 v154, 3, v1\nv_lshl_add_u32 v5, v154, 3, v5")
        a(f"v_and_b32 v154, 2, v4\nv_xor_b32 v154, s{S_WAVE}, v154")
        a(f"v_lshl_add_u32 v113, v154, 5, v5\nv_add_u32 v113, {8192+2048}, v113")
        a("v_xor_b32 v154, v154, v2\nv_lshl_add_u32 v112, v154, 5, v5\nv_lshl_add_u32 v112, v2, 10, v112\nv_add_u32 v112, 8192, v112")
        a("v_add_u32 v114, 0x10000, v112\nv_add_u32 v115, 0x10000, v113")
        a("v_mov_b32 v160, 0\nv_mov_b32 v161, 0\nv_mov_b32 v162, 0\nv_mov_b32 v163, 0")
        a(f"v_lshrrev_b32 v2, 5, v1\nv_mul_u32_u24 v2, {UC}, v2\nv_and_b32 v3, 31, v1\nv_lshl_add_u32 v2, v3, 4, v2\nv_add_u32 v2, {U+4096}, v2")
        a("ds_write_b128 v2, v[160:163]")
        a(f"v_and_b32 v4, 7, v1\nv_lshrrev_b32 v5, 3, v1\ns_lshl_b32 s{ST}, s{S_WAVE}, 3\nv_add_u32 v2, s{ST}, v5\nv_sub_u32 v2, 31, v2")
        a("v_lshrrev_b32 v3, 2, v2\nv_xor_b32 v3, v3, v4\nv_lshlrev_b32 v3, 4, v3\nv_and_b32 v2, 3, v2\nv_lshl_add_u32 v3, v2, 2, v3\nv_lshl_add_u32 v3, v4, 10, v3")
        a(f"v_add_u32 v155, {TP}, v3")
        a(f"v_lshlrev_b32 v153, 6, v4\nv_add_u32 v153, {WSH}, v153")
        a(f"s_lshl_b32 s{ST}, s{S_WAVE}, 1\nv_xor_b32 v156, s{ST}, v4\nv_lshlrev_b32 v156, 4, v156\nv_lshl_add_u32 v156, v5, 7, v156")
        a(f"s_lshl_b32 s{ST+1}, s{S_WAVE}, 11\ns_add_u32 s{ST+1}, s{ST+1}, {TP}\nv_add_u32 v156, s{ST+1}, v156\nv_xor_b32 v157, 16, v156")
        a(f"s_lshl_b32 s{ST}, s{S_XCD}, 6\ns_lshl_b32 s{ST+1}, s{S_WAVE}, 4\ns_add_u32 s{ST}, s{ST}, s{ST+1}\ns_lshl_b32 s{ST}, s{ST}, 12")
        a(f"s_lshl_b32 s{ST+1}, s{S_I}, 7\ns_sub_u32 s{ST}, s{ST}, s{ST+1}\ns_add_u32 s{ST}, s{ST}, {WS_KVT + 1984*2}")
        a(f"v_lshlrev_b32 v158, 12, v5\nv_lshl_add_u32 v158, v4, 4, v158\nv_add_u32 v158, s{ST}, v158\nv_add_u32 v159, {8*4096}, v158")
        a(f"s_lshl_b32 s{ST}, s{ST+3}, 12\ns_and_b32 s{ST+1}, s{S_WAVE}, 1\ns_lshl_b32 s{ST+1}, s{ST+1}, 10\ns_add_u32 s{ST}, s{ST}, s{ST+1}\ns_add_u32 s{ST}, s{ST}, {WS_KVT}")
        a(f"v_lshlrev_b32 v6, 4, v1\nv_add_u32 v7, s{ST}, v6")
        a(f"s_lshr_b32 s{ST}, s{S_WAVE}, 1\ns_mul_i32 s{ST+2}, s{ST}, {UC}\ns_add_u32 s{ST+2}, s{ST+2}, s{ST+1}\ns_add_u32 s{ST+2}, s{ST+2}, {U}\nv_add_u32 v8, s{ST+2}, v6")
        a(f"s_mul_i32 s{ST}, s{ST}, {4*TZC}\ns_lshl_b32 s{ST+2}, s{ST+1}, 1\ns_add_u32 s{ST+2}, s{ST+2}, s{ST}\ns_add_u32 s{ST+2}, s{ST+2}, {TZ}")
        a(f"v_lshlrev_b32 v154, 5, v1\nv_add_u32 v154, s{ST+2}, v154\ns_add_u32 s{ST}, s{ST}, {TZ + 4096}\nv_mov_b32 v12, s{ST}")
        a("v_and_b32 v2, 31, v1\nv_mov_b32 v3, 0\nv_mov_b32 v4, 0x3f803f80\nv_cmp_eq_u32 vcc, 16, v2\ns_nop 1\nv_cndmask_b32 v3, v3, v4, vcc\ns_nop 0")
        for r in range(32, 96): a(f"v_accvgpr_write_b32 a{r}, v3")
        a("v_mov_b32 v164, -1\nv_mov_b32 v165, -1\nv_mov_b32 v166, -1\nv_mov_b32 v167, -1")
        a(J(self.of_store_addr(9, 2, ST+7)))
        a("s_waitcnt lgkmcnt(0)")
        for i in range(8): a(f"v_mov_b32 v{126+i}, s{S_HT+i}")
        a("v_mov_b32 v134, 0\nv_mov_b32 v135, 0")
        DB = list(range(126, 136))
        a(J(self.toep_valu(DB, 224, 232, 240)))
        a("s_mov_b64 exec, 1"); a(J(self.toep_writes(DB, 224, 232, 240, 12))); a("s_mov_b64 exec, -1")

    def xw_prefetch_addr(self):
        a = self.a
        a(f"s_lshr_b32 s{ST}, s{S_XCD}, 1\ns_lshl_b32 s{ST}, s{ST}, 9\ns_lshl_b32 s{ST+1}, s{S_I}, 4\ns_add_u32 s{ST}, s{ST}, s{ST+1}\ns_lshl_b32 s{ST+1}, s{S_WAVE}, 2\ns_add_u32 s{ST}, s{ST}, s{ST+1}\ns_lshl_b32 s{ST}, s{ST}, 10")
        a(f"v_lshrrev_b32 v2, 3, v1\nv_lshlrev_b32 v2, 10, v2\nv_and_b32 v3, 7, v1\nv_lshl_add_u32 v2, v3, 6, v2\nv_add_u32 v250, s{ST}, v2")
        a(f"s_lshl_b32 s{ST}, s{S_I}, 3\ns_lshl_b32 s{ST+1}, s{S_WAVE}, 1\ns_add_u32 s{ST}, s{ST}, s{ST+1}\ns_mul_i32 s{ST}, s{ST}, 3072\ns_and_b32 s{ST+1}, s{S_XCD}, 1\ns_lshl_b32 s{ST+1}, s{ST+1}, 9\ns_add_u32 s{ST}, s{ST}, s{ST+1}")
        a("v_subrev_u32 v2, 24, v1\nv_ashrrev_i32 v3, 31, v2\nv_and_b32 v4, 24, v3\nv_add_u32 v2, v2, v4\nv_not_b32 v3, v3\nv_and_b32 v3, 3072, v3")
        a(f"v_lshrrev_b32 v4, 3, v2\nv_lshl_add_u32 v3, v4, 10, v3\nv_and_b32 v2, 7, v2\nv_lshl_add_u32 v3, v2, 6, v3\nv_add_u32 v251, s{ST}, v3")
    def xw_prefetch(self, ph):
        return ["s_mov_b32 exec_hi, 0", f"buffer_load_dword v252, v250, {S4(SRD_X)}, 0 offen offset:{512*ph}{self.PNT} ; @pf",
                "s_mov_b32 exec_hi, 0xffff", f"s_mov_b32 s{ST}, {256*3072*ph}", f"buffer_load_dword v253, v251, {S4(SRD_W)}, s{ST} offen{self.PNT} ; @pf", "s_mov_b32 exec_hi, -1"]

    def toep_valu(self, D, E, F, G):
        o = [f"v_alignbit_b32 v{E+i}, v{D[i+1]}, v{D[i]}, 16" for i in range(8)]
        o += [f"v_mov_b32 v{F+i}, v{D[i+1]}" for i in range(8)]
        o += [f"v_alignbit_b32 v{G+i}, v{D[i+2]}, v{D[i+1]}, 16" for i in range(8)]
        return o
    def toep_writes(self, D, E, F, G, vaddr):
        o = [f"ds_write_b128 v{vaddr}, v[{D[0]}:{D[0]+3}]", f"ds_write_b128 v{vaddr}, v[{D[4]}:{D[4]+3}] offset:16"]
        for r, R in ((1, E), (2, F), (3, G)):
            o += [f"ds_write_b128 v{vaddr}, v[{R}:{R+3}] offset:{r*TZC}", f"ds_write_b128 v{vaddr}, v[{R+4}:{R+7}] offset:{r*TZC+16}"]
        return o

    def pre(self):
        a = self.a
        a("s_waitcnt vmcnt(@kv)")
        self.stamp('predata')
        for i in range(4): a(f"ds_read_b128 v[{44+4*i}:{47+4*i}], v153 offset:{16*i}")
        main = []
        for d in range(4):
            for par in range(2):
                sel = f"s{S_SEL1 if par else S_SEL0}"; ch = 2*d + par; o = 60 + 8*(ch % 4)
                r = lambda row: 16 + 4*(row+3) + d
                un = (lambda dst, src: f"v_lshlrev_b32 v{dst}, 16, v{src}") if par == 0 else (lambda dst, src: f"v_and_b32 v{dst}, 0xffff0000, v{src}")
                main.append([f"v_perm_b32 v{o}, v{r(-1)}, v{r(0)}, {sel}", f"v_perm_b32 v{o+1}, v{r(0)}, v{r(1)}, {sel}",
                             f"v_perm_b32 v{o+2}, v{r(-3)}, v{r(-2)}, {sel}", f"v_perm_b32 v{o+3}, v{r(-2)}, v{r(-1)}, {sel}",
                             un(o+4, 36+d), un(o+5, 40+d),
                             f"v_dot2_f32_bf16 v{o+6}, v{o}, v{44+2*ch}, 0", f"v_dot2_f32_bf16 v{o+7}, v{o+1}, v{44+2*ch}, 0",
                             f"v_dot2_f32_bf16 v{o+6}, v{o+2}, v{45+2*ch}, v{o+6}", f"v_dot2_f32_bf16 v{o+7}, v{o+3}, v{45+2*ch}, v{o+7}",
                             f"v_mul_f32 v{o+6}, v{o+6}, v{o+4}", f"v_mul_f32 v{o+7}, v{o+7}, v{o+5}", f"v_cvt_pk_bf16_f32 v{92+ch}, v{o+7}, v{o+6}"])
        seq = []
        for k in range(0, 8, 2):
            A, B = main[k], main[k+1]
            seq += A[:6] + B[:6]
            if k == 0: seq.append("s_waitcnt lgkmcnt(0)")
            seq += A[6:10] + B[6:10] + A[10:12] + B[10:12] + [A[12], B[12]]
        a(J(interleave(seq, self.dma_groups(1), every=12)))
        for ch in range(8): a(f"ds_write_b32 v155, v{92+ch} offset:{ch*128}")
        self.stamp('precomp')
        a("s_waitcnt vmcnt(@dma0) lgkmcnt(0)\ns_barrier")
        self.stamp('stage0')
        a("ds_read_b128 v[16:19], v156\nds_read_b128 v[20:23], v157 offset:1024")
        self.qkv_reads(0, 0, 0)
        a(f"buffer_store_dwordx4 v[164:167], v9, {WS}, s{ST+7} offen sc1 ; @st0")
        a(f"s_add_u32 s{ST+7}, s{ST+7}, 32768")
        a("s_waitcnt lgkmcnt(7)")
        a(f"buffer_store_dwordx4 v[16:19], v158, {WS}, 0 offen sc1 ; @st0")
        a(f"buffer_store_dwordx4 v[164:167], v9, {WS}, s{ST+7} offen sc1 ; @st0")
        a("s_waitcnt lgkmcnt(6)")
        a(f"buffer_store_dwordx4 v[20:23], v159, {WS}, 0 offen sc1 ; @st0")
        a("v_mov_b32 v3, 0")
        a(f"buffer_load_dwordx2 v[14:15], v3, {DBG}, 0 offen sc1 ; @nonce")

    def qkv_reads(self, s, kk, st):
        a = self.a
        if 'noreads' in self.exp and s >= 1: return
        buf = s % 3; b = 60 + 16*st
        if buf < 2: xa, wqk, wv, base = 104+kk, 112, 113, buf*32768
        else:       xa, wqk, wv, base = 108+kk, 114, 115, 0
        a(f"ds_read_b128 v[{b}:{b+3}], v{xa} offset:{base}")
        a(f"ds_read_b64_tr_b16 v[{b+8}:{b+9}], v{wqk} offset:{base + kk*6144}")
        a(f"ds_read_b64_tr_b16 v[{b+10}:{b+11}], v{wqk} offset:{base + kk*6144 + 512}")
        a(f"ds_read_b128 v[{b+4}:{b+7}], v{xa} offset:{base + 4096}")
        a(f"ds_read_b64_tr_b16 v[{b+12}:{b+13}], v{wv} offset:{base + kk*6144}")
        a(f"ds_read_b64_tr_b16 v[{b+14}:{b+15}], v{wv} offset:{base + kk*6144 + 512}")
    def qkv_mfma(self, st, first=False):
        b = 60 + 16*st
        c = lambda r: "0" if first else f"v[{r}:{r+15}]"
        return [f"{MF32} v[160:175], v[{b+8}:{b+11}], v[{b}:{b+3}], {c(160)}", f"{MF32} v[176:191], v[{b+8}:{b+11}], v[{b+4}:{b+7}], {c(176)}",
                f"{MF32} v[192:207], v[{b}:{b+3}], v[{b+12}:{b+15}], {c(192)}", f"{MF32} v[208:223], v[{b+4}:{b+7}], v[{b+12}:{b+15}], {c(208)}"]
    def nonce_fix(self):
        a = self.a
        Lok = a.label('nonce_ok'); Lp = a.label('nonce_poll')
        a(f"v_readfirstlane_b32 s{S_T}, v14\nv_readfirstlane_b32 s{S_T+1}, v15\ns_nop 0")
        a(f"s_cmp_lg_u32 s{S_T+1}, 0\ns_cbranch_scc1 {Lok}\ns_mov_b32 s{S_TMO}, 0\n{Lp}:")
        a(f"v_mov_b32 v3, 0\nbuffer_load_dwordx2 v[14:15], v3, {DBG}, 0 offen sc1 ; @cond")
        a("s_waitcnt vmcnt(0)")
        a(f"v_readfirstlane_b32 s{S_T}, v14\nv_readfirstlane_b32 s{S_T+1}, v15")
        a(f"s_add_u32 s{S_TMO}, s{S_TMO}, 1\ns_cmp_gt_u32 s{S_TMO}, 0x20000\ns_cbranch_scc1 {Lok}")
        a(f"s_cmp_eq_u32 s{S_T+1}, 0\ns_cbranch_scc1 {Lp}\n{Lok}:")

    def qkv(self):
        a = self.a
        DA = list(range(116, 126)); H = S4(SRD_H)
        tzA = self.toep_valu(DA, 136, 144, 92)
        pend = self.dma_groups(2); vfill = []
        if 'pf2' in self.exp: pend = pend + [self.xw_prefetch(1)]
        def emit_mfma(st, first=False, nv=3):
            nonlocal pend, vfill
            for i, ins in enumerate(self.qkv_mfma(st, first)):
                a(ins)
                if i % 2 == 1 and pend: a(J(pend.pop(0)))
                for _ in range(nv):
                    if vfill: a(vfill.pop(0))
        for s in range(8):
            self.qkv_reads(s, 1, 1)
            if s == 7:
                a("ds_write_b128 v8, v[16:19]\nds_write_b128 v8, v[20:23] offset:2048")
                a("s_waitcnt lgkmcnt(8)")
            else: a("s_waitcnt lgkmcnt(6)")
            emit_mfma(0, first=(s == 0))
            self.qkv_reads(s, 2, 0)
            if s == 7:
                assert not vfill
                a(J(self.toep_writes(DA, 136, 144, 92, 154)))
                a("s_waitcnt lgkmcnt(14)")
            else: a("s_waitcnt lgkmcnt(6)")
            emit_mfma(1)
            self.qkv_reads(s, 3, 1)
            a("s_waitcnt lgkmcnt(6)")
            emit_mfma(0)
            if s < 7:
                while pend: a(J(pend.pop(0)))
                a(f"s_waitcnt vmcnt(@dma{s+1}) lgkmcnt(0)" if s < 6 else "s_waitcnt vmcnt(0) lgkmcnt(0)")
                if 'nobar' not in self.exp or s in (0, 6): a("s_barrier")
                if s == 1:
                    self.nonce_fix()
                    a(f"s_lshl_b32 s{ST}, s{S_XCD}, 2\ns_add_u32 s{ST}, s{ST}, s{S_WAVE}\ns_lshl_b32 s{ST}, s{ST}, 5\ns_add_u32 s{ST}, s{ST}, s{S_I}\ns_lshl_b32 s{ST}, s{ST}, 3\ns_add_u32 s{ST}, s{ST}, {WS_F1}")
                    a(J(self.flag_instrs(ST, 2, 4)))
                    a(f"s_lshl_b32 s{ST}, s{S_J}, 5\ns_add_u32 s{ST}, s{ST}, s{S_HEAD}\ns_lshl_b32 s{ST}, s{ST}, 3\ns_add_u32 s{ST}, s{ST}, {WS_F5}")
                    a(J(self.flag_instrs(ST, 2, 4)))
                if s + 3 < 8: pend = self.dma_groups(s + 3) if 'nodma' not in self.exp else [[f"buffer_load_dword v252, v250, {S4(SRD_X)}, 0 offen ; @dma{s+3}"]]
                if s == 3:
                    a(f"s_lshl_b32 s{ST}, s{S_XCD}, 2\ns_lshr_b32 s{ST+1}, s{S_I}, 3\ns_add_u32 s{ST}, s{ST}, s{ST+1}\ns_lshl_b32 s{ST}, s{ST}, 8\ns_add_u32 s{ST}, s{ST}, {WS_F1}")
                    a(f"v_lshlrev_b32 v2, 3, v1\nv_add_u32 v2, s{ST}, v2")
                    a(J(self.exec_n(32) + [self.poll_ld(2, 4, 'pf1'), "s_mov_b64 exec, -1"]))
                if s == 4:
                    a("s_waitcnt vmcnt(@pf1)")
                    a(J(self.exec_n(32)))
                    self.poll_check(2, 4, 'f1')
                    a("s_mov_b64 exec, -1")
                    pend = [[f"buffer_load_dwordx4 v[16:19], v7, {WS}, 0 offen sc1 ; @u"], [f"buffer_load_dwordx4 v[20:23], v7, {WS}, 0 offen offset:2048 sc1 ; @u"]] + pend + \
                           [[f"buffer_load_dwordx4 v[116:119], v11, {H}, 0 offen {self.NT}; @h"], [f"buffer_load_dwordx4 v[120:123], v152, {H}, 0 offen {self.NT}; @h"], [f"buffer_load_dwordx2 v[124:125], v13, {H}, 0 offen {self.NT}; @h"]]
                if s == 6: vfill = list(tzA)
                self.qkv_reads(s+1, 0, 0)
                self.stamp(f'b{s}')
            else:
                a("s_waitcnt lgkmcnt(0)\ns_barrier")
                self.stamp('b7')
                self.conv_addr()
                a(J(self.conv_reads_mixed_first()))
            emit_mfma(1)
        assert not vfill and not pend

    def conv_addr(self):
        a = self.a
        a("v_and_b32 v4, 15, v1\nv_lshrrev_b32 v5, 4, v1\nv_add_u32 v9, 1, v4\nv_and_b32 v10, 3, v9\nv_lshrrev_b32 v9, 2, v9")
        a(f"v_mul_u32_u24 v2, {TZC}, v10\nv_lshl_add_u32 v2, v9, 3, v2\nv_lshl_add_u32 v2, v5, 4, v2")
        a(f"s_lshr_b32 s{ST}, s{S_WAVE}, 1\ns_mul_i32 s{ST+1}, s{ST}, {4*TZC}\ns_and_b32 s{ST+2}, s{S_WAVE}, 1\ns_lshl_b32 s{ST+2}, s{ST+2}, 8\ns_add_u32 s{ST+1}, s{ST+1}, s{ST+2}\ns_add_u32 s{ST+1}, s{ST+1}, {TZ}")
        a(f"v_add_u32 v2, s{ST+1}, v2")
        a(f"s_mul_i32 s{ST+1}, s{ST}, {UC}\ns_add_u32 s{ST+1}, s{ST+1}, s{ST+2}\ns_add_u32 s{ST+1}, s{ST+1}, {U+480}")
        a(f"v_lshlrev_b32 v3, 4, v5\nv_lshlrev_b32 v9, 5, v4\nv_sub_u32 v3, v3, v9\nv_add_u32 v3, s{ST+1}, v3")
    def conv_reads(self, st, n):
        A = 16 + 64*st; B = 48 + 64*st; o = []
        for i in range(8):
            o.append(f"ds_read_b128 v[{B+4*i}:{B+4*i+3}], v3 offset:{512*(7-i) + 64*n}")
            o.append(f"ds_read_b64 v[{A+4*i}:{A+4*i+1}], v2 offset:{512*i + 64*n}")
            o.append(f"ds_read_b64 v[{A+4*i+2}:{A+4*i+3}], v2 offset:{512*i + 64*n + 8}")
        return o
    def conv_reads_mixed_first(self):
        o = self.conv_reads(0, 0)
        self.deferred = [x for x in o if 'v[76:79]' in x]
        return [x for x in o if 'v[76:79]' not in x]
    def conv_mfmas(self, st, first):
        A = 16 + 64*st; B = 48 + 64*st; o = []
        for i in range(8):
            for t in range(i, 8):
                acc = 144 + 4*t
                c = "0" if (first and i == 0) else f"v[{acc}:{acc+3}]"
                o.append(f"{MF16} v[{acc}:{acc+3}], v[{A+4*i}:{A+4*i+3}], v[{B+4*(t-i)}:{B+4*(t-i)+3}], {c}")
        return o
    def qkv_epilogue(self):
        a = self.a
        self.stamp('qkvdone')
        a(f"s_mov_b32 s{ST+2}, {hex(f2u(QSCALE))}")
        a(f"s_lshl_b32 s{ST}, s{S_HEAD}, 6\ns_lshl_b32 s{ST+1}, s{S_J}, 1\ns_add_u32 s{ST}, s{ST}, s{ST+1}\ns_lshl_b32 s{ST}, s{ST}, 11\ns_add_u32 s{ST}, s{ST}, {WS_KV}")
        a(f"s_add_u32 s{ST+1}, s{ST}, 2048")
        a("v_lshrrev_b32 v4, 5, v1\nv_and_b32 v5, 15, v1\nv_lshl_add_u32 v4, v4, 4, v5\nv_lshlrev_b32 v4, 4, v4\ns_nop 4")
        a(J(self.deferred))
        for b in range(2):
            acc = 160 + 16*b
            for p in range(4): a(f"v_cvt_pk_bf16_f32 v{232+4*b+p}, v{acc+8+2*p}, v{acc+8+2*p+1}")
        a(f"buffer_store_dwordx4 v[232:235], v6, {WS}, s{ST} offen sc1 ; @kvst")
        for p in range(8): a(f"v_cvt_pk_bf16_f32 v{240+p}, v{192+2*p}, v{192+2*p+1}")
        a(f"buffer_store_dwordx4 v[236:239], v6, {WS}, s{ST+1} offen sc1 ; @kvst")
        for p in range(8): a(f"v_cvt_pk_bf16_f32 v{248+p}, v{208+2*p}, v{208+2*p+1}")
        a("s_mov_b32 exec_lo, 0xffff\ns_mov_b32 exec_hi, 0xffff")
        for b in range(2):
            for h in range(2): a(f"buffer_store_dwordx4 v[{240+8*b+4*h}:{243+8*b+4*h}], v4, {WS}, s{ST+b} offen offset:{1024+512*h} sc1 ; @kvst")
        a("s_mov_b64 exec, -1")
        for b in range(2):
            acc = 160 + 16*b
            for r in range(8): a(f"v_mul_f32 v{acc+r}, s{ST+2}, v{acc+r}")
            for p in range(4): a(f"v_cvt_pk_bf16_f32 v{224+4*b+p}, v{acc+2*p}, v{acc+2*p+1}")
        a("s_mov_b32 exec_lo, 0x10000\ns_mov_b32 exec_hi, 0x10000")
        for r in range(240, 256): a(f"v_mov_b32 v{r}, 0x3f803f80")
        a("s_mov_b64 exec, -1")
    def mask_fill(self):
        o = ["v_and_b32 v176, 31, v1", "v_lshrrev_b32 v177, 5, v1", "v_lshlrev_b32 v177, 2, v177", "v_sub_u32 v176, v176, v177", f"v_mov_b32 v178, {hex(NEG)}"]
        for i in range(4):
            for r in range(4):
                k = 8*i + r
                o += [f"v_subrev_u32 v177, {k}, v176", "v_ashrrev_i32 v177, 31, v177", f"v_and_b32 v{A_MD+4*i+r}, v177, v178"]
        for p in range(8):
            k = 8*(p//2) + 2*(p % 2)
            o += [f"v_subrev_u32 v177, {k}, v176", "v_ashrrev_i32 v179, 31, v177", "v_subrev_u32 v177, 1, v177", "v_ashrrev_i32 v177, 31, v177",
                  "v_and_b32 v179, 0xffff, v179", "v_and_b32 v177, 0xffff0000, v177", "v_or_b32 v177, v177, v179", f"v_not_b32 v{A_MK+p}, v177"]
        return o
    def halo_groups(self, p):
        g = []
        for tau in (7-2*p, 6-2*p):
            g.append([f"s_add_u32 s{ST+6}, s{ST+5}, {tau*2048}", f"buffer_load_dwordx4 a[{4*tau}:{4*tau+3}], v216, {WS}, s{ST+6} offen sc1 ; @pair{p}"])
            g.append([f"s_add_u32 s{ST+6}, s{ST+5}, {tau*2048}", "s_mov_b32 exec_lo, 0xffff", "s_mov_b32 exec_hi, 0xffff",
                      f"buffer_load_dwordx4 a[{32+8*tau}:{35+8*tau}], v217, {WS}, s{ST+6} offen offset:1024 sc1 ; @pair{p}",
                      f"buffer_load_dwordx4 a[{36+8*tau}:{39+8*tau}], v217, {WS}, s{ST+6} offen offset:1536 sc1 ; @pair{p}", "s_mov_b64 exec, -1"])
        return g
    def conv(self):
        a = self.a
        a("v_lshrrev_b32 v5, 4, v1\nv_and_b32 v9, 7, v1\nv_lshrrev_b32 v10, 1, v9\nv_xor_b32 v10, v10, v5\nv_lshlrev_b32 v10, 5, v10\nv_and_b32 v9, 1, v9\nv_lshl_add_u32 v10, v9, 4, v10\nv_lshrrev_b32 v9, 3, v1\nv_lshl_add_u32 v8, v9, 10, v10")
        a(f"s_lshl_b32 s{ST+3}, s{S_WAVE}, 17\ns_lshl_b32 s{ST+4}, s{S_P}, 7\ns_add_u32 s{ST+3}, s{ST+3}, s{ST+4}\ns_lshl_b32 s{ST+4}, s{S_WAVE}, 14")
        wo = [[f"s_add_u32 m0, s{ST+4}, {n*1024}", f"s_add_u32 s{ST+9}, s{ST+3}, {n*8192}", f"buffer_load_dwordx4 v8, {S4(SRD_WO)}, s{ST+9} offen lds ; @wo"] for n in range(16)]
        f2post = [f"s_lshl_b32 s{ST}, s{S_HEAD}, 5", f"s_add_u32 s{ST}, s{ST}, s{S_J}", f"s_lshl_b32 s{ST}, s{ST}, 3", f"s_add_u32 s{ST}, s{ST}, {WS_F2}"] + self.flag_instrs(ST, 4, 6)
        masks = self.mask_fill()
        masks += [f"s_lshl_b32 s{ST+5}, s{S_HEAD}, 6", f"s_lshl_b32 s{ST+6}, s{S_J}, 1", f"s_add_u32 s{ST+5}, s{ST+5}, s{ST+6}", f"s_lshl_b32 s{ST+5}, s{ST+5}, 11", f"s_add_u32 s{ST+5}, s{ST+5}, {WS_KV - 8*2048}",
                  "v_lshlrev_b32 v216, 4, v1", "v_lshrrev_b32 v177, 5, v1", "v_and_b32 v179, 15, v1", "v_lshl_add_u32 v177, v177, 4, v179", "v_lshlrev_b32 v217, 4, v177"]
        a("s_waitcnt lgkmcnt(0)")
        self.stamp('convstart')
        nwo = 0
        for n in range(4):
            m = self.conv_mfmas(n & 1, n == 0)
            rd = self.conv_reads((n+1) & 1, n+1) if n < 3 else []
            for i, ins in enumerate(m):
                gi = 36*n + i
                a(ins)
                if rd: a(rd.pop(0))
                elif masks: a(masks.pop(0))
                if masks and i % 2 == 0: a(masks.pop(0))
                if gi % 8 == 4 and nwo < 16: a(J(wo[nwo])); nwo += 1
                if gi == 58:
                    a("s_waitcnt vmcnt(@kvst)"); a(J(f2post))
                if gi == 110:
                    a(f"s_lshl_b32 s{ST}, s{S_HEAD}, 5\ns_add_u32 s{ST}, s{ST}, s{S_J}\ns_sub_u32 s{ST}, s{ST}, s{S_NH}\ns_lshl_b32 s{ST}, s{ST}, 3\ns_add_u32 s{ST}, s{ST}, {WS_F2}")
                    a(f"v_lshlrev_b32 v9, 3, v1\nv_add_u32 v9, s{ST}, v9")
                    a(f"s_lshl_b32 s{ST+1}, 1, s{S_NH}\ns_sub_u32 s{ST+1}, s{ST+1}, 1\ns_max_u32 s{ST+1}, s{ST+1}, 1")
                    a(f"s_mov_b32 exec_lo, s{ST+1}\ns_mov_b32 exec_hi, 0"); a(self.poll_ld(9, 10, 'pf2')); a("s_mov_b64 exec, -1")
            if n < 3: a("s_waitcnt lgkmcnt(0)")
        while masks: a(masks.pop(0))
        assert nwo == 16
        self.stamp('convmfma')
        L = a.label('nopoll2')
        a("s_waitcnt vmcnt(@pf2)")
        a(f"s_cmp_eq_u32 s{S_NH}, 0\ns_cbranch_scc1 {L}")
        a(f"s_lshl_b32 s{ST+1}, 1, s{S_NH}\ns_sub_u32 s{ST+1}, s{ST+1}, 1\ns_mov_b32 exec_lo, s{ST+1}\ns_mov_b32 exec_hi, 0")
        self.poll_check(9, 10, 'f2')
        a(f"s_mov_b64 exec, -1\n{L}:")
        self.stamp('f2seen')
        with Cap(a) as cap: self.conv_epilogue()
        halo = self.halo_groups(0)
        out = []; cnt = 8; blocked = 0
        for ins in cap.out:
            if ins.startswith(';#noint'): blocked = 1; continue
            if ins.startswith(';#int'): blocked = 0; continue
            out.append(ins)
            if not blocked and not ins.endswith(':'):
                cnt += 1
                if cnt >= 6 and halo and not ins.startswith('s_cmp'): out += halo.pop(0); cnt = 0
        assert not halo
        a(J(out))
    def conv_epilogue(self):
        a = self.a
        Lr1 = a.label('rho1'); Lj = a.label('rhojoin')
        a(f"s_lshl_b32 s{ST}, s{S_WAVE}, 12\ns_add_u32 s{ST}, s{ST}, {EX}\nv_lshlrev_b32 v4, 4, v1\nv_add_u32 v5, s{ST}, v4")
        a(f"s_xor_b32 s{ST}, s{S_WAVE}, 1\ns_lshl_b32 s{ST}, s{ST}, 12\ns_add_u32 s{ST}, s{ST}, {EX}\nv_add_u32 v6, s{ST}, v4")
        a.lines.append(";#noint")
        a(f"s_and_b32 s{ST+1}, s{S_WAVE}, 1\ns_cmp_lg_u32 s{ST+1}, 0\ns_cbranch_scc1 {Lr1}")
        for t in range(4): a(f"ds_write_b128 v5, v[{160+4*t}:{163+4*t}] offset:{1024*t}")
        a(f"s_branch {Lj}\n{Lr1}:")
        for t in range(4): a(f"ds_write_b128 v5, v[{144+4*t}:{147+4*t}] offset:{1024*t}")
        a("s_waitcnt lgkmcnt(0)")
        for r in range(16): a(f"v_mov_b32 v{144+r}, v{160+r}")
        a(f"{Lj}:")
        a.lines.append(";#int")
        a(f"s_lshr_b32 s{ST}, s{S_WAVE}, 1\ns_mul_i32 s{ST}, s{ST}, {UC}\ns_lshl_b32 s{ST+2}, s{ST+1}, 11\ns_sub_u32 s{ST}, s{ST}, s{ST+2}\ns_add_u32 s{ST}, s{ST}, {U + 4088 - 1536}")
        a(f"v_and_b32 v7, 15, v1\nv_lshrrev_b32 v8, 4, v1\nv_lshlrev_b32 v9, 5, v7\nv_lshl_add_u32 v9, v8, 3, v9\nv_sub_u32 v10, s{ST}, v9")
        for tl in range(4): a(f"ds_read_b64 v[{176+2*tl}:{177+2*tl}], v10 offset:{512*(3-tl)}")
        a(f"s_lshl_b32 s{ST}, s{S_D}, 16\ns_and_b32 s{ST+2}, s{S_D}, 0xffff0000\ns_cmp_lt_u32 s{S_WAVE}, 2\ns_cselect_b32 s{ST}, s{ST}, s{ST+2}")
        a(f"s_lshl_b32 s{ST+1}, s{S_WAVE}, 11\ns_add_u32 s{ST+1}, s{ST+1}, {TP}\nv_add_u32 v9, s{ST+1}, v9")
        a("s_waitcnt lgkmcnt(0)\ns_barrier")
        for t in range(4): a(f"ds_read_b128 v[{16+4*t}:{19+4*t}], v6 offset:{1024*t}")
        for tl in range(4):
            lo, hi = 176+2*tl, 177+2*tl
            acc = 144 + 4*tl; px = 16 + 4*tl
            a(f"v_and_b32 v32, 0xffff0000, v{hi}\nv_lshlrev_b32 v33, 16, v{hi}\nv_and_b32 v34, 0xffff0000, v{lo}\nv_lshlrev_b32 v35, 16, v{lo}")
            for r in range(4): a(f"v_fmac_f32 v{acc+r}, s{ST}, v{32+r}")
            if tl == 0: a("s_waitcnt lgkmcnt(0)")
            for r in range(4): a(f"v_add_f32 v{acc+r}, v{acc+r}, v{px+r}")
            a(f"v_cvt_pk_bf16_f32 v{36+2*tl}, v{acc}, v{acc+1}\nv_cvt_pk_bf16_f32 v{37+2*tl}, v{acc+2}, v{acc+3}")
            a(f"ds_write_b64 v9, v[{36+2*tl}:{37+2*tl}] offset:{512*tl}")
        a(f"v_add_u32 v4, s{ST+1}, v4")
        a("s_waitcnt lgkmcnt(0)")
        a("ds_read_b128 v[208:211], v4\nds_read_b128 v[212:215], v4 offset:1024")
        a(f"s_lshl_b32 s{ST}, s{S_XCD}, 6\ns_lshl_b32 s{ST+1}, s{S_I}, 1\ns_add_u32 s{ST}, s{ST}, s{ST+1}\ns_lshr_b32 s{ST+1}, s{S_WAVE}, 1\ns_add_u32 s{ST}, s{ST}, s{ST+1}\ns_lshl_b32 s{ST}, s{ST}, 12")
        a(f"s_and_b32 s{ST+1}, s{S_WAVE}, 1\ns_lshl_b32 s{ST+1}, s{ST+1}, 11\ns_add_u32 s{ST+7}, s{ST}, s{ST+1}\ns_add_u32 s{ST+7}, s{ST+7}, {WS_ZT}")

    def attention(self):
        a = self.a
        S, P, CN, O, MD, MK, QF = A_S, A_P, A_CN, A_O, A_MD, A_MK, A_QF
        def Kf(t): return f"a[{4*t}:{4*t+3}]" if t < 8 else f"v[{232+4*(t-8)}:{235+4*(t-8)}]"
        def Vf(t, h): return f"a[{32+8*t+4*h}:{35+8*t+4*h}]" if t < 8 else f"v[{240+8*(t-8)+4*h}:{243+8*(t-8)+4*h}]"
        def maxreduce(src, dst, init=None):
            o = []
            if init is None: o.append(f"v_max3_f32 v{dst}, v{src}, v{src+1}, v{src+2}"); rest = list(range(src+3, src+16))
            else: rest = list(range(src, src+16))
            while len(rest) >= 2: o.append(f"v_max3_f32 v{dst}, v{dst}, v{rest[0]}, v{rest[1]}"); rest = rest[2:]
            if rest: o.append(f"v_max_f32 v{dst}, v{dst}, v{rest[0]}")
            return o
        def finish_max(m, b, bias, tmp):
            o = [f"v_mov_b32 v{tmp}, v{m}", "s_nop 1", f"v_permlane32_swap_b32 v{m}, v{tmp}", "s_nop 1", f"v_max_f32 v{m}, v{m}, v{tmp}"]
            if bias: o.append(f"v_add_f32 v{m}, {bias}, v{m}")
            o.append(f"v_sub_f32 v{m}, 0, v{m}")
            return o + [f"v_mov_b32 v{CN[b]+r}, v{m}" for r in range(16)]
        a(f"{MF32} v[{S[0]}:{S[0]+15}], {Kf(8)}, v[{QF[0]}:{QF[0]+3}], v[{MD}:{MD+15}]")
        a(f"{MF32} v[{S[1]}:{S[1]+15}], {Kf(8)}, v[{QF[1]}:{QF[1]+3}], 0")
        a(f"{MF32} v[{O[0]}:{O[0]+15}], {Kf(9)}, v[{QF[1]}:{QF[1]+3}], v[{MD}:{MD+15}]")
        a("s_waitcnt lgkmcnt(0)\nv_lshlrev_b32 v5, 4, v1")
        a(f"buffer_store_dwordx4 v[208:211], v5, {WS}, s{ST+7} offen sc1 ; @zst")
        a(f"buffer_store_dwordx4 v[212:215], v5, {WS}, s{ST+7} offen offset:1024 sc1 ; @zst")
        a(f"s_lshl_b32 s{ST}, s{S_XCD}, 1\ns_and_b32 s{ST+1}, s{S_WAVE}, 1\ns_add_u32 s{ST}, s{ST}, s{ST+1}\ns_lshl_b32 s{ST}, s{ST}, 6")
        a(f"s_lshl_b32 s{ST+1}, s{S_I}, 1\ns_add_u32 s{ST}, s{ST}, s{ST+1}\ns_lshr_b32 s{ST+1}, s{S_WAVE}, 1\ns_add_u32 s{ST}, s{ST}, s{ST+1}\ns_lshl_b32 s{ST}, s{ST}, 3\ns_add_u32 s{ST+7}, s{ST}, {WS_F3}")
        a(f"s_lshl_b32 s{ST}, s{S_XCD}, 1\ns_lshr_b32 s{ST+1}, s{S_I}, 4\ns_add_u32 s{ST}, s{ST}, s{ST+1}\ns_lshl_b32 s{ST}, s{ST}, 6\ns_lshl_b32 s{ST+1}, s{S_WAVE}, 4\ns_add_u32 s{ST}, s{ST}, s{ST+1}\ns_lshl_b32 s{ST}, s{ST}, 3\ns_add_u32 s{ST}, s{ST}, {WS_F3}")
        a(f"v_lshlrev_b32 v219, 3, v1\nv_add_u32 v218, s{ST}, v219")
        a(f"s_lshl_b32 s{ST}, s{S_J}, 8\ns_add_u32 s{ST}, s{ST}, {WS_F5}\nv_add_u32 v219, s{ST}, v219")
        a(f"s_lshl_b32 s{ST}, s{S_I}, 6\ns_lshl_b32 s{ST+1}, s{S_WAVE}, 4\ns_add_u32 s{ST}, s{ST}, s{ST+1}\ns_lshl_b32 s{ST}, s{ST}, 10\ns_lshl_b32 s{ST+1}, s{S_XCD}, 7\ns_add_u32 s{ST+8}, s{ST}, s{ST+1}")
        a("v_and_b32 v4, 15, v1\nv_lshrrev_b32 v5, 4, v1\nv_lshlrev_b32 v4, 10, v4\nv_lshl_add_u32 v220, v5, 5, v4")
        a("v_mov_b32 v152, 0\nv_mov_b32 v153, 0\nv_mov_b32 v154, 0\nv_mov_b32 v155, 0")
        a(f"s_mov_b32 s{ST}, 0x42800000")
        mx = maxreduce(S[0], 10) + maxreduce(S[1], 11) + maxreduce(O[0], 11, init=11) + finish_max(10, 0, f"s{ST}", 8) + finish_max(11, 1, f"s{ST}", 9)
        fill = self.halo_groups(1)
        out = []; cnt = 0
        for k, ins in enumerate(mx):
            out.append(ins)
            nxt = mx[k+1] if k+1 < len(mx) else ''
            if ins.startswith('v_') and not nxt.startswith(('s_nop', 'v_permlane')) and not ins.startswith('v_permlane'):
                cnt += 1
                if cnt % 10 == 0 and fill: out += fill.pop(0)
        for gset in fill: out += gset
        a(J(out))
        self.stamp('attnstart')
        Lmain = a.label('attn_main'); Ldone = a.label('attn_done'); Lfb = a.label('attn_fallback'); Lok = a.label('attn_ok'); Lj0 = a.label('attn_j0')
        a(f"{Lmain}:")
        items = [(0, 8, 'D'), (1, 9, 'D'), (1, 8, None)]
        pairs = [[(0,7,None),(1,7,None),(0,6,None),(1,6,None)], [(0,5,None),(1,5,None),(0,4,None),(1,4,None)],
                 [(0,3,None),(1,3,None),(0,2,None),(1,2,None)], [(0,1,None),(1,1,'F'),(0,0,'F')]]
        allitems = items + [x for p in pairs for x in p]
        first_pv = {0: True, 1: True}
        def smfma(n):
            b, t, m = allitems[n]
            return f"{MF32} v[{S[n&1]}:{S[n&1]+15}], {Kf(t)}, v[{QF[b]}:{QF[b]+3}], v[{CN[b]}:{CN[b]+15}]"
        pair_start = {}; n = len(items)
        for pi, p in enumerate(pairs): pair_start[n] = pi; n += len(p)
        late = {0: self.halo_groups(2)[:2], 1: self.halo_groups(2)[2:], 3: self.halo_groups(3)[:2], 4: self.halo_groups(3)[2:],
                2: [[f"buffer_load_dwordx4 v[168:171], v220, {S4(SRD_Q)}, s{ST+8} offen {self.NT}; @q"], [f"buffer_load_dwordx4 v[172:175], v220, {S4(SRD_Q)}, s{ST+8} offen offset:16 {self.NT}; @q"]],
                15: [self.exec_n(16) + [self.poll_ld(218, 152, 'pf3'), "s_mov_b64 exec, -1"], self.exec_n(32) + [self.poll_ld(219, 154, 'pf5'), "s_mov_b64 exec, -1"]]}
        a(smfma(0)); a("s_nop 7\ns_nop 3")
        pvp = []; N = len(allitems)
        for n, (b, t, m) in enumerate(allitems):
            s = S[n & 1]; p = P[n & 1]; nxt = n + 1
            lg = list(late.get(n, []))
            ex = lambda r0, r1: [a(f"v_exp_f32 v{s+r}, v{s+r}") for r in range(r0, r1)]
            ex(0, 2)
            if pvp: a(pvp[0])
            ex(2, 5)
            if pvp: a(pvp[1])
            pvp = []
            if lg: a(J(lg.pop(0)))
            ex(5, 9)
            if nxt < N:
                if nxt in pair_start:
                    pi = pair_start[nxt]
                    a(f"s_waitcnt vmcnt(@pair{pi})")
                    if pi == 1: a(J(self.flag_instrs(ST+7, 2, 4)))
                a(smfma(nxt))
            ex(9, 13)
            if lg: a(J(lg.pop(0)))
            ex(13, 16)
            for r in range(8): a(f"v_cvt_pk_bf16_f32 v{p+r}, v{s+2*r}, v{s+2*r+1}")
            if m == 'D':
                for r in range(8): a(f"v_and_b32 v{p+r}, v{MK+r}, v{p+r}")
            elif m == 'F':
                for r in range(8): a(f"v_bfi_b32 v{p+r}, v{MK+r}, 0, v{p+r}")
            c = "0" if first_pv[b] else f"v[{O[b]}:{O[b]+15}]"
            first_pv[b] = False
            pv = [f"{MF32} v[{O[b]}:{O[b]+15}], {Vf(t,0)}, v[{p}:{p+3}], {c}", f"{MF32} v[{O[b]}:{O[b]+15}], {Vf(t,1)}, v[{p+4}:{p+7}], v[{O[b]}:{O[b]+15}]"]
            if nxt in pair_start or nxt == N:
                a("s_nop 1"); a(pv[0]); a(pv[1])
                if nxt in pair_start:
                    pi = pair_start[nxt]
                    a(f"s_cmp_le_u32 s{S_NH}, {pi}\ns_cbranch_scc1 {Lj0 if pi == 0 else Ldone}")
            else: pvp = pv
        a(f"{Ldone}:")
        self.stamp('attndone')
        a("s_nop 7\ns_nop 3")
        for b in range(2): a(f"v_mov_b32 v{10+b}, v{O[b]+8}\nv_mov_b32 v8, v{O[b]+8}\ns_nop 1\nv_permlane32_swap_b32 v{10+b}, v8")
        a(f"s_mov_b32 s{ST}, 0x71800000")
        a(f"v_cmp_gt_f32 vcc, s{ST}, v10\ns_nop 4\ns_mov_b64 s[{ST+2}:{ST+3}], vcc")
        a(f"v_cmp_gt_f32 vcc, s{ST}, v11\ns_nop 4\ns_and_b64 s[{ST+2}:{ST+3}], s[{ST+2}:{ST+3}], vcc")
        a(f"s_cmp_lg_u32 s{S_FB}, 0\ns_cbranch_scc1 {Lok}")
        a(f"s_cmp_eq_u64 s[{ST+2}:{ST+3}], -1\ns_cbranch_scc0 {Lfb}\n{Lok}:")
        with Cap(a) as cap:
            a(f"{Lj0}:")
            a("s_waitcnt vmcnt(0)"); a(J(self.flag_instrs(ST+7, 2, 4))); a(f"s_branch {Ldone}")
            a(f"{Lfb}:")
            a(f"s_mov_b32 s{ST}, {hex(NEG)}")
            for r in range(16): a(f"v_sub_f32 v{128+r}, s{ST}, v{MD+r}")
            a(f"v_mov_b32 v10, s{ST}\nv_mov_b32 v11, s{ST}\ns_waitcnt vmcnt(0)")
            Lf = a.label('fb_done')
            for (b, t, m) in sorted(allitems, key=lambda x: -x[1]):
                if t < 8 and (t % 2 == 1) and b == 0: a(f"s_cmp_le_u32 s{S_NH}, {(7-t)//2}\ns_cbranch_scc1 {Lf}")
                c = {None: "0", 'D': f"v[{MD}:{MD+15}]", 'F': "v[128:143]"}[m]
                a(f"{MF32} v[16:31], {Kf(t)}, v[{QF[b]}:{QF[b]+3}], {c}\ns_nop 7\ns_nop 3")
                a(J(maxreduce(16, 10+b, init=10+b))); a("s_nop 7")
            a(f"{Lf}:")
            a(J(finish_max(10, 0, None, 8) + finish_max(11, 1, None, 9)))
            a(f"s_mov_b32 s{S_FB}, 1\ns_branch {Lmain}")
        self.tail_blocks.append(cap.out)

    def tail(self):
        a = self.a
        O = A_O
        a("s_waitcnt vmcnt(0)")
        a(J(self.exec_n(16))); self.poll_check(218, 152, 'f3'); a("s_mov_b64 exec, -1")
        a(f"s_lshl_b32 s{ST}, s{S_XCD}, 6\ns_lshl_b32 s{ST+1}, s{S_WAVE}, 4\ns_add_u32 s{ST}, s{ST}, s{ST+1}\ns_lshl_b32 s{ST}, s{ST}, 12\ns_lshl_b32 s{ST+1}, s{S_I}, 7\ns_add_u32 s{ST}, s{ST}, s{ST+1}\ns_add_u32 s{ST+5}, s{ST}, {WS_ZT}")
        a(f"v_lshrrev_b32 v6, 3, v1\nv_and_b32 v3, 7, v1\nv_lshlrev_b32 v24, 12, v6\nv_lshl_add_u32 v24, v3, 4, v24\ns_add_u32 s{ST+6}, s{ST+5}, {8*4096}")
        a(f"buffer_load_dwordx4 v[156:159], v24, {WS}, s{ST+5} offen sc1 ; @z")
        a(f"buffer_load_dwordx4 v[160:163], v24, {WS}, s{ST+6} offen sc1 ; @z")
        self.stamp('f3seen')
        a(J(self.of_store_addr(2, 3, ST)))
        for b in range(2): a(f"v_rcp_f32 v{10+b}, v{10+b}")
        for b in range(2):
            for r in range(8): a(f"v_mul_f32 v{O[b]+r}, v{O[b]+r}, v{10+b}")
            for p in range(4): a(f"v_cvt_pk_bf16_f32 v{16+4*b+p}, v{O[b]+2*p}, v{O[b]+2*p+1}")
            a(f"s_add_u32 s{ST+1}, s{ST}, {b*32768}")
            if b == 0:
                pass
            a(f"buffer_store_dwordx4 v[{16+4*b}:{19+4*b}], v2, {WS}, s{ST+1} offen sc1 ; @ost")
        self.stamp('ostored')
        a(J(self.exec_n(32))); self.poll_check(219, 154, 'f5'); a("s_mov_b64 exec, -1")
        a(f"s_lshl_b32 s{ST}, s{S_WAVE}, 11\ns_add_u32 s{ST}, s{ST}, {TP}\nv_lshlrev_b32 v25, 4, v1\nv_add_u32 v25, s{ST}, v25")
        a(f"v_lshrrev_b32 v6, 4, v1\nv_bfe_u32 v3, v1, 2, 2\nv_lshl_add_u32 v6, v6, 4, v3\nv_lshlrev_b32 v6, 7, v6\nv_and_b32 v3, 3, v1\nv_lshl_add_u32 v6, v3, 3, v6\ns_lshl_b32 s{ST}, s{S_WAVE}, 5\ns_add_u32 s{ST}, s{ST}, {TP}\nv_add_u32 v26, s{ST}, v6")
        a(f"s_lshl_b32 s{ST}, s{S_I}, 6\ns_lshl_b32 s{ST+1}, s{S_WAVE}, 4\ns_add_u32 s{ST}, s{ST}, s{ST+1}\ns_lshl_b32 s{ST}, s{ST}, 11\ns_lshl_b32 s{ST+1}, s{S_XCD}, 7\ns_add_u32 s{ST}, s{ST}, s{ST+1}\ns_add_u32 s{ST+4}, s{ST}, 1024")
        a(f"v_and_b32 v6, 15, v1\nv_lshrrev_b32 v3, 4, v1\nv_lshlrev_b32 v6, 11, v6\nv_lshl_add_u32 v27, v3, 5, v6")
        for i in range(8): a(f"v_lshlrev_b32 v{32+2*i}, 16, v{168+i}\nv_and_b32 v{33+2*i}, 0xffff0000, v{168+i}")
        a("v_lshrrev_b32 v3, 5, v1\nv_bfe_u32 v4, v1, 4, 1\nv_bfe_u32 v5, v1, 2, 2\nv_lshlrev_b32 v6, 4, v3\nv_lshl_add_u32 v6, v4, 2, v6\nv_add_u32 v6, v6, v5\nv_lshlrev_b32 v6, 7, v6")
        a("v_and_b32 v7, 3, v1\nv_lshl_add_u32 v6, v7, 3, v6\nv_lshrrev_b32 v5, 1, v5\nv_lshl_add_u32 v5, v4, 1, v5")
        for t in range(4): a(f"v_xor_b32 v7, {t}, v5\nv_lshl_add_u32 v{84+t}, v7, 5, v6")
        a(f"s_lshl_b32 s{ST+5}, s{S_J}, 2\ns_add_u32 s{ST+5}, s{ST+5}, s{S_WAVE}\ns_lshl_b32 s{ST+5}, s{ST+5}, 14\ns_add_u32 s{ST+5}, s{ST+5}, {WS_OF}\nv_lshlrev_b32 v2, 4, v1")
        a("s_waitcnt vmcnt(@z)")
        a("ds_write_b128 v25, v[156:159]\nds_write_b128 v25, v[160:163] offset:1024")
        a("s_waitcnt lgkmcnt(0)\ns_barrier")
        self.stamp('zlds')
        for n in range(4): a(f"ds_read_b64_tr_b16 v[{48+2*n}:{49+2*n}], v26 offset:{512*n}")
        OF = 96
        def ofld(m, tag=True):
            return [f"s_add_u32 s{ST+6}, s{ST+5}, {(m//4)*4096}", f"buffer_load_dwordx4 v[{OF+4*m}:{OF+4*m+3}], v2, {WS}, s{ST+6} offen offset:{1024*(m%4)} sc1" + (f" ; @of{m}" if tag else " ; @cond")]
        a("s_waitcnt lgkmcnt(0)")
        comp = []
        for i in range(8): comp += [f"v_lshlrev_b32 v{64+2*i}, 16, v{48+i}", f"v_and_b32 v{65+2*i}, 0xffff0000, v{48+i}"]
        comp += [f"v_mul_f32 v{32+i}, v{32+i}, v{64+i}" for i in range(16)]
        comp += [f"v_cvt_pk_bf16_f32 v{16+i}, v{32+2*i}, v{33+2*i}" for i in range(8)]
        a(J(interleave(comp, [ofld(m) for m in range(16)], every=3)))
        a(f"buffer_store_dwordx4 v[16:19], v27, {S4(SRD_OUT)}, s{ST+4} offen ; @bst")
        a(f"buffer_store_dwordx4 v[20:23], v27, {S4(SRD_OUT)}, s{ST+4} offen offset:16 ; @bst")
        self.stamp('ofissued')
        def reads(m, st): return [f"ds_read_b64_tr_b16 v[{24+16*st+4*t+2*e}:{25+16*st+4*t+2*e}], v{84+t} offset:{m*4096 + e*1024}" for t in range(4) for e in range(2)]
        a(J(reads(0, 0)))
        a(f"s_mov_b32 s{S_TMO}, 0")
        for m in range(16):
            st = m & 1; r = OF + 4*m
            Lc = a.label(f'ofchk{m}'); Lr = a.label(f'ofretry{m}')
            a(f"s_waitcnt vmcnt(@of{m})")
            a(f"{Lc}:")
            a(f"v_max3_u32 v3, v{r}, v{r+1}, v{r+2}\nv_max_u32 v3, v3, v{r+3}\nv_cmp_eq_u32 vcc, -1, v3")
            if m < 15: a(J(reads(m+1, st ^ 1)))
            else: a("s_nop 4")
            a(f"s_cbranch_vccnz {Lr}")
            a(f"{Lc}_ok:")
            a("s_waitcnt lgkmcnt(8)" if m < 15 else "s_waitcnt lgkmcnt(0)")
            for t in range(4):
                c = "0" if m == 0 else f"v[{64+4*t}:{67+4*t}]"
                a(f"{MF16} v[{64+4*t}:{67+4*t}], v[{24+16*st+4*t}:{27+16*st+4*t}], v[{r}:{r+3}], {c}")
            with Cap(a) as cap:
                a(f"{Lr}:")
                a(f"s_add_u32 s{S_TMO}, s{S_TMO}, 1\ns_cmp_gt_u32 s{S_TMO}, 0x20000\ns_cbranch_scc1 {Lc}_ok")
                a(J(ofld(m, False))); a("s_waitcnt vmcnt(0)")
                a(f"v_max3_u32 v3, v{r}, v{r+1}, v{r+2}\nv_max_u32 v3, v3, v{r+3}\nv_cmp_eq_u32 vcc, -1, v3\ns_nop 4\ns_cbranch_vccnz {Lr}\ns_branch {Lc}_ok")
            self.tail_blocks.append(cap.out)
        a(f"s_lshl_b32 s{ST}, s{S_J}, 6\ns_lshl_b32 s{ST+1}, s{S_WAVE}, 4\ns_add_u32 s{ST}, s{ST}, s{ST+1}\ns_lshl_b32 s{ST}, s{ST}, 11\ns_lshl_b32 s{ST+1}, s{S_P}, 7\ns_add_u32 s{ST}, s{ST}, s{ST+1}")
        a("v_and_b32 v2, 15, v1\nv_lshlrev_b32 v2, 11, v2\nv_bfe_u32 v3, v1, 4, 1\nv_lshl_add_u32 v2, v3, 5, v2\nv_lshrrev_b32 v3, 5, v1\nv_lshl_add_u32 v2, v3, 4, v2\ns_nop 1")
        for t in range(4): a(f"v_cvt_pk_bf16_f32 v{8+2*t}, v{64+4*t}, v{65+4*t}\nv_cvt_pk_bf16_f32 v{9+2*t}, v{66+4*t}, v{67+4*t}")
        a("s_nop 1\nv_permlane16_swap_b32 v8, v10\nv_permlane16_swap_b32 v9, v11\nv_permlane16_swap_b32 v12, v14\nv_permlane16_swap_b32 v13, v15\ns_nop 1")
        a(f"buffer_store_dwordx4 v[8:11], v2, {S4(SRD_OUT)}, s{ST} offen")
        a(f"buffer_store_dwordx4 v[12:15], v2, {S4(SRD_OUT)}, s{ST} offen offset:64")
        self.stamp('end')

    def build(self):
        a = self.a
        self.startup(); self.pre(); self.qkv(); self.qkv_epilogue(); self.conv(); self.attention(); self.tail()
        self.dump_stamps()
        if 'dbgs' in self.exp:
            L = a.label('dbgskip')
            a("s_waitcnt vmcnt(0) lgkmcnt(0)")
            a(f"s_cmp_lg_u32 s{S_WAVE}, 1\ns_cbranch_scc1 {L}\ns_cmp_lg_u32 s2, 109\ns_cbranch_scc1 {L}")
            a("v_mov_b32 v4, 8\ns_mov_b64 exec, 1")
            k0 = 0
            if 'early' in self.exp:
                for k0, r in enumerate((200, 201, 202)):
                    a(f"v_accvgpr_read_b32 v2, a{r}\ns_nop 1\nv_subrev_u32 v2, s100, v2\nbuffer_store_dword v2, v4, {DBG}, 0 offen offset:{4*k0}\ns_nop 1")
                k0 = 3
            for n, r in enumerate(self.STAMP_REGS[:len(self.stamp_slots)][:14-k0]):
                a(f"s_sub_u32 s84, s{r}, s100\nv_mov_b32 v2, s84\nbuffer_store_dword v2, v4, {DBG}, 0 offen offset:{4*(n+k0)}\ns_nop 1")
            a(f"s_mov_b64 exec, -1\n{L}:")
        if 'dbgt' in self.exp:
            L = a.label('dbgskip')
            a(f"s_memrealtime s[84:85]\ns_memtime s[86:87]\ns_waitcnt vmcnt(0) lgkmcnt(0)")
            a(f"s_cmp_lg_u32 s{S_WAVE}, 0\ns_cbranch_scc1 {L}")
            a(f"s_and_b32 s88, s2, 63\ns_cmp_lg_u32 s88, 0\ns_cbranch_scc1 {L}")
            a(f"s_sub_u32 s84, s84, s{S_T}\ns_sub_u32 s86, s86, s100\ns_lshr_b32 s88, s2, 6\ns_lshl_b32 s88, s88, 3\ns_add_u32 s88, s88, 8")
            a(f"v_mov_b32 v2, s84\nv_mov_b32 v3, s86\nv_mov_b32 v4, s88\ns_mov_b64 exec, 1")
            a(f"buffer_store_dwordx2 v[2:3], v4, {DBG}, 0 offen\ns_mov_b64 exec, -1\n{L}:")
        a("L_end:\ns_endpgm")
        a.lines = resolve_vmcnt(a.lines)
        for blk in self.tail_blocks: a.lines += blk
        a("L_codeend:")
        probs = check_hazards(a.lines)
        for p in probs[:12]: print(p, file=sys.stderr)
        hdr = open('cdna_kernels/' + NAME + '.s.ref').read().split('\n')
        cm = [l for l in hdr if l.startswith(';') and '@launch' not in l and 'Override' not in l and 'grid=ceil' not in l][:13]
        head = J(cm) + f"\n; @launch grid=(256,1,1) block=(256,1,1) lds={LDS_BYTES}\n"
        head += f'.amdgcn_target "amdgcn-amd-amdhsa--gfx950"\n.text\n.globl {NAME}_kernel\n.p2align 8\n.type {NAME}_kernel,@function\n{NAME}_kernel:\n'
        tail = f'''.section .rodata,"a"
.p2align 6
.amdhsa_kernel {NAME}_kernel
  .amdhsa_next_free_vgpr 512
  .amdhsa_next_free_sgpr 102
  .amdhsa_accum_offset 256
  .amdhsa_group_segment_fixed_size 0
  .amdhsa_kernarg_size 96
  .amdhsa_user_sgpr_count 2
  .amdhsa_user_sgpr_kernarg_segment_ptr 1
  .amdhsa_system_sgpr_workgroup_id_x 1
.end_amdhsa_kernel
'''
        return head + a.text() + tail, len(probs), self.stamp_slots

if __name__ == '__main__':
    ap = argparse.ArgumentParser()
    ap.add_argument('-o', default='cdna_kernels/' + NAME + '.s')
    ap.add_argument('--stamps', default=''); ap.add_argument('--exp', default='')
    args = ap.parse_args()
    g = Gen(stamps=[x for x in args.stamps.split(',') if x], exp=args.exp)
    txt, np_, slots = g.build()
    open(args.o, 'w').write(txt)
    print('wrote', args.o, 'lines', txt.count('\n'), 'hazards', np_, 'stamps', slots)
```

```python
import re

class Asm:
    def __init__(self):
        self.lines = []
        self.uid = 0
    def __call__(self, s=''):
        for l in s.split('\n'):
            l = l.strip()
            if l:
                self.lines.append(l)
    def label(self, base):
        self.uid += 1
        return f"L_{base}_{self.uid}"
    def text(self):
        out = []
        for l in self.lines:
            if l.endswith(':') or l.startswith('.') or l.startswith(';'):
                out.append(l)
            else:
                out.append('    ' + l)
        return '\n'.join(out) + '\n'

def vr(base, n=1, p='v'):
    return f"{p}{base}" if n == 1 else f"{p}[{base}:{base+n-1}]"
def ar(base, n=1):
    return vr(base, n, 'a')
def sr(base, n=1):
    return vr(base, n, 's')

_REG = re.compile(r'\b([vas])(\d+)\b|\b([vas])\[(\d+):(\d+)\]')
def regs_of(tok):
    out = set()
    for m in _REG.finditer(tok):
        if m.group(1):
            out.add((m.group(1), int(m.group(2))))
        else:
            for k in range(int(m.group(4)), int(m.group(5)) + 1):
                out.add((m.group(3), k))
    if re.search(r'\bvcc\b', tok):
        out.add(('s', 'vcc'))
    if re.search(r'\bexec\b', tok):
        out.add(('s', 'exec'))
    if re.search(r'\bm0\b', tok):
        out.add(('s', 'm0'))
    return out

TRANS = ('v_exp_f32', 'v_log_f32', 'v_rcp_f32', 'v_rsq_f32', 'v_sqrt_f32', 'v_sin_f32', 'v_cos_f32')

def parse(line):
    line = line.split(';')[0].split('//')[0].strip()
    if not line or line.endswith(':') or line.startswith('.'):
        return None
    parts = line.split(None, 1)
    op = parts[0]
    ops = [x.strip() for x in parts[1].split(',')] if len(parts) > 1 else []
    d = dict(op=op, line=line, dst=set(), src=set(), kind='other', passes=0, srcC=set(), srcAB=set())
    if op.startswith('v_mfma'):
        d['kind'] = 'mfma'
        d['passes'] = 8 if '32x32' in op else 4
        d['dst'] = regs_of(ops[0])
        d['srcAB'] = regs_of(ops[1]) | regs_of(ops[2])
        d['srcC'] = regs_of(ops[3])
        d['src'] = d['srcAB'] | d['srcC']
    elif op.startswith('v_cmp'):
        d['kind'] = 'valu'
        d['dst'] = regs_of(ops[0])
        d['src'] = set().union(*[regs_of(x) for x in ops[1:]])
        if op.startswith('v_cmpx'):
            d['dst'] |= {('s', 'exec')}
    elif op.startswith('v_readfirstlane') or op.startswith('v_readlane'):
        d['kind'] = 'valu'; d['rl'] = True
        d['dst'] = regs_of(ops[0]); d['src'] = set().union(*[regs_of(x) for x in ops[1:]])
    elif op.startswith('v_permlane'):
        d['kind'] = 'valu'; d['perm'] = True
        d['dst'] = regs_of(ops[0]) | regs_of(ops[1]); d['src'] = set(d['dst'])
    elif op.startswith('v_'):
        d['kind'] = 'valu'
        d['dst'] = regs_of(ops[0])
        d['src'] = set().union(*[regs_of(x) for x in ops[1:]]) if len(ops) > 1 else set()
        if op.startswith(('v_fmac', 'v_mac', 'v_dot2c', 'v_pk_fmac')):
            d['src'] |= d['dst']
        if op.startswith('v_cndmask') and len(ops) == 3:
            d['src'] |= {('s', 'vcc')}
        if op.startswith(('v_add_co', 'v_sub_co', 'v_addc_co', 'v_subb_co')):
            d['dst'] |= regs_of(ops[1])
        if any(op.startswith(t) for t in TRANS):
            d['trans'] = True
        if 'dpp' in op or 'row_shr' in line or 'row_shl' in line or 'quad_perm' in line:
            d['dpp'] = True
    elif op.startswith(('buffer_', 'global_', 'ds_')):
        d['kind'] = 'mem'
        isload = ('load' in op) or op.startswith('ds_read') or op.startswith('ds_bpermute')
        islds = ' lds' in line
        if op.startswith('buffer_'):
            if isload and not islds:
                d['dst'] = regs_of(ops[0]); d['src'] = set().union(*[regs_of(x) for x in ops[1:]])
            else:
                d['src'] = set().union(*[regs_of(x) for x in ops])
                if 'store' in op:
                    d['store_data'] = regs_of(ops[0])
                    d['wide'] = ('x4' in op or 'x3' in op)
                if 'atomic' in op and 'sc0' in line:
                    d['dst'] = regs_of(ops[0])
            if islds:
                d['src'] |= {('s', 'm0')}; d['ldsdma'] = True
            d['vmem'] = True
        elif op.startswith('ds_'):
            if isload:
                d['dst'] = regs_of(ops[0]); d['src'] = set().union(*[regs_of(x) for x in ops[1:]])
            else:
                d['src'] = set().union(*[regs_of(x) for x in ops])
        else:
            d['vmem'] = True
            if isload:
                d['dst'] = regs_of(ops[0]); d['src'] = set().union(*[regs_of(x) for x in ops[1:]])
            else:
                d['src'] = set().union(*[regs_of(x) for x in ops])
    elif op.startswith('s_'):
        d['kind'] = 'salu'
        if op in ('s_nop',):
            d['nop'] = int(ops[0], 0) + 1
        elif op.startswith(('s_cmp', 's_cbranch', 's_branch', 's_waitcnt', 's_barrier', 's_endpgm', 's_sleep', 's_setprio')):
            d['src'] = set().union(*[regs_of(x) for x in ops]) if ops else set()
        else:
            d['dst'] = regs_of(ops[0]) if ops else set()
            d['src'] = set().union(*[regs_of(x) for x in ops[1:]]) if len(ops) > 1 else set()
            if 'saveexec' in op:
                d['dst'] |= {('s', 'exec')}
    return d

def is_v(r):
    return r[0] in 'va'

def check_hazards(lines, verbose=True):
    ins = [p for p in (parse(l) for l in lines) if p]
    probs = []
    MF_VALU = {4: 8, 8: 12}
    MF_AB = {4: 8, 8: 12}
    MF_COVER = {4: 6, 8: 10}
    MF_WARC = {4: 3, 8: 7}
    for i, b in enumerate(ins):
        dist = 0
        for j in range(i - 1, max(-1, i - 40), -1):
            a = ins[j]
            need = 0; why = ''
            av = {r for r in a['dst'] if is_v(r)}
            asg = {r for r in a['dst'] if not is_v(r)}
            bsrcv = {r for r in b['src'] if is_v(r)}
            bdstv = {r for r in b['dst'] if is_v(r)}
            if a['kind'] == 'valu':
                if b['kind'] == 'mfma' and av & b['src']:
                    need, why = 2, 'valu->mfma'
                if b.get('perm') and av & b['src']:
                    need, why = max(need, 2), 'valu->permlane'
                if b.get('dpp') and av & b['src']:
                    need, why = max(need, 2), 'valu->dpp'
                if b.get('rl') and av & b['src']:
                    need, why = max(need, 1), 'valu->readlane'
                if a.get('trans') and b['kind'] in ('valu', 'mfma') and not b.get('trans') and av & b['src']:
                    need, why = max(need, 1), 'trans->valu'
                if asg:
                    if b.get('vmem') and asg & b['src']:
                        need, why = max(need, 5), 'valu sgpr->vmem'
                    if b['kind'] == 'valu' and asg & b['src']:
                        need, why = max(need, 2), 'valu sgpr->valu'
                    if b.get('rl') and asg & b['src']:
                        need, why = max(need, 4), 'valu sgpr->readlane'
                    if ('s', 'exec') in asg and b['kind'] == 'mfma':
                        need, why = max(need, 4), 'valu exec->mfma'
                    if b['kind'] == 'salu' and asg & b['src'] and not b['op'].startswith('s_cbranch'):
                        need, why = max(need, 1), 'valu sgpr->salu(pad)'
            if a['kind'] == 'mfma':
                p = a['passes']
                if b['kind'] == 'mfma':
                    if av & b['srcAB']:
                        need, why = MF_AB[p], 'mfma->mfma AB'
                    if av & b['srcC']:
                        if not (av == b['srcC'] and b['passes'] == p):
                            need, why = max(need, MF_COVER[p]), 'mfma->mfma C overlap'
                    if av & b['dst'] and not (av == b['srcC']):
                        if not (av == b['dst'] and av == b['srcC']):
                            need, why = max(need, MF_COVER[p]), 'mfma WAW mfma'
                elif b['kind'] in ('valu', 'mem'):
                    if av & (bsrcv | bdstv):
                        need, why = MF_VALU[p], 'mfma->valu/mem'
                    if b['kind'] == 'valu' and (a['srcC'] & bdstv):
                        need, why = max(need, MF_WARC[p]), 'mfma srcC WAR'
            if a['op'].startswith('v_dot2') and (av & (bsrcv | bdstv)):
                if b['op'] == a['op'] and not (av & (regs_of(b['line'].split(',')[1]) | regs_of(b['line'].split(',')[2]))):
                    pass
                else:
                    need, why = max(need, 3), 'dot->other'
            if a.get('store_data') and a.get('wide') and b['kind'] == 'valu' and (a['store_data'] & bdstv):
                need, why = max(need, 2), 'wide store WAR'
            if a['kind'] == 'salu' and ('s', 'm0') in a['dst'] and b.get('ldsdma'):
                need, why = max(need, 1), 'm0->ldsdma'
            if need > dist:
                probs.append(f"HAZARD {why}: need {need} have {dist}\n    A: {a['line']}\n    B: {b['line']}")
            dist += a.get('nop', 1)
            if dist >= 20:
                break
    return probs


def split_instrs(text_or_list):
    if isinstance(text_or_list, str):
        text_or_list = text_or_list.split('\n')
    return [l.strip() for l in text_or_list if l.strip()]

def interleave(main, filler_groups, every=1, after=None, start=0):
    out = []
    gi = 0
    cnt = 0
    for ins in main:
        out.append(ins)
        if after is None or after(ins):
            cnt += 1
            if cnt > start and (cnt - start) % every == 0 and gi < len(filler_groups):
                out.extend(filler_groups[gi]); gi += 1
    while gi < len(filler_groups):
        out.extend(filler_groups[gi]); gi += 1
    return out

def chunks(lst, n):
    return [lst[i:i+n] for i in range(0, len(lst), n)]

class Cap:
    def __init__(self, a): self.a = a
    def __enter__(self):
        self.saved = self.a.lines; self.a.lines = []; return self
    def __exit__(self, *e):
        self.out = self.a.lines; self.a.lines = self.saved


VMEM_RE = re.compile(r'^(buffer_|global_)')
def resolve_vmcnt(lines):
    out = []
    for i, l in enumerate(lines):
        m = re.search(r'vmcnt\(@(\w+)\)', l)
        if m:
            tag = m.group(1); n = 0; found = False
            for j in range(i - 1, -1, -1):
                x = lines[j]
                if VMEM_RE.match(x):
                    tags = re.findall(r'@(\w+)', x.split(';', 1)[1]) if ';' in x else []
                    if tag in tags:
                        found = True; break
                    if 'cond' not in tags: n += 1
            assert found, f"tag {tag} not found for line {i}: {l}"
            assert n <= 63, (tag, n)
            l = l.replace(f'vmcnt(@{tag})', f'vmcnt({n})') + f'   ; waits @{tag}'
        out.append(l)
    return out


def safe_interleave(main, groups, every, start=0):
    out = []; cnt = -start; blocked = False; gi = 0
    body = [m for m in main]
    for k, ins in enumerate(body):
        if ins == ';#noint': blocked = True; continue
        if ins == ';#int': blocked = False; continue
        out.append(ins)
        if blocked or ins.endswith(':'): continue
        nxt = next((x for x in body[k+1:] if not x.startswith(';#')), '')
        if nxt.startswith(('s_addc', 's_subb', 's_cselect', 's_cbranch_scc', 's_cbranch_vcc', 'v_cndmask', 'v_permlane')) or ins.startswith(('s_cmp', 'v_cmp', 's_nop')):
            continue
        cnt += 1
        if cnt >= every and gi < len(groups):
            if groups[gi]: out += groups[gi]
            gi += 1; cnt = 0
    for g in groups[gi:]:
        if g: out += g
    return out
```

```python
import sys, argparse, struct
from asmlib import *

NAME = "concat_heads__sliding_block__ssm_conv_h3__prompt"
FS = 7
WS_F1, WS_F2, WS_F3, WS_F5 = 0x00000, 0x20000, 0x40000, 0x60000
WS_KVT = 0x100000; WS_ZT = 0x300000; WS_KV = 0x500000; WS_OF = 0xA00000
KVS = 2304
WS_STAMP = 0xC00000; WS_SIZE = 0xC40000
TZ = 98304; TZC = 4160
U = TZ + 8*TZC; UC = 4608
TP = U + 2*UC
WSH = TP + 8192
LDS_BYTES = WSH + 1024
EX = 65536
S_WAVE, S_XCD, S_I, S_J, S_P = 3, 4, 5, 6, 7
SRD_X, SRD_W, SRD_K, SRD_V, SRD_Q, SRD_H, SRD_WO, SRD_OUT, SRD_WS, SRD_DBG, SRD_SH = 8,12,16,20,24,28,32,36,40,44,48
S_T = 52; S_D = 54; S_TMO = 55
PTR = 56
S_HT = 72
S_XOFF, S_WOFF, S_M0B, S_NH = 80, 81, 82, 83
ST = 84
S_FB = 94; S_HEAD = 95
S_SEL0, S_SEL1 = 96, 97
S_M0W = 98; S_OFS = 99
S_F1P, S_F2P, S_F5P, S_F3P, S_PF1, S_PF2, S_PF3, S_PF5 = 16, 17, 18, 19, 20, 21, 22, 23
S_KVO, S_ZTO, S_ZLD, S_BOUT, S_AOUT, S_OFL, S_QO, S_WOO, S_WOM, S_UO, S_NHM, S_DV = 56, 57, 58, 59, 60, 61, 62, 63, 66, 67, 68, 69
S_SPEC = 64
S_CH, S_RHO = 70, 71
QSCALE = 0.25 * 1.4426950408889634
def f2u(x): return struct.unpack('<I', struct.pack('<f', x))[0]
def S4(b): return f"s[{b}:{b+3}]"
WS, DBG = S4(SRD_WS), S4(SRD_DBG)
MF32 = "v_mfma_f32_32x32x16_bf16"; MF16 = "v_mfma_f32_16x16x32_bf16"
NEG = 0xf149f2ca
A_S = [16, 32]; A_P = [48, 56]; A_CN = [184, 160]; A_O = [96, 112]; A_MD = 144; A_MK = 200; A_QF = [224, 228]
CACC = 96
V_T = 8; V_FL = 10; V_VV = 11; V_OF = 12; V_L16 = 13; V_CA = 14; V_CB = 15; V_PL = 7
J = '\n'.join
OOB = 0x7ff00000

class Gen:
    STAMP_REGS = [48, 50, 72, 74, 76, 78, 28, 24] if True else []
    def __init__(self, stamps=None, exp=''):
        self.a = Asm(); self.stamps = stamps or []; self.exp = exp.split(',')
        self.stamp_slots = []; self.tail_blocks = []
        self.NT = '' if 'nont' in self.exp else 'nt '
        self.SLEEP = next((int(x[2:]) for x in self.exp if x.startswith('sl')), 2)

    def srd(self, base, ptr, size):
        return [f"s_mov_b32 s{base}, s{ptr}", f"s_mov_b32 s{base+1}, s{ptr+1}", f"s_mov_b32 s{base+2}, {size}", f"s_mov_b32 s{base+3}, 0x20000"]
    def stamp(self, name):
        if name not in self.stamps: return
        n = len(self.stamp_slots)
        assert n < len(self.STAMP_REGS)
        r = self.STAMP_REGS[n]; self.stamp_slots.append(name)
        if 'blk' in self.exp:
            self.a(f"s_memtime s[92:93]\ns_waitcnt lgkmcnt(0)\nv_mov_b32 v254, s92\nv_accvgpr_write_b32 a{210+n}, v254")
        else:
            self.a(f"s_memtime s[{r}:{r+1}]")
    def dump_stamps(self):
        if not self.stamp_slots: return
        a = self.a
        a("s_waitcnt lgkmcnt(0)")
        if 'dbgs' in self.exp:
            L = a.label('dbgskip')
            a("s_waitcnt vmcnt(0)")
            a(f"s_cmp_lg_u32 s{S_WAVE}, 1\ns_cbranch_scc1 {L}\ns_cmp_lg_u32 s2, 109\ns_cbranch_scc1 {L}")
            a("v_mov_b32 v4, 8\ns_mov_b64 exec, 1")
            for n, r in enumerate(self.STAMP_REGS[:len(self.stamp_slots)]):
                a(f"s_sub_u32 s84, s{r}, s100\nv_mov_b32 v2, s84\nbuffer_store_dword v2, v4, {DBG}, 0 offen offset:{4*n}\ns_nop 1")
            a(f"s_mov_b64 exec, -1\n{L}:")
            return
        a(f"s_lshl_b32 s{ST}, s2, 2\ns_add_u32 s{ST}, s{ST}, s{S_WAVE}\ns_lshl_b32 s{ST}, s{ST}, 7\ns_add_u32 s{ST}, s{ST}, {WS_STAMP}")
        a(f"v_mov_b32 v3, s{ST}\ns_mov_b64 exec, 1")
        for n, r in enumerate([100] + self.STAMP_REGS[:len(self.stamp_slots)]):
            if 'blk' in self.exp and n > 0: a(f"v_accvgpr_read_b32 v2, a{210+n-1}\ns_nop 1\nbuffer_store_dword v2, v3, {WS}, 0 offen offset:{4*n}\ns_nop 1")
            else: a(f"v_mov_b32 v2, s{r}\nbuffer_store_dword v2, v3, {WS}, 0 offen offset:{4*n}\ns_nop 1")
        for k in range(201, 207): a(f"v_accvgpr_read_b32 v2, a{k}\ns_nop 1\nbuffer_store_dword v2, v3, {WS}, 0 offen offset:{4*(k-201+20)}\ns_nop 1")
        a(f"v_accvgpr_read_b32 v2, a200\ns_nop 1\nbuffer_store_dword v2, v3, {WS}, 0 offen offset:120\ns_nop 1")
        a(f"s_memrealtime s[84:85]\ns_waitcnt lgkmcnt(0)\nv_mov_b32 v2, s84\nbuffer_store_dword v2, v3, {WS}, 0 offen offset:124\ns_nop 1")
        a("s_mov_b64 exec, -1")
    def count(self, k):
        if self.stamps and 'dbgs' not in self.exp: self.a(f"v_mov_b32 v253, s{S_TMO}\nv_accvgpr_write_b32 a{k}, v253")
    def poll_ld(self, sbase, tag='', vt=4):
        return f"buffer_load_dwordx2 v[{vt}:{vt+1}], v{V_PL}, {WS}, s{sbase} offen sc1" + (f" ; @{tag}" if tag else "")
    def cmp_flags(self, mask, vt=4):
        return [f"v_cmp_ne_u64 vcc, s[{S_T}:{S_T+1}], v[{vt}:{vt+1}]", "s_nop 0", f"s_and_b32 vcc_lo, vcc_lo, {mask}"]
    def poll_check(self, sbase, mask, name, vt=4, cnt=None):
        a = self.a
        L = a.label(name); Ld = a.label(name+'_done'); Lc = a.label(name+'_chk')
        a(f"s_mov_b32 s{S_TMO}, 0\ns_branch {Lc}\n{L}:")
        if self.SLEEP: a(f"s_sleep {self.SLEEP}")
        a(self.poll_ld(sbase, 'cond', vt))
        a(f"s_waitcnt vmcnt(0)\n{Lc}:")
        a(f"s_add_u32 s{S_TMO}, s{S_TMO}, 1")
        a(J(self.cmp_flags(mask, vt)))
        a(f"s_cbranch_scc0 {Ld}\ns_cmp_lt_u32 s{S_TMO}, 0x20000\ns_cbranch_scc1 {L}\n{Ld}:")
        if cnt: self.count(cnt)
    def flag(self, sreg, tag='flag'):
        return f"buffer_store_dwordx2 v[{V_T}:{V_T+1}], v{V_FL}, {WS}, s{sreg} offen sc1 ; @{tag}"
    def dma_groups(self, s):
        buf = s % 3
        X, W = S4(SRD_X), S4(SRD_W)
        t = f" ; @dma{s}"
        return [[f"s_add_u32 m0, s{S_M0B}, {buf*32768}", f"s_add_u32 s{ST+9}, s{S_XOFF}, {s*128}", f"buffer_load_dwordx4 v100, {X}, s{ST+9} offen lds" + t],
                [f"buffer_load_dwordx4 v101, {X}, s{ST+9} offen offset:1024 lds" + t],
                [f"s_add_u32 m0, s{S_M0W}, {buf*32768}", f"s_add_u32 s{ST+8}, s{S_WOFF}, {s*64*3072}", f"buffer_load_dwordx4 v102, {W}, s{ST+8} offen lds" + t],
                [f"buffer_load_dwordx4 v103, {W}, s{ST+8} offen offset:1024 lds" + t],
                [f"buffer_load_dwordx4 v102, {W}, s{ST+8} offen offset:2048 lds" + t, f"s_add_u32 m0, s{S_M0W}, {buf*32768 + 3072}"],
                ["s_nop 0", f"buffer_load_dwordx4 v248, {W}, s{ST+8} offen lds" + t] if s in (0, 1) else [f"buffer_load_dwordx4 v248, {W}, s{ST+8} offen lds" + t],
                [f"buffer_load_dwordx4 v249, {W}, s{ST+8} offen offset:1024 lds" + t],
                [f"buffer_load_dwordx4 v248, {W}, s{ST+8} offen offset:2048 lds" + t]]

    def startup(self):
        a = self.a
        a("L_entry:")
        a(f"s_load_dwordx16 s[{PTR}:{PTR+15}], s[0:1], 0")
        a(f"s_load_dwordx8 s[{PTR+16}:{PTR+23}], s[0:1], 64")
        a(f"s_memrealtime s[{S_T}:{S_T+1}]")
        if self.stamps: a("s_memtime s[100:101]")
        a("s_cmp_ge_u32 s2, 256\ns_cbranch_scc1 L_end")
        a("s_getpc_b64 s[8:9]\nL_pc:")
        a("s_sub_u32 s8, s8, (L_pc - L_entry)\ns_subb_u32 s9, s9, 0\ns_mov_b32 s10, (L_codeend - L_entry)\ns_mov_b32 s11, 0x20000")
        a(f"s_lshr_b32 s{S_I}, s2, 3\ns_and_b32 s{ST}, s{S_I}, 7\ns_lshl_b32 s{ST}, s{ST}, 12\nv_lshlrev_b32 v2, 4, v0")
        a(f"buffer_load_dwordx4 v[216:219], v2, s[8:11], s{ST} offen")
        a("v_and_b32 v1, 63, v0\nv_lshrrev_b32 v2, 6, v0")
        a(f"s_and_b32 s{S_XCD}, s2, 7")
        a(f"v_readfirstlane_b32 s{S_WAVE}, v2")
        a("v_and_b32 v4, 7, v1\nv_lshrrev_b32 v5, 3, v1")
        a(f"s_lshl_b32 s{ST}, s{S_I}, 6\ns_lshl_b32 s{ST+2}, s{S_XCD}, 7\ns_lshl_b32 s{ST+1}, s{S_WAVE}, 4\ns_add_u32 s{ST}, s{ST}, s{ST+1}\ns_lshl_b32 s{ST}, s{ST}, 10\ns_add_u32 s{ST}, s{ST}, s{ST+2}")
        a(f"v_lshlrev_b32 v140, 11, v5\nv_lshl_add_u32 v140, v4, 4, v140\nv_add_u32 v140, s{ST}, v140")
        a("v_subrev_u32 v141, 3072, v140\nv_subrev_u32 v142, 2048, v140\nv_subrev_u32 v143, 1024, v140")
        a(f"s_lshr_b32 s{ST}, s{S_XCD}, 1\ns_lshl_b32 s{ST}, s{ST}, 3\ns_and_b32 s{ST+1}, s{S_I}, 7\ns_add_u32 s{S_J}, s{ST}, s{ST+1}")
        a(f"s_and_b32 s{ST}, s{S_XCD}, 1\ns_lshl_b32 s{ST}, s{ST}, 2\ns_lshr_b32 s{ST+1}, s{S_I}, 3\ns_add_u32 s{S_P}, s{ST}, s{ST+1}")
        a(f"s_lshl_b32 s{ST}, s{S_XCD}, 9\nv_lshlrev_b32 v{V_L16}, 4, v1\nv_add_u32 v144, s{ST}, v{V_L16}")
        a("v_lshrrev_b32 v2, 4, v1\nv_xor_b32 v3, v4, v2\nv_lshlrev_b32 v3, 4, v3")
        a(f"s_lshl_b32 s{ST}, s{S_WAVE}, 14\nv_lshl_add_u32 v100, v5, 10, v3\nv_add_u32 v100, s{ST}, v100")
        a(f"v_xor_b32 v101, 64, v100\nv_add_u32 v101, {8192-1024}, v101")
        a("v_lshrrev_b32 v3, 1, v4\nv_and_b32 v2, 1, v2\nv_lshlrev_b32 v2, 1, v2\nv_xor_b32 v3, v3, v2\nv_lshlrev_b32 v3, 5, v3")
        a("v_and_b32 v2, 1, v4\nv_lshl_add_u32 v3, v2, 4, v3\nv_mul_u32_u24 v102, 3072, v5\nv_add_u32 v102, v102, v3\nv_xor_b32 v103, 32, v102")
        a("v_add_u32 v248, 24576, v102\nv_add_u32 v249, 24576, v103")
        a(f"s_lshl_b32 s{S_XOFF}, s{S_J}, 16")
        a(f"s_mul_i32 s{S_WOFF}, s{S_WAVE}, {16*3072}\ns_lshl_b32 s{ST}, s{S_P}, 7\ns_add_u32 s{S_WOFF}, s{S_WOFF}, s{ST}")
        a(f"s_lshl_b32 s{S_M0B}, s{S_WAVE}, 11\ns_mul_i32 s{S_M0W}, s{S_WAVE}, 6144\ns_add_u32 s{S_M0W}, s{S_M0W}, 8192")
        a("s_waitcnt lgkmcnt(0)")
        if self.stamps and 'dbgs' not in self.exp:
            a(f"v_mov_b32 v12, s{S_T}\nv_accvgpr_write_b32 a200, v12\nv_mov_b32 v12, 0")
            for k in range(201, 207): a(f"v_accvgpr_write_b32 a{k}, v12")
        a(J(self.srd(SRD_K, PTR+8, 2097152) + self.srd(SRD_V, PTR+10, 2097152) + self.srd(SRD_X, PTR+0, 2097152) + self.srd(SRD_W, PTR+2, 1572864)))
        Ln = a.label('nononce')
        a(f"s_or_b32 s{ST}, s2, s{S_WAVE}\ns_cmp_lg_u32 s{ST}, 0\ns_cbranch_scc1 {Ln}")
        a(J(self.srd(SRD_DBG, PTR+20, 256)))
        a(f"s_or_b32 s{S_T+1}, s{S_T+1}, 0x80000000")
        a(f"v_mov_b32 v14, s{S_T}\nv_mov_b32 v15, s{S_T+1}\nv_mov_b32 v2, 0\ns_mov_b64 exec, 1")
        a(f"buffer_store_dwordx2 v[14:15], v2, {DBG}, 0 offen sc1 ; @cond")
        a(f"s_mov_b64 exec, -1\n{Ln}:")
        K, V = S4(SRD_K), S4(SRD_V)
        a(f"s_lshr_b32 s{ST}, s{S_XCD}, 1\ns_lshl_b32 s{ST}, s{ST}, 9\ns_lshl_b32 s{ST+1}, s{S_I}, 4\ns_add_u32 s{ST}, s{ST}, s{ST+1}\ns_lshl_b32 s{ST+1}, s{S_WAVE}, 2\ns_add_u32 s{ST+4}, s{ST}, s{ST+1}\ns_lshl_b32 s{ST+4}, s{ST+4}, 10")
        a(f"v_lshlrev_b32 v2, 10, v5\nv_lshl_add_u32 v2, v4, 6, v2")
        a(f"s_lshl_b32 s{ST}, s{S_I}, 3\ns_lshl_b32 s{ST+1}, s{S_WAVE}, 1\ns_add_u32 s{ST}, s{ST}, s{ST+1}\ns_mul_i32 s{ST}, s{ST}, 3072\ns_and_b32 s{ST+1}, s{S_XCD}, 1\ns_lshl_b32 s{ST+1}, s{ST+1}, 9\ns_add_u32 s{ST}, s{ST}, s{ST+1}")
        a("v_subrev_u32 v7, 24, v1\nv_ashrrev_i32 v3, 31, v7\nv_and_b32 v6, 24, v3\nv_add_u32 v7, v7, v6\nv_not_b32 v3, v3\nv_and_b32 v3, 3072, v3")
        a(f"v_lshrrev_b32 v6, 3, v7\nv_lshl_add_u32 v3, v6, 10, v3\nv_and_b32 v7, 7, v7\nv_lshl_add_u32 v3, v7, 6, v3\ns_add_u32 s{ST+1}, s{ST}, {256*3072}")
        a(f"s_mov_b32 exec_hi, 0xffff\nbuffer_load_dword v252, v3, {S4(SRD_W)}, s{ST} offen ; @pf\ns_mov_b32 exec_hi, 0\nbuffer_load_dword v252, v2, {S4(SRD_X)}, s{ST+4} offen ; @pf")
        a(f"s_lshl_b32 s{ST+2}, s{S_I}, 6\ns_lshl_b32 s{ST+3}, s{S_WAVE}, 4\ns_add_u32 s{ST+2}, s{ST+2}, s{ST+3}\ns_lshl_b32 s{ST+2}, s{ST+2}, 10\ns_lshl_b32 s{ST+3}, s{S_XCD}, 7\ns_add_u32 s{ST+2}, s{ST+2}, s{ST+3}")
        a(f"v_lshrrev_b32 v6, 1, v1\nv_lshlrev_b32 v6, 10, v6\nv_and_b32 v7, 1, v1\nv_lshl_add_u32 v6, v7, 6, v6")
        a(f"buffer_load_dword v252, v6, {K}, s{ST+2} offen {self.NT}; @pf\nbuffer_load_dword v252, v6, {V}, s{ST+2} offen {self.NT}; @pf")
        a(f"buffer_load_dword v252, v2, {S4(SRD_X)}, s{ST+4} offen offset:512 ; @pf\ns_mov_b32 exec_hi, 0xffff\nbuffer_load_dword v252, v3, {S4(SRD_W)}, s{ST+1} offen ; @pf\ns_mov_b32 exec_hi, -1")
        self.stamp('issued')
        a(J(self.srd(SRD_SH, PTR+12, 4096)))
        a(J(self.srd(SRD_WS, PTR+22, WS_SIZE) + self.srd(SRD_DBG, PTR+20, 256) + self.srd(SRD_Q, PTR+6, 2097152) + self.srd(SRD_WO, PTR+4, 524288) + self.srd(SRD_OUT, PTR+18, 4194304)))
        a(f"s_lshl_b32 s{ST}, s{S_XCD}, 7\ns_lshl_b32 s{ST+1}, s{S_I}, 2\ns_add_u32 s{ST}, s{ST}, s{ST+1}")
        a(f"s_load_dword s{S_D}, s[{PTR+16}:{PTR+17}], s{ST}")
        a(f"s_lshl_b32 s{ST}, s{S_XCD}, 6\ns_lshl_b32 s{ST+1}, s{S_I}, 1\ns_add_u32 s{ST}, s{ST}, s{ST+1}\ns_lshr_b32 s{ST+1}, s{S_WAVE}, 1\ns_add_u32 s{ST+3}, s{ST}, s{ST+1}\ns_lshl_b32 s{ST}, s{ST+3}, 12")
        a(f"s_add_u32 s{SRD_H}, s{PTR+14}, s{ST}\ns_addc_u32 s{SRD_H+1}, s{PTR+15}, 0\ns_mov_b32 s{SRD_H+2}, 4096\ns_mov_b32 s{SRD_H+3}, 0x20000")
        a(f"s_mov_b32 s{S_CH}, s{ST+3}\ns_and_b32 s{S_RHO}, s{S_WAVE}, 1")
        a("s_waitcnt lgkmcnt(0)")
        a(f"s_load_dwordx8 s[{S_HT}:{S_HT+7}], s[{SRD_H}:{SRD_H+1}], 4064")
        a(f"s_min_u32 s{S_NH}, s{S_J}, 4\ns_lshl_b32 s{S_HEAD}, s{S_P}, 2\ns_add_u32 s{S_HEAD}, s{S_HEAD}, s{S_WAVE}\ns_mov_b32 s{S_FB}, 0")
        a(f"s_mov_b32 s{S_SEL0}, 0x05040100\ns_mov_b32 s{S_SEL1}, 0x07060302")
        a("v_and_b32 v2, 31, v1\nv_lshrrev_b32 v3, 5, v1\nv_bfe_u32 v6, v2, 1, 3\nv_xor_b32 v3, v3, v6\nv_lshlrev_b32 v2, 7, v2")
        for kk in range(4):
            a(f"v_xor_b32 v6, {2*kk}, v3\nv_lshl_add_u32 v{104+kk}, v6, 4, v2\nv_add_u32 v{108+kk}, 0x10000, v{104+kk}")
        a("v_bfe_u32 v2, v1, 4, 1\nv_lshrrev_b32 v3, 5, v1\nv_bfe_u32 v6, v1, 2, 2")
        a("v_mul_u32_u24 v7, 3072, v3\nv_lshl_add_u32 v7, v6, 7, v7\nv_and_b32 v9, 3, v1\nv_lshl_add_u32 v7, v9, 3, v7")
        a(f"v_and_b32 v9, 2, v6\nv_xor_b32 v9, s{S_WAVE}, v9")
        a(f"v_lshl_add_u32 v113, v9, 5, v7\nv_add_u32 v113, {8192+2048}, v113")
        a("v_xor_b32 v9, v9, v2\nv_lshl_add_u32 v112, v9, 5, v7\nv_lshl_add_u32 v112, v2, 10, v112\nv_add_u32 v112, 8192, v112")
        a("v_add_u32 v114, 0x10000, v112\nv_add_u32 v115, 0x10000, v113")
        a(f"s_lshl_b32 s{ST}, s{S_WAVE}, 3\nv_add_u32 v2, s{ST}, v5\nv_sub_u32 v2, 31, v2")
        a("v_lshrrev_b32 v3, 2, v2\nv_xor_b32 v3, v3, v4\nv_lshlrev_b32 v3, 4, v3\nv_and_b32 v2, 3, v2\nv_lshl_add_u32 v3, v2, 2, v3\nv_lshl_add_u32 v3, v4, 10, v3")
        a(f"v_add_u32 v155, {TP}, v3\nv_lshlrev_b32 v153, 6, v4\nv_add_u32 v153, {WSH}, v153")
        a(f"s_lshl_b32 s{ST}, s{S_WAVE}, 1\nv_xor_b32 v156, s{ST}, v4\nv_lshlrev_b32 v156, 4, v156\nv_lshl_add_u32 v156, v5, 7, v156")
        a(f"s_lshl_b32 s{ST+1}, s{S_WAVE}, 11\ns_add_u32 s{ST+1}, s{ST+1}, {TP}\nv_add_u32 v156, s{ST+1}, v156\nv_xor_b32 v157, 16, v156")
        a(f"s_lshl_b32 s{ST}, s{S_XCD}, 6\ns_lshl_b32 s{ST+1}, s{S_WAVE}, 4\ns_add_u32 s{ST}, s{ST}, s{ST+1}\ns_lshl_b32 s{ST}, s{ST}, 12")
        a(f"s_lshl_b32 s{ST+1}, s{S_I}, 7\ns_sub_u32 s{ST}, s{ST}, s{ST+1}\ns_add_u32 s{ST}, s{ST}, {WS_KVT + 1984*2}")
        a(f"v_lshlrev_b32 v158, 12, v5\nv_lshl_add_u32 v158, v4, 4, v158\nv_add_u32 v158, s{ST}, v158\nv_add_u32 v159, {8*4096}, v158")

    def toep_valu(self, D, E, F, G):
        o = [f"v_alignbit_b32 v{E+i}, v{D[i+1]}, v{D[i]}, 16" for i in range(8)]
        o += [f"v_mov_b32 v{F+i}, v{D[i+1]}" for i in range(8)]
        o += [f"v_alignbit_b32 v{G+i}, v{D[i+2]}, v{D[i+1]}, 16" for i in range(8)]
        return o
    def toep_writes(self, D, E, F, G, vaddr):
        o = [f"ds_write_b128 v{vaddr}, v[{D[0]}:{D[0]+3}]", f"ds_write_b128 v{vaddr}, v[{D[4]}:{D[4]+3}] offset:16"]
        for r, R in ((1, E), (2, F), (3, G)):
            o += [f"ds_write_b128 v{vaddr}, v[{R}:{R+3}] offset:{r*TZC}", f"ds_write_b128 v{vaddr}, v[{R+4}:{R+7}] offset:{r*TZC+16}"]
        return o

    def pre(self):
        a = self.a
        K, V = S4(SRD_K), S4(SRD_V)
        a("s_waitcnt lgkmcnt(0)")
        for x in self.late_setup():
            if x == ';#tzB':
                a("ds_write_b128 v152, v[148:151]")
                a("s_mov_b64 exec, 1"); a(J(self.toep_writes(list(range(116, 126)), 224, 232, 240, 139))); a("s_mov_b64 exec, -1")
            elif not x.startswith(';#'): a(x)
        self.stamp('shadowdone')
        for d, v, srd, off in ((28,140,K,0),(32,140,K,1024),(24,143,K,0),(20,142,K,0),(16,141,K,0),(36,140,V,0),(40,140,V,1024)):
            a(f"buffer_load_dwordx4 v[{d}:{d+3}], v{v}, {srd}, 0 offen offset:{off} ; @kv")
        a(f"s_mov_b32 m0, {WSH}\ns_mov_b32 exec_hi, 0")
        a(f"buffer_load_dwordx4 v144, {S4(SRD_SH)}, 0 offen lds ; @kv")
        a("s_mov_b32 exec_hi, -1")
        for g in self.dma_groups(0): a(J(g))
        a(f"v_lshlrev_b32 v2, 20, v1\ns_mov_b32 exec_lo, 0x1fff\ns_mov_b32 exec_hi, 0\nbuffer_load_dword v252, v2, {WS}, 0 offen ; @pf\nbuffer_load_dword v252, v2, {S4(SRD_OUT)}, 0 offen ; @pf\ns_mov_b64 exec, -1")
        a(J(self.flag_scalars()))
        a("s_waitcnt vmcnt(@kv)")
        self.stamp('predata')
        for i in range(4): a(f"ds_read_b128 v[{44+4*i}:{47+4*i}], v153 offset:{16*i}")
        seq = self.pre_valu()
        seq = seq[:12] + ["s_waitcnt lgkmcnt(0)"] + seq[12:]
        a(J(safe_interleave(seq, self.dma_groups(1), every=12)))
        for ch in range(8): a(f"ds_write_b32 v155, v{92+ch} offset:{ch*128}")
        a("s_waitcnt vmcnt(@dma0) lgkmcnt(0)\ns_barrier")
        self.stamp('stage0')
        a("ds_read_b128 v[16:19], v156\nds_read_b128 v[20:23], v157 offset:1024")
        self.qkv_reads(0, 0, 0)
        a(f"v_mov_b32 v3, 0\nbuffer_load_dwordx2 v[{V_T}:{V_T+1}], v3, {DBG}, 0 offen sc1 ; @nonce")
    def pre_valu(self):
        main = []
        for d in range(4):
            for par in range(2):
                sel = f"s{S_SEL1 if par else S_SEL0}"; ch = 2*d + par; o = 224 + 8*(ch % 3)
                r = lambda row: 16 + 4*(row+3) + d
                un = (lambda dst, src: f"v_lshlrev_b32 v{dst}, 16, v{src}") if par == 0 else (lambda dst, src: f"v_and_b32 v{dst}, 0xffff0000, v{src}")
                main.append([f"v_perm_b32 v{o}, v{r(-1)}, v{r(0)}, {sel}", f"v_perm_b32 v{o+1}, v{r(0)}, v{r(1)}, {sel}",
                             f"v_perm_b32 v{o+2}, v{r(-3)}, v{r(-2)}, {sel}", f"v_perm_b32 v{o+3}, v{r(-2)}, v{r(-1)}, {sel}",
                             un(o+4, 36+d), un(o+5, 40+d),
                             f"v_dot2_f32_bf16 v{o+6}, v{o}, v{44+2*ch}, 0", f"v_dot2_f32_bf16 v{o+7}, v{o+1}, v{44+2*ch}, 0",
                             f"v_dot2_f32_bf16 v{o+6}, v{o+2}, v{45+2*ch}, v{o+6}", f"v_dot2_f32_bf16 v{o+7}, v{o+3}, v{45+2*ch}, v{o+7}",
                             f"v_mul_f32 v{o+6}, v{o+6}, v{o+4}", f"v_mul_f32 v{o+7}, v{o+7}, v{o+5}", f"v_cvt_pk_bf16_f32 v{92+ch}, v{o+7}, v{o+6}"])
        seq = []
        for k in range(0, 8, 2):
            A, B = main[k], main[k+1]
            seq += A[:6] + B[:6] + A[6:10] + B[6:10] + A[10:12] + B[10:12] + [A[12], B[12]]
        return seq

    def qkv_reads(self, s, kk, st):
        a = self.a
        buf = s % 3; b = 60 + 16*st
        if buf < 2: xa, wqk, wv, base = 104+kk, 112, 113, buf*32768
        else:       xa, wqk, wv, base = 108+kk, 114, 115, 0
        a(f"ds_read_b128 v[{b}:{b+3}], v{xa} offset:{base}")
        a(f"ds_read_b64_tr_b16 v[{b+8}:{b+9}], v{wqk} offset:{base + kk*6144}")
        a(f"ds_read_b64_tr_b16 v[{b+10}:{b+11}], v{wqk} offset:{base + kk*6144 + 512}")
        a(f"ds_read_b128 v[{b+4}:{b+7}], v{xa} offset:{base + 4096}")
        a(f"ds_read_b64_tr_b16 v[{b+12}:{b+13}], v{wv} offset:{base + kk*6144}")
        a(f"ds_read_b64_tr_b16 v[{b+14}:{b+15}], v{wv} offset:{base + kk*6144 + 512}")
    def qkv_mfma(self, st, first=False):
        b = 60 + 16*st
        c = lambda r: "0" if first else f"v[{r}:{r+15}]"
        return [f"{MF32} v[160:175], v[{b+8}:{b+11}], v[{b}:{b+3}], {c(160)}", f"{MF32} v[176:191], v[{b+8}:{b+11}], v[{b+4}:{b+7}], {c(176)}",
                f"{MF32} v[192:207], v[{b}:{b+3}], v[{b+12}:{b+15}], {c(192)}", f"{MF32} v[208:223], v[{b+4}:{b+7}], v[{b+12}:{b+15}], {c(208)}"]
    def nonce_fix(self):
        a = self.a
        Lok = a.label('nonce_ok'); Lp = a.label('nonce_poll')
        a(f"v_readfirstlane_b32 s{S_T}, v{V_T}\nv_readfirstlane_b32 s{S_T+1}, v{V_T+1}\ns_nop 0")
        a(f"s_cmp_eq_u32 s{S_T+1}, 0\ns_cbranch_scc1 {Lp}\n{Lok}:")
        with Cap(a) as cap:
            a(f"{Lp}:\ns_mov_b32 s{S_TMO}, 0\n{Lp}_l:")
            a(f"v_mov_b32 v3, 0\nbuffer_load_dwordx2 v[{V_T}:{V_T+1}], v3, {DBG}, 0 offen sc1\ns_waitcnt vmcnt(0)")
            a(f"v_readfirstlane_b32 s{S_T}, v{V_T}\nv_readfirstlane_b32 s{S_T+1}, v{V_T+1}")
            a(f"s_add_u32 s{S_TMO}, s{S_TMO}, 1\ns_cmp_gt_u32 s{S_TMO}, 0x20000\ns_cbranch_scc1 {Lok}")
            a(f"s_cmp_eq_u32 s{S_T+1}, 0\ns_cbranch_scc1 {Lp}_l\ns_branch {Lok}")
        self.tail_blocks.append(cap.out)

    def late_setup(self):
        o = []
        A = lambda t: o.extend(split_instrs(t))
        A(f"v_cmp_eq_u32 vcc, 0, v1\nv_mov_b32 v2, {hex(OOB)}\nv_mov_b32 v3, 0\n;#g\nv_cndmask_b32 v{V_FL}, v2, v3, vcc")
        A(f"v_lshlrev_b32 v{V_PL}, {FS}, v1\nv_cmp_gt_u32 vcc, 32, v1\ns_nop 1\n;#g\nv_cndmask_b32 v{V_PL}, v2, v{V_PL}, vcc")
        A(f"s_lshl_b32 s{ST}, s{S_RHO}, 11\nv_lshlrev_b32 v138, 5, v1\nv_add_u32 v138, s{ST}, v138\nv_subrev_u32 v136, 32, v138\nv_subrev_u32 v137, 16, v138")
        A(f"s_lshr_b32 s{ST+1}, s{S_WAVE}, 1\ns_mul_i32 s{ST+2}, s{ST+1}, {4*TZC}\ns_add_u32 s{ST}, s{ST}, s{ST+2}\ns_add_u32 s{ST}, s{ST}, {TZ}\nv_lshlrev_b32 v132, 5, v1\nv_add_u32 v132, s{ST}, v132")
        A(f"s_add_u32 s{ST+2}, s{ST+2}, {TZ + 4096}\nv_mov_b32 v139, s{ST+2}")
        A(f"s_lshl_b32 s{S_UO}, s{S_CH}, 12\ns_lshl_b32 s{ST}, s{S_RHO}, 10\ns_add_u32 s{S_UO}, s{S_UO}, s{ST}\ns_add_u32 s{S_UO}, s{S_UO}, {WS_KVT}")
        A(f"s_mul_i32 s{ST+2}, s{ST+1}, {UC}\ns_add_u32 s{ST+2}, s{ST+2}, s{ST}\ns_add_u32 s{ST+2}, s{ST+2}, {U}\nv_add_u32 v127, s{ST+2}, v{V_L16}")
        A(f"v_mov_b32 v148, 0\nv_mov_b32 v149, 0\nv_mov_b32 v150, 0\nv_mov_b32 v151, 0")
        A(f"v_lshrrev_b32 v2, 5, v1\nv_mul_u32_u24 v2, {UC}, v2\nv_and_b32 v3, 31, v1\nv_lshl_add_u32 v2, v3, 4, v2\nv_add_u32 v152, {U+4096}, v2")
        A(J([f"v_mov_b32 v{116+i}, s{S_HT+i}" for i in range(8)]) + "\nv_mov_b32 v124, 0\nv_mov_b32 v125, 0")
        A(J(self.toep_valu(list(range(116, 126)), 224, 232, 240)))
        o.append(';#tzB')
        A(f"v_and_b32 v4, 15, v1\nv_lshrrev_b32 v5, 4, v1\nv_add_u32 v2, 1, v4\nv_and_b32 v3, 3, v2\nv_lshrrev_b32 v2, 2, v2")
        A(f"v_mul_u32_u24 v{V_CA}, {TZC}, v3\nv_lshl_add_u32 v{V_CA}, v2, 3, v{V_CA}\nv_lshl_add_u32 v{V_CA}, v5, 4, v{V_CA}")
        A(f"s_lshr_b32 s{ST}, s{S_WAVE}, 1\ns_mul_i32 s{ST+1}, s{ST}, {4*TZC}\ns_lshl_b32 s{ST+2}, s{S_RHO}, 8\ns_add_u32 s{ST+1}, s{ST+1}, s{ST+2}\ns_add_u32 s{ST+1}, s{ST+1}, {TZ}\nv_add_u32 v{V_CA}, s{ST+1}, v{V_CA}")
        A(f"s_mul_i32 s{ST+1}, s{ST}, {UC}\ns_add_u32 s{ST+1}, s{ST+1}, s{ST+2}\ns_add_u32 s{ST+1}, s{ST+1}, {U+480}")
        A(f"v_lshlrev_b32 v{V_CB}, 4, v5\nv_lshlrev_b32 v2, 5, v4\nv_sub_u32 v{V_CB}, v{V_CB}, v2\nv_add_u32 v{V_CB}, s{ST+1}, v{V_CB}")
        A(f"v_lshrrev_b32 v2, 5, v1\nv_mul_u32_u24 v2, 17, v2\nv_and_b32 v3, 31, v1\nv_add_u32 v2, v2, v3\nv_lshlrev_b32 v{V_VV}, 4, v2")
        A(f"v_bfe_u32 v{V_OF}, v1, 4, 1\nv_lshlrev_b32 v{V_OF}, 14, v{V_OF}\nv_lshrrev_b32 v2, 5, v1\nv_lshl_add_u32 v{V_OF}, v2, 8, v{V_OF}\nv_and_b32 v2, 15, v1\nv_lshl_add_u32 v{V_OF}, v2, 4, v{V_OF}")
        A(f"s_lshl_b32 s{S_OFS}, s{S_J}, 16\ns_lshr_b32 s{ST+1}, s{S_HEAD}, 1\ns_lshl_b32 s{ST+1}, s{ST+1}, 10\ns_add_u32 s{S_OFS}, s{S_OFS}, s{ST+1}\ns_and_b32 s{ST+1}, s{S_HEAD}, 1\ns_lshl_b32 s{ST+1}, s{ST+1}, 9\ns_add_u32 s{S_OFS}, s{S_OFS}, s{ST+1}\ns_add_u32 s{S_OFS}, s{S_OFS}, {WS_OF}")
        A("v_mov_b32 v128, -1\nv_mov_b32 v129, -1\nv_mov_b32 v130, -1\nv_mov_b32 v131, -1")
        A(f"s_lshl_b32 s{S_NHM}, 1, s{S_NH}\ns_sub_u32 s{S_NHM}, s{S_NHM}, 1")
        A(f"s_lshl_b32 s{ST}, s{S_HEAD}, 6\ns_lshl_b32 s{ST+1}, s{S_J}, 1\ns_add_u32 s{ST}, s{ST}, s{ST+1}\ns_mul_i32 s{S_KVO}, s{ST}, {KVS}\ns_add_u32 s{S_KVO}, s{S_KVO}, {WS_KV}")
        A(f"s_lshl_b32 s{S_ZTO}, s{S_CH}, 12\ns_lshl_b32 s{ST}, s{S_RHO}, 11\ns_add_u32 s{S_ZTO}, s{S_ZTO}, s{ST}\ns_add_u32 s{S_ZTO}, s{S_ZTO}, {WS_ZT}")
        A(f"s_lshl_b32 s{ST}, s{S_XCD}, 6\ns_lshl_b32 s{ST+1}, s{S_WAVE}, 4\ns_add_u32 s{ST}, s{ST}, s{ST+1}\ns_lshl_b32 s{ST}, s{ST}, 12\ns_lshl_b32 s{ST+2}, s{S_I}, 7\ns_add_u32 s{ST}, s{ST}, s{ST+2}\ns_add_u32 s{S_ZLD}, s{ST}, {WS_ZT}")
        A(f"s_lshl_b32 s{ST}, s{S_I}, 6\ns_add_u32 s{ST}, s{ST}, s{ST+1}\ns_lshl_b32 s{ST+2}, s{S_XCD}, 7\ns_lshl_b32 s{S_QO}, s{ST}, 10\ns_add_u32 s{S_QO}, s{S_QO}, s{ST+2}\ns_lshl_b32 s{S_BOUT}, s{ST}, 11\ns_add_u32 s{S_BOUT}, s{S_BOUT}, s{ST+2}\ns_add_u32 s{S_BOUT}, s{S_BOUT}, 1024")
        A(f"s_lshl_b32 s{ST}, s{S_J}, 6\ns_add_u32 s{ST}, s{ST}, s{ST+1}\ns_lshl_b32 s{S_AOUT}, s{ST}, 11\ns_lshl_b32 s{ST+2}, s{S_P}, 7\ns_add_u32 s{S_AOUT}, s{S_AOUT}, s{ST+2}")
        A(f"s_lshl_b32 s{S_OFL}, s{S_J}, 2\ns_add_u32 s{S_OFL}, s{S_OFL}, s{S_WAVE}\ns_lshl_b32 s{S_OFL}, s{S_OFL}, 14\ns_add_u32 s{S_OFL}, s{S_OFL}, {WS_OF}")
        A(f"s_lshl_b32 s{S_WOO}, s{S_WAVE}, 17\ns_add_u32 s{S_WOO}, s{S_WOO}, s{ST+2}\ns_lshl_b32 s{S_WOM}, s{S_WAVE}, 14")
        A(f"s_lshl_b32 s{ST}, s{S_D}, 16\ns_and_b32 s{ST+1}, s{S_D}, 0xffff0000\ns_cmp_lt_u32 s{S_WAVE}, 2\ns_cselect_b32 s{S_DV}, s{ST}, s{ST+1}")
        return o
    def flag_scalars(self):
        o = []
        A = lambda t: o.extend(split_instrs(t))
        A(f"s_lshl_b32 s{ST}, s{S_XCD}, 2\ns_add_u32 s{ST}, s{ST}, s{S_WAVE}\ns_lshl_b32 s{ST}, s{ST}, 5\ns_add_u32 s{ST}, s{ST}, s{S_I}\ns_lshl_b32 s{S_F1P}, s{ST}, {FS}")
        A(f"s_lshl_b32 s{ST}, s{S_XCD}, 2\ns_lshr_b32 s{ST+1}, s{S_I}, 3\ns_add_u32 s{ST}, s{ST}, s{ST+1}\ns_lshl_b32 s{S_PF1}, s{ST}, {5+FS}")
        A(f"s_lshl_b32 s{ST}, s{S_HEAD}, 5\ns_add_u32 s{ST}, s{ST}, s{S_J}\ns_lshl_b32 s{S_F2P}, s{ST}, {FS}\ns_add_u32 s{S_F2P}, s{S_F2P}, {WS_F2}\ns_lshl_b32 s{ST+1}, s{S_NH}, {FS}\ns_sub_u32 s{S_PF2}, s{S_F2P}, s{ST+1}")
        A(f"s_lshl_b32 s{ST}, s{S_J}, 5\ns_add_u32 s{ST+1}, s{ST}, s{S_HEAD}\ns_lshl_b32 s{S_F5P}, s{ST+1}, {FS}\ns_add_u32 s{S_F5P}, s{S_F5P}, {WS_F5}\ns_lshl_b32 s{S_PF5}, s{ST}, {FS}\ns_add_u32 s{S_PF5}, s{S_PF5}, {WS_F5}")
        A(f"s_lshl_b32 s{ST}, s{S_XCD}, 1\ns_add_u32 s{ST+1}, s{ST}, s{S_RHO}\ns_lshl_b32 s{ST+1}, s{ST+1}, 6\ns_and_b32 s{ST+2}, s{S_CH}, 63\ns_add_u32 s{ST+1}, s{ST+1}, s{ST+2}\ns_lshl_b32 s{S_F3P}, s{ST+1}, {FS}\ns_add_u32 s{S_F3P}, s{S_F3P}, {WS_F3}")
        A(f"s_lshr_b32 s{ST+1}, s{S_I}, 4\ns_add_u32 s{ST}, s{ST}, s{ST+1}\ns_lshl_b32 s{ST}, s{ST}, 6\ns_lshl_b32 s{ST+1}, s{S_WAVE}, 4\ns_add_u32 s{ST}, s{ST}, s{ST+1}\ns_lshl_b32 s{S_PF3}, s{ST}, {FS}\ns_add_u32 s{S_PF3}, s{S_PF3}, {WS_F3}")
        return o

    def qkv(self):
        a = self.a
        DA = list(range(116, 126)); H = S4(SRD_H)
        tzA = self.toep_valu(DA, 136, 24, 92)
        tzW = self.toep_writes(DA, 136, 24, 92, 132)
        pend = self.dma_groups(2); vfill = []
        def emit_mfma(st, first=False, nv=3):
            nonlocal pend
            for i, ins in enumerate(self.qkv_mfma(st, first)):
                a(ins)
                if i % 2 == 1 and pend: a(J(pend.pop(0)))
                for _ in range(nv):
                    if vfill: a(vfill.pop(0))
        def reads_wait(s, kk, st):
            self.qkv_reads(s, kk, st)
            extra = []
            if (s == 6 and kk >= 2) or (s == 7 and kk in (1, 2)): extra = [tzW.pop(0), tzW.pop(0)]
            for x in extra: a(x)
            a(f"s_waitcnt lgkmcnt({6+len(extra)})")
        for s in range(8):
            reads_wait(s, 1, 1)
            emit_mfma(0, first=(s == 0))
            reads_wait(s, 2, 0)
            emit_mfma(1)
            reads_wait(s, 3, 1)
            emit_mfma(0)
            if s == 0:
                while pend: a(J(pend.pop(0)))
                a(f"buffer_store_dwordx4 v[16:19], v158, {WS}, 0 offen sc1 ; @st0")
                a(f"buffer_store_dwordx4 v[20:23], v159, {WS}, 0 offen sc1 ; @st0")
            if s < 7:
                while pend: a(J(pend.pop(0)))
                a(f"s_waitcnt vmcnt(@dma{s+1}) lgkmcnt(0)")
                a("s_barrier")
                if s == 2:
                    self.nonce_fix()
                    a(self.flag(S_F1P))
                if s + 3 < 8: pend = self.dma_groups(s + 3)
                if s == 3:
                    hl = [f"buffer_load_dwordx4 v[116:119], v136, {H}, 0 offen {self.NT}; @h", f"buffer_load_dwordx4 v[120:123], v137, {H}, 0 offen {self.NT}; @h", f"buffer_load_dwordx2 v[124:125], v138, {H}, 0 offen {self.NT}; @h"]
                    d = pend
                    pend = [[hl[0]] + d[0], [hl[1]] + d[1], [hl[2]] + d[2], d[3], d[4], d[5], [self.poll_ld(S_PF1, 'pf1')] + d[6], d[7]]
                if s == 5:
                    a(J(self.cmp_flags("-1"))); a(f"s_cselect_b32 s{S_SPEC}, 1, 0")
                    pend = [[f"buffer_load_dwordx4 v[16:19], v{V_L16}, {WS}, s{S_UO} offen sc1 ; @u"], [f"buffer_load_dwordx4 v[20:23], v{V_L16}, {WS}, s{S_UO} offen offset:2048 sc1 ; @u"],
                            [f"s_getpc_b64 s[{ST+4}:{ST+5}]", "L_tabpc:", f"s_add_u32 s{ST+4}, s{ST+4}, (L_masktab - L_tabpc)", f"s_addc_u32 s{ST+5}, s{ST+5}, 0", f"s_mov_b32 s{ST+6}, 6144", f"s_mov_b32 s{ST+7}, 0x20000",
                             f"buffer_load_dwordx4 v[{A_MD}:{A_MD+3}], v{V_L16}, s[{ST+4}:{ST+7}], 0 offen ; @md", f"buffer_load_dwordx4 v[{A_MD+4}:{A_MD+7}], v{V_L16}, s[{ST+4}:{ST+7}], 0 offen offset:1024 ; @md"],
                            [f"buffer_load_dwordx4 v[{A_MD+8}:{A_MD+11}], v{V_L16}, s[{ST+4}:{ST+7}], 0 offen offset:2048 ; @md", f"buffer_load_dwordx4 v[{A_MD+12}:{A_MD+15}], v{V_L16}, s[{ST+4}:{ST+7}], 0 offen offset:3072 ; @md"],
                            [f"buffer_store_dwordx4 v[128:131], v{V_OF}, {WS}, s{S_OFS} offen sc1 ; @sent"], [f"s_add_u32 s{ST+2}, s{S_OFS}, 32768", f"buffer_store_dwordx4 v[128:131], v{V_OF}, {WS}, s{ST+2} offen sc1 ; @sent"]]
                    vfill = list(tzA)
                self.qkv_reads(s+1, 0, 0)
                self.stamp(f'b{s}')
                emit_mfma(1, nv=(6 if s == 5 else 3))
            else:
                assert not tzW
                a("s_waitcnt vmcnt(@md)")
                Lu = a.label('u_slow'); Lub = a.label('u_back')
                a(f"s_cmp_lg_u32 s{S_SPEC}, 0\ns_cbranch_scc1 {Lu}\n{Lub}:")
                with Cap(a) as cap:
                    a(f"{Lu}:"); self.poll_check(S_PF1, "-1", 'f1', cnt=201)
                    a(f"buffer_load_dwordx4 v[16:19], v{V_L16}, {WS}, s{S_UO} offen sc1\nbuffer_load_dwordx4 v[20:23], v{V_L16}, {WS}, s{S_UO} offen offset:2048 sc1\ns_waitcnt vmcnt(0)\ns_branch {Lub}")
                self.tail_blocks.append(cap.out)
                a("ds_write_b128 v127, v[16:19]\nds_write_b128 v127, v[20:23] offset:2048")
                a("s_waitcnt lgkmcnt(0)\ns_barrier")
                self.stamp('b7')
                a(J(self.conv_reads_mixed_first()))
                emit_mfma(1)
        assert not vfill and not pend
        a("s_nop 3"); a(J(self.deferred)); a("s_nop 3")
        for g in self.conv_fillers():
            if g is None or g == 'WO': continue
            if isinstance(g, int): a("s_nop 7\ns_nop 4"); continue
            a(J(g))

    def conv_reads(self, st, n):
        A = 16 + 64*st; B = 48 + 64*st; o = []
        for i in range(8):
            o.append(f"ds_read_b128 v[{B+4*i}:{B+4*i+3}], v{V_CB} offset:{512*(7-i) + 64*n}")
            o.append(f"ds_read_b64 v[{A+4*i}:{A+4*i+1}], v{V_CA} offset:{512*i + 64*n}")
            o.append(f"ds_read_b64 v[{A+4*i+2}:{A+4*i+3}], v{V_CA} offset:{512*i + 64*n + 8}")
        return o
    def conv_reads_mixed_first(self):
        o = self.conv_reads(0, 0)
        self.deferred = [x for x in o if 'v[76:79]' in x]
        return [x for x in o if 'v[76:79]' not in x]
    def conv_mfmas(self, st, first):
        A = 16 + 64*st; B = 48 + 64*st; o = []
        for i in range(8):
            for t in range(i, 8):
                acc = CACC + 4*t
                c = "0" if (first and i == 0) else f"a[{acc}:{acc+3}]"
                o.append(f"{MF16} a[{acc}:{acc+3}], v[{A+4*i}:{A+4*i+3}], v[{B+4*(t-i)}:{B+4*(t-i)+3}], {c}")
        return o
    def Kf(self, t): return f"a[{4*t}:{4*t+3}]" if t < 8 else f"v[{232+4*(t-8)}:{235+4*(t-8)}]"
    def Vf(self, t, h): return f"a[{32+8*t+4*h}:{35+8*t+4*h}]" if t < 8 else f"v[{240+8*(t-8)+4*h}:{243+8*(t-8)+4*h}]"
    def maxreduce(self, src, dst, init=None):
        o = []
        if init is None: o.append(f"v_max3_f32 v{dst}, v{src}, v{src+1}, v{src+2}"); rest = list(range(src+3, src+16))
        else: rest = list(range(src, src+16))
        while len(rest) >= 2: o.append(f"v_max3_f32 v{dst}, v{dst}, v{rest[0]}, v{rest[1]}"); rest = rest[2:]
        if rest: o.append(f"v_max_f32 v{dst}, v{dst}, v{rest[0]}")
        return o
    def finish_max(self, m, b, bias, tmp):
        o = [[f"v_mov_b32 v{tmp}, v{m}", "s_nop 1", f"v_permlane32_swap_b32 v{m}, v{tmp}", "s_nop 1", f"v_max_f32 v{m}, v{m}, v{tmp}"]]
        if bias: o.append([f"v_add_f32 v{m}, {bias}, v{m}"])
        o.append([f"v_sub_f32 v{m}, 0, v{m}"])
        return o + [[f"v_mov_b32 v{A_CN[b]+r}, v{m}"] for r in range(16)]
    VM = ["s_mov_b32 exec_lo, 0x1ffff", "s_mov_b32 exec_hi, 0x1ffff"]
    def conv_fillers(self):
        F = []
        one = lambda l: F.extend([[x] for x in l])
        QF, MD, MK = A_QF, A_MD, A_MK
        F += [None]*3
        F.append([f"s_add_u32 s{ST+1}, s{S_KVO}, {KVS}"])
        for b in range(2): one([f"v_cvt_pk_bf16_f32 v{232+4*b+p}, v{160+16*b+8+2*p}, v{160+16*b+8+2*p+1}" for p in range(4)])
        F.append([f"buffer_store_dwordx4 v[232:235], v{V_L16}, {WS}, s{S_KVO} offen sc1 ; @kvst"])
        one([f"v_cvt_pk_bf16_f32 v{240+p}, v{192+2*p}, v{192+2*p+1}" for p in range(8)])
        F.append([f"buffer_store_dwordx4 v[236:239], v{V_L16}, {WS}, s{ST+1} offen sc1 ; @kvst"])
        one([f"v_cvt_pk_bf16_f32 v{248+p}, v{208+2*p}, v{208+2*p+1}" for p in range(8)])
        ones = lambda r0: ["s_mov_b32 exec_lo, 0x10000", "s_mov_b32 exec_hi, 0x10000"] + [f"v_mov_b32 v{r}, 0x3f803f80" for r in range(r0, r0+8)]
        F.append(ones(240) + self.VM + ["s_nop 0"] + [f"buffer_store_dwordx4 v[{240+4*h}:{243+4*h}], v{V_VV}, {WS}, s{S_KVO} offen offset:{1024+640*h} sc1 ; @kvst" for h in range(2)] + ["s_mov_b64 exec, -1"])
        F.append(None)
        F.append(ones(248) + self.VM + ["s_nop 0"] + [f"buffer_store_dwordx4 v[{248+4*h}:{251+4*h}], v{V_VV}, {WS}, s{ST+1} offen offset:{1024+640*h} sc1 ; @kvst" for h in range(2)] + ["s_mov_b64 exec, -1"])
        F.append([f"s_mov_b32 s{ST+3}, 4096", f"buffer_load_dwordx4 v[{MK}:{MK+3}], v{V_L16}, s[{ST+4}:{ST+7}], s{ST+3} offen ; @mk", f"buffer_load_dwordx4 v[{MK+4}:{MK+7}], v{V_L16}, s[{ST+4}:{ST+7}], s{ST+3} offen offset:1024 ; @mk"])
        F.append([f"s_mov_b32 s{ST+2}, {hex(f2u(QSCALE))}"])
        for b in range(2):
            one([f"v_mul_f32 v{160+16*b+r}, s{ST+2}, v{160+16*b+r}" for r in range(8)])
            one([f"v_cvt_pk_bf16_f32 v{224+4*b+p}, v{160+16*b+2*p}, v{160+16*b+2*p+1}" for p in range(4)])
        one(["v_lshrrev_b32 v2, 4, v1", "v_and_b32 v3, 7, v1", "v_lshrrev_b32 v6, 1, v3", "v_xor_b32 v6, v6, v2", "v_lshlrev_b32 v6, 5, v6", "v_and_b32 v3, 1, v3", "v_lshl_add_u32 v6, v3, 4, v6",
             "v_lshrrev_b32 v3, 3, v1", "v_lshl_add_u32 v176, v3, 10, v6", "v_add_u32 v177, 7168, v176", "v_add_u32 v178, 14336, v176", "v_add_u32 v179, 21504, v176"])
        F.append('WO')
        T = 208
        F.append([f"{MF32} v[{T}:{T+15}], {self.Kf(8)}, v[{QF[0]}:{QF[0]+3}], v[{MD}:{MD+15}]"]); F.append(13)
        one(self.maxreduce(T, 2))
        F.append([f"{MF32} v[{T}:{T+15}], {self.Kf(8)}, v[{QF[1]}:{QF[1]+3}], 0"])
        F.append([f"s_mov_b32 s{ST+2}, 0x42800000"])
        F += self.finish_max(2, 0, f"s{ST+2}", 3)
        one(self.maxreduce(T, 2))
        F.append([f"{MF32} v[{T}:{T+15}], {self.Kf(9)}, v[{QF[1]}:{QF[1]+3}], v[{MD}:{MD+15}]"]); F.append(13)
        one(self.maxreduce(T, 2, init=2))
        F += self.finish_max(2, 1, f"s{ST+2}", 3)
        return F
    def halo_groups(self, p):
        g = []
        for tau in (7-2*p, 6-2*p):
            off = (tau - 8) * KVS
            g.append([f"s_sub_u32 s{ST+6}, s{S_KVO}, {-off}", f"buffer_load_dwordx4 a[{4*tau}:{4*tau+3}], v{V_L16}, {WS}, s{ST+6} offen sc1 ; @pair{p}"])
            g.append([f"s_sub_u32 s{ST+6}, s{S_KVO}, {-off}"] + self.VM +
                     [f"buffer_load_dwordx4 a[{32+8*tau}:{35+8*tau}], v{V_VV}, {WS}, s{ST+6} offen offset:1024 sc1 ; @pair{p}",
                      f"buffer_load_dwordx4 a[{36+8*tau}:{39+8*tau}], v{V_VV}, {WS}, s{ST+6} offen offset:1664 sc1 ; @pair{p}", "s_mov_b64 exec, -1"])
        return g
    def conv(self):
        a = self.a
        wo = []
        for n in range(16):
            pre = [f"s_add_u32 m0, s{S_WOM}, {(n//4)*4096}", f"s_add_u32 s{ST+9}, s{S_WOO}, {(n//4)*32768}"] if n % 4 == 0 else []
            wo.append(pre + [f"buffer_load_dwordx4 v{176 + n%4}, {S4(SRD_WO)}, s{ST+9} offen offset:{(n%4)*1024} lds ; @wo"])
        a("s_waitcnt lgkmcnt(0)")
        self.stamp('convstart')
        nwo = 0
        GPOST = next((int(x[2:]) for x in self.exp if x.startswith('gp')), 40)
        GPOLL = next((int(x[2:]) for x in self.exp if x.startswith('gq')), 110)
        for n in range(4):
            m = self.conv_mfmas(n & 1, n == 0)
            rd = self.conv_reads((n+1) & 1, n+1) if n < 3 else []
            for i, ins in enumerate(m):
                gi = 36*n + i
                a(ins)
                if rd: a(rd.pop(0))
                if gi % 6 == 3 and nwo < 16: a(J(wo[nwo])); nwo += 1
                if gi == GPOST: a("s_waitcnt vmcnt(@kvst)"); a(self.flag(S_F2P, 'f2f')); a(self.flag(S_F5P, 'f5f'))
                if gi == GPOLL: a(self.poll_ld(S_PF2, 'pf2', 218))
            if n < 3: a("s_waitcnt lgkmcnt(0)")
        assert nwo == 16
        self.stamp('convmfma')
        a("s_waitcnt vmcnt(@pf2)")
        self.poll_check(S_PF2, f"s{S_NHM}", 'f2', vt=218, cnt=202)
        self.stamp('f2seen')
        for g in self.halo_groups(0): a(J(g))
        with Cap(a) as cap: self.conv_epilogue()
        body = cap.out
        out = []
        for x in body:
            if x.startswith('s_cmp_lg_u32 s71'): out.append(';#noint')
            out.append(x)
            if x.startswith('L_rhojoin'): out.append(';#int')
        a(J(safe_interleave(out, self.halo_groups(1), every=14, start=10)))
    def conv_epilogue(self):
        a = self.a
        Lr1 = a.label('rho1'); Lj = a.label('rhojoin')
        a(f"s_lshl_b32 s{ST}, s{S_WAVE}, 12\ns_add_u32 s{ST}, s{ST}, {EX}\nv_add_u32 v5, s{ST}, v{V_L16}\nv_xor_b32 v6, 0x1000, v5")
        a(f"s_cmp_lg_u32 s{S_RHO}, 0\ns_cbranch_scc1 {Lr1}")
        for t in range(4): a(f"ds_write_b128 v5, a[{CACC+16+4*t}:{CACC+19+4*t}] offset:{1024*t}")
        for r in range(16): a(f"v_accvgpr_read_b32 v{32+r}, a{CACC+r}")
        a(f"s_branch {Lj}\n{Lr1}:")
        for t in range(4): a(f"ds_write_b128 v5, a[{CACC+4*t}:{CACC+4*t+3}] offset:{1024*t}")
        for r in range(16): a(f"v_accvgpr_read_b32 v{32+r}, a{CACC+16+r}")
        a(f"{Lj}:")
        a(f"s_lshr_b32 s{ST}, s{S_WAVE}, 1\ns_mul_i32 s{ST}, s{ST}, {UC}\ns_lshl_b32 s{ST+2}, s{S_RHO}, 11\ns_sub_u32 s{ST}, s{ST}, s{ST+2}\ns_add_u32 s{ST}, s{ST}, {U + 4088 - 1536}")
        a(f"v_and_b32 v2, 15, v1\nv_lshrrev_b32 v3, 4, v1\nv_lshlrev_b32 v2, 5, v2\nv_lshl_add_u32 v2, v3, 3, v2\nv_sub_u32 v3, s{ST}, v2")
        for tl in range(4): a(f"ds_read_b64 v[{48+2*tl}:{49+2*tl}], v3 offset:{512*(3-tl)}")
        a(f"s_lshl_b32 s{ST+1}, s{S_WAVE}, 11\ns_add_u32 s{ST+1}, s{ST+1}, {TP}\nv_add_u32 v2, s{ST+1}, v2\nv_add_u32 v3, s{ST+1}, v{V_L16}")
        a("s_waitcnt lgkmcnt(0)\ns_barrier")
        for t in range(4): a(f"ds_read_b128 v[{16+4*t}:{19+4*t}], v6 offset:{1024*t}")
        for tl in range(4):
            lo, hi = 48+2*tl, 49+2*tl
            a(f"v_and_b32 v56, 0xffff0000, v{hi}\nv_lshlrev_b32 v57, 16, v{hi}\nv_and_b32 v58, 0xffff0000, v{lo}\nv_lshlrev_b32 v59, 16, v{lo}")
            for r in range(4): a(f"v_fmac_f32 v{32+4*tl+r}, s{S_DV}, v{56+r}")
        a("s_waitcnt lgkmcnt(0)")
        for tl in range(4):
            acc = 32 + 4*tl; px = 16 + 4*tl
            for r in range(4): a(f"v_add_f32 v{acc+r}, v{acc+r}, v{px+r}")
            a(f"v_cvt_pk_bf16_f32 v{60+2*tl}, v{acc}, v{acc+1}\nv_cvt_pk_bf16_f32 v{61+2*tl}, v{acc+2}, v{acc+3}")
            a(f"ds_write_b64 v2, v[{60+2*tl}:{61+2*tl}] offset:{512*tl}")
        a("s_waitcnt lgkmcnt(0)")
        a("ds_read_b128 v[208:211], v3\nds_read_b128 v[212:215], v3 offset:1024")

    def attention(self):
        a = self.a
        S, P, CN, O, MD, MK, QF = A_S, A_P, A_CN, A_O, A_MD, A_MK, A_QF
        Kf, Vf = self.Kf, self.Vf
        items = [(0, 8, 'D'), (1, 9, 'D'), (1, 8, None)]
        pairs = [[(0,7,None),(1,7,None),(0,6,None),(1,6,None)], [(0,5,None),(1,5,None),(0,4,None),(1,4,None)],
                 [(0,3,None),(1,3,None),(0,2,None),(1,2,None)], [(0,1,None),(1,1,'F'),(0,0,'F')]]
        allitems = items + [x for p in pairs for x in p]
        def smfma(n):
            b, t, m = allitems[n]
            return f"{MF32} v[{S[n&1]}:{S[n&1]+15}], {Kf(t)}, v[{QF[b]}:{QF[b]+3}], v[{CN[b]}:{CN[b]+15}]"
        a("s_waitcnt lgkmcnt(0)")
        a(f"buffer_store_dwordx4 v[208:211], v{V_L16}, {WS}, s{S_ZTO} offen sc1 ; @zst")
        a(f"buffer_store_dwordx4 v[212:215], v{V_L16}, {WS}, s{S_ZTO} offen offset:1024 sc1 ; @zst")
        Lmain = a.label('attn_main'); Ldone = a.label('attn_done'); Lfb = a.label('attn_fallback'); Lok = a.label('attn_ok'); Lj0 = a.label('attn_j0')
        self.stamp('attnstart')
        a(f"{Lmain}:")
        first_pv = {0: True, 1: True}
        pair_start = {}; n = len(items)
        for pi, p in enumerate(pairs): pair_start[n] = pi; n += len(p)
        late = {0: self.halo_groups(2)[:2], 1: self.halo_groups(2)[2:], 3: self.halo_groups(3)[:2], 4: self.halo_groups(3)[2:],
                2: [[f"buffer_load_dwordx4 v[176:179], v222, {S4(SRD_Q)}, s{S_QO} offen {self.NT}; @q"], [f"buffer_load_dwordx4 v[180:183], v222, {S4(SRD_Q)}, s{S_QO} offen offset:16 {self.NT}; @q"]],
                15: [[self.poll_ld(S_PF3, 'pf3', 218)], [self.poll_ld(S_PF5, 'pf5', 220)]]}
        a(smfma(0))
        a("v_and_b32 v4, 15, v1\nv_lshrrev_b32 v5, 4, v1\nv_lshlrev_b32 v4, 10, v4\nv_lshl_add_u32 v222, v5, 5, v4")
        a(f"v_mov_b32 v218, 0\nv_mov_b32 v219, 0\nv_mov_b32 v220, 0\nv_mov_b32 v221, 0")
        a("v_lshrrev_b32 v4, 3, v1\nv_and_b32 v5, 7, v1\nv_lshlrev_b32 v223, 12, v4\nv_lshl_add_u32 v223, v5, 4, v223")
        pvp = []; N = len(allitems)
        for n, (b, t, m) in enumerate(allitems):
            s = S[n & 1]; p = P[n & 1]; nxt = n + 1
            lg = list(late.get(n, []))
            ex = lambda r0, r1: [a(f"v_exp_f32 v{s+r}, v{s+r}") for r in range(r0, r1)]
            ex(0, 2)
            if pvp: a(pvp[0])
            ex(2, 5)
            if pvp: a(pvp[1])
            pvp = []
            if lg: a(J(lg.pop(0)))
            ex(5, 9)
            if nxt < N:
                if nxt in pair_start:
                    pi = pair_start[nxt]
                    a(f"s_waitcnt vmcnt(@pair{pi})" if pi != 1 else "s_waitcnt vmcnt(@zst)")
                    if pi == 1: a(self.flag(S_F3P))
                a(smfma(nxt))
            ex(9, 13)
            if lg: a(J(lg.pop(0)))
            ex(13, 16)
            for r in range(8): a(f"v_cvt_pk_bf16_f32 v{p+r}, v{s+2*r}, v{s+2*r+1}")
            if m == 'D':
                for r in range(8): a(f"v_and_b32 v{p+r}, v{MK+r}, v{p+r}")
            elif m == 'F':
                for r in range(8): a(f"v_bfi_b32 v{p+r}, v{MK+r}, 0, v{p+r}")
            c = "0" if first_pv[b] else f"v[{O[b]}:{O[b]+15}]"
            first_pv[b] = False
            pv = [f"{MF32} v[{O[b]}:{O[b]+15}], {Vf(t,0)}, v[{p}:{p+3}], {c}", f"{MF32} v[{O[b]}:{O[b]+15}], {Vf(t,1)}, v[{p+4}:{p+7}], v[{O[b]}:{O[b]+15}]"]
            if nxt in pair_start or nxt == N:
                a("s_nop 1"); a(pv[0]); a(pv[1])
                if nxt in pair_start:
                    pi = pair_start[nxt]
                    a(f"s_cmp_le_u32 s{S_NH}, {pi}\ns_cbranch_scc1 {Lj0 if pi == 0 else Ldone}")
            else: pvp = pv
        a(f"{Ldone}:")
        self.stamp('attndone')
        a("s_nop 7\ns_nop 3")
        for b in range(2): a(f"v_mov_b32 v{2+b}, v{O[b]+8}\nv_mov_b32 v4, v{O[b]+8}\ns_nop 1\nv_permlane32_swap_b32 v{2+b}, v4")
        a(f"s_mov_b32 s{ST}, 0x71800000")
        a(f"v_max_f32 v4, v2, v3\ns_nop 0\nv_cmp_gt_f32 vcc, s{ST}, v4")
        a(f"s_nop 3\ns_mov_b64 s[{ST+2}:{ST+3}], vcc\nv_cmp_o_f32 vcc, v2, v3\ns_nop 4\ns_and_b64 s[{ST+2}:{ST+3}], s[{ST+2}:{ST+3}], vcc")
        a(f"s_cmp_lg_u32 s{S_FB}, 0\ns_cbranch_scc1 {Lok}")
        a(f"s_cmp_eq_u64 s[{ST+2}:{ST+3}], -1\ns_cbranch_scc0 {Lfb}\n{Lok}:")
        with Cap(a) as cap:
            a(f"{Lj0}:")
            a("s_waitcnt vmcnt(0)"); a(self.flag(S_F3P)); a(f"s_branch {Ldone}")
            a(f"{Lfb}:")
            a(f"s_mov_b32 s{ST}, {hex(NEG)}")
            for r in range(16): a(f"v_sub_f32 v{128+r}, s{ST}, v{MD+r}")
            a(f"v_mov_b32 v2, s{ST}\nv_mov_b32 v3, s{ST}\ns_waitcnt vmcnt(0)")
            Lf = a.label('fb_done')
            for (b, t, m) in sorted(allitems, key=lambda x: -x[1]):
                if t < 8 and (t % 2 == 1) and b == 0: a(f"s_cmp_le_u32 s{S_NH}, {(7-t)//2}\ns_cbranch_scc1 {Lf}")
                c = {None: "0", 'D': f"v[{MD}:{MD+15}]", 'F': "v[128:143]"}[m]
                a(f"{MF32} v[16:31], {Kf(t)}, v[{QF[b]}:{QF[b]+3}], {c}\ns_nop 7\ns_nop 3")
                a(J(self.maxreduce(16, 2+b, init=2+b))); a("s_nop 7")
            a(f"{Lf}:")
            for g in self.finish_max(2, 0, None, 4) + self.finish_max(3, 1, None, 4): a(J(g))
            a(f"s_mov_b32 s{S_FB}, 1\ns_branch {Lmain}")
        self.tail_blocks.append(cap.out)

    def tail(self):
        a = self.a
        O = A_O
        a("v_rcp_f32 v2, v2\nv_rcp_f32 v3, v3")
        for b in range(2):
            for r in range(8): a(f"v_mul_f32 v{O[b]+r}, v{O[b]+r}, v{2+b}")
            for p in range(4): a(f"v_cvt_pk_bf16_f32 v{16+4*b+p}, v{O[b]+2*p}, v{O[b]+2*p+1}")
            if b == 1: a(f"s_add_u32 s{ST+1}, s{S_OFS}, 32768")
            if b == 0 and 'zfirst' in self.exp: continue
            if b == 1 and 'zfirst' in self.exp: continue
            a(f"buffer_store_dwordx4 v[{16+4*b}:{19+4*b}], v{V_OF}, {WS}, s{S_OFS if b == 0 else ST+1} offen sc1 ; @ost")
        zf = 'zfirst' in self.exp
        a("s_waitcnt vmcnt(0)" if zf else "s_waitcnt vmcnt(2)")
        self.poll_check(S_PF3, "0xffff", 'f3', vt=218, cnt=203)
        a(f"s_add_u32 s{ST+6}, s{S_ZLD}, {8*4096}")
        a(f"buffer_load_dwordx4 v[64:67], v223, {WS}, s{S_ZLD} offen sc1 ; @z")
        a(f"buffer_load_dwordx4 v[68:71], v223, {WS}, s{ST+6} offen sc1 ; @z")
        if zf:
            a(f"buffer_store_dwordx4 v[16:19], v{V_OF}, {WS}, s{S_OFS} offen sc1 ; @ost")
            a(f"buffer_store_dwordx4 v[20:23], v{V_OF}, {WS}, s{ST+1} offen sc1 ; @ost")
        self.stamp('ostored')
        self.poll_check(S_PF5, "-1", 'f5', vt=220, cnt=204)
        a(f"s_lshl_b32 s{ST}, s{S_WAVE}, 11\ns_add_u32 s{ST}, s{ST}, {TP}\nv_add_u32 v25, s{ST}, v{V_L16}")
        a(f"v_lshrrev_b32 v6, 4, v1\nv_bfe_u32 v3, v1, 2, 2\nv_lshl_add_u32 v4, v6, 4, v3\nv_lshlrev_b32 v4, 7, v4\nv_and_b32 v5, 3, v1\nv_lshl_add_u32 v4, v5, 3, v4\ns_lshl_b32 s{ST}, s{S_WAVE}, 5\ns_add_u32 s{ST}, s{ST}, {TP}\nv_add_u32 v26, s{ST}, v4")
        a(f"v_and_b32 v4, 15, v1\nv_lshlrev_b32 v4, 11, v4\nv_lshl_add_u32 v27, v6, 5, v4")
        for i in range(8): a(f"v_lshlrev_b32 v{32+2*i}, 16, v{176+i}\nv_and_b32 v{33+2*i}, 0xffff0000, v{176+i}")
        a("v_lshrrev_b32 v2, 5, v1\nv_bfe_u32 v4, v1, 4, 1\nv_lshlrev_b32 v6, 4, v2\nv_lshl_add_u32 v6, v4, 2, v6\nv_add_u32 v6, v6, v3\nv_lshlrev_b32 v6, 7, v6\nv_lshl_add_u32 v6, v5, 3, v6")
        a("v_lshrrev_b32 v3, 1, v3\nv_lshl_add_u32 v3, v4, 1, v3")
        for t in range(4): a(f"v_xor_b32 v5, {t}, v3\nv_lshl_add_u32 v{84+t}, v5, 5, v6")
        a("v_and_b32 v5, 15, v1\nv_lshlrev_b32 v30, 11, v5\nv_lshl_add_u32 v30, v4, 5, v30\nv_lshl_add_u32 v30, v2, 4, v30")
        a("s_waitcnt vmcnt(@z)")
        a("ds_write_b128 v25, v[64:67]\nds_write_b128 v25, v[68:71] offset:1024")
        a("s_waitcnt lgkmcnt(0)\ns_barrier")
        self.stamp('zlds')
        for n in range(4): a(f"ds_read_b64_tr_b16 v[{48+2*n}:{49+2*n}], v26 offset:{512*n}")
        OF = 96
        def ofld(m, tag=True, force=False):
            pre = [f"s_add_u32 s{ST+6}, s{S_OFL}, {(m//4)*4096}"] if (m % 4 == 0 or force) else []
            return pre + [f"buffer_load_dwordx4 v[{OF+4*m}:{OF+4*m+3}], v{V_L16}, {WS}, s{ST+6} offen offset:{1024*(m%4)} sc1" + (f" ; @of{m}" if tag else " ; @cond")]
        a("s_waitcnt lgkmcnt(0)")
        comp = []
        for i in range(8): comp += [f"v_lshlrev_b32 v{64+2*i}, 16, v{48+i}", f"v_and_b32 v{65+2*i}, 0xffff0000, v{48+i}"]
        comp += [f"v_mul_f32 v{32+i}, v{32+i}, v{64+i}" for i in range(16)]
        comp += [f"v_cvt_pk_bf16_f32 v{16+i}, v{32+2*i}, v{33+2*i}" for i in range(8)]
        a(J(interleave(comp, [ofld(m) for m in range(16)], every=3)))
        a(f"buffer_store_dwordx4 v[16:19], v27, {S4(SRD_OUT)}, s{S_BOUT} offen ; @bst")
        a(f"buffer_store_dwordx4 v[20:23], v27, {S4(SRD_OUT)}, s{S_BOUT} offen offset:16 ; @bst")
        self.stamp('ofissued')
        def reads(m, st): return [f"ds_read_b64_tr_b16 v[{32+16*st+4*t+2*e}:{33+16*st+4*t+2*e}], v{84+t} offset:{m*4096 + e*1024}" for t in range(4) for e in range(2)]
        a(J(reads(0, 0)))
        a(f"s_mov_b32 s{S_TMO}, 0")
        Lrl = [a.label(f'of_reload{k}') for k in range(4)]
        for m in range(16):
            st = m & 1; r = OF + 4*m
            Lc = a.label(f'ofchk{m}'); Lk = a.label(f'ofok{m}')
            a(f"s_waitcnt vmcnt(@of{m})")
            a(f"{Lc}:")
            a(f"v_max3_u32 v31, v{r}, v{r+1}, v{r+2}\nv_max_u32 v31, v31, v{r+3}\nv_cmp_eq_u32 vcc, -1, v31")
            if m < 15: a(J(reads(m+1, st ^ 1)))
            else: a("s_nop 3")
            a(f"s_cbranch_vccnz {Lc}_r\n{Lk}:")
            a("s_waitcnt lgkmcnt(8)" if m < 15 else "s_waitcnt lgkmcnt(0)")
            for t in range(4):
                c = "0" if m == 0 else f"v[{64+4*t}:{67+4*t}]"
                a(f"{MF16} v[{64+4*t}:{67+4*t}], v[{32+16*st+4*t}:{35+16*st+4*t}], v[{r}:{r+3}], {c}")
            with Cap(a) as cap:
                a(f"{Lc}_r:")
                a(f"s_call_b64 s[30:31], {Lrl[m//4]}")
                a(f"s_cbranch_scc1 {Lk}")
                a(f"v_max3_u32 v31, v{r}, v{r+1}, v{r+2}\nv_max_u32 v31, v31, v{r+3}\nv_cmp_eq_u32 vcc, -1, v31\ns_nop 3\ns_cbranch_vccnz {Lc}_r\ns_branch {Lk}")
            self.tail_blocks.append(cap.out)
        with Cap(a) as cap:
            for k in range(4):
                a(f"{Lrl[k]}:")
                if self.SLEEP: a(f"s_sleep {self.SLEEP}")
                for m in range(4*k, 16): a(J(ofld(m, False)))
                a("s_waitcnt vmcnt(0)")
                a(f"s_add_u32 s{S_TMO}, s{S_TMO}, 1\ns_cmp_gt_u32 s{S_TMO}, 0x8000\ns_setpc_b64 s[30:31]")
        self.tail_blocks.append(cap.out)
        self.count(206)
        a("s_nop 7")
        for t in range(4): a(f"v_cvt_pk_bf16_f32 v{88+2*t}, v{64+4*t}, v{65+4*t}\nv_cvt_pk_bf16_f32 v{89+2*t}, v{66+4*t}, v{67+4*t}")
        a("s_nop 1\nv_permlane16_swap_b32 v88, v90\nv_permlane16_swap_b32 v89, v91\nv_permlane16_swap_b32 v92, v94\nv_permlane16_swap_b32 v93, v95\ns_nop 1")
        a(f"buffer_store_dwordx4 v[88:91], v30, {S4(SRD_OUT)}, s{S_AOUT} offen")
        a(f"buffer_store_dwordx4 v[92:95], v30, {S4(SRD_OUT)}, s{S_AOUT} offen offset:64")
        self.stamp('end')

    def mask_table(self):
        rows = []
        for blk in range(6):
            for l in range(64):
                q = l & 31; hi = l >> 5; vals = []
                for e in range(4):
                    r = 4*blk + e
                    if r < 16:
                        key = 8*(r // 4) + 4*hi + (r % 4)
                        vals.append(0 if key <= q else NEG)
                    else:
                        p = r - 16; k = 8*(p // 2) + 4*hi + 2*(p % 2)
                        vals.append((0xffff if k <= q else 0) | (0xffff0000 if k + 1 <= q else 0))
                rows.append(".long " + ", ".join(hex(v) for v in vals))
        return rows

    def build(self):
        a = self.a
        self.startup(); self.pre(); self.qkv(); self.conv(); self.attention(); self.tail()
        self.dump_stamps()
        a("L_end:\ns_endpgm")
        a.lines = resolve_vmcnt(a.lines)
        for blk in self.tail_blocks: a.lines += blk
        probs = check_hazards(a.lines)
        for p in probs[:12]: print(p, file=sys.stderr)
        a(".p2align 6\nL_masktab:")
        a.lines += self.mask_table()
        a("L_codeend:")
        hdr = open('cdna_kernels/' + NAME + '.s.ref').read().split('\n')
        cm = [l for l in hdr if l.startswith(';') and '@launch' not in l and 'Override' not in l and 'grid=ceil' not in l][:13]
        head = J(cm) + f"\n; @launch grid=(256,1,1) block=(256,1,1) lds={LDS_BYTES}\n"
        head += f'.amdgcn_target "amdgcn-amd-amdhsa--gfx950"\n.text\n.globl {NAME}_kernel\n.p2align 8\n.type {NAME}_kernel,@function\n{NAME}_kernel:\n'
        tail = f'''.section .rodata,"a"
.p2align 6
.amdhsa_kernel {NAME}_kernel
  .amdhsa_next_free_vgpr 512
  .amdhsa_next_free_sgpr 102
  .amdhsa_accum_offset 256
  .amdhsa_group_segment_fixed_size 0
  .amdhsa_kernarg_size 96
  .amdhsa_user_sgpr_count 2
  .amdhsa_user_sgpr_kernarg_segment_ptr 1
  .amdhsa_system_sgpr_workgroup_id_x 1
.end_amdhsa_kernel
'''
        return head + a.text() + tail, len(probs), self.stamp_slots

if __name__ == '__main__':
    ap = argparse.ArgumentParser()
    ap.add_argument('-o', default='cdna_kernels/' + NAME + '.s')
    ap.add_argument('--stamps', default=''); ap.add_argument('--exp', default='')
    args = ap.parse_args()
    g = Gen(stamps=[x for x in args.stamps.split(',') if x], exp=args.exp)
    txt, np_, slots = g.build()
    open(args.o, 'w').write(txt)
    print('wrote', args.o, 'lines', txt.count('\n'), 'hazards', np_, 'stamps', slots)
```

```python
import sys, argparse, struct
from asmlib import *

NAME = "concat_heads__sliding_block__ssm_conv_h3__prompt"
import os
FS = int(os.environ.get('FS', 4))
WS_F1, WS_F2, WS_F3, WS_F5 = 0x00000, 0x20000, 0x40000, 0x60000
WS_KVT = 0x100000; WS_ZT = 0x300000; WS_KV = 0x500000; WS_OF = 0xA00000
KVS = 2304
WS_STAMP = 0xC00000; WS_SIZE = 0xC40000
TZ = 98304; TZC = 4160
U = TZ + 8*TZC; UC = 4608
TP = U + 2*UC
WSH = TP + 8192
LDS_BYTES = WSH + 1024
EX = 65536
S_WAVE, S_XCD, S_I, S_J, S_P = 3, 4, 5, 6, 7
SRD_X, SRD_W, SRD_K, SRD_V, SRD_Q, SRD_H, SRD_WO, SRD_OUT, SRD_WS, SRD_DBG, SRD_SH = 8,12,16,20,24,28,32,36,40,44,48
S_T = 52; S_D = 54; S_TMO = 55
PTR = 56
S_HT = 72
S_XOFF, S_WOFF, S_M0B, S_NH = 80, 81, 82, 83
ST = 84
S_FB = 94; S_HEAD = 95
S_SEL0, S_SEL1 = 96, 97
S_M0W = 98; S_OFS = 99
S_F1P, S_F2P, S_F5P, S_F3P, S_PF1, S_PF2, S_PF3, S_PF5 = 16, 17, 18, 19, 20, 21, 22, 23
S_KVO, S_ZTO, S_ZLD, S_BOUT, S_AOUT, S_OFL, S_QO, S_WOO, S_WOM, S_UO, S_NHM, S_DV = 56, 57, 58, 59, 60, 61, 62, 63, 66, 67, 68, 69
S_SPEC = 64
S_CH, S_RHO = 70, 71
QSCALE = 0.25 * 1.4426950408889634
def f2u(x): return struct.unpack('<I', struct.pack('<f', x))[0]
def S4(b): return f"s[{b}:{b+3}]"
WS, DBG = S4(SRD_WS), S4(SRD_DBG)
MF32 = "v_mfma_f32_32x32x16_bf16"; MF16 = "v_mfma_f32_16x16x32_bf16"
NEG = 0xf149f2ca
A_S = [16, 32]; A_P = [48, 56]; A_CN = [184, 160]; A_O = [96, 112]; A_MD = 144; A_MK = 200; A_QF = [224, 228]
CACC = 96
V_T = 8; V_FL = 10; V_VV = 11; V_OF = 12; V_L16 = 13; V_CA = 14; V_CB = 15; V_PL = 7
J = '\n'.join
OOB = 0x7ff00000

class Gen:
    STAMP_REGS = [48, 50, 72, 74, 76, 78, 28, 24] if True else []
    def __init__(self, stamps=None, exp=''):
        self.a = Asm(); self.stamps = stamps or []; self.exp = exp.split(',')
        self.stamp_slots = []; self.tail_blocks = []
        self.NT = '' if 'nont' in self.exp else 'nt '
        self.OUTF = ' sc1' if 'outsc1' in self.exp else (' nt' if 'outnt' in self.exp else (' sc0 sc1' if 'outsys' in self.exp else ''))
        self.QR = 72 if 'wolate' in self.exp else 176
        self.SLEEP = next((int(x[2:]) for x in self.exp if x.startswith('sl')), 2)

    def srd(self, base, ptr, size):
        return [f"s_mov_b32 s{base}, s{ptr}", f"s_mov_b32 s{base+1}, s{ptr+1}", f"s_mov_b32 s{base+2}, {size}", f"s_mov_b32 s{base+3}, 0x20000"]
    def stamp(self, name):
        if name not in self.stamps: return
        n = len(self.stamp_slots)
        assert n < (10 if 'blk' in self.exp else 6)
        r = self.STAMP_REGS[n]; self.stamp_slots.append(name)
        if 'blk' in self.exp:
            self.a(f"s_memtime s[92:93]\ns_waitcnt lgkmcnt(0)\nv_mov_b32 v254, s92\nv_accvgpr_write_b32 a{210+n}, v254")
        else:
            self.a(f"s_memtime s[{r}:{r+1}]")
    def dump_stamps(self):
        if not self.stamp_slots: return
        a = self.a
        a("s_waitcnt lgkmcnt(0)")
        if 'dbgs' in self.exp:
            L = a.label('dbgskip')
            a("s_waitcnt vmcnt(0)")
            a(f"s_cmp_lg_u32 s{S_WAVE}, 1\ns_cbranch_scc1 {L}\ns_cmp_lg_u32 s2, 109\ns_cbranch_scc1 {L}")
            a("v_mov_b32 v4, 8\ns_mov_b64 exec, 1")
            for n, r in enumerate(self.STAMP_REGS[:len(self.stamp_slots)]):
                a(f"s_sub_u32 s84, s{r}, s100\nv_mov_b32 v2, s84\nbuffer_store_dword v2, v4, {DBG}, 0 offen offset:{4*n}\ns_nop 1")
            a(f"s_mov_b64 exec, -1\n{L}:")
            return
        a(f"s_lshl_b32 s{ST}, s2, 2\ns_add_u32 s{ST}, s{ST}, s{S_WAVE}\ns_lshl_b32 s{ST}, s{ST}, 7\ns_add_u32 s{ST}, s{ST}, {WS_STAMP}")
        a(f"v_mov_b32 v3, s{ST}\ns_mov_b64 exec, 1")
        for n, r in enumerate([100] + self.STAMP_REGS[:len(self.stamp_slots)]):
            if 'blk' in self.exp and n > 0: a(f"v_accvgpr_read_b32 v2, a{210+n-1}\ns_nop 1\nbuffer_store_dword v2, v3, {WS}, 0 offen offset:{4*n}\ns_nop 1")
            else: a(f"v_mov_b32 v2, s{r}\nbuffer_store_dword v2, v3, {WS}, 0 offen offset:{4*n}\ns_nop 1")
        for k in range(201, 207): a(f"v_accvgpr_read_b32 v2, a{k}\ns_nop 1\nbuffer_store_dword v2, v3, {WS}, 0 offen offset:{4*(k-201+20)}\ns_nop 1")
        a(f"v_accvgpr_read_b32 v2, a200\ns_nop 1\nbuffer_store_dword v2, v3, {WS}, 0 offen offset:120\ns_nop 1")
        a(f"s_memrealtime s[84:85]\ns_waitcnt lgkmcnt(0)\nv_mov_b32 v2, s84\nbuffer_store_dword v2, v3, {WS}, 0 offen offset:124\ns_nop 1")
        a("s_mov_b64 exec, -1")
    def count(self, k):
        if self.stamps and 'dbgs' not in self.exp: self.a(f"v_mov_b32 v253, s{S_TMO}\nv_accvgpr_write_b32 a{k}, v253")
    def poll_ld(self, sbase, tag='', vt=4):
        return f"buffer_load_dwordx2 v[{vt}:{vt+1}], v{V_PL}, {WS}, s{sbase} offen sc1" + (f" ; @{tag}" if tag else "")
    def cmp_flags(self, mask, vt=4):
        return [f"v_cmp_ne_u64 vcc, s[{S_T}:{S_T+1}], v[{vt}:{vt+1}]", "s_nop 0", f"s_and_b32 vcc_lo, vcc_lo, {mask}"]
    def poll_check(self, sbase, mask, name, vt=4, cnt=None):
        a = self.a
        L = a.label(name); Ld = a.label(name+'_done'); Lc = a.label(name+'_chk')
        a(f"s_mov_b32 s{S_TMO}, 0\ns_branch {Lc}\n{L}:")
        if self.SLEEP: a(f"s_sleep {self.SLEEP}")
        a(self.poll_ld(sbase, 'cond', vt))
        a(f"s_waitcnt vmcnt(0)\n{Lc}:")
        a(f"s_add_u32 s{S_TMO}, s{S_TMO}, 1")
        a(J(self.cmp_flags(mask, vt)))
        a(f"s_cbranch_scc0 {Ld}\ns_cmp_lt_u32 s{S_TMO}, 0x20000\ns_cbranch_scc1 {L}\n{Ld}:")
        if cnt: self.count(cnt)
    def flag(self, sreg, tag='flag'):
        return f"buffer_store_dwordx2 v[{V_T}:{V_T+1}], v{V_FL}, {WS}, s{sreg} offen sc1 ; @{tag}"
    def dma_groups(self, s):
        buf = s % 3
        X, W = S4(SRD_X), S4(SRD_W)
        t = f" ; @dma{s}"
        if 'rot' in self.exp:
            px = [f"s_add_u32 s{ST+9}, s101, {s & 3}", f"s_and_b32 s{ST+9}, s{ST+9}, 3", f"s_mul_i32 s{ST+8}, s{ST+9}, {64*3072}", f"s_lshl_b32 s{ST+9}, s{ST+9}, 7",
                  f"s_add_u32 s{ST+9}, s{ST+9}, s{S_XOFF}", f"s_add_u32 s{ST+8}, s{ST+8}, s{S_WOFF}"]
            if s & 4: px += [f"s_add_u32 s{ST+9}, s{ST+9}, 512", f"s_add_u32 s{ST+8}, s{ST+8}, {4*64*3072}"]
            g0 = px + [f"s_add_u32 m0, s{S_M0B}, {buf*32768}", "s_nop 0", f"buffer_load_dwordx4 v100, {X}, s{ST+9} offen lds" + t]
            g2 = [f"s_add_u32 m0, s{S_M0W}, {buf*32768}", "s_nop 0", f"buffer_load_dwordx4 v102, {W}, s{ST+8} offen lds" + t]
        else:
            g0 = [f"s_add_u32 m0, s{S_M0B}, {buf*32768}", f"s_add_u32 s{ST+9}, s{S_XOFF}, {s*128}", f"buffer_load_dwordx4 v100, {X}, s{ST+9} offen lds" + t]
            g2 = [f"s_add_u32 m0, s{S_M0W}, {buf*32768}", f"s_add_u32 s{ST+8}, s{S_WOFF}, {s*64*3072}", f"buffer_load_dwordx4 v102, {W}, s{ST+8} offen lds" + t]
        return [g0,
                [f"buffer_load_dwordx4 v101, {X}, s{ST+9} offen offset:1024 lds" + t],
                g2,
                [f"buffer_load_dwordx4 v103, {W}, s{ST+8} offen offset:1024 lds" + t],
                [f"buffer_load_dwordx4 v102, {W}, s{ST+8} offen offset:2048 lds" + t, f"s_add_u32 m0, s{S_M0W}, {buf*32768 + 3072}"],
                ["s_nop 0", f"buffer_load_dwordx4 v248, {W}, s{ST+8} offen lds" + t] if s in (0, 1, 2) else [f"buffer_load_dwordx4 v248, {W}, s{ST+8} offen lds" + t],
                [f"buffer_load_dwordx4 v249, {W}, s{ST+8} offen offset:1024 lds" + t],
                [f"buffer_load_dwordx4 v248, {W}, s{ST+8} offen offset:2048 lds" + t]]

    def startup(self):
        a = self.a
        a("L_entry:")
        a(f"s_load_dwordx16 s[{PTR}:{PTR+15}], s[0:1], 0")
        a(f"s_load_dwordx8 s[{PTR+16}:{PTR+23}], s[0:1], 64")
        a(f"s_memrealtime s[{S_T}:{S_T+1}]")
        if self.stamps: a("s_memtime s[100:101]")
        a("s_cmp_ge_u32 s2, 256\ns_cbranch_scc1 L_end")
        a("s_getpc_b64 s[8:9]\nL_pc:")
        a("s_sub_u32 s8, s8, (L_pc - L_entry)\ns_subb_u32 s9, s9, 0\ns_mov_b32 s10, (L_codeend - L_entry)\ns_mov_b32 s11, 0x20000")
        a(f"s_lshr_b32 s{S_I}, s2, 3\ns_and_b32 s{ST}, s{S_I}, 7\ns_lshl_b32 s{ST}, s{ST}, 12\nv_lshlrev_b32 v2, 4, v0")
        a(f"buffer_load_dwordx4 v[216:219], v2, s[8:11], s{ST} offen")
        a("v_and_b32 v1, 63, v0\nv_lshrrev_b32 v2, 6, v0")
        a(f"s_and_b32 s{S_XCD}, s2, 7")
        a(f"v_readfirstlane_b32 s{S_WAVE}, v2")
        a("v_and_b32 v4, 7, v1\nv_lshrrev_b32 v5, 3, v1")
        a(f"s_lshl_b32 s{ST}, s{S_I}, 6\ns_lshl_b32 s{ST+2}, s{S_XCD}, 7\ns_lshl_b32 s{ST+1}, s{S_WAVE}, 4\ns_add_u32 s{ST}, s{ST}, s{ST+1}\ns_lshl_b32 s{ST}, s{ST}, 10\ns_add_u32 s{ST}, s{ST}, s{ST+2}")
        a(f"v_lshlrev_b32 v140, 11, v5\nv_lshl_add_u32 v140, v4, 4, v140\nv_add_u32 v140, s{ST}, v140")
        a("v_subrev_u32 v141, 3072, v140\nv_subrev_u32 v142, 2048, v140\nv_subrev_u32 v143, 1024, v140")
        a(f"s_lshr_b32 s{ST}, s{S_XCD}, 1\ns_lshl_b32 s{ST}, s{ST}, 3\ns_and_b32 s{ST+1}, s{S_I}, 7\ns_add_u32 s{S_J}, s{ST}, s{ST+1}")
        a(f"s_and_b32 s{ST}, s{S_XCD}, 1\ns_lshl_b32 s{ST}, s{ST}, 2\ns_lshr_b32 s{ST+1}, s{S_I}, 3\ns_add_u32 s{S_P}, s{ST}, s{ST+1}")
        a(f"s_lshl_b32 s{ST}, s{S_XCD}, 9\nv_lshlrev_b32 v{V_L16}, 4, v1\nv_add_u32 v144, s{ST}, v{V_L16}")
        a("v_lshrrev_b32 v2, 4, v1\nv_xor_b32 v3, v4, v2\nv_lshlrev_b32 v3, 4, v3")
        a(f"s_lshl_b32 s{ST}, s{S_WAVE}, 14\nv_lshl_add_u32 v100, v5, 10, v3\nv_add_u32 v100, s{ST}, v100")
        a(f"v_xor_b32 v101, 64, v100\nv_add_u32 v101, {8192-1024}, v101")
        a("v_lshrrev_b32 v3, 1, v4\nv_and_b32 v2, 1, v2\nv_lshlrev_b32 v2, 1, v2\nv_xor_b32 v3, v3, v2\nv_lshlrev_b32 v3, 5, v3")
        a("v_and_b32 v2, 1, v4\nv_lshl_add_u32 v3, v2, 4, v3\nv_mul_u32_u24 v102, 3072, v5\nv_add_u32 v102, v102, v3\nv_xor_b32 v103, 32, v102")
        a("v_add_u32 v248, 24576, v102\nv_add_u32 v249, 24576, v103")
        a(f"s_lshl_b32 s{S_XOFF}, s{S_J}, 16")
        if 'rot' in self.exp: a(f"s_and_b32 s101, s{S_J}, 3")
        a(f"s_mul_i32 s{S_WOFF}, s{S_WAVE}, {16*3072}\ns_lshl_b32 s{ST}, s{S_P}, 7\ns_add_u32 s{S_WOFF}, s{S_WOFF}, s{ST}")
        a(f"s_lshl_b32 s{S_M0B}, s{S_WAVE}, 11\ns_mul_i32 s{S_M0W}, s{S_WAVE}, 6144\ns_add_u32 s{S_M0W}, s{S_M0W}, 8192")
        a("s_waitcnt lgkmcnt(0)")
        if self.stamps and 'dbgs' not in self.exp:
            a(f"v_mov_b32 v12, s{S_T}\nv_accvgpr_write_b32 a200, v12\nv_mov_b32 v12, 0")
            for k in range(201, 207): a(f"v_accvgpr_write_b32 a{k}, v12")
        a(J(self.srd(SRD_K, PTR+8, 2097152) + self.srd(SRD_V, PTR+10, 2097152) + self.srd(SRD_X, PTR+0, 2097152) + self.srd(SRD_W, PTR+2, 1572864)))
        Ln = a.label('nononce')
        a(f"s_or_b32 s{ST}, s2, s{S_WAVE}\ns_cmp_lg_u32 s{ST}, 0\ns_cbranch_scc1 {Ln}")
        a(J(self.srd(SRD_DBG, PTR+20, 256)))
        a(f"s_or_b32 s{S_T+1}, s{S_T+1}, 0x80000000")
        a(f"v_mov_b32 v14, s{S_T}\nv_mov_b32 v15, s{S_T+1}\nv_mov_b32 v2, 0\ns_mov_b64 exec, 1")
        a(f"buffer_store_dwordx2 v[14:15], v2, {DBG}, 0 offen sc1 ; @cond")
        a(f"s_mov_b64 exec, -1\n{Ln}:")
        K, V = S4(SRD_K), S4(SRD_V)
        for d, v, srd, off in ((28,140,K,0),(32,140,K,1024),(24,143,K,0),(20,142,K,0),(16,141,K,0),(36,140,V,0),(40,140,V,1024)):
            a(f"buffer_load_dwordx4 v[{d}:{d+3}], v{v}, {srd}, 0 offen offset:{off} {self.NT}; @kv")
        a(J(self.srd(SRD_SH, PTR+12, 4096)))
        a(f"s_mov_b32 m0, {WSH}\ns_mov_b32 exec_hi, 0")
        a(f"buffer_load_dwordx4 v144, {S4(SRD_SH)}, 0 offen lds ; @kv")
        a("s_mov_b32 exec_hi, -1")
        for g in self.dma_groups(0): a(J(g))
        a(f"s_lshr_b32 s{ST}, s{S_XCD}, 1\ns_lshl_b32 s{ST}, s{ST}, 9\ns_lshl_b32 s{ST+1}, s{S_I}, 4\ns_add_u32 s{ST}, s{ST}, s{ST+1}\ns_lshl_b32 s{ST+1}, s{S_WAVE}, 2\ns_add_u32 s{ST+4}, s{ST}, s{ST+1}\ns_lshl_b32 s{ST+4}, s{ST+4}, 10")
        a(f"v_lshlrev_b32 v145, 10, v5\nv_lshl_add_u32 v145, v4, 6, v145\nv_add_u32 v145, s{ST+4}, v145")
        a(f"s_lshl_b32 s{ST}, s{S_I}, 3\ns_lshl_b32 s{ST+1}, s{S_WAVE}, 1\ns_add_u32 s{ST}, s{ST}, s{ST+1}\ns_mul_i32 s{ST}, s{ST}, 3072\ns_and_b32 s{ST+1}, s{S_XCD}, 1\ns_lshl_b32 s{ST+1}, s{ST+1}, 9\ns_add_u32 s{ST}, s{ST}, s{ST+1}")
        a("v_subrev_u32 v7, 24, v1\nv_ashrrev_i32 v3, 31, v7\nv_and_b32 v6, 24, v3\nv_add_u32 v7, v7, v6\nv_not_b32 v3, v3\nv_and_b32 v3, 3072, v3")
        a(f"v_lshrrev_b32 v6, 3, v7\nv_lshl_add_u32 v3, v6, 10, v3\nv_and_b32 v7, 7, v7\nv_lshl_add_u32 v3, v7, 6, v3\nv_add_u32 v146, s{ST}, v3")
        a(f"s_mov_b32 exec_hi, 0xffff\nbuffer_load_dword v252, v146, {S4(SRD_W)}, 0 offen ; @pf\ns_mov_b32 exec_hi, 0\nbuffer_load_dword v252, v145, {S4(SRD_X)}, 0 offen ; @pf\ns_mov_b32 exec_hi, -1")
        self.stamp('issued')
        a(J(self.srd(SRD_WS, PTR+22, WS_SIZE) + self.srd(SRD_DBG, PTR+20, 256) + self.srd(SRD_Q, PTR+6, 2097152) + self.srd(SRD_WO, PTR+4, 524288) + self.srd(SRD_OUT, PTR+18, 4194304)))
        a(f"s_lshl_b32 s{ST}, s{S_XCD}, 7\ns_lshl_b32 s{ST+1}, s{S_I}, 2\ns_add_u32 s{ST}, s{ST}, s{ST+1}")
        a(f"s_load_dword s{S_D}, s[{PTR+16}:{PTR+17}], s{ST}")
        a(f"s_lshl_b32 s{ST}, s{S_XCD}, 6\ns_lshl_b32 s{ST+1}, s{S_I}, 1\ns_add_u32 s{ST}, s{ST}, s{ST+1}\ns_lshr_b32 s{ST+1}, s{S_WAVE}, 1\ns_add_u32 s{ST+3}, s{ST}, s{ST+1}\ns_lshl_b32 s{ST}, s{ST+3}, 12")
        a(f"s_add_u32 s{SRD_H}, s{PTR+14}, s{ST}\ns_addc_u32 s{SRD_H+1}, s{PTR+15}, 0\ns_mov_b32 s{SRD_H+2}, 4096\ns_mov_b32 s{SRD_H+3}, 0x20000")
        a(f"s_mov_b32 s{S_CH}, s{ST+3}\ns_and_b32 s{S_RHO}, s{S_WAVE}, 1")
        a(f"s_load_dwordx8 s[{S_HT}:{S_HT+7}], s[{SRD_H}:{SRD_H+1}], 4064")
        a(f"s_min_u32 s{S_NH}, s{S_J}, 4\ns_lshl_b32 s{S_HEAD}, s{S_P}, 2\ns_add_u32 s{S_HEAD}, s{S_HEAD}, s{S_WAVE}\ns_mov_b32 s{S_FB}, 0")
        a(f"s_mov_b32 s{S_SEL0}, 0x05040100\ns_mov_b32 s{S_SEL1}, 0x07060302")
        a("v_and_b32 v2, 31, v1\nv_lshrrev_b32 v3, 5, v1\nv_bfe_u32 v6, v2, 1, 3\nv_xor_b32 v3, v3, v6\nv_lshlrev_b32 v2, 7, v2")
        for kk in range(4):
            a(f"v_xor_b32 v6, {2*kk}, v3\nv_lshl_add_u32 v{104+kk}, v6, 4, v2\nv_add_u32 v{108+kk}, 0x10000, v{104+kk}")
        a("v_bfe_u32 v2, v1, 4, 1\nv_lshrrev_b32 v3, 5, v1\nv_bfe_u32 v6, v1, 2, 2")
        a("v_mul_u32_u24 v7, 3072, v3\nv_lshl_add_u32 v7, v6, 7, v7\nv_and_b32 v9, 3, v1\nv_lshl_add_u32 v7, v9, 3, v7")
        a(f"v_and_b32 v9, 2, v6\nv_xor_b32 v9, s{S_WAVE}, v9")
        a(f"v_lshl_add_u32 v113, v9, 5, v7\nv_add_u32 v113, {8192+2048}, v113")
        a("v_xor_b32 v9, v9, v2\nv_lshl_add_u32 v112, v9, 5, v7\nv_lshl_add_u32 v112, v2, 10, v112\nv_add_u32 v112, 8192, v112")
        a("v_add_u32 v114, 0x10000, v112\nv_add_u32 v115, 0x10000, v113")
        a(f"s_lshl_b32 s{ST}, s{S_WAVE}, 3\nv_add_u32 v2, s{ST}, v5\nv_sub_u32 v2, 31, v2")
        a("v_lshrrev_b32 v3, 2, v2\nv_xor_b32 v3, v3, v4\nv_lshlrev_b32 v3, 4, v3\nv_and_b32 v2, 3, v2\nv_lshl_add_u32 v3, v2, 2, v3\nv_lshl_add_u32 v3, v4, 10, v3")
        a(f"v_add_u32 v155, {TP}, v3\nv_lshlrev_b32 v153, 6, v4\nv_add_u32 v153, {WSH}, v153")
        a(f"s_lshl_b32 s{ST}, s{S_WAVE}, 1\nv_xor_b32 v156, s{ST}, v4\nv_lshlrev_b32 v156, 4, v156\nv_lshl_add_u32 v156, v5, 7, v156")
        a(f"s_lshl_b32 s{ST+1}, s{S_WAVE}, 11\ns_add_u32 s{ST+1}, s{ST+1}, {TP}\nv_add_u32 v156, s{ST+1}, v156\nv_xor_b32 v157, 16, v156")
        a(f"s_lshl_b32 s{ST}, s{S_XCD}, 6\ns_lshl_b32 s{ST+1}, s{S_WAVE}, 4\ns_add_u32 s{ST}, s{ST}, s{ST+1}\ns_lshl_b32 s{ST}, s{ST}, 12")
        a(f"s_lshl_b32 s{ST+1}, s{S_I}, 7\ns_sub_u32 s{ST}, s{ST}, s{ST+1}\ns_add_u32 s{ST}, s{ST}, {WS_KVT + 1984*2}")
        a(f"v_lshlrev_b32 v158, 12, v5\nv_lshl_add_u32 v158, v4, 4, v158\nv_add_u32 v158, s{ST}, v158\nv_add_u32 v159, {8*4096}, v158")

    def toep_valu(self, D, E, F, G):
        o = [f"v_alignbit_b32 v{E+i}, v{D[i+1]}, v{D[i]}, 16" for i in range(8)]
        o += [f"v_mov_b32 v{F+i}, v{D[i+1]}" for i in range(8)]
        o += [f"v_alignbit_b32 v{G+i}, v{D[i+2]}, v{D[i+1]}, 16" for i in range(8)]
        return o
    def toep_writes(self, D, E, F, G, vaddr):
        o = [f"ds_write_b128 v{vaddr}, v[{D[0]}:{D[0]+3}]", f"ds_write_b128 v{vaddr}, v[{D[4]}:{D[4]+3}] offset:16"]
        for r, R in ((1, E), (2, F), (3, G)):
            o += [f"ds_write_b128 v{vaddr}, v[{R}:{R+3}] offset:{r*TZC}", f"ds_write_b128 v{vaddr}, v[{R+4}:{R+7}] offset:{r*TZC+16}"]
        return o

    def pre(self):
        a = self.a
        for x in self.late_setup():
            if not x.startswith(';#'): a(x)
        a(J(self.flag_scalars()))
        a(J(self.scalar_dep()))
        a("s_waitcnt lgkmcnt(0)")
        pfB = ["s_mov_b32 exec_hi, 0", f"buffer_load_dword v252, v145, {S4(SRD_X)}, 0 offen offset:512 ; @pf", "s_mov_b32 exec_hi, 0xffff", f"s_mov_b32 s{ST+2}, {256*3072}", f"buffer_load_dword v252, v146, {S4(SRD_W)}, s{ST+2} offen ; @pf", "s_mov_b32 exec_hi, -1"]
        misc = [f"s_lshl_b32 s{ST+2}, s{S_RHO}, 11", f"v_lshlrev_b32 v2, 6, v1", "s_mov_b32 exec_hi, 0", f"buffer_load_dword v252, v2, {S4(SRD_H)}, s{ST+2} offen {self.NT}; @pf",
                ] + ([f"s_lshl_b32 s{ST+2}, s{S_I}, 4", f"s_lshl_b32 s{ST+3}, s{S_WAVE}, 2", f"s_add_u32 s{ST+2}, s{ST+2}, s{ST+3}", f"s_lshl_b32 s{ST+2}, s{ST+2}, 10", f"s_and_b32 s{ST+3}, s{S_XCD}, 1", f"s_lshl_b32 s{ST+3}, s{ST+3}, 9", f"s_add_u32 s{ST+2}, s{ST+2}, s{ST+3}",
                "v_lshrrev_b32 v2, 3, v1", "v_and_b32 v3, 7, v1", "v_lshlrev_b32 v2, 10, v2", "v_lshl_add_u32 v2, v3, 6, v2", f"buffer_load_dword v252, v2, {S4(SRD_WO)}, s{ST+2} offen ; @pf"] if 'wopf' in self.exp else []) + [
                "v_lshlrev_b32 v2, 20, v1", "s_mov_b32 exec_lo, 0x1fff", f"buffer_load_dword v252, v2, {WS}, 0 offen ; @pf", f"buffer_load_dword v252, v2, {S4(SRD_OUT)}, 0 offen ; @pf", "s_mov_b64 exec, -1"]
        if 'pfbsplit' in self.exp:
            a(J(pfB))
            self.misc_late = misc
        else:
            a(J(pfB + misc))
        self.stamp('shadowdone')
        a("s_waitcnt vmcnt(@kv)")
        self.stamp('predata')
        for i in range(4): a(f"ds_read_b128 v[{44+4*i}:{47+4*i}], v153 offset:{16*i}")
        seq = self.pre_valu()
        seq = seq[:12] + ["s_waitcnt lgkmcnt(0)"] + seq[12:]
        a(J(safe_interleave(seq, self.dma_groups(1), every=12)))
        for ch in range(8): a(f"ds_write_b32 v155, v{92+ch} offset:{ch*128}")
        a("s_waitcnt vmcnt(@dma0) lgkmcnt(0)\ns_barrier")
        self.stamp('stage0')
        a("ds_read_b128 v[16:19], v156\nds_read_b128 v[20:23], v157 offset:1024")
        self.qkv_reads(0, 0, 0)
        a(f"v_mov_b32 v3, 0\nbuffer_load_dwordx2 v[{V_T}:{V_T+1}], v3, {DBG}, 0 offen sc1 ; @nonce")
    def pre_valu(self):
        main = []
        for d in range(4):
            for par in range(2):
                sel = f"s{S_SEL1 if par else S_SEL0}"; ch = 2*d + par; o = 224 + 8*(ch % 3)
                r = lambda row: 16 + 4*(row+3) + d
                un = (lambda dst, src: f"v_lshlrev_b32 v{dst}, 16, v{src}") if par == 0 else (lambda dst, src: f"v_and_b32 v{dst}, 0xffff0000, v{src}")
                main.append([f"v_perm_b32 v{o}, v{r(-1)}, v{r(0)}, {sel}", f"v_perm_b32 v{o+1}, v{r(0)}, v{r(1)}, {sel}",
                             f"v_perm_b32 v{o+2}, v{r(-3)}, v{r(-2)}, {sel}", f"v_perm_b32 v{o+3}, v{r(-2)}, v{r(-1)}, {sel}",
                             un(o+4, 36+d), un(o+5, 40+d),
                             f"v_dot2_f32_bf16 v{o+6}, v{o}, v{44+2*ch}, 0", f"v_dot2_f32_bf16 v{o+7}, v{o+1}, v{44+2*ch}, 0",
                             f"v_dot2_f32_bf16 v{o+6}, v{o+2}, v{45+2*ch}, v{o+6}", f"v_dot2_f32_bf16 v{o+7}, v{o+3}, v{45+2*ch}, v{o+7}",
                             f"v_mul_f32 v{o+6}, v{o+6}, v{o+4}", f"v_mul_f32 v{o+7}, v{o+7}, v{o+5}", f"v_cvt_pk_bf16_f32 v{92+ch}, v{o+7}, v{o+6}"])
        seq = []
        for k in range(0, 8, 2):
            A, B = main[k], main[k+1]
            seq += A[:6] + B[:6] + A[6:10] + B[6:10] + A[10:12] + B[10:12] + [A[12], B[12]]
        return seq

    def qkv_reads(self, s, kk, st):
        a = self.a
        buf = s % 3; b = 60 + 16*st
        if buf < 2: xa, wqk, wv, base = 104+kk, 112, 113, buf*32768
        else:       xa, wqk, wv, base = 108+kk, 114, 115, 0
        a(f"ds_read_b128 v[{b}:{b+3}], v{xa} offset:{base}")
        a(f"ds_read_b64_tr_b16 v[{b+8}:{b+9}], v{wqk} offset:{base + kk*6144}")
        a(f"ds_read_b64_tr_b16 v[{b+10}:{b+11}], v{wqk} offset:{base + kk*6144 + 512}")
        a(f"ds_read_b128 v[{b+4}:{b+7}], v{xa} offset:{base + 4096}")
        a(f"ds_read_b64_tr_b16 v[{b+12}:{b+13}], v{wv} offset:{base + kk*6144}")
        a(f"ds_read_b64_tr_b16 v[{b+14}:{b+15}], v{wv} offset:{base + kk*6144 + 512}")
    def qkv_mfma(self, st, first=False):
        b = 60 + 16*st
        c = lambda r: "0" if first else f"v[{r}:{r+15}]"
        return [f"{MF32} v[160:175], v[{b+8}:{b+11}], v[{b}:{b+3}], {c(160)}", f"{MF32} v[176:191], v[{b+8}:{b+11}], v[{b+4}:{b+7}], {c(176)}",
                f"{MF32} v[192:207], v[{b}:{b+3}], v[{b+12}:{b+15}], {c(192)}", f"{MF32} v[208:223], v[{b+4}:{b+7}], v[{b+12}:{b+15}], {c(208)}"]
    def nonce_fix(self):
        a = self.a
        Lok = a.label('nonce_ok'); Lp = a.label('nonce_poll')
        a(f"v_readfirstlane_b32 s{S_T}, v{V_T}\nv_readfirstlane_b32 s{S_T+1}, v{V_T+1}\ns_nop 0")
        a(f"s_cmp_eq_u32 s{S_T+1}, 0\ns_cbranch_scc1 {Lp}\n{Lok}:")
        with Cap(a) as cap:
            a(f"{Lp}:\ns_mov_b32 s{S_TMO}, 0\n{Lp}_l:")
            a(f"v_mov_b32 v3, 0\nbuffer_load_dwordx2 v[{V_T}:{V_T+1}], v3, {DBG}, 0 offen sc1\ns_waitcnt vmcnt(0)")
            a(f"v_readfirstlane_b32 s{S_T}, v{V_T}\nv_readfirstlane_b32 s{S_T+1}, v{V_T+1}")
            a(f"s_add_u32 s{S_TMO}, s{S_TMO}, 1\ns_cmp_gt_u32 s{S_TMO}, 0x20000\ns_cbranch_scc1 {Lok}")
            a(f"s_cmp_eq_u32 s{S_T+1}, 0\ns_cbranch_scc1 {Lp}_l\ns_branch {Lok}")
        self.tail_blocks.append(cap.out)

    def late_setup(self):
        o = []
        A = lambda t: o.extend(split_instrs(t))
        A(f"v_cmp_eq_u32 vcc, 0, v1\nv_mov_b32 v2, {hex(OOB)}\nv_mov_b32 v3, 0\n;#g\nv_cndmask_b32 v{V_FL}, v2, v3, vcc")
        A(f"v_lshlrev_b32 v{V_PL}, {FS}, v1\nv_cmp_gt_u32 vcc, 32, v1\ns_nop 1\n;#g\nv_cndmask_b32 v{V_PL}, v2, v{V_PL}, vcc")
        A(f"s_lshl_b32 s{ST}, s{S_RHO}, 11\nv_lshlrev_b32 v138, 5, v1\nv_add_u32 v138, s{ST}, v138\nv_subrev_u32 v136, 32, v138\nv_subrev_u32 v137, 16, v138")
        A(f"s_lshr_b32 s{ST+1}, s{S_WAVE}, 1\ns_mul_i32 s{ST+2}, s{ST+1}, {4*TZC}\ns_add_u32 s{ST}, s{ST}, s{ST+2}\ns_add_u32 s{ST}, s{ST}, {TZ}\nv_lshlrev_b32 v132, 5, v1\nv_add_u32 v132, s{ST}, v132")
        A(f"s_add_u32 s{ST+2}, s{ST+2}, {TZ + 4096}\nv_mov_b32 v139, s{ST+2}")
        A(f"s_lshl_b32 s{S_UO}, s{S_CH}, 12\ns_lshl_b32 s{ST}, s{S_RHO}, 10\ns_add_u32 s{S_UO}, s{S_UO}, s{ST}\ns_add_u32 s{S_UO}, s{S_UO}, {WS_KVT}")
        A(f"s_mul_i32 s{ST+2}, s{ST+1}, {UC}\ns_add_u32 s{ST+2}, s{ST+2}, s{ST}\ns_add_u32 s{ST+2}, s{ST+2}, {U}\nv_add_u32 v127, s{ST+2}, v{V_L16}")
        A(f"v_mov_b32 v148, 0\nv_mov_b32 v149, 0\nv_mov_b32 v150, 0\nv_mov_b32 v151, 0")
        A(f"v_lshrrev_b32 v2, 5, v1\nv_mul_u32_u24 v2, {UC}, v2\nv_and_b32 v3, 31, v1\nv_lshl_add_u32 v2, v3, 4, v2\nv_add_u32 v152, {U+4096}, v2")
        A(f"v_and_b32 v4, 15, v1\nv_lshrrev_b32 v5, 4, v1\nv_add_u32 v2, 1, v4\nv_and_b32 v3, 3, v2\nv_lshrrev_b32 v2, 2, v2")
        A(f"v_mul_u32_u24 v{V_CA}, {TZC}, v3\nv_lshl_add_u32 v{V_CA}, v2, 3, v{V_CA}\nv_lshl_add_u32 v{V_CA}, v5, 4, v{V_CA}")
        A(f"s_lshr_b32 s{ST}, s{S_WAVE}, 1\ns_mul_i32 s{ST+1}, s{ST}, {4*TZC}\ns_lshl_b32 s{ST+2}, s{S_RHO}, 8\ns_add_u32 s{ST+1}, s{ST+1}, s{ST+2}\ns_add_u32 s{ST+1}, s{ST+1}, {TZ}\nv_add_u32 v{V_CA}, s{ST+1}, v{V_CA}")
        A(f"s_mul_i32 s{ST+1}, s{ST}, {UC}\ns_add_u32 s{ST+1}, s{ST+1}, s{ST+2}\ns_add_u32 s{ST+1}, s{ST+1}, {U+480}")
        A(f"v_lshlrev_b32 v{V_CB}, 4, v5\nv_lshlrev_b32 v2, 5, v4\nv_sub_u32 v{V_CB}, v{V_CB}, v2\nv_add_u32 v{V_CB}, s{ST+1}, v{V_CB}")
        A(f"v_lshrrev_b32 v2, 5, v1\nv_mul_u32_u24 v2, 17, v2\nv_and_b32 v3, 31, v1\nv_add_u32 v2, v2, v3\nv_lshlrev_b32 v{V_VV}, 4, v2")
        A(f"v_bfe_u32 v{V_OF}, v1, 4, 1\nv_lshlrev_b32 v{V_OF}, 14, v{V_OF}\nv_lshrrev_b32 v2, 5, v1\nv_lshl_add_u32 v{V_OF}, v2, 8, v{V_OF}\nv_and_b32 v2, 15, v1\nv_lshl_add_u32 v{V_OF}, v2, 4, v{V_OF}")
        A(f"s_lshl_b32 s{S_OFS}, s{S_J}, 16\ns_lshr_b32 s{ST+1}, s{S_HEAD}, 1\ns_lshl_b32 s{ST+1}, s{ST+1}, 10\ns_add_u32 s{S_OFS}, s{S_OFS}, s{ST+1}\ns_and_b32 s{ST+1}, s{S_HEAD}, 1\ns_lshl_b32 s{ST+1}, s{ST+1}, 9\ns_add_u32 s{S_OFS}, s{S_OFS}, s{ST+1}\ns_add_u32 s{S_OFS}, s{S_OFS}, {WS_OF}")
        A("v_mov_b32 v128, -1\nv_mov_b32 v129, -1\nv_mov_b32 v130, -1\nv_mov_b32 v131, -1")
        A(f"s_lshl_b32 s{S_NHM}, 1, s{S_NH}\ns_sub_u32 s{S_NHM}, s{S_NHM}, 1")
        A(f"s_lshl_b32 s{ST}, s{S_HEAD}, 6\ns_lshl_b32 s{ST+1}, s{S_J}, 1\ns_add_u32 s{ST}, s{ST}, s{ST+1}\ns_mul_i32 s{S_KVO}, s{ST}, {KVS}\ns_add_u32 s{S_KVO}, s{S_KVO}, {WS_KV}")
        A(f"s_lshl_b32 s{S_ZTO}, s{S_CH}, 12\ns_lshl_b32 s{ST}, s{S_RHO}, 11\ns_add_u32 s{S_ZTO}, s{S_ZTO}, s{ST}\ns_add_u32 s{S_ZTO}, s{S_ZTO}, {WS_ZT}")
        A(f"s_lshl_b32 s{ST}, s{S_XCD}, 6\ns_lshl_b32 s{ST+1}, s{S_WAVE}, 4\ns_add_u32 s{ST}, s{ST}, s{ST+1}\ns_lshl_b32 s{ST}, s{ST}, 12\ns_lshl_b32 s{ST+2}, s{S_I}, 7\ns_add_u32 s{ST}, s{ST}, s{ST+2}\ns_add_u32 s{S_ZLD}, s{ST}, {WS_ZT}")
        A(f"s_lshl_b32 s{ST}, s{S_I}, 6\ns_add_u32 s{ST}, s{ST}, s{ST+1}\ns_lshl_b32 s{ST+2}, s{S_XCD}, 7\ns_lshl_b32 s{S_QO}, s{ST}, 10\ns_add_u32 s{S_QO}, s{S_QO}, s{ST+2}\ns_lshl_b32 s{S_BOUT}, s{ST}, 11\ns_add_u32 s{S_BOUT}, s{S_BOUT}, s{ST+2}\ns_add_u32 s{S_BOUT}, s{S_BOUT}, 1024")
        A(f"s_lshl_b32 s{ST}, s{S_J}, 6\ns_add_u32 s{ST}, s{ST}, s{ST+1}\ns_lshl_b32 s{S_AOUT}, s{ST}, 11\ns_lshl_b32 s{ST+2}, s{S_P}, 7\ns_add_u32 s{S_AOUT}, s{S_AOUT}, s{ST+2}")
        A(f"s_lshl_b32 s{S_OFL}, s{S_J}, 2\ns_add_u32 s{S_OFL}, s{S_OFL}, s{S_WAVE}\ns_lshl_b32 s{S_OFL}, s{S_OFL}, 14\ns_add_u32 s{S_OFL}, s{S_OFL}, {WS_OF}")
        A(f"s_lshl_b32 s{S_WOO}, s{S_WAVE}, 17\ns_add_u32 s{S_WOO}, s{S_WOO}, s{ST+2}\ns_lshl_b32 s{S_WOM}, s{S_WAVE}, 14")
        return o
    def scalar_dep(self):
        o = ["s_waitcnt lgkmcnt(0)"]
        A = lambda t: o.extend(split_instrs(t))
        A(J([f"v_mov_b32 v{116+i}, s{S_HT+i}" for i in range(8)]) + "\nv_mov_b32 v124, 0\nv_mov_b32 v125, 0")
        A(J(self.toep_valu(list(range(116, 126)), 224, 232, 240)))
        o.append("ds_write_b128 v152, v[148:151]")
        o.append("s_mov_b64 exec, 1"); o.extend(self.toep_writes(list(range(116, 126)), 224, 232, 240, 139)); o.append("s_mov_b64 exec, -1")
        A(f"s_lshl_b32 s{ST}, s{S_D}, 16\ns_and_b32 s{ST+1}, s{S_D}, 0xffff0000\ns_cmp_lt_u32 s{S_WAVE}, 2\ns_cselect_b32 s{S_DV}, s{ST}, s{ST+1}")
        return o
    def flag_scalars(self):
        o = []
        A = lambda t: o.extend(split_instrs(t))
        A(f"s_lshl_b32 s{ST}, s{S_XCD}, 2\ns_add_u32 s{ST}, s{ST}, s{S_WAVE}\ns_lshl_b32 s{ST}, s{ST}, 5\ns_add_u32 s{ST}, s{ST}, s{S_I}\ns_lshl_b32 s{S_F1P}, s{ST}, {FS}")
        A(f"s_lshl_b32 s{ST}, s{S_XCD}, 2\ns_lshr_b32 s{ST+1}, s{S_I}, 3\ns_add_u32 s{ST}, s{ST}, s{ST+1}\ns_lshl_b32 s{S_PF1}, s{ST}, {5+FS}")
        A(f"s_lshl_b32 s{ST}, s{S_HEAD}, 5\ns_add_u32 s{ST}, s{ST}, s{S_J}\ns_lshl_b32 s{S_F2P}, s{ST}, {FS}\ns_add_u32 s{S_F2P}, s{S_F2P}, {WS_F2}\ns_lshl_b32 s{ST+1}, s{S_NH}, {FS}\ns_sub_u32 s{S_PF2}, s{S_F2P}, s{ST+1}")
        A(f"s_lshl_b32 s{ST}, s{S_J}, 5\ns_add_u32 s{ST+1}, s{ST}, s{S_HEAD}\ns_lshl_b32 s{S_F5P}, s{ST+1}, {FS}\ns_add_u32 s{S_F5P}, s{S_F5P}, {WS_F5}\ns_lshl_b32 s{S_PF5}, s{ST}, {FS}\ns_add_u32 s{S_PF5}, s{S_PF5}, {WS_F5}")
        A(f"s_lshl_b32 s{ST}, s{S_XCD}, 1\ns_add_u32 s{ST+1}, s{ST}, s{S_RHO}\ns_lshl_b32 s{ST+1}, s{ST+1}, 6\ns_and_b32 s{ST+2}, s{S_CH}, 63\ns_add_u32 s{ST+1}, s{ST+1}, s{ST+2}\ns_lshl_b32 s{S_F3P}, s{ST+1}, {FS}\ns_add_u32 s{S_F3P}, s{S_F3P}, {WS_F3}")
        A(f"s_lshr_b32 s{ST+1}, s{S_I}, 4\ns_add_u32 s{ST}, s{ST}, s{ST+1}\ns_lshl_b32 s{ST}, s{ST}, 6\ns_lshl_b32 s{ST+1}, s{S_WAVE}, 4\ns_add_u32 s{ST}, s{ST}, s{ST+1}\ns_lshl_b32 s{S_PF3}, s{ST}, {FS}\ns_add_u32 s{S_PF3}, s{S_PF3}, {WS_F3}")
        return o

    def qkv(self):
        a = self.a
        DA = list(range(116, 126)); H = S4(SRD_H)
        tzA = self.toep_valu(DA, 136, 24, 92)
        tzW = self.toep_writes(DA, 136, 24, 92, 132)
        pend = self.dma_groups(2); vfill = []
        def emit_mfma(st, first=False, nv=3):
            nonlocal pend
            for i, ins in enumerate(self.qkv_mfma(st, first)):
                a(ins)
                if i % 2 == 1 and pend: a(J(pend.pop(0)))
                for _ in range(nv):
                    if vfill: a(vfill.pop(0))
        def reads_wait(s, kk, st):
            self.qkv_reads(s, kk, st)
            extra = []
            if (s == 6 and kk >= 2) or (s == 7 and kk in (1, 2)): extra = [tzW.pop(0), tzW.pop(0)]
            for x in extra: a(x)
            a(f"s_waitcnt lgkmcnt({6+len(extra)})")
        for s in range(8):
            reads_wait(s, 1, 1)
            emit_mfma(0, first=(s == 0))
            reads_wait(s, 2, 0)
            emit_mfma(1)
            reads_wait(s, 3, 1)
            emit_mfma(0)
            if s == 0:
                while pend: a(J(pend.pop(0)))
                a(f"buffer_store_dwordx4 v[16:19], v158, {WS}, 0 offen sc1 ; @st0")
                a(f"buffer_store_dwordx4 v[20:23], v159, {WS}, 0 offen sc1 ; @st0")
            if s < 7:
                while pend: a(J(pend.pop(0)))
                a(f"s_waitcnt vmcnt(@dma{s+1}) lgkmcnt(0)")
                a("s_barrier")
                if s == 2:
                    self.nonce_fix()
                    a(self.flag(S_F1P))
                if s + 3 < 8: pend = self.dma_groups(s + 3)
                if s == 3:
                    hl = [f"buffer_load_dwordx4 v[116:119], v136, {H}, 0 offen {self.NT}; @h", f"buffer_load_dwordx4 v[120:123], v137, {H}, 0 offen {self.NT}; @h", f"buffer_load_dwordx2 v[124:125], v138, {H}, 0 offen {self.NT}; @h"]
                    d = pend
                    pend = [[hl[0]] + d[0], [hl[1]] + d[1], [hl[2]] + d[2], d[3], d[4], d[5], d[6], d[7]]
                if s == 5:
                    pend = [[self.poll_ld(S_PF1, 'pf1')],
                            [f"s_getpc_b64 s[{ST+4}:{ST+5}]", "L_tabpc:", f"s_add_u32 s{ST+4}, s{ST+4}, (L_masktab - L_tabpc)", f"s_addc_u32 s{ST+5}, s{ST+5}, 0", f"s_mov_b32 s{ST+6}, 6144", f"s_mov_b32 s{ST+7}, 0x20000",
                             f"buffer_load_dwordx4 v[{A_MD}:{A_MD+3}], v{V_L16}, s[{ST+4}:{ST+7}], 0 offen ; @md", f"buffer_load_dwordx4 v[{A_MD+4}:{A_MD+7}], v{V_L16}, s[{ST+4}:{ST+7}], 0 offen offset:1024 ; @md"],
                            [f"buffer_load_dwordx4 v[{A_MD+8}:{A_MD+11}], v{V_L16}, s[{ST+4}:{ST+7}], 0 offen offset:2048 ; @md", f"buffer_load_dwordx4 v[{A_MD+12}:{A_MD+15}], v{V_L16}, s[{ST+4}:{ST+7}], 0 offen offset:3072 ; @md"]]
                    vfill = list(tzA)
                if s == 6:
                    a("s_waitcnt vmcnt(@pf1)")
                    a(J(self.cmp_flags("-1"))); a(f"s_cselect_b32 s{S_SPEC}, 1, 0")
                    a(f"buffer_load_dwordx4 v[16:19], v{V_L16}, {WS}, s{S_UO} offen sc1 ; @u\nbuffer_load_dwordx4 v[20:23], v{V_L16}, {WS}, s{S_UO} offen offset:2048 sc1 ; @u")
                    pend = [[f"buffer_store_dwordx4 v[128:131], v{V_OF}, {WS}, s{S_OFS} offen sc1 ; @sent"], [f"s_add_u32 s{ST+2}, s{S_OFS}, 32768", f"buffer_store_dwordx4 v[128:131], v{V_OF}, {WS}, s{ST+2} offen sc1 ; @sent"]]
                self.qkv_reads(s+1, 0, 0)
                self.stamp(f'b{s}')
                emit_mfma(1, nv=(6 if s == 5 else 3))
            else:
                assert not tzW
                a("s_waitcnt vmcnt(@u)")
                Lu = a.label('u_slow'); Lub = a.label('u_back')
                a(f"s_cmp_lg_u32 s{S_SPEC}, 0\ns_cbranch_scc1 {Lu}\n{Lub}:")
                with Cap(a) as cap:
                    a(f"{Lu}:"); self.poll_check(S_PF1, "-1", 'f1', cnt=201)
                    a(f"buffer_load_dwordx4 v[16:19], v{V_L16}, {WS}, s{S_UO} offen sc1\nbuffer_load_dwordx4 v[20:23], v{V_L16}, {WS}, s{S_UO} offen offset:2048 sc1\ns_waitcnt vmcnt(0)\ns_branch {Lub}")
                self.tail_blocks.append(cap.out)
                a("ds_write_b128 v127, v[16:19]\nds_write_b128 v127, v[20:23] offset:2048")
                a("s_waitcnt lgkmcnt(0)\ns_barrier")
                self.stamp('b7')
                a(J(self.conv_reads_mixed_first()))
                emit_mfma(1)
        assert not vfill and not pend
        a("s_nop 3"); a(J(self.deferred)); a("s_nop 3")
        for g in self.conv_fillers():
            if g is None or g == 'WO': continue
            if isinstance(g, int): a("s_nop 7\ns_nop 4"); continue
            a(J(g))

    def conv_reads(self, st, n):
        A = 16 + 64*st; B = 48 + 64*st; o = []
        for i in range(8):
            o.append(f"ds_read_b128 v[{B+4*i}:{B+4*i+3}], v{V_CB} offset:{512*(7-i) + 64*n}")
            o.append(f"ds_read_b64 v[{A+4*i}:{A+4*i+1}], v{V_CA} offset:{512*i + 64*n}")
            o.append(f"ds_read_b64 v[{A+4*i+2}:{A+4*i+3}], v{V_CA} offset:{512*i + 64*n + 8}")
        return o
    def conv_reads_mixed_first(self):
        o = self.conv_reads(0, 0)
        self.deferred = [x for x in o if 'v[76:79]' in x]
        return [x for x in o if 'v[76:79]' not in x]
    def conv_mfmas(self, st, first):
        A = 16 + 64*st; B = 48 + 64*st; o = []
        for i in range(8):
            for t in range(i, 8):
                acc = CACC + 4*t
                c = "0" if (first and i == 0) else f"a[{acc}:{acc+3}]"
                o.append(f"{MF16} a[{acc}:{acc+3}], v[{A+4*i}:{A+4*i+3}], v[{B+4*(t-i)}:{B+4*(t-i)+3}], {c}")
        return o
    def Kf(self, t): return f"a[{4*t}:{4*t+3}]" if t < 8 else f"v[{232+4*(t-8)}:{235+4*(t-8)}]"
    def Vf(self, t, h): return f"a[{32+8*t+4*h}:{35+8*t+4*h}]" if t < 8 else f"v[{240+8*(t-8)+4*h}:{243+8*(t-8)+4*h}]"
    def maxreduce(self, src, dst, init=None):
        o = []
        if init is None: o.append(f"v_max3_f32 v{dst}, v{src}, v{src+1}, v{src+2}"); rest = list(range(src+3, src+16))
        else: rest = list(range(src, src+16))
        while len(rest) >= 2: o.append(f"v_max3_f32 v{dst}, v{dst}, v{rest[0]}, v{rest[1]}"); rest = rest[2:]
        if rest: o.append(f"v_max_f32 v{dst}, v{dst}, v{rest[0]}")
        return o
    def finish_max(self, m, b, bias, tmp):
        o = [[f"v_mov_b32 v{tmp}, v{m}", "s_nop 1", f"v_permlane32_swap_b32 v{m}, v{tmp}", "s_nop 1", f"v_max_f32 v{m}, v{m}, v{tmp}"]]
        if bias: o.append([f"v_add_f32 v{m}, {bias}, v{m}"])
        o.append([f"v_sub_f32 v{m}, 0, v{m}"])
        return o + [[f"v_mov_b32 v{A_CN[b]+r}, v{m}"] for r in range(16)]
    VM = ["s_mov_b32 exec_lo, 0x1ffff", "s_mov_b32 exec_hi, 0x1ffff"]
    def conv_fillers(self):
        F = []
        one = lambda l: F.extend([[x] for x in l])
        QF, MD, MK = A_QF, A_MD, A_MK
        F += [None]*3
        F.append([f"s_add_u32 s{ST+1}, s{S_KVO}, {KVS}"])
        for b in range(2): one([f"v_cvt_pk_bf16_f32 v{232+4*b+p}, v{160+16*b+8+2*p}, v{160+16*b+8+2*p+1}" for p in range(4)])
        F.append([f"buffer_store_dwordx4 v[232:235], v{V_L16}, {WS}, s{S_KVO} offen sc1 ; @kvst"])
        one([f"v_cvt_pk_bf16_f32 v{240+p}, v{192+2*p}, v{192+2*p+1}" for p in range(8)])
        F.append([f"buffer_store_dwordx4 v[236:239], v{V_L16}, {WS}, s{ST+1} offen sc1 ; @kvst"])
        one([f"v_cvt_pk_bf16_f32 v{248+p}, v{208+2*p}, v{208+2*p+1}" for p in range(8)])
        ones = lambda r0: ["s_mov_b32 exec_lo, 0x10000", "s_mov_b32 exec_hi, 0x10000"] + [f"v_mov_b32 v{r}, 0x3f803f80" for r in range(r0, r0+8)]
        F.append(ones(240) + self.VM + ["s_nop 0"] + [f"buffer_store_dwordx4 v[{240+4*h}:{243+4*h}], v{V_VV}, {WS}, s{S_KVO} offen offset:{1024+640*h} sc1 ; @kvst" for h in range(2)] + ["s_mov_b64 exec, -1"])
        F.append(None)
        F.append(ones(248) + self.VM + ["s_nop 0"] + [f"buffer_store_dwordx4 v[{248+4*h}:{251+4*h}], v{V_VV}, {WS}, s{ST+1} offen offset:{1024+640*h} sc1 ; @kvst" for h in range(2)] + ["s_mov_b64 exec, -1"])
        F.append([f"s_mov_b32 s{ST+3}, 4096", f"buffer_load_dwordx4 v[{MK}:{MK+3}], v{V_L16}, s[{ST+4}:{ST+7}], s{ST+3} offen ; @mk", f"buffer_load_dwordx4 v[{MK+4}:{MK+7}], v{V_L16}, s[{ST+4}:{ST+7}], s{ST+3} offen offset:1024 ; @mk"])
        F.append([f"s_mov_b32 s{ST+2}, {hex(f2u(QSCALE))}"])
        for b in range(2):
            one([f"v_mul_f32 v{160+16*b+r}, s{ST+2}, v{160+16*b+r}" for r in range(8)])
            one([f"v_cvt_pk_bf16_f32 v{224+4*b+p}, v{160+16*b+2*p}, v{160+16*b+2*p+1}" for p in range(4)])
        one(["v_lshrrev_b32 v2, 4, v1", "v_and_b32 v3, 7, v1", "v_lshrrev_b32 v6, 1, v3", "v_xor_b32 v6, v6, v2", "v_lshlrev_b32 v6, 5, v6", "v_and_b32 v3, 1, v3", "v_lshl_add_u32 v6, v3, 4, v6",
             "v_lshrrev_b32 v3, 3, v1", "v_lshl_add_u32 v176, v3, 10, v6", "v_add_u32 v177, 7168, v176", "v_add_u32 v178, 14336, v176", "v_add_u32 v179, 21504, v176"])
        F.append('WO')
        T = 208
        F.append([f"{MF32} v[{T}:{T+15}], {self.Kf(8)}, v[{QF[0]}:{QF[0]+3}], v[{MD}:{MD+15}]"]); F.append(13)
        one(self.maxreduce(T, 2))
        F.append([f"{MF32} v[{T}:{T+15}], {self.Kf(8)}, v[{QF[1]}:{QF[1]+3}], 0"])
        F.append([f"s_mov_b32 s{ST+2}, 0x42800000"])
        F += self.finish_max(2, 0, f"s{ST+2}", 3)
        one(self.maxreduce(T, 2))
        F.append([f"{MF32} v[{T}:{T+15}], {self.Kf(9)}, v[{QF[1]}:{QF[1]+3}], v[{MD}:{MD+15}]"]); F.append(13)
        one(self.maxreduce(T, 2, init=2))
        F += self.finish_max(2, 1, f"s{ST+2}", 3)
        return F
    def halo_groups(self, p):
        g = []
        for tau in (7-2*p, 6-2*p):
            off = (tau - 8) * KVS
            g.append([f"s_sub_u32 s{ST+6}, s{S_KVO}, {-off}", f"buffer_load_dwordx4 a[{4*tau}:{4*tau+3}], v{V_L16}, {WS}, s{ST+6} offen sc1 ; @pair{p}"])
            g.append([f"s_sub_u32 s{ST+6}, s{S_KVO}, {-off}"] + self.VM +
                     [f"buffer_load_dwordx4 a[{32+8*tau}:{35+8*tau}], v{V_VV}, {WS}, s{ST+6} offen offset:1024 sc1 ; @pair{p}",
                      f"buffer_load_dwordx4 a[{36+8*tau}:{39+8*tau}], v{V_VV}, {WS}, s{ST+6} offen offset:1664 sc1 ; @pair{p}", "s_mov_b64 exec, -1"])
        return g
    def conv(self):
        a = self.a
        wo = []
        for n in range(16):
            pre = [f"s_add_u32 m0, s{S_WOM}, {(n//4)*4096}", f"s_add_u32 s{ST+9}, s{S_WOO}, {(n//4)*32768}"] if n % 4 == 0 else []
            wo.append(pre + [f"buffer_load_dwordx4 v{176 + n%4}, {S4(SRD_WO)}, s{ST+9} offen offset:{(n%4)*1024} lds ; @wo"])
        a("s_waitcnt lgkmcnt(0)")
        self.stamp('convstart')
        nwo = 0
        GPOST = next((int(x[2:]) for x in self.exp if x.startswith('gp')), 40)
        GPOLL = next((int(x[2:]) for x in self.exp if x.startswith('gq')), 110)
        for n in range(4):
            m = self.conv_mfmas(n & 1, n == 0)
            rd = self.conv_reads((n+1) & 1, n+1) if n < 3 else []
            for i, ins in enumerate(m):
                gi = 36*n + i
                a(ins)
                if rd: a(rd.pop(0))
                if gi % 6 == 3 and nwo < 16 and 'wolate' not in self.exp: a(J(wo[nwo])); nwo += 1
                if gi == GPOST: a("s_waitcnt vmcnt(@kvst)"); a(self.flag(S_F2P, 'f2f')); a(self.flag(S_F5P, 'f5f'))
                if gi == GPOLL: a(self.poll_ld(S_PF2, 'pf2', 218))
            if n < 3: a("s_waitcnt lgkmcnt(0)")
        assert nwo == 16 or 'wolate' in self.exp
        self.wo_groups = wo
        self.stamp('convmfma')
        a("s_waitcnt vmcnt(@pf2)")
        self.poll_check(S_PF2, f"s{S_NHM}", 'f2', vt=218, cnt=202)
        self.stamp('f2seen')
        for g in self.halo_groups(0): a(J(g))
        with Cap(a) as cap: self.conv_epilogue()
        body = cap.out
        out = []
        for x in body:
            if x.startswith('s_cmp_lg_u32 s71'): out.append(';#noint')
            out.append(x)
            if x.startswith('L_rhojoin'): out.append(';#int')
        a(J(safe_interleave(out, self.halo_groups(1), every=14, start=10)))
    def conv_epilogue(self):
        a = self.a
        Lr1 = a.label('rho1'); Lj = a.label('rhojoin')
        a(f"s_lshl_b32 s{ST}, s{S_WAVE}, 12\ns_add_u32 s{ST}, s{ST}, {EX}\nv_add_u32 v5, s{ST}, v{V_L16}\nv_xor_b32 v6, 0x1000, v5")
        a(f"s_cmp_lg_u32 s{S_RHO}, 0\ns_cbranch_scc1 {Lr1}")
        for t in range(4): a(f"ds_write_b128 v5, a[{CACC+16+4*t}:{CACC+19+4*t}] offset:{1024*t}")
        for r in range(16): a(f"v_accvgpr_read_b32 v{32+r}, a{CACC+r}")
        a(f"s_branch {Lj}\n{Lr1}:")
        for t in range(4): a(f"ds_write_b128 v5, a[{CACC+4*t}:{CACC+4*t+3}] offset:{1024*t}")
        for r in range(16): a(f"v_accvgpr_read_b32 v{32+r}, a{CACC+16+r}")
        a(f"{Lj}:")
        a(f"s_lshr_b32 s{ST}, s{S_WAVE}, 1\ns_mul_i32 s{ST}, s{ST}, {UC}\ns_lshl_b32 s{ST+2}, s{S_RHO}, 11\ns_sub_u32 s{ST}, s{ST}, s{ST+2}\ns_add_u32 s{ST}, s{ST}, {U + 4088 - 1536}")
        a(f"v_and_b32 v2, 15, v1\nv_lshrrev_b32 v3, 4, v1\nv_lshlrev_b32 v2, 5, v2\nv_lshl_add_u32 v2, v3, 3, v2\nv_sub_u32 v3, s{ST}, v2")
        for tl in range(4): a(f"ds_read_b64 v[{48+2*tl}:{49+2*tl}], v3 offset:{512*(3-tl)}")
        a(f"s_lshl_b32 s{ST+1}, s{S_WAVE}, 11\ns_add_u32 s{ST+1}, s{ST+1}, {TP}\nv_add_u32 v2, s{ST+1}, v2\nv_add_u32 v3, s{ST+1}, v{V_L16}")
        a("s_waitcnt lgkmcnt(0)\ns_barrier")
        for t in range(4): a(f"ds_read_b128 v[{16+4*t}:{19+4*t}], v6 offset:{1024*t}")
        for tl in range(4):
            lo, hi = 48+2*tl, 49+2*tl
            a(f"v_and_b32 v56, 0xffff0000, v{hi}\nv_lshlrev_b32 v57, 16, v{hi}\nv_and_b32 v58, 0xffff0000, v{lo}\nv_lshlrev_b32 v59, 16, v{lo}")
            for r in range(4): a(f"v_fmac_f32 v{32+4*tl+r}, s{S_DV}, v{56+r}")
        a("s_waitcnt lgkmcnt(0)")
        for tl in range(4):
            acc = 32 + 4*tl; px = 16 + 4*tl
            for r in range(4): a(f"v_add_f32 v{acc+r}, v{acc+r}, v{px+r}")
            a(f"v_cvt_pk_bf16_f32 v{60+2*tl}, v{acc}, v{acc+1}\nv_cvt_pk_bf16_f32 v{61+2*tl}, v{acc+2}, v{acc+3}")
            a(f"ds_write_b64 v2, v[{60+2*tl}:{61+2*tl}] offset:{512*tl}")
        a("s_waitcnt lgkmcnt(0)")
        a("ds_read_b128 v[208:211], v3\nds_read_b128 v[212:215], v3 offset:1024")

    def attention(self):
        a = self.a
        S, P, CN, O, MD, MK, QF = A_S, A_P, A_CN, A_O, A_MD, A_MK, A_QF
        Kf, Vf = self.Kf, self.Vf
        items = [(0, 8, 'D'), (1, 9, 'D'), (1, 8, None)]
        pairs = [[(0,7,None),(1,7,None),(0,6,None),(1,6,None)], [(0,5,None),(1,5,None),(0,4,None),(1,4,None)],
                 [(0,3,None),(1,3,None),(0,2,None),(1,2,None)], [(0,1,None),(1,1,'F'),(0,0,'F')]]
        allitems = items + [x for p in pairs for x in p]
        def smfma(n):
            b, t, m = allitems[n]
            return f"{MF32} v[{S[n&1]}:{S[n&1]+15}], {Kf(t)}, v[{QF[b]}:{QF[b]+3}], v[{CN[b]}:{CN[b]+15}]"
        a("s_waitcnt lgkmcnt(0)")
        a(f"buffer_store_dwordx4 v[208:211], v{V_L16}, {WS}, s{S_ZTO} offen sc1 ; @zst")
        a(f"buffer_store_dwordx4 v[212:215], v{V_L16}, {WS}, s{S_ZTO} offen offset:1024 sc1 ; @zst")
        Lmain = a.label('attn_main'); Ldone = a.label('attn_done'); Lfb = a.label('attn_fallback'); Lok = a.label('attn_ok'); Lj0 = a.label('attn_j0')
        self.stamp('attnstart')
        a(f"{Lmain}:")
        first_pv = {0: True, 1: True}
        pair_start = {}; n = len(items)
        for pi, p in enumerate(pairs): pair_start[n] = pi; n += len(p)
        late = {0: self.halo_groups(2)[:2], 1: self.halo_groups(2)[2:], 3: self.halo_groups(3)[:2], 4: self.halo_groups(3)[2:],
                2: [[f"buffer_load_dwordx4 v[{self.QR}:{self.QR+3}], v222, {S4(SRD_Q)}, s{S_QO} offen {self.NT}; @q"], [f"buffer_load_dwordx4 v[{self.QR+4}:{self.QR+7}], v222, {S4(SRD_Q)}, s{S_QO} offen offset:16 {self.NT}; @q"]],
                15: [[self.poll_ld(S_PF3, 'pf3', 218)], [self.poll_ld(S_PF5, 'pf5', 220)]]}
        if 'wolate' in self.exp:
            w = self.wo_groups
            for k, it in enumerate(range(5, 13)):
                late[it] = late.get(it, []) + [w[2*k], w[2*k+1]]
        if 'f5early' in self.exp:
            late[15] = [[self.poll_ld(S_PF3, 'pf3', 218)]]
            late[5] = [[self.poll_ld(S_PF5, 'pf5', 220)]]
        if 'f3early' in self.exp:
            late[13] = late[15]; del late[15]
        a(smfma(0))
        a("v_and_b32 v4, 15, v1\nv_lshrrev_b32 v5, 4, v1\nv_lshlrev_b32 v4, 10, v4\nv_lshl_add_u32 v222, v5, 5, v4")
        a(f"v_mov_b32 v218, 0\nv_mov_b32 v219, 0\nv_mov_b32 v220, 0\nv_mov_b32 v221, 0")
        a("v_lshrrev_b32 v4, 3, v1\nv_and_b32 v5, 7, v1\nv_lshlrev_b32 v223, 12, v4\nv_lshl_add_u32 v223, v5, 4, v223")
        pvp = []; N = len(allitems)
        for n, (b, t, m) in enumerate(allitems):
            s = S[n & 1]; p = P[n & 1]; nxt = n + 1
            lg = list(late.get(n, []))
            ex = lambda r0, r1: [a(f"v_exp_f32 v{s+r}, v{s+r}") for r in range(r0, r1)]
            ex(0, 2)
            if pvp: a(pvp[0])
            ex(2, 5)
            if pvp: a(pvp[1])
            pvp = []
            if lg: a(J(lg.pop(0)))
            ex(5, 9)
            if nxt < N:
                if nxt in pair_start:
                    pi = pair_start[nxt]
                    a(f"s_waitcnt vmcnt(@pair{pi})" if pi != 1 else "s_waitcnt vmcnt(@zst)")
                    if pi == 1: a(self.flag(S_F3P))
                a(smfma(nxt))
            ex(9, 13)
            if lg: a(J(lg.pop(0)))
            ex(13, 16)
            for r in range(8): a(f"v_cvt_pk_bf16_f32 v{p+r}, v{s+2*r}, v{s+2*r+1}")
            if m == 'D':
                for r in range(8): a(f"v_and_b32 v{p+r}, v{MK+r}, v{p+r}")
            elif m == 'F':
                for r in range(8): a(f"v_bfi_b32 v{p+r}, v{MK+r}, 0, v{p+r}")
            c = "0" if first_pv[b] else f"v[{O[b]}:{O[b]+15}]"
            first_pv[b] = False
            pv = [f"{MF32} v[{O[b]}:{O[b]+15}], {Vf(t,0)}, v[{p}:{p+3}], {c}", f"{MF32} v[{O[b]}:{O[b]+15}], {Vf(t,1)}, v[{p+4}:{p+7}], v[{O[b]}:{O[b]+15}]"]
            if nxt in pair_start or nxt == N:
                a("s_nop 1"); a(pv[0]); a(pv[1])
                if nxt in pair_start:
                    pi = pair_start[nxt]
                    a(f"s_cmp_le_u32 s{S_NH}, {pi}\ns_cbranch_scc1 {Lj0 if pi == 0 else Ldone}")
            else: pvp = pv
        a(f"{Ldone}:")
        self.stamp('attndone')
        a("s_nop 7\ns_nop 3")
        for b in range(2): a(f"v_mov_b32 v{2+b}, v{O[b]+8}\nv_mov_b32 v4, v{O[b]+8}\ns_nop 1\nv_permlane32_swap_b32 v{2+b}, v4")
        a(f"s_mov_b32 s{ST}, 0x71800000")
        a(f"v_max_f32 v4, v2, v3\ns_nop 0\nv_cmp_gt_f32 vcc, s{ST}, v4")
        a(f"s_nop 3\ns_mov_b64 s[{ST+2}:{ST+3}], vcc\nv_cmp_o_f32 vcc, v2, v3\ns_nop 4\ns_and_b64 s[{ST+2}:{ST+3}], s[{ST+2}:{ST+3}], vcc")
        a(f"s_cmp_lg_u32 s{S_FB}, 0\ns_cbranch_scc1 {Lok}")
        a(f"s_cmp_eq_u64 s[{ST+2}:{ST+3}], -1\ns_cbranch_scc0 {Lfb}\n{Lok}:")
        with Cap(a) as cap:
            a(f"{Lj0}:")
            a("s_waitcnt vmcnt(0)"); a(self.flag(S_F3P)); a(f"s_branch {Ldone}")
            a(f"{Lfb}:")
            a(f"s_mov_b32 s{ST}, {hex(NEG)}")
            for r in range(16): a(f"v_sub_f32 v{128+r}, s{ST}, v{MD+r}")
            a(f"v_mov_b32 v2, s{ST}\nv_mov_b32 v3, s{ST}\ns_waitcnt vmcnt(0)")
            Lf = a.label('fb_done')
            for (b, t, m) in sorted(allitems, key=lambda x: -x[1]):
                if t < 8 and (t % 2 == 1) and b == 0: a(f"s_cmp_le_u32 s{S_NH}, {(7-t)//2}\ns_cbranch_scc1 {Lf}")
                c = {None: "0", 'D': f"v[{MD}:{MD+15}]", 'F': "v[128:143]"}[m]
                a(f"{MF32} v[16:31], {Kf(t)}, v[{QF[b]}:{QF[b]+3}], {c}\ns_nop 7\ns_nop 3")
                a(J(self.maxreduce(16, 2+b, init=2+b))); a("s_nop 7")
            a(f"{Lf}:")
            for g in self.finish_max(2, 0, None, 4) + self.finish_max(3, 1, None, 4): a(J(g))
            a(f"s_mov_b32 s{S_FB}, 1\ns_branch {Lmain}")
        self.tail_blocks.append(cap.out)

    def tail(self):
        a = self.a
        O = A_O
        if 'wolate' in self.exp:
            Lw = a.label('wo_done')
            a(f"s_cmp_ge_u32 s{S_NH}, 3\ns_cbranch_scc1 {Lw}")
            for g in self.wo_groups: a(J([x.replace('; @wo', '; @cond') for x in g]))
            a(f"s_waitcnt vmcnt(0)\n{Lw}:")
        a("v_rcp_f32 v2, v2\nv_rcp_f32 v3, v3")
        for b in range(2):
            for r in range(8): a(f"v_mul_f32 v{O[b]+r}, v{O[b]+r}, v{2+b}")
            for p in range(4): a(f"v_cvt_pk_bf16_f32 v{16+4*b+p}, v{O[b]+2*p}, v{O[b]+2*p+1}")
            if b == 1: a(f"s_add_u32 s{ST+1}, s{S_OFS}, 32768")
            if b == 0 and 'zfirst' in self.exp: continue
            if b == 1 and 'zfirst' in self.exp: continue
            a(f"buffer_store_dwordx4 v[{16+4*b}:{19+4*b}], v{V_OF}, {WS}, s{S_OFS if b == 0 else ST+1} offen sc1 ; @ost")
        zf = 'zfirst' in self.exp
        a("s_waitcnt vmcnt(0)" if zf else "s_waitcnt vmcnt(2)")
        self.poll_check(S_PF3, "0xffff", 'f3', vt=218, cnt=203)
        a(f"s_add_u32 s{ST+6}, s{S_ZLD}, {8*4096}")
        a(f"buffer_load_dwordx4 v[64:67], v223, {WS}, s{S_ZLD} offen sc1 ; @z")
        a(f"buffer_load_dwordx4 v[68:71], v223, {WS}, s{ST+6} offen sc1 ; @z")
        if zf:
            a(f"buffer_store_dwordx4 v[16:19], v{V_OF}, {WS}, s{S_OFS} offen sc1 ; @ost")
            a(f"buffer_store_dwordx4 v[20:23], v{V_OF}, {WS}, s{ST+1} offen sc1 ; @ost")
        self.stamp('ostored')
        self.poll_check(S_PF5, "-1", 'f5', vt=220, cnt=204)
        a(f"s_lshl_b32 s{ST}, s{S_WAVE}, 11\ns_add_u32 s{ST}, s{ST}, {TP}\nv_add_u32 v25, s{ST}, v{V_L16}")
        a(f"v_lshrrev_b32 v6, 4, v1\nv_bfe_u32 v3, v1, 2, 2\nv_lshl_add_u32 v4, v6, 4, v3\nv_lshlrev_b32 v4, 7, v4\nv_and_b32 v5, 3, v1\nv_lshl_add_u32 v4, v5, 3, v4\ns_lshl_b32 s{ST}, s{S_WAVE}, 5\ns_add_u32 s{ST}, s{ST}, {TP}\nv_add_u32 v26, s{ST}, v4")
        a(f"v_and_b32 v4, 15, v1\nv_lshlrev_b32 v4, 11, v4\nv_lshl_add_u32 v27, v6, 5, v4")
        for i in range(8): a(f"v_lshlrev_b32 v{32+2*i}, 16, v{self.QR+i}\nv_and_b32 v{33+2*i}, 0xffff0000, v{self.QR+i}")
        a("v_lshrrev_b32 v2, 5, v1\nv_bfe_u32 v4, v1, 4, 1\nv_lshlrev_b32 v6, 4, v2\nv_lshl_add_u32 v6, v4, 2, v6\nv_add_u32 v6, v6, v3\nv_lshlrev_b32 v6, 7, v6\nv_lshl_add_u32 v6, v5, 3, v6")
        a("v_lshrrev_b32 v3, 1, v3\nv_lshl_add_u32 v3, v4, 1, v3")
        for t in range(4): a(f"v_xor_b32 v5, {t}, v3\nv_lshl_add_u32 v{84+t}, v5, 5, v6")
        a("v_and_b32 v5, 15, v1\nv_lshlrev_b32 v30, 11, v5\nv_lshl_add_u32 v30, v4, 5, v30\nv_lshl_add_u32 v30, v2, 4, v30")
        a("s_waitcnt vmcnt(@z)")
        a("ds_write_b128 v25, v[64:67]\nds_write_b128 v25, v[68:71] offset:1024")
        a("s_waitcnt lgkmcnt(0)\ns_barrier")
        self.stamp('zlds')
        for n in range(4): a(f"ds_read_b64_tr_b16 v[{48+2*n}:{49+2*n}], v26 offset:{512*n}")
        OF = 96
        def ofld(m, tag=True, force=False):
            pre = [f"s_add_u32 s{ST+6}, s{S_OFL}, {(m//4)*4096}"] if (m % 4 == 0 or force) else []
            return pre + [f"buffer_load_dwordx4 v[{OF+4*m}:{OF+4*m+3}], v{V_L16}, {WS}, s{ST+6} offen offset:{1024*(m%4)} sc1" + (f" ; @of{m}" if tag else " ; @cond")]
        a("s_waitcnt lgkmcnt(0)")
        comp = []
        for i in range(8): comp += [f"v_lshlrev_b32 v{64+2*i}, 16, v{48+i}", f"v_and_b32 v{65+2*i}, 0xffff0000, v{48+i}"]
        comp += [f"v_mul_f32 v{32+i}, v{32+i}, v{64+i}" for i in range(16)]
        comp += [f"v_cvt_pk_bf16_f32 v{16+i}, v{32+2*i}, v{33+2*i}" for i in range(8)]
        a(J(interleave(comp, [ofld(m) for m in range(16)], every=3)))
        a(f"buffer_store_dwordx4 v[16:19], v27, {S4(SRD_OUT)}, s{S_BOUT} offen{self.OUTF} ; @bst")
        a(f"buffer_store_dwordx4 v[20:23], v27, {S4(SRD_OUT)}, s{S_BOUT} offen offset:16{self.OUTF} ; @bst")
        self.stamp('ofissued')
        def reads(m, st): return [f"ds_read_b64_tr_b16 v[{32+16*st+4*t+2*e}:{33+16*st+4*t+2*e}], v{84+t} offset:{m*4096 + e*1024}" for t in range(4) for e in range(2)]
        a(J(reads(0, 0)))
        a(f"s_mov_b32 s{S_TMO}, 0")
        Lrl = [a.label(f'of_reload{k}') for k in range(4)]
        for m in range(16):
            st = m & 1; r = OF + 4*m
            Lc = a.label(f'ofchk{m}'); Lk = a.label(f'ofok{m}')
            a(f"s_waitcnt vmcnt(@of{m})")
            a(f"{Lc}:")
            a(f"v_max3_u32 v31, v{r}, v{r+1}, v{r+2}\nv_max_u32 v31, v31, v{r+3}\nv_cmp_eq_u32 vcc, -1, v31")
            if m < 15: a(J(reads(m+1, st ^ 1)))
            else: a("s_nop 3")
            a(f"s_cbranch_vccnz {Lc}_r\n{Lk}:")
            a("s_waitcnt lgkmcnt(8)" if m < 15 else "s_waitcnt lgkmcnt(0)")
            for t in range(4):
                c = "0" if m == 0 else f"v[{64+4*t}:{67+4*t}]"
                a(f"{MF16} v[{64+4*t}:{67+4*t}], v[{32+16*st+4*t}:{35+16*st+4*t}], v[{r}:{r+3}], {c}")
            with Cap(a) as cap:
                a(f"{Lc}_r:")
                a(f"s_call_b64 s[30:31], {Lrl[m//4]}")
                a(f"s_cbranch_scc1 {Lk}")
                a(f"v_max3_u32 v31, v{r}, v{r+1}, v{r+2}\nv_max_u32 v31, v31, v{r+3}\nv_cmp_eq_u32 vcc, -1, v31\ns_nop 3\ns_cbranch_vccnz {Lc}_r\ns_branch {Lk}")
            self.tail_blocks.append(cap.out)
        with Cap(a) as cap:
            for k in range(4):
                a(f"{Lrl[k]}:")
                if self.SLEEP: a(f"s_sleep {self.SLEEP}")
                for m in range(4*k, 16): a(J(ofld(m, False)))
                a("s_waitcnt vmcnt(0)")
                a(f"s_add_u32 s{S_TMO}, s{S_TMO}, 1\ns_cmp_gt_u32 s{S_TMO}, 0x8000\ns_setpc_b64 s[30:31]")
        self.tail_blocks.append(cap.out)
        self.count(206)
        if self.stamps and 'dbgs' not in self.exp: a(f"v_mov_b32 v253, s{S_FB}\nv_accvgpr_write_b32 a201, v253")
        a("s_nop 7")
        for t in range(4): a(f"v_cvt_pk_bf16_f32 v{88+2*t}, v{64+4*t}, v{65+4*t}\nv_cvt_pk_bf16_f32 v{89+2*t}, v{66+4*t}, v{67+4*t}")
        a("s_nop 1\nv_permlane16_swap_b32 v88, v90\nv_permlane16_swap_b32 v89, v91\nv_permlane16_swap_b32 v92, v94\nv_permlane16_swap_b32 v93, v95\ns_nop 1")
        a(f"buffer_store_dwordx4 v[88:91], v30, {S4(SRD_OUT)}, s{S_AOUT} offen{self.OUTF}")
        a(f"buffer_store_dwordx4 v[92:95], v30, {S4(SRD_OUT)}, s{S_AOUT} offen offset:64{self.OUTF}")
        self.stamp('end')

    def mask_table(self):
        rows = []
        for blk in range(6):
            for l in range(64):
                q = l & 31; hi = l >> 5; vals = []
                for e in range(4):
                    r = 4*blk + e
                    if r < 16:
                        key = 8*(r // 4) + 4*hi + (r % 4)
                        vals.append(0 if key <= q else NEG)
                    else:
                        p = r - 16; k = 8*(p // 2) + 4*hi + 2*(p % 2)
                        vals.append((0xffff if k <= q else 0) | (0xffff0000 if k + 1 <= q else 0))
                rows.append(".long " + ", ".join(hex(v) for v in vals))
        return rows

    def build(self):
        a = self.a
        self.startup(); self.pre(); self.qkv(); self.conv(); self.attention(); self.tail()
        self.dump_stamps()
        a("L_end:\ns_endpgm")
        a.lines = resolve_vmcnt(a.lines)
        for blk in self.tail_blocks: a.lines += blk
        probs = check_hazards(a.lines)
        for p in probs[:12]: print(p, file=sys.stderr)
        a(".p2align 6\nL_masktab:")
        a.lines += self.mask_table()
        a("L_codeend:")
        hdr = open('cdna_kernels/' + NAME + '.s.ref').read().split('\n')
        cm = [l for l in hdr if l.startswith(';') and '@launch' not in l and 'Override' not in l and 'grid=ceil' not in l][:13]
        head = J(cm) + f"\n; @launch grid=(256,1,1) block=(256,1,1) lds={LDS_BYTES}\n"
        head += f'.amdgcn_target "amdgcn-amd-amdhsa--gfx950"\n.text\n.globl {NAME}_kernel\n.p2align 8\n.type {NAME}_kernel,@function\n{NAME}_kernel:\n'
        tail = f'''.section .rodata,"a"
.p2align 6
.amdhsa_kernel {NAME}_kernel
  .amdhsa_next_free_vgpr 512
  .amdhsa_next_free_sgpr 102
  .amdhsa_accum_offset 256
  .amdhsa_group_segment_fixed_size 0
  .amdhsa_kernarg_size 96
  .amdhsa_user_sgpr_count 2
  .amdhsa_user_sgpr_kernarg_segment_ptr 1
  .amdhsa_system_sgpr_workgroup_id_x 1
.end_amdhsa_kernel
'''
        return head + a.text() + tail, len(probs), self.stamp_slots

if __name__ == '__main__':
    ap = argparse.ArgumentParser()
    ap.add_argument('-o', default='cdna_kernels/' + NAME + '.s')
    ap.add_argument('--stamps', default=''); ap.add_argument('--exp', default='')
    args = ap.parse_args()
    g = Gen(stamps=[x for x in args.stamps.split(',') if x], exp=args.exp)
    txt, np_, slots = g.build()
    open(args.o, 'w').write(txt)
    print('wrote', args.o, 'lines', txt.count('\n'), 'hazards', np_, 'stamps', slots)
```

```python
import sys, argparse, struct
from asmlib import *

NAME = "concat_heads__sliding_block__ssm_conv_h3__prompt"
import os
FS = int(os.environ.get('FS', 4))
WS_F1, WS_F2, WS_F3, WS_F5 = 0x00000, 0x20000, 0x40000, 0x60000
WS_KVT = 0x100000; WS_ZT = 0x300000; WS_KV = 0x500000; WS_OF = 0xA00000
KVS = 2304
WS_STAMP = 0xC00000; WS_SIZE = 0xC40000
TZ = 98304; TZC = 4160
U = TZ + 8*TZC; UC = 4608
TP = U + 2*UC
WSH = TP + 8192
LDS_BYTES = WSH + 1024
EX = 65536
S_WAVE, S_XCD, S_I, S_J, S_P = 3, 4, 5, 6, 7
SRD_X, SRD_W, SRD_K, SRD_V, SRD_Q, SRD_H, SRD_WO, SRD_OUT, SRD_WS, SRD_DBG, SRD_SH = 8,12,16,20,24,28,32,36,40,44,48
S_T = 52; S_D = 54; S_TMO = 55
PTR = 56
S_HT = 72
S_XOFF, S_WOFF, S_M0B, S_NH = 80, 81, 82, 83
ST = 84
S_FB = 94; S_HEAD = 95
S_SEL0, S_SEL1 = 96, 97
S_M0W = 98; S_OFS = 99
S_F1P, S_F2P, S_F5P, S_F3P, S_PF1, S_PF2, S_PF3, S_PF5 = 16, 17, 18, 19, 20, 21, 22, 23
S_KVO, S_ZTO, S_ZLD, S_BOUT, S_AOUT, S_OFL, S_QO, S_WOO, S_WOM, S_UO, S_NHM, S_DV = 56, 57, 58, 59, 60, 61, 62, 63, 66, 67, 68, 69
S_SPEC = 64
S_CH, S_RHO = 70, 71
QSCALE = 0.25 * 1.4426950408889634
def f2u(x): return struct.unpack('<I', struct.pack('<f', x))[0]
def S4(b): return f"s[{b}:{b+3}]"
WS, DBG = S4(SRD_WS), S4(SRD_DBG)
MF32 = "v_mfma_f32_32x32x16_bf16"; MF16 = "v_mfma_f32_16x16x32_bf16"
NEG = 0xf149f2ca
A_S = [16, 32]; A_P = [48, 56]; A_CN = [184, 160]; A_O = [96, 112]; A_MD = 144; A_MK = 200; A_QF = [224, 228]
CACC = 96
V_T = 8; V_FL = 10; V_VV = 11; V_OF = 12; V_L16 = 13; V_CA = 14; V_CB = 15; V_PL = 7
J = '\n'.join
OOB = 0x7ff00000

class Gen:
    STAMP_REGS = [48, 50, 72, 74, 76, 78, 28, 24] if True else []
    def __init__(self, stamps=None, exp=''):
        self.a = Asm(); self.stamps = stamps or []; self.exp = exp.split(',')
        self.stamp_slots = []; self.tail_blocks = []
        self.NT = '' if 'nont' in self.exp else 'nt '
        self.OUTF = ' sc1' if 'outsc1' in self.exp else (' nt' if 'outnt' in self.exp else (' sc0 sc1' if 'outsys' in self.exp else ''))
        self.QR = 72 if 'wolate' in self.exp else 176
        self.SLEEP = next((int(x[2:]) for x in self.exp if x.startswith('sl')), 2)

    def srd(self, base, ptr, size):
        return [f"s_mov_b32 s{base}, s{ptr}", f"s_mov_b32 s{base+1}, s{ptr+1}", f"s_mov_b32 s{base+2}, {size}", f"s_mov_b32 s{base+3}, 0x20000"]
    def stamp(self, name):
        if name not in self.stamps: return
        n = len(self.stamp_slots)
        assert n < (10 if 'blk' in self.exp else 6)
        r = self.STAMP_REGS[n]; self.stamp_slots.append(name)
        if 'blk' in self.exp:
            self.a(f"s_memtime s[92:93]\ns_waitcnt lgkmcnt(0)\nv_mov_b32 v254, s92\nv_accvgpr_write_b32 a{210+n}, v254")
        else:
            self.a(f"s_memtime s[{r}:{r+1}]")
    def dump_stamps(self):
        if not self.stamp_slots: return
        a = self.a
        a("s_waitcnt lgkmcnt(0)")
        if 'dbgs' in self.exp:
            L = a.label('dbgskip')
            a("s_waitcnt vmcnt(0)")
            a(f"s_cmp_lg_u32 s{S_WAVE}, 1\ns_cbranch_scc1 {L}\ns_cmp_lg_u32 s2, 109\ns_cbranch_scc1 {L}")
            a("v_mov_b32 v4, 8\ns_mov_b64 exec, 1")
            for n, r in enumerate(self.STAMP_REGS[:len(self.stamp_slots)]):
                a(f"s_sub_u32 s84, s{r}, s100\nv_mov_b32 v2, s84\nbuffer_store_dword v2, v4, {DBG}, 0 offen offset:{4*n}\ns_nop 1")
            a(f"s_mov_b64 exec, -1\n{L}:")
            return
        a(f"s_lshl_b32 s{ST}, s2, 2\ns_add_u32 s{ST}, s{ST}, s{S_WAVE}\ns_lshl_b32 s{ST}, s{ST}, 7\ns_add_u32 s{ST}, s{ST}, {WS_STAMP}")
        a(f"v_mov_b32 v3, s{ST}\ns_mov_b64 exec, 1")
        for n, r in enumerate([100] + self.STAMP_REGS[:len(self.stamp_slots)]):
            if 'blk' in self.exp and n > 0: a(f"v_accvgpr_read_b32 v2, a{210+n-1}\ns_nop 1\nbuffer_store_dword v2, v3, {WS}, 0 offen offset:{4*n}\ns_nop 1")
            else: a(f"v_mov_b32 v2, s{r}\nbuffer_store_dword v2, v3, {WS}, 0 offen offset:{4*n}\ns_nop 1")
        for k in range(201, 207): a(f"v_accvgpr_read_b32 v2, a{k}\ns_nop 1\nbuffer_store_dword v2, v3, {WS}, 0 offen offset:{4*(k-201+20)}\ns_nop 1")
        a(f"v_accvgpr_read_b32 v2, a200\ns_nop 1\nbuffer_store_dword v2, v3, {WS}, 0 offen offset:120\ns_nop 1")
        a(f"s_memrealtime s[84:85]\ns_waitcnt lgkmcnt(0)\nv_mov_b32 v2, s84\nbuffer_store_dword v2, v3, {WS}, 0 offen offset:124\ns_nop 1")
        a("s_mov_b64 exec, -1")
    def count(self, k):
        if k >= 203: return
        if self.stamps and 'dbgs' not in self.exp: self.a(f"v_mov_b32 v253, s{S_TMO}\nv_accvgpr_write_b32 a{k}, v253")
    def poll_ld(self, sbase, tag='', vt=4):
        return f"buffer_load_dwordx2 v[{vt}:{vt+1}], v{V_PL}, {WS}, s{sbase} offen sc1" + (f" ; @{tag}" if tag else "")
    def cmp_flags(self, mask, vt=4):
        return [f"v_cmp_ne_u64 vcc, s[{S_T}:{S_T+1}], v[{vt}:{vt+1}]", "s_nop 0", f"s_and_b32 vcc_lo, vcc_lo, {mask}"]
    def poll_check(self, sbase, mask, name, vt=4, cnt=None):
        a = self.a
        L = a.label(name); Ld = a.label(name+'_done'); Lc = a.label(name+'_chk')
        a(f"s_mov_b32 s{S_TMO}, 0\ns_branch {Lc}\n{L}:")
        if self.SLEEP: a(f"s_sleep {self.SLEEP}")
        a(self.poll_ld(sbase, 'cond', vt))
        a(f"s_waitcnt vmcnt(0)\n{Lc}:")
        a(f"s_add_u32 s{S_TMO}, s{S_TMO}, 1")
        a(J(self.cmp_flags(mask, vt)))
        a(f"s_cbranch_scc0 {Ld}\ns_cmp_lt_u32 s{S_TMO}, 0x20000\ns_cbranch_scc1 {L}\n{Ld}:")
        if cnt: self.count(cnt)
    def flag(self, sreg, tag='flag'):
        return f"buffer_store_dwordx2 v[{V_T}:{V_T+1}], v{V_FL}, {WS}, s{sreg} offen sc1 ; @{tag}"
    def dma_groups(self, s):
        buf = s % 3
        X, W = S4(SRD_X), S4(SRD_W)
        t = f" ; @dma{s}"
        if 'rot' in self.exp:
            px = [f"s_add_u32 s{ST+9}, s101, {s & 3}", f"s_and_b32 s{ST+9}, s{ST+9}, 3", f"s_mul_i32 s{ST+8}, s{ST+9}, {64*3072}", f"s_lshl_b32 s{ST+9}, s{ST+9}, 7",
                  f"s_add_u32 s{ST+9}, s{ST+9}, s{S_XOFF}", f"s_add_u32 s{ST+8}, s{ST+8}, s{S_WOFF}"]
            if s & 4: px += [f"s_add_u32 s{ST+9}, s{ST+9}, 512", f"s_add_u32 s{ST+8}, s{ST+8}, {4*64*3072}"]
            g0 = px + [f"s_add_u32 m0, s{S_M0B}, {buf*32768}", "s_nop 0", f"buffer_load_dwordx4 v100, {X}, s{ST+9} offen lds" + t]
            g2 = [f"s_add_u32 m0, s{S_M0W}, {buf*32768}", "s_nop 0", f"buffer_load_dwordx4 v102, {W}, s{ST+8} offen lds" + t]
        else:
            g0 = [f"s_add_u32 m0, s{S_M0B}, {buf*32768}", f"s_add_u32 s{ST+9}, s{S_XOFF}, {s*128}", f"buffer_load_dwordx4 v100, {X}, s{ST+9} offen lds" + t]
            g2 = [f"s_add_u32 m0, s{S_M0W}, {buf*32768}", f"s_add_u32 s{ST+8}, s{S_WOFF}, {s*64*3072}", f"buffer_load_dwordx4 v102, {W}, s{ST+8} offen lds" + t]
        return [g0,
                [f"buffer_load_dwordx4 v101, {X}, s{ST+9} offen offset:1024 lds" + t],
                g2,
                [f"buffer_load_dwordx4 v103, {W}, s{ST+8} offen offset:1024 lds" + t],
                [f"buffer_load_dwordx4 v102, {W}, s{ST+8} offen offset:2048 lds" + t, f"s_add_u32 m0, s{S_M0W}, {buf*32768 + 3072}"],
                ["s_nop 0", f"buffer_load_dwordx4 v248, {W}, s{ST+8} offen lds" + t] if s in (0, 1, 2) else [f"buffer_load_dwordx4 v248, {W}, s{ST+8} offen lds" + t],
                [f"buffer_load_dwordx4 v249, {W}, s{ST+8} offen offset:1024 lds" + t],
                [f"buffer_load_dwordx4 v248, {W}, s{ST+8} offen offset:2048 lds" + t]]

    def startup(self):
        a = self.a
        a("L_entry:")
        a(f"s_load_dwordx16 s[{PTR}:{PTR+15}], s[0:1], 0")
        a(f"s_load_dwordx8 s[{PTR+16}:{PTR+23}], s[0:1], 64")
        a(f"s_memrealtime s[{S_T}:{S_T+1}]")
        if self.stamps: a("s_memtime s[100:101]")
        a("s_cmp_ge_u32 s2, 256\ns_cbranch_scc1 L_end")
        a("s_getpc_b64 s[8:9]\nL_pc:")
        a("s_sub_u32 s8, s8, (L_pc - L_entry)\ns_subb_u32 s9, s9, 0\ns_mov_b32 s10, (L_codeend - L_entry)\ns_mov_b32 s11, 0x20000")
        a(f"s_lshr_b32 s{S_I}, s2, 3\ns_and_b32 s{ST}, s{S_I}, 7\ns_lshl_b32 s{ST}, s{ST}, 12\nv_lshlrev_b32 v2, 4, v0")
        a(f"buffer_load_dwordx4 v[216:219], v2, s[8:11], s{ST} offen")
        a("v_and_b32 v1, 63, v0\nv_lshrrev_b32 v2, 6, v0")
        a(f"s_and_b32 s{S_XCD}, s2, 7")
        a(f"v_readfirstlane_b32 s{S_WAVE}, v2")
        a("v_and_b32 v4, 7, v1\nv_lshrrev_b32 v5, 3, v1")
        a(f"s_lshl_b32 s{ST}, s{S_I}, 6\ns_lshl_b32 s{ST+2}, s{S_XCD}, 7\ns_lshl_b32 s{ST+1}, s{S_WAVE}, 4\ns_add_u32 s{ST}, s{ST}, s{ST+1}\ns_lshl_b32 s{ST}, s{ST}, 10\ns_add_u32 s{ST}, s{ST}, s{ST+2}")
        a(f"v_lshlrev_b32 v140, 11, v5\nv_lshl_add_u32 v140, v4, 4, v140\nv_add_u32 v140, s{ST}, v140")
        a("v_subrev_u32 v141, 3072, v140\nv_subrev_u32 v142, 2048, v140\nv_subrev_u32 v143, 1024, v140")
        if 'map3' in self.exp:
            a(f"s_and_b32 s{ST}, s{S_XCD}, 3\ns_lshl_b32 s{ST}, s{ST}, 3\ns_lshr_b32 s{ST+1}, s{S_I}, 2\ns_add_u32 s{S_J}, s{ST}, s{ST+1}")
            a(f"s_lshr_b32 s{ST}, s{S_XCD}, 2\ns_lshl_b32 s{ST}, s{ST}, 2\ns_and_b32 s{ST+1}, s{S_I}, 3\ns_add_u32 s{S_P}, s{ST}, s{ST+1}")
        elif 'map2' in self.exp:
            a(f"s_lshr_b32 s{ST}, s{S_XCD}, 1\ns_lshl_b32 s{ST}, s{ST}, 3\ns_lshr_b32 s{ST+1}, s{S_I}, 2\ns_add_u32 s{S_J}, s{ST}, s{ST+1}")
            a(f"s_and_b32 s{ST}, s{S_XCD}, 1\ns_lshl_b32 s{ST}, s{ST}, 2\ns_and_b32 s{ST+1}, s{S_I}, 3\ns_add_u32 s{S_P}, s{ST}, s{ST+1}")
        else:
            a(f"s_lshr_b32 s{ST}, s{S_XCD}, 1\ns_lshl_b32 s{ST}, s{ST}, 3\ns_and_b32 s{ST+1}, s{S_I}, 7\ns_add_u32 s{S_J}, s{ST}, s{ST+1}")
            a(f"s_and_b32 s{ST}, s{S_XCD}, 1\ns_lshl_b32 s{ST}, s{ST}, 2\ns_lshr_b32 s{ST+1}, s{S_I}, 3\ns_add_u32 s{S_P}, s{ST}, s{ST+1}")
        a(f"s_lshl_b32 s{ST}, s{S_XCD}, 9\nv_lshlrev_b32 v{V_L16}, 4, v1\nv_add_u32 v144, s{ST}, v{V_L16}")
        a("v_lshrrev_b32 v2, 4, v1\nv_xor_b32 v3, v4, v2\nv_lshlrev_b32 v3, 4, v3")
        a(f"s_lshl_b32 s{ST}, s{S_WAVE}, 14\nv_lshl_add_u32 v100, v5, 10, v3\nv_add_u32 v100, s{ST}, v100")
        a(f"v_xor_b32 v101, 64, v100\nv_add_u32 v101, {8192-1024}, v101")
        a("v_lshrrev_b32 v3, 1, v4\nv_and_b32 v2, 1, v2\nv_lshlrev_b32 v2, 1, v2\nv_xor_b32 v3, v3, v2\nv_lshlrev_b32 v3, 5, v3")
        a("v_and_b32 v2, 1, v4\nv_lshl_add_u32 v3, v2, 4, v3\nv_mul_u32_u24 v102, 3072, v5\nv_add_u32 v102, v102, v3\nv_xor_b32 v103, 32, v102")
        a("v_add_u32 v248, 24576, v102\nv_add_u32 v249, 24576, v103")
        a(f"s_lshl_b32 s{S_XOFF}, s{S_J}, 16")
        if 'rot' in self.exp: a(f"s_and_b32 s101, s{S_J}, 3")
        a(f"s_mul_i32 s{S_WOFF}, s{S_WAVE}, {16*3072}\ns_lshl_b32 s{ST}, s{S_P}, 7\ns_add_u32 s{S_WOFF}, s{S_WOFF}, s{ST}")
        a(f"s_lshl_b32 s{S_M0B}, s{S_WAVE}, 11\ns_mul_i32 s{S_M0W}, s{S_WAVE}, 6144\ns_add_u32 s{S_M0W}, s{S_M0W}, 8192")
        a("s_waitcnt lgkmcnt(0)")
        if self.stamps and 'dbgs' not in self.exp:
            a(f"v_mov_b32 v12, s{S_T}\nv_accvgpr_write_b32 a200, v12\nv_mov_b32 v12, 0")
            for k in range(201, 207): a(f"v_accvgpr_write_b32 a{k}, v12")
        a(J(self.srd(SRD_K, PTR+8, 2097152) + self.srd(SRD_V, PTR+10, 2097152) + self.srd(SRD_X, PTR+0, 2097152) + self.srd(SRD_W, PTR+2, 1572864)))
        Ln = a.label('nononce')
        a(f"s_or_b32 s{ST}, s2, s{S_WAVE}\ns_cmp_lg_u32 s{ST}, 0\ns_cbranch_scc1 {Ln}")
        a(J(self.srd(SRD_DBG, PTR+20, 256)))
        a(f"s_or_b32 s{S_T+1}, s{S_T+1}, 0x80000000")
        a(f"v_mov_b32 v14, s{S_T}\nv_mov_b32 v15, s{S_T+1}\nv_mov_b32 v2, 0\ns_mov_b64 exec, 1")
        a(f"buffer_store_dwordx2 v[14:15], v2, {DBG}, 0 offen sc1 ; @cond")
        a(f"s_mov_b64 exec, -1\n{Ln}:")
        K, V = S4(SRD_K), S4(SRD_V)
        for d, v, srd, off in ((28,140,K,0),(32,140,K,1024),(24,143,K,0),(20,142,K,0),(16,141,K,0),(36,140,V,0),(40,140,V,1024)):
            a(f"buffer_load_dwordx4 v[{d}:{d+3}], v{v}, {srd}, 0 offen offset:{off} {self.NT}; @kv")
        a(J(self.srd(SRD_SH, PTR+12, 4096)))
        a(f"s_mov_b32 m0, {WSH}\ns_mov_b32 exec_hi, 0")
        a(f"buffer_load_dwordx4 v144, {S4(SRD_SH)}, 0 offen lds ; @kv")
        a("s_mov_b32 exec_hi, -1")
        for g in self.dma_groups(0): a(J(g))
        a(f"s_lshr_b32 s{ST}, s{S_J}, 3\ns_lshl_b32 s{ST}, s{ST}, 9\ns_lshl_b32 s{ST+1}, s{S_I}, 4\ns_add_u32 s{ST}, s{ST}, s{ST+1}\ns_lshl_b32 s{ST+1}, s{S_WAVE}, 2\ns_add_u32 s{ST+4}, s{ST}, s{ST+1}\ns_lshl_b32 s{ST+4}, s{ST+4}, 10")
        a(f"v_lshlrev_b32 v145, 10, v5\nv_lshl_add_u32 v145, v4, 6, v145\nv_add_u32 v145, s{ST+4}, v145")
        a(f"s_lshl_b32 s{ST}, s{S_I}, 3\ns_lshl_b32 s{ST+1}, s{S_WAVE}, 1\ns_add_u32 s{ST}, s{ST}, s{ST+1}\ns_mul_i32 s{ST}, s{ST}, 3072\ns_lshr_b32 s{ST+1}, s{S_P}, 2\ns_lshl_b32 s{ST+1}, s{ST+1}, 9\ns_add_u32 s{ST}, s{ST}, s{ST+1}")
        a("v_subrev_u32 v7, 24, v1\nv_ashrrev_i32 v3, 31, v7\nv_and_b32 v6, 24, v3\nv_add_u32 v7, v7, v6\nv_not_b32 v3, v3\nv_and_b32 v3, 3072, v3")
        a(f"v_lshrrev_b32 v6, 3, v7\nv_lshl_add_u32 v3, v6, 10, v3\nv_and_b32 v7, 7, v7\nv_lshl_add_u32 v3, v7, 6, v3\nv_add_u32 v146, s{ST}, v3")
        a(f"s_mov_b32 exec_hi, 0xffff\nbuffer_load_dword v252, v146, {S4(SRD_W)}, 0 offen ; @pf\ns_mov_b32 exec_hi, 0\nbuffer_load_dword v252, v145, {S4(SRD_X)}, 0 offen ; @pf\ns_mov_b32 exec_hi, -1")
        self.stamp('issued')
        a(J(self.srd(SRD_WS, PTR+22, WS_SIZE) + self.srd(SRD_DBG, PTR+20, 256) + self.srd(SRD_Q, PTR+6, 2097152) + self.srd(SRD_WO, PTR+4, 524288) + self.srd(SRD_OUT, PTR+18, 4194304)))
        a(f"s_lshl_b32 s{ST}, s{S_XCD}, 7\ns_lshl_b32 s{ST+1}, s{S_I}, 2\ns_add_u32 s{ST}, s{ST}, s{ST+1}")
        a(f"s_load_dword s{S_D}, s[{PTR+16}:{PTR+17}], s{ST}")
        a(f"s_lshl_b32 s{ST}, s{S_XCD}, 6\ns_lshl_b32 s{ST+1}, s{S_I}, 1\ns_add_u32 s{ST}, s{ST}, s{ST+1}\ns_lshr_b32 s{ST+1}, s{S_WAVE}, 1\ns_add_u32 s{ST+3}, s{ST}, s{ST+1}\ns_lshl_b32 s{ST}, s{ST+3}, 12")
        a(f"s_add_u32 s{SRD_H}, s{PTR+14}, s{ST}\ns_addc_u32 s{SRD_H+1}, s{PTR+15}, 0\ns_mov_b32 s{SRD_H+2}, 4096\ns_mov_b32 s{SRD_H+3}, 0x20000")
        a(f"s_mov_b32 s{S_CH}, s{ST+3}\ns_and_b32 s{S_RHO}, s{S_WAVE}, 1")
        a(f"s_load_dwordx8 s[{S_HT}:{S_HT+7}], s[{SRD_H}:{SRD_H+1}], 4064")
        a(f"s_min_u32 s{S_NH}, s{S_J}, 4\ns_lshl_b32 s{S_HEAD}, s{S_P}, 2\ns_add_u32 s{S_HEAD}, s{S_HEAD}, s{S_WAVE}\ns_mov_b32 s{S_FB}, 0")
        a(f"s_mov_b32 s{S_SEL0}, 0x05040100\ns_mov_b32 s{S_SEL1}, 0x07060302")
        a("v_and_b32 v2, 31, v1\nv_lshrrev_b32 v3, 5, v1\nv_bfe_u32 v6, v2, 1, 3\nv_xor_b32 v3, v3, v6\nv_lshlrev_b32 v2, 7, v2")
        for kk in range(4):
            a(f"v_xor_b32 v6, {2*kk}, v3\nv_lshl_add_u32 v{104+kk}, v6, 4, v2\nv_add_u32 v{108+kk}, 0x10000, v{104+kk}")
        a("v_bfe_u32 v2, v1, 4, 1\nv_lshrrev_b32 v3, 5, v1\nv_bfe_u32 v6, v1, 2, 2")
        a("v_mul_u32_u24 v7, 3072, v3\nv_lshl_add_u32 v7, v6, 7, v7\nv_and_b32 v9, 3, v1\nv_lshl_add_u32 v7, v9, 3, v7")
        a(f"v_and_b32 v9, 2, v6\nv_xor_b32 v9, s{S_WAVE}, v9")
        a(f"v_lshl_add_u32 v113, v9, 5, v7\nv_add_u32 v113, {8192+2048}, v113")
        a("v_xor_b32 v9, v9, v2\nv_lshl_add_u32 v112, v9, 5, v7\nv_lshl_add_u32 v112, v2, 10, v112\nv_add_u32 v112, 8192, v112")
        a("v_add_u32 v114, 0x10000, v112\nv_add_u32 v115, 0x10000, v113")
        a(f"s_lshl_b32 s{ST}, s{S_WAVE}, 3\nv_add_u32 v2, s{ST}, v5\nv_sub_u32 v2, 31, v2")
        a("v_lshrrev_b32 v3, 2, v2\nv_xor_b32 v3, v3, v4\nv_lshlrev_b32 v3, 4, v3\nv_and_b32 v2, 3, v2\nv_lshl_add_u32 v3, v2, 2, v3\nv_lshl_add_u32 v3, v4, 10, v3")
        a(f"v_add_u32 v155, {TP}, v3\nv_lshlrev_b32 v153, 6, v4\nv_add_u32 v153, {WSH}, v153")
        a(f"s_lshl_b32 s{ST}, s{S_WAVE}, 1\nv_xor_b32 v156, s{ST}, v4\nv_lshlrev_b32 v156, 4, v156\nv_lshl_add_u32 v156, v5, 7, v156")
        a(f"s_lshl_b32 s{ST+1}, s{S_WAVE}, 11\ns_add_u32 s{ST+1}, s{ST+1}, {TP}\nv_add_u32 v156, s{ST+1}, v156\nv_xor_b32 v157, 16, v156")
        a(f"s_lshl_b32 s{ST}, s{S_XCD}, 6\ns_lshl_b32 s{ST+1}, s{S_WAVE}, 4\ns_add_u32 s{ST}, s{ST}, s{ST+1}\ns_lshl_b32 s{ST}, s{ST}, 12")
        a(f"s_lshl_b32 s{ST+1}, s{S_I}, 7\ns_sub_u32 s{ST}, s{ST}, s{ST+1}\ns_add_u32 s{ST}, s{ST}, {WS_KVT + 1984*2}")
        a(f"v_lshlrev_b32 v158, 12, v5\nv_lshl_add_u32 v158, v4, 4, v158\nv_add_u32 v158, s{ST}, v158\nv_add_u32 v159, {8*4096}, v158")

    def toep_valu(self, D, E, F, G):
        o = [f"v_alignbit_b32 v{E+i}, v{D[i+1]}, v{D[i]}, 16" for i in range(8)]
        o += [f"v_mov_b32 v{F+i}, v{D[i+1]}" for i in range(8)]
        o += [f"v_alignbit_b32 v{G+i}, v{D[i+2]}, v{D[i+1]}, 16" for i in range(8)]
        return o
    def toep_writes(self, D, E, F, G, vaddr):
        o = [f"ds_write_b128 v{vaddr}, v[{D[0]}:{D[0]+3}]", f"ds_write_b128 v{vaddr}, v[{D[4]}:{D[4]+3}] offset:16"]
        for r, R in ((1, E), (2, F), (3, G)):
            o += [f"ds_write_b128 v{vaddr}, v[{R}:{R+3}] offset:{r*TZC}", f"ds_write_b128 v{vaddr}, v[{R+4}:{R+7}] offset:{r*TZC+16}"]
        return o

    def pre(self):
        a = self.a
        for x in self.late_setup():
            if not x.startswith(';#'): a(x)
        a(J(self.flag_scalars()))
        a(J(self.scalar_dep()))
        a("s_waitcnt lgkmcnt(0)")
        pfB = ["s_mov_b32 exec_hi, 0", f"buffer_load_dword v252, v145, {S4(SRD_X)}, 0 offen offset:512 ; @pf", "s_mov_b32 exec_hi, 0xffff", f"s_mov_b32 s{ST+2}, {256*3072}", f"buffer_load_dword v252, v146, {S4(SRD_W)}, s{ST+2} offen ; @pf", "s_mov_b32 exec_hi, -1"]
        misc = [f"s_lshl_b32 s{ST+2}, s{S_RHO}, 11", f"v_lshlrev_b32 v2, 6, v1", "s_mov_b32 exec_hi, 0", f"buffer_load_dword v252, v2, {S4(SRD_H)}, s{ST+2} offen {self.NT}; @pf",
                ] + ([f"s_lshl_b32 s{ST+2}, s{S_I}, 4", f"s_lshl_b32 s{ST+3}, s{S_WAVE}, 2", f"s_add_u32 s{ST+2}, s{ST+2}, s{ST+3}", f"s_lshl_b32 s{ST+2}, s{ST+2}, 10", f"s_and_b32 s{ST+3}, s{S_XCD}, 1", f"s_lshl_b32 s{ST+3}, s{ST+3}, 9", f"s_add_u32 s{ST+2}, s{ST+2}, s{ST+3}",
                "v_lshrrev_b32 v2, 3, v1", "v_and_b32 v3, 7, v1", "v_lshlrev_b32 v2, 10, v2", "v_lshl_add_u32 v2, v3, 6, v2", f"buffer_load_dword v252, v2, {S4(SRD_WO)}, s{ST+2} offen ; @pf"] if 'wopf' in self.exp else []) + [
                "v_lshlrev_b32 v2, 20, v1", "s_mov_b32 exec_lo, 0x1fff", f"buffer_load_dword v252, v2, {WS}, 0 offen ; @pf", f"buffer_load_dword v252, v2, {S4(SRD_OUT)}, 0 offen ; @pf", "s_mov_b64 exec, -1"]
        if 'pfbsplit' in self.exp:
            a(J(pfB))
            self.misc_late = misc
        else:
            a(J(pfB + misc))
        self.stamp('shadowdone')
        a("s_waitcnt vmcnt(@kv)")
        self.stamp('predata')
        for i in range(4): a(f"ds_read_b128 v[{44+4*i}:{47+4*i}], v153 offset:{16*i}")
        seq = self.pre_valu()
        seq = seq[:12] + ["s_waitcnt lgkmcnt(0)"] + seq[12:]
        a(J(safe_interleave(seq, self.dma_groups(1), every=12)))
        for ch in range(8): a(f"ds_write_b32 v155, v{92+ch} offset:{ch*128}")
        a("s_waitcnt vmcnt(@dma0) lgkmcnt(0)\ns_barrier")
        self.stamp('stage0')
        a("ds_read_b128 v[16:19], v156\nds_read_b128 v[20:23], v157 offset:1024")
        self.qkv_reads(0, 0, 0)
        a(f"v_mov_b32 v3, 0\nbuffer_load_dwordx2 v[{V_T}:{V_T+1}], v3, {DBG}, 0 offen sc1 ; @nonce")
    def pre_valu(self):
        main = []
        for d in range(4):
            for par in range(2):
                sel = f"s{S_SEL1 if par else S_SEL0}"; ch = 2*d + par; o = 224 + 8*(ch % 3)
                r = lambda row: 16 + 4*(row+3) + d
                un = (lambda dst, src: f"v_lshlrev_b32 v{dst}, 16, v{src}") if par == 0 else (lambda dst, src: f"v_and_b32 v{dst}, 0xffff0000, v{src}")
                main.append([f"v_perm_b32 v{o}, v{r(-1)}, v{r(0)}, {sel}", f"v_perm_b32 v{o+1}, v{r(0)}, v{r(1)}, {sel}",
                             f"v_perm_b32 v{o+2}, v{r(-3)}, v{r(-2)}, {sel}", f"v_perm_b32 v{o+3}, v{r(-2)}, v{r(-1)}, {sel}",
                             un(o+4, 36+d), un(o+5, 40+d),
                             f"v_dot2_f32_bf16 v{o+6}, v{o}, v{44+2*ch}, 0", f"v_dot2_f32_bf16 v{o+7}, v{o+1}, v{44+2*ch}, 0",
                             f"v_dot2_f32_bf16 v{o+6}, v{o+2}, v{45+2*ch}, v{o+6}", f"v_dot2_f32_bf16 v{o+7}, v{o+3}, v{45+2*ch}, v{o+7}",
                             f"v_mul_f32 v{o+6}, v{o+6}, v{o+4}", f"v_mul_f32 v{o+7}, v{o+7}, v{o+5}", f"v_cvt_pk_bf16_f32 v{92+ch}, v{o+7}, v{o+6}"])
        seq = []
        for k in range(0, 8, 2):
            A, B = main[k], main[k+1]
            seq += A[:6] + B[:6] + A[6:10] + B[6:10] + A[10:12] + B[10:12] + [A[12], B[12]]
        return seq

    def qkv_reads(self, s, kk, st):
        a = self.a
        buf = s % 3; b = 60 + 16*st
        if buf < 2: xa, wqk, wv, base = 104+kk, 112, 113, buf*32768
        else:       xa, wqk, wv, base = 108+kk, 114, 115, 0
        a(f"ds_read_b128 v[{b}:{b+3}], v{xa} offset:{base}")
        a(f"ds_read_b64_tr_b16 v[{b+8}:{b+9}], v{wqk} offset:{base + kk*6144}")
        a(f"ds_read_b64_tr_b16 v[{b+10}:{b+11}], v{wqk} offset:{base + kk*6144 + 512}")
        a(f"ds_read_b128 v[{b+4}:{b+7}], v{xa} offset:{base + 4096}")
        a(f"ds_read_b64_tr_b16 v[{b+12}:{b+13}], v{wv} offset:{base + kk*6144}")
        a(f"ds_read_b64_tr_b16 v[{b+14}:{b+15}], v{wv} offset:{base + kk*6144 + 512}")
    def qkv_mfma(self, st, first=False):
        b = 60 + 16*st
        c = lambda r: "0" if first else f"v[{r}:{r+15}]"
        return [f"{MF32} v[160:175], v[{b+8}:{b+11}], v[{b}:{b+3}], {c(160)}", f"{MF32} v[176:191], v[{b+8}:{b+11}], v[{b+4}:{b+7}], {c(176)}",
                f"{MF32} v[192:207], v[{b}:{b+3}], v[{b+12}:{b+15}], {c(192)}", f"{MF32} v[208:223], v[{b+4}:{b+7}], v[{b+12}:{b+15}], {c(208)}"]
    def nonce_fix(self):
        a = self.a
        Lok = a.label('nonce_ok'); Lp = a.label('nonce_poll')
        a(f"v_readfirstlane_b32 s{S_T}, v{V_T}\nv_readfirstlane_b32 s{S_T+1}, v{V_T+1}\ns_nop 0")
        a(f"s_cmp_eq_u32 s{S_T+1}, 0\ns_cbranch_scc1 {Lp}\n{Lok}:")
        with Cap(a) as cap:
            a(f"{Lp}:\ns_mov_b32 s{S_TMO}, 0\n{Lp}_l:")
            a(f"v_mov_b32 v3, 0\nbuffer_load_dwordx2 v[{V_T}:{V_T+1}], v3, {DBG}, 0 offen sc1\ns_waitcnt vmcnt(0)")
            a(f"v_readfirstlane_b32 s{S_T}, v{V_T}\nv_readfirstlane_b32 s{S_T+1}, v{V_T+1}")
            a(f"s_add_u32 s{S_TMO}, s{S_TMO}, 1\ns_cmp_gt_u32 s{S_TMO}, 0x20000\ns_cbranch_scc1 {Lok}")
            a(f"s_cmp_eq_u32 s{S_T+1}, 0\ns_cbranch_scc1 {Lp}_l\ns_branch {Lok}")
        self.tail_blocks.append(cap.out)

    def late_setup(self):
        o = []
        A = lambda t: o.extend(split_instrs(t))
        A(f"v_cmp_eq_u32 vcc, 0, v1\nv_mov_b32 v2, {hex(OOB)}\nv_mov_b32 v3, 0\n;#g\nv_cndmask_b32 v{V_FL}, v2, v3, vcc")
        A(f"v_lshlrev_b32 v{V_PL}, {FS}, v1\nv_cmp_gt_u32 vcc, 32, v1\ns_nop 1\n;#g\nv_cndmask_b32 v{V_PL}, v2, v{V_PL}, vcc")
        A(f"s_lshl_b32 s{ST}, s{S_RHO}, 11\nv_lshlrev_b32 v138, 5, v1\nv_add_u32 v138, s{ST}, v138\nv_subrev_u32 v136, 32, v138\nv_subrev_u32 v137, 16, v138")
        A(f"s_lshr_b32 s{ST+1}, s{S_WAVE}, 1\ns_mul_i32 s{ST+2}, s{ST+1}, {4*TZC}\ns_add_u32 s{ST}, s{ST}, s{ST+2}\ns_add_u32 s{ST}, s{ST}, {TZ}\nv_lshlrev_b32 v132, 5, v1\nv_add_u32 v132, s{ST}, v132")
        A(f"s_add_u32 s{ST+2}, s{ST+2}, {TZ + 4096}\nv_mov_b32 v139, s{ST+2}")
        A(f"s_lshl_b32 s{S_UO}, s{S_CH}, 12\ns_lshl_b32 s{ST}, s{S_RHO}, 10\ns_add_u32 s{S_UO}, s{S_UO}, s{ST}\ns_add_u32 s{S_UO}, s{S_UO}, {WS_KVT}")
        A(f"s_mul_i32 s{ST+2}, s{ST+1}, {UC}\ns_add_u32 s{ST+2}, s{ST+2}, s{ST}\ns_add_u32 s{ST+2}, s{ST+2}, {U}\nv_add_u32 v127, s{ST+2}, v{V_L16}")
        A(f"v_mov_b32 v148, 0\nv_mov_b32 v149, 0\nv_mov_b32 v150, 0\nv_mov_b32 v151, 0")
        A(f"v_lshrrev_b32 v2, 5, v1\nv_mul_u32_u24 v2, {UC}, v2\nv_and_b32 v3, 31, v1\nv_lshl_add_u32 v2, v3, 4, v2\nv_add_u32 v152, {U+4096}, v2")
        A(f"v_and_b32 v4, 15, v1\nv_lshrrev_b32 v5, 4, v1\nv_add_u32 v2, 1, v4\nv_and_b32 v3, 3, v2\nv_lshrrev_b32 v2, 2, v2")
        A(f"v_mul_u32_u24 v{V_CA}, {TZC}, v3\nv_lshl_add_u32 v{V_CA}, v2, 3, v{V_CA}\nv_lshl_add_u32 v{V_CA}, v5, 4, v{V_CA}")
        A(f"s_lshr_b32 s{ST}, s{S_WAVE}, 1\ns_mul_i32 s{ST+1}, s{ST}, {4*TZC}\ns_lshl_b32 s{ST+2}, s{S_RHO}, 8\ns_add_u32 s{ST+1}, s{ST+1}, s{ST+2}\ns_add_u32 s{ST+1}, s{ST+1}, {TZ}\nv_add_u32 v{V_CA}, s{ST+1}, v{V_CA}")
        A(f"s_mul_i32 s{ST+1}, s{ST}, {UC}\ns_add_u32 s{ST+1}, s{ST+1}, s{ST+2}\ns_add_u32 s{ST+1}, s{ST+1}, {U+480}")
        A(f"v_lshlrev_b32 v{V_CB}, 4, v5\nv_lshlrev_b32 v2, 5, v4\nv_sub_u32 v{V_CB}, v{V_CB}, v2\nv_add_u32 v{V_CB}, s{ST+1}, v{V_CB}")
        A(f"v_lshrrev_b32 v2, 5, v1\nv_mul_u32_u24 v2, 17, v2\nv_and_b32 v3, 31, v1\nv_add_u32 v2, v2, v3\nv_lshlrev_b32 v{V_VV}, 4, v2\nv_sub_u32 v3, 16, v3\nv_ashrrev_i32 v3, 31, v3\nv_and_b32 v3, {hex(OOB)}, v3\nv_or_b32 v{V_VV}, v{V_VV}, v3")
        A(f"v_bfe_u32 v{V_OF}, v1, 4, 1\nv_lshlrev_b32 v{V_OF}, 14, v{V_OF}\nv_lshrrev_b32 v2, 5, v1\nv_lshl_add_u32 v{V_OF}, v2, 8, v{V_OF}\nv_and_b32 v2, 15, v1\nv_lshl_add_u32 v{V_OF}, v2, 4, v{V_OF}")
        A(f"s_lshl_b32 s{S_OFS}, s{S_J}, 16\ns_lshr_b32 s{ST+1}, s{S_HEAD}, 1\ns_lshl_b32 s{ST+1}, s{ST+1}, 10\ns_add_u32 s{S_OFS}, s{S_OFS}, s{ST+1}\ns_and_b32 s{ST+1}, s{S_HEAD}, 1\ns_lshl_b32 s{ST+1}, s{ST+1}, 9\ns_add_u32 s{S_OFS}, s{S_OFS}, s{ST+1}\ns_add_u32 s{S_OFS}, s{S_OFS}, {WS_OF}")
        A("v_mov_b32 v128, -1\nv_mov_b32 v129, -1\nv_mov_b32 v130, -1\nv_mov_b32 v131, -1")
        A(f"s_lshl_b32 s{S_NHM}, 1, s{S_NH}\ns_sub_u32 s{S_NHM}, s{S_NHM}, 1")
        A(f"s_lshl_b32 s{ST}, s{S_HEAD}, 6\ns_lshl_b32 s{ST+1}, s{S_J}, 1\ns_add_u32 s{ST}, s{ST}, s{ST+1}\ns_mul_i32 s{S_KVO}, s{ST}, {KVS}\ns_add_u32 s{S_KVO}, s{S_KVO}, {WS_KV}")
        A(f"s_lshl_b32 s{S_ZTO}, s{S_CH}, 12\ns_lshl_b32 s{ST}, s{S_RHO}, 11\ns_add_u32 s{S_ZTO}, s{S_ZTO}, s{ST}\ns_add_u32 s{S_ZTO}, s{S_ZTO}, {WS_ZT}")
        A(f"s_lshl_b32 s{ST}, s{S_XCD}, 6\ns_lshl_b32 s{ST+1}, s{S_WAVE}, 4\ns_add_u32 s{ST}, s{ST}, s{ST+1}\ns_lshl_b32 s{ST}, s{ST}, 12\ns_lshl_b32 s{ST+2}, s{S_I}, 7\ns_add_u32 s{ST}, s{ST}, s{ST+2}\ns_add_u32 s{S_ZLD}, s{ST}, {WS_ZT}")
        A(f"s_lshl_b32 s{ST}, s{S_I}, 6\ns_add_u32 s{ST}, s{ST}, s{ST+1}\ns_lshl_b32 s{ST+2}, s{S_XCD}, 7\ns_lshl_b32 s{S_QO}, s{ST}, 10\ns_add_u32 s{S_QO}, s{S_QO}, s{ST+2}\ns_lshl_b32 s{S_BOUT}, s{ST}, 11\ns_add_u32 s{S_BOUT}, s{S_BOUT}, s{ST+2}\ns_add_u32 s{S_BOUT}, s{S_BOUT}, 1024")
        A(f"s_lshl_b32 s{ST}, s{S_J}, 6\ns_add_u32 s{ST}, s{ST}, s{ST+1}\ns_lshl_b32 s{S_AOUT}, s{ST}, 11\ns_lshl_b32 s{ST+2}, s{S_P}, 7\ns_add_u32 s{S_AOUT}, s{S_AOUT}, s{ST+2}")
        A(f"s_lshl_b32 s{S_OFL}, s{S_J}, 2\ns_add_u32 s{S_OFL}, s{S_OFL}, s{S_WAVE}\ns_lshl_b32 s{S_OFL}, s{S_OFL}, 14\ns_add_u32 s{S_OFL}, s{S_OFL}, {WS_OF}")
        A(f"s_lshl_b32 s{S_WOO}, s{S_WAVE}, 17\ns_add_u32 s{S_WOO}, s{S_WOO}, s{ST+2}\ns_lshl_b32 s{S_WOM}, s{S_WAVE}, 14")
        return o
    def scalar_dep(self):
        o = ["s_waitcnt lgkmcnt(0)"]
        A = lambda t: o.extend(split_instrs(t))
        A(J([f"v_mov_b32 v{116+i}, s{S_HT+i}" for i in range(8)]) + "\nv_mov_b32 v124, 0\nv_mov_b32 v125, 0")
        A(J(self.toep_valu(list(range(116, 126)), 224, 232, 240)))
        o.append("ds_write_b128 v152, v[148:151]")
        o.append("s_mov_b64 exec, 1"); o.extend(self.toep_writes(list(range(116, 126)), 224, 232, 240, 139)); o.append("s_mov_b64 exec, -1")
        A(f"s_lshl_b32 s{ST}, s{S_D}, 16\ns_and_b32 s{ST+1}, s{S_D}, 0xffff0000\ns_cmp_lt_u32 s{S_WAVE}, 2\ns_cselect_b32 s{S_DV}, s{ST}, s{ST+1}")
        return o
    def flag_scalars(self):
        o = []
        A = lambda t: o.extend(split_instrs(t))
        A(f"s_lshl_b32 s{ST}, s{S_XCD}, 2\ns_add_u32 s{ST}, s{ST}, s{S_WAVE}\ns_lshl_b32 s{ST}, s{ST}, 5\ns_add_u32 s{ST}, s{ST}, s{S_I}\ns_lshl_b32 s{S_F1P}, s{ST}, {FS}")
        A(f"s_lshl_b32 s{ST}, s{S_XCD}, 2\ns_lshr_b32 s{ST+1}, s{S_I}, 3\ns_add_u32 s{ST}, s{ST}, s{ST+1}\ns_lshl_b32 s{S_PF1}, s{ST}, {5+FS}")
        A(f"s_lshl_b32 s{ST}, s{S_HEAD}, 5\ns_add_u32 s{ST}, s{ST}, s{S_J}\ns_lshl_b32 s{S_F2P}, s{ST}, {FS}\ns_add_u32 s{S_F2P}, s{S_F2P}, {WS_F2}\ns_lshl_b32 s{ST+1}, s{S_NH}, {FS}\ns_sub_u32 s{S_PF2}, s{S_F2P}, s{ST+1}")
        A(f"s_lshl_b32 s{ST}, s{S_J}, 5\ns_add_u32 s{ST+1}, s{ST}, s{S_HEAD}\ns_lshl_b32 s{S_F5P}, s{ST+1}, {FS}\ns_add_u32 s{S_F5P}, s{S_F5P}, {WS_F5}\ns_lshl_b32 s{S_PF5}, s{ST}, {FS}\ns_add_u32 s{S_PF5}, s{S_PF5}, {WS_F5}")
        A(f"s_lshl_b32 s{ST}, s{S_XCD}, 1\ns_add_u32 s{ST+1}, s{ST}, s{S_RHO}\ns_lshl_b32 s{ST+1}, s{ST+1}, 6\ns_and_b32 s{ST+2}, s{S_CH}, 63\ns_add_u32 s{ST+1}, s{ST+1}, s{ST+2}\ns_lshl_b32 s{S_F3P}, s{ST+1}, {FS}\ns_add_u32 s{S_F3P}, s{S_F3P}, {WS_F3}")
        A(f"s_lshr_b32 s{ST+1}, s{S_I}, 4\ns_add_u32 s{ST}, s{ST}, s{ST+1}\ns_lshl_b32 s{ST}, s{ST}, 6\ns_lshl_b32 s{ST+1}, s{S_WAVE}, 4\ns_add_u32 s{ST}, s{ST}, s{ST+1}\ns_lshl_b32 s{S_PF3}, s{ST}, {FS}\ns_add_u32 s{S_PF3}, s{S_PF3}, {WS_F3}")
        return o

    def qkv(self):
        a = self.a
        DA = list(range(116, 126)); H = S4(SRD_H)
        tzA = self.toep_valu(DA, 136, 24, 92)
        tzW = self.toep_writes(DA, 136, 24, 92, 132)
        pend = self.dma_groups(2); vfill = []
        def emit_mfma(st, first=False, nv=3):
            nonlocal pend
            for i, ins in enumerate(self.qkv_mfma(st, first)):
                a(ins)
                if i % 2 == 1 and pend: a(J(pend.pop(0)))
                for _ in range(nv):
                    if vfill: a(vfill.pop(0))
        def reads_wait(s, kk, st):
            self.qkv_reads(s, kk, st)
            extra = []
            if (s == 6 and kk >= 2) or (s == 7 and kk in (1, 2)): extra = [tzW.pop(0), tzW.pop(0)]
            for x in extra: a(x)
            a(f"s_waitcnt lgkmcnt({6+len(extra)})")
        for s in range(8):
            reads_wait(s, 1, 1)
            emit_mfma(0, first=(s == 0))
            reads_wait(s, 2, 0)
            emit_mfma(1)
            reads_wait(s, 3, 1)
            emit_mfma(0)
            if s == 0:
                while pend: a(J(pend.pop(0)))
                a(f"buffer_store_dwordx4 v[16:19], v158, {WS}, 0 offen sc1 ; @st0")
                a(f"buffer_store_dwordx4 v[20:23], v159, {WS}, 0 offen sc1 ; @st0")
            if s < 7:
                while pend: a(J(pend.pop(0)))
                a(f"s_waitcnt vmcnt(@dma{s+1}) lgkmcnt(0)")
                a("s_barrier")
                if s == 2:
                    self.nonce_fix()
                    a(self.flag(S_F1P))
                if s + 3 < 8: pend = self.dma_groups(s + 3)
                if s == 3:
                    hl = [f"buffer_load_dwordx4 v[116:119], v136, {H}, 0 offen {self.NT}; @h", f"buffer_load_dwordx4 v[120:123], v137, {H}, 0 offen {self.NT}; @h", f"buffer_load_dwordx2 v[124:125], v138, {H}, 0 offen {self.NT}; @h"]
                    d = pend
                    pend = [[hl[0]] + d[0], [hl[1]] + d[1], [hl[2]] + d[2], d[3], d[4], d[5], d[6], d[7]]
                if s == 5:
                    pend = [[self.poll_ld(S_PF1, 'pf1')],
                            [f"s_getpc_b64 s[{ST+4}:{ST+5}]", "L_tabpc:", f"s_add_u32 s{ST+4}, s{ST+4}, (L_masktab - L_tabpc)", f"s_addc_u32 s{ST+5}, s{ST+5}, 0", f"s_mov_b32 s{ST+6}, 6144", f"s_mov_b32 s{ST+7}, 0x20000",
                             f"buffer_load_dwordx4 v[{A_MD}:{A_MD+3}], v{V_L16}, s[{ST+4}:{ST+7}], 0 offen ; @md", f"buffer_load_dwordx4 v[{A_MD+4}:{A_MD+7}], v{V_L16}, s[{ST+4}:{ST+7}], 0 offen offset:1024 ; @md"],
                            [f"buffer_load_dwordx4 v[{A_MD+8}:{A_MD+11}], v{V_L16}, s[{ST+4}:{ST+7}], 0 offen offset:2048 ; @md", f"buffer_load_dwordx4 v[{A_MD+12}:{A_MD+15}], v{V_L16}, s[{ST+4}:{ST+7}], 0 offen offset:3072 ; @md"]]
                    vfill = list(tzA)
                if s == 6:
                    a("s_waitcnt vmcnt(@pf1)")
                    a(J(self.cmp_flags("-1"))); a(f"s_cselect_b32 s{S_SPEC}, 1, 0")
                    a(f"buffer_load_dwordx4 v[16:19], v{V_L16}, {WS}, s{S_UO} offen sc1 ; @u\nbuffer_load_dwordx4 v[20:23], v{V_L16}, {WS}, s{S_UO} offen offset:2048 sc1 ; @u")
                    pend = [[f"buffer_store_dwordx4 v[128:131], v{V_OF}, {WS}, s{S_OFS} offen sc1 ; @sent"], [f"s_add_u32 s{ST+2}, s{S_OFS}, 32768", f"buffer_store_dwordx4 v[128:131], v{V_OF}, {WS}, s{ST+2} offen sc1 ; @sent"]]
                self.qkv_reads(s+1, 0, 0)
                self.stamp(f'b{s}')
                emit_mfma(1, nv=(6 if s == 5 else 3))
            else:
                assert not tzW
                a("s_waitcnt lgkmcnt(0)")
                emit_mfma(1)
        assert not vfill and not pend
        self.stamp('b7')
        a("s_waitcnt vmcnt(@md)\ns_nop 7\ns_nop 1")
        for g in self.conv_fillers():
            if g is None or g == 'WO': continue
            if isinstance(g, int): a("s_nop 7\ns_nop 4"); continue
            a(J(g))
        self.stamp('epi')
        a("s_waitcnt vmcnt(@u)")
        Lu = a.label('u_slow'); Lub = a.label('u_back')
        a(f"s_cmp_lg_u32 s{S_SPEC}, 0\ns_cbranch_scc1 {Lu}\n{Lub}:")
        with Cap(a) as cap:
            a(f"{Lu}:"); self.poll_check(S_PF1, "-1", 'f1', cnt=201)
            a(f"buffer_load_dwordx4 v[16:19], v{V_L16}, {WS}, s{S_UO} offen sc1\nbuffer_load_dwordx4 v[20:23], v{V_L16}, {WS}, s{S_UO} offen offset:2048 sc1\ns_waitcnt vmcnt(0)\ns_branch {Lub}")
        self.tail_blocks.append(cap.out)
        a("ds_write_b128 v127, v[16:19]\nds_write_b128 v127, v[20:23] offset:2048")
        a("s_waitcnt lgkmcnt(0)\ns_barrier")
        a(J(self.conv_reads(0, 0)))

    def conv_reads(self, st, n):
        A = 16 + 64*st; B = 48 + 64*st; o = []
        for i in range(8):
            o.append(f"ds_read_b128 v[{B+4*i}:{B+4*i+3}], v{V_CB} offset:{512*(7-i) + 64*n}")
            o.append(f"ds_read_b64 v[{A+4*i}:{A+4*i+1}], v{V_CA} offset:{512*i + 64*n}")
            o.append(f"ds_read_b64 v[{A+4*i+2}:{A+4*i+3}], v{V_CA} offset:{512*i + 64*n + 8}")
        return o
    def conv_reads_mixed_first(self):
        o = self.conv_reads(0, 0)
        self.deferred = [x for x in o if 'v[76:79]' in x]
        return [x for x in o if 'v[76:79]' not in x]
    def conv_mfmas(self, st, first):
        A = 16 + 64*st; B = 48 + 64*st; o = []
        for i in range(8):
            for t in range(i, 8):
                acc = CACC + 4*t
                c = "0" if (first and i == 0) else f"a[{acc}:{acc+3}]"
                o.append(f"{MF16} a[{acc}:{acc+3}], v[{A+4*i}:{A+4*i+3}], v[{B+4*(t-i)}:{B+4*(t-i)+3}], {c}")
        return o
    def Kf(self, t): return f"a[{4*t}:{4*t+3}]" if t < 8 else f"v[{232+4*(t-8)}:{235+4*(t-8)}]"
    def Vf(self, t, h): return f"a[{32+8*t+4*h}:{35+8*t+4*h}]" if t < 8 else f"v[{240+8*(t-8)+4*h}:{243+8*(t-8)+4*h}]"
    def maxreduce(self, src, dst, init=None):
        o = []
        if init is None: o.append(f"v_max3_f32 v{dst}, v{src}, v{src+1}, v{src+2}"); rest = list(range(src+3, src+16))
        else: rest = list(range(src, src+16))
        while len(rest) >= 2: o.append(f"v_max3_f32 v{dst}, v{dst}, v{rest[0]}, v{rest[1]}"); rest = rest[2:]
        if rest: o.append(f"v_max_f32 v{dst}, v{dst}, v{rest[0]}")
        return o
    def finish_max(self, m, b, bias, tmp):
        o = [[f"v_mov_b32 v{tmp}, v{m}", "s_nop 1", f"v_permlane32_swap_b32 v{m}, v{tmp}", "s_nop 1", f"v_max_f32 v{m}, v{m}, v{tmp}"]]
        if bias: o.append([f"v_add_f32 v{m}, {bias}, v{m}"])
        o.append([f"v_sub_f32 v{m}, 0, v{m}"])
        return o + [[f"v_mov_b32 v{A_CN[b]+r}, v{m}"] for r in range(16)]
    VM = ["s_mov_b32 exec_lo, 0x1ffff", "s_mov_b32 exec_hi, 0x1ffff"]
    def conv_fillers(self):
        F = []
        one = lambda l: F.extend([[x] for x in l])
        QF, MD, MK = A_QF, A_MD, A_MK
        F += [None]*3
        F.append([f"s_add_u32 s{ST+1}, s{S_KVO}, {KVS}"])
        for b in range(2): one([f"v_cvt_pk_bf16_f32 v{232+4*b+p}, v{160+16*b+8+2*p}, v{160+16*b+8+2*p+1}" for p in range(4)])
        F.append([f"buffer_store_dwordx4 v[232:235], v{V_L16}, {WS}, s{S_KVO} offen sc1 ; @kvst"])
        one([f"v_cvt_pk_bf16_f32 v{240+p}, v{192+2*p}, v{192+2*p+1}" for p in range(8)])
        F.append([f"buffer_store_dwordx4 v[236:239], v{V_L16}, {WS}, s{ST+1} offen sc1 ; @kvst"])
        one([f"v_cvt_pk_bf16_f32 v{248+p}, v{208+2*p}, v{208+2*p+1}" for p in range(8)])
        ones = lambda r0: ["s_mov_b32 exec_lo, 0x10000", "s_mov_b32 exec_hi, 0x10000"] + [f"v_mov_b32 v{r}, 0x3f803f80" for r in range(r0, r0+8)]
        F.append(ones(240) + ["s_mov_b64 exec, -1", "s_nop 0"] + [f"buffer_store_dwordx4 v[{240+4*h}:{243+4*h}], v{V_VV}, {WS}, s{S_KVO} offen offset:{1024+640*h} sc1 ; @kvst" for h in range(2)])
        F.append(None)
        F.append(ones(248) + ["s_mov_b64 exec, -1", "s_nop 0"] + [f"buffer_store_dwordx4 v[{248+4*h}:{251+4*h}], v{V_VV}, {WS}, s{ST+1} offen offset:{1024+640*h} sc1 ; @kvst" for h in range(2)])
        F.append([f"s_mov_b32 s{ST+3}, 4096", f"buffer_load_dwordx4 v[{MK}:{MK+3}], v{V_L16}, s[{ST+4}:{ST+7}], s{ST+3} offen ; @mk", f"buffer_load_dwordx4 v[{MK+4}:{MK+7}], v{V_L16}, s[{ST+4}:{ST+7}], s{ST+3} offen offset:1024 ; @mk"])
        F.append([f"s_mov_b32 s{ST+2}, {hex(f2u(QSCALE))}"])
        for b in range(2):
            one([f"v_mul_f32 v{160+16*b+r}, s{ST+2}, v{160+16*b+r}" for r in range(8)])
            one([f"v_cvt_pk_bf16_f32 v{224+4*b+p}, v{160+16*b+2*p}, v{160+16*b+2*p+1}" for p in range(4)])
        one(["v_lshrrev_b32 v2, 4, v1", "v_and_b32 v3, 7, v1", "v_lshrrev_b32 v6, 1, v3", "v_xor_b32 v6, v6, v2", "v_lshlrev_b32 v6, 5, v6", "v_and_b32 v3, 1, v3", "v_lshl_add_u32 v6, v3, 4, v6",
             "v_lshrrev_b32 v3, 3, v1", "v_lshl_add_u32 v176, v3, 10, v6", "v_add_u32 v177, 7168, v176", "v_add_u32 v178, 14336, v176", "v_add_u32 v179, 21504, v176"])
        F.append('WO')
        T = 208
        F.append([f"{MF32} v[{T}:{T+15}], {self.Kf(8)}, v[{QF[0]}:{QF[0]+3}], v[{MD}:{MD+15}]"]); F.append(13)
        one(self.maxreduce(T, 2))
        F.append([f"{MF32} v[{T}:{T+15}], {self.Kf(8)}, v[{QF[1]}:{QF[1]+3}], 0"])
        F.append([f"s_mov_b32 s{ST+2}, 0x42800000"])
        F += self.finish_max(2, 0, f"s{ST+2}", 3)
        one(self.maxreduce(T, 2))
        F.append([f"{MF32} v[{T}:{T+15}], {self.Kf(9)}, v[{QF[1]}:{QF[1]+3}], v[{MD}:{MD+15}]"]); F.append(13)
        one(self.maxreduce(T, 2, init=2))
        F += self.finish_max(2, 1, f"s{ST+2}", 3)
        return F
    def halo_groups(self, p):
        g = []
        for tau in (7-2*p, 6-2*p):
            off = (tau - 8) * KVS
            g.append([f"s_sub_u32 s{ST+6}, s{S_KVO}, {-off}", f"buffer_load_dwordx4 a[{4*tau}:{4*tau+3}], v{V_L16}, {WS}, s{ST+6} offen sc1 ; @pair{p}"])
            g.append([f"buffer_load_dwordx4 a[{32+8*tau}:{35+8*tau}], v{V_VV}, {WS}, s{ST+6} offen offset:1024 sc1 ; @pair{p}",
                      f"buffer_load_dwordx4 a[{36+8*tau}:{39+8*tau}], v{V_VV}, {WS}, s{ST+6} offen offset:1664 sc1 ; @pair{p}"])
        return g
    def conv(self):
        a = self.a
        wo = []
        for n in range(16):
            pre = [f"s_add_u32 m0, s{S_WOM}, {(n//4)*4096}", f"s_add_u32 s{ST+9}, s{S_WOO}, {(n//4)*32768}"] if n % 4 == 0 else []
            wo.append(pre + [f"buffer_load_dwordx4 v{176 + n%4}, {S4(SRD_WO)}, s{ST+9} offen offset:{(n%4)*1024} lds ; @wo"])
        a("s_waitcnt lgkmcnt(0)")
        self.stamp('convstart')
        nwo = 0
        GPOST = next((int(x[2:]) for x in self.exp if x.startswith('gp')), 40)
        GPOLL = next((int(x[2:]) for x in self.exp if x.startswith('gq')), 110)
        for n in range(4):
            m = self.conv_mfmas(n & 1, n == 0)
            rd = self.conv_reads((n+1) & 1, n+1) if n < 3 else []
            for i, ins in enumerate(m):
                gi = 36*n + i
                a(ins)
                if rd: a(rd.pop(0))
                if gi % 6 == 3 and nwo < 16 and 'wolate' not in self.exp: a(J(wo[nwo])); nwo += 1
                if gi == GPOST: a("s_waitcnt vmcnt(@kvst)"); a(self.flag(S_F2P, 'f2f')); a(self.flag(S_F5P, 'f5f'))
                if gi == GPOLL: a(self.poll_ld(S_PF2, 'pf2', 218))
            if n < 3: a("s_waitcnt lgkmcnt(0)")
        assert nwo == 16 or 'wolate' in self.exp
        self.wo_groups = wo
        self.stamp('convmfma')
        a("s_waitcnt vmcnt(@pf2)")
        self.poll_check(S_PF2, f"s{S_NHM}", 'f2', vt=218, cnt=202)
        self.stamp('f2seen')
        for g in self.halo_groups(0): a(J(g))
        with Cap(a) as cap: self.conv_epilogue()
        body = cap.out
        out = []
        for x in body:
            if x.startswith('s_cmp_lg_u32 s71'): out.append(';#noint')
            out.append(x)
            if x.startswith('L_rhojoin'): out.append(';#int')
        a(J(safe_interleave(out, self.halo_groups(1), every=14, start=10)))
    def conv_epilogue(self):
        a = self.a
        Lr1 = a.label('rho1'); Lj = a.label('rhojoin')
        a(f"s_lshl_b32 s{ST}, s{S_WAVE}, 12\ns_add_u32 s{ST}, s{ST}, {EX}\nv_add_u32 v5, s{ST}, v{V_L16}\nv_xor_b32 v6, 0x1000, v5")
        a(f"s_cmp_lg_u32 s{S_RHO}, 0\ns_cbranch_scc1 {Lr1}")
        for t in range(4): a(f"ds_write_b128 v5, a[{CACC+16+4*t}:{CACC+19+4*t}] offset:{1024*t}")
        for r in range(16): a(f"v_accvgpr_read_b32 v{32+r}, a{CACC+r}")
        a(f"s_branch {Lj}\n{Lr1}:")
        for t in range(4): a(f"ds_write_b128 v5, a[{CACC+4*t}:{CACC+4*t+3}] offset:{1024*t}")
        for r in range(16): a(f"v_accvgpr_read_b32 v{32+r}, a{CACC+16+r}")
        a(f"{Lj}:")
        a(f"s_lshr_b32 s{ST}, s{S_WAVE}, 1\ns_mul_i32 s{ST}, s{ST}, {UC}\ns_lshl_b32 s{ST+2}, s{S_RHO}, 11\ns_sub_u32 s{ST}, s{ST}, s{ST+2}\ns_add_u32 s{ST}, s{ST}, {U + 4088 - 1536}")
        a(f"v_and_b32 v2, 15, v1\nv_lshrrev_b32 v3, 4, v1\nv_lshlrev_b32 v2, 5, v2\nv_lshl_add_u32 v2, v3, 3, v2\nv_sub_u32 v3, s{ST}, v2")
        for tl in range(4): a(f"ds_read_b64 v[{48+2*tl}:{49+2*tl}], v3 offset:{512*(3-tl)}")
        a(f"s_lshl_b32 s{ST+1}, s{S_WAVE}, 11\ns_add_u32 s{ST+1}, s{ST+1}, {TP}\nv_add_u32 v2, s{ST+1}, v2\nv_add_u32 v3, s{ST+1}, v{V_L16}")
        a("s_waitcnt lgkmcnt(0)\ns_barrier")
        for t in range(4): a(f"ds_read_b128 v[{16+4*t}:{19+4*t}], v6 offset:{1024*t}")
        for tl in range(4):
            lo, hi = 48+2*tl, 49+2*tl
            a(f"v_and_b32 v56, 0xffff0000, v{hi}\nv_lshlrev_b32 v57, 16, v{hi}\nv_and_b32 v58, 0xffff0000, v{lo}\nv_lshlrev_b32 v59, 16, v{lo}")
            for r in range(4): a(f"v_fmac_f32 v{32+4*tl+r}, s{S_DV}, v{56+r}")
        a("s_waitcnt lgkmcnt(0)")
        for tl in range(4):
            acc = 32 + 4*tl; px = 16 + 4*tl
            for r in range(4): a(f"v_add_f32 v{acc+r}, v{acc+r}, v{px+r}")
            a(f"v_cvt_pk_bf16_f32 v{60+2*tl}, v{acc}, v{acc+1}\nv_cvt_pk_bf16_f32 v{61+2*tl}, v{acc+2}, v{acc+3}")
            a(f"ds_write_b64 v2, v[{60+2*tl}:{61+2*tl}] offset:{512*tl}")
        a("s_waitcnt lgkmcnt(0)")
        a("ds_read_b128 v[208:211], v3\nds_read_b128 v[212:215], v3 offset:1024")

    def attention(self):
        a = self.a
        S, P, CN, O, MD, MK, QF = A_S, A_P, A_CN, A_O, A_MD, A_MK, A_QF
        Kf, Vf = self.Kf, self.Vf
        items = [(0, 8, 'D'), (1, 9, 'D'), (1, 8, None)]
        pairs = [[(0,7,None),(1,7,None),(0,6,None),(1,6,None)], [(0,5,None),(1,5,None),(0,4,None),(1,4,None)],
                 [(0,3,None),(1,3,None),(0,2,None),(1,2,None)], [(0,1,None),(1,1,'F'),(0,0,'F')]]
        allitems = items + [x for p in pairs for x in p]
        def smfma(n):
            b, t, m = allitems[n]
            return f"{MF32} v[{S[n&1]}:{S[n&1]+15}], {Kf(t)}, v[{QF[b]}:{QF[b]+3}], v[{CN[b]}:{CN[b]+15}]"
        a("s_waitcnt lgkmcnt(0)")
        a(f"buffer_store_dwordx4 v[208:211], v{V_L16}, {WS}, s{S_ZTO} offen sc1 ; @zst")
        a(f"buffer_store_dwordx4 v[212:215], v{V_L16}, {WS}, s{S_ZTO} offen offset:1024 sc1 ; @zst")
        Lmain = a.label('attn_main'); Ldone = a.label('attn_done'); Lfb = a.label('attn_fallback'); Lok = a.label('attn_ok'); Lj0 = a.label('attn_j0')
        self.stamp('attnstart')
        a(f"{Lmain}:")
        first_pv = {0: True, 1: True}
        pair_start = {}; n = len(items)
        for pi, p in enumerate(pairs): pair_start[n] = pi; n += len(p)
        late = {0: self.halo_groups(2)[:2], 1: self.halo_groups(2)[2:], 3: self.halo_groups(3)[:2], 4: self.halo_groups(3)[2:],
                2: [[f"buffer_load_dwordx4 v[{self.QR}:{self.QR+3}], v222, {S4(SRD_Q)}, s{S_QO} offen {self.NT}; @q"], [f"buffer_load_dwordx4 v[{self.QR+4}:{self.QR+7}], v222, {S4(SRD_Q)}, s{S_QO} offen offset:16 {self.NT}; @q"]],
                15: [[self.poll_ld(S_PF3, 'pf3', 218)], [self.poll_ld(S_PF5, 'pf5', 220)]]}
        if 'wolate' in self.exp:
            w = self.wo_groups
            for k, it in enumerate(range(5, 13)):
                late[it] = late.get(it, []) + [w[2*k], w[2*k+1]]
        if 'f5early' in self.exp:
            late[15] = [[self.poll_ld(S_PF3, 'pf3', 218)]]
            late[5] = [[self.poll_ld(S_PF5, 'pf5', 220)]]
        if 'f3early' in self.exp:
            late[13] = late[15]; del late[15]
        a(smfma(0))
        a("v_and_b32 v4, 15, v1\nv_lshrrev_b32 v5, 4, v1\nv_lshlrev_b32 v4, 10, v4\nv_lshl_add_u32 v222, v5, 5, v4")
        a(f"v_mov_b32 v218, 0\nv_mov_b32 v219, 0\nv_mov_b32 v220, 0\nv_mov_b32 v221, 0")
        a("v_lshrrev_b32 v4, 3, v1\nv_and_b32 v5, 7, v1\nv_lshlrev_b32 v223, 12, v4\nv_lshl_add_u32 v223, v5, 4, v223")
        pvp = []; N = len(allitems)
        for n, (b, t, m) in enumerate(allitems):
            s = S[n & 1]; p = P[n & 1]; nxt = n + 1
            lg = list(late.get(n, []))
            ex = lambda r0, r1: [a(f"v_exp_f32 v{s+r}, v{s+r}") for r in range(r0, r1)]
            ex(0, 2)
            if pvp: a(pvp[0])
            ex(2, 5)
            if pvp: a(pvp[1])
            pvp = []
            if lg: a(J(lg.pop(0)))
            ex(5, 9)
            if nxt < N:
                if nxt in pair_start:
                    pi = pair_start[nxt]
                    a(f"s_waitcnt vmcnt(@pair{pi})" if pi != 1 else "s_waitcnt vmcnt(@zst)")
                    if pi == 1: a(self.flag(S_F3P))
                a(smfma(nxt))
            ex(9, 13)
            if lg: a(J(lg.pop(0)))
            ex(13, 16)
            for r in range(8): a(f"v_cvt_pk_bf16_f32 v{p+r}, v{s+2*r}, v{s+2*r+1}")
            if m == 'D':
                for r in range(8): a(f"v_and_b32 v{p+r}, v{MK+r}, v{p+r}")
            elif m == 'F':
                for r in range(8): a(f"v_bfi_b32 v{p+r}, v{MK+r}, 0, v{p+r}")
            c = "0" if first_pv[b] else f"v[{O[b]}:{O[b]+15}]"
            first_pv[b] = False
            pv = [f"{MF32} v[{O[b]}:{O[b]+15}], {Vf(t,0)}, v[{p}:{p+3}], {c}", f"{MF32} v[{O[b]}:{O[b]+15}], {Vf(t,1)}, v[{p+4}:{p+7}], v[{O[b]}:{O[b]+15}]"]
            if nxt in pair_start or nxt == N:
                a("s_nop 1"); a(pv[0]); a(pv[1])
                if nxt in pair_start:
                    pi = pair_start[nxt]
                    a(f"s_cmp_le_u32 s{S_NH}, {pi}\ns_cbranch_scc1 {Lj0 if pi == 0 else Ldone}")
            else: pvp = pv
        a(f"{Ldone}:")
        self.stamp('attndone')
        a("s_nop 7\ns_nop 3")
        for b in range(2): a(f"v_mov_b32 v{2+b}, v{O[b]+8}\nv_mov_b32 v4, v{O[b]+8}\ns_nop 1\nv_permlane32_swap_b32 v{2+b}, v4")
        a(f"s_mov_b32 s{ST}, 0x71800000")
        a(f"v_max_f32 v4, v2, v3\ns_nop 0\nv_cmp_gt_f32 vcc, s{ST}, v4")
        a(f"s_nop 3\ns_mov_b64 s[{ST+2}:{ST+3}], vcc\nv_cmp_o_f32 vcc, v2, v3\ns_nop 4\ns_and_b64 s[{ST+2}:{ST+3}], s[{ST+2}:{ST+3}], vcc")
        a(f"s_cmp_lg_u32 s{S_FB}, 0\ns_cbranch_scc1 {Lok}")
        a(f"s_cmp_eq_u64 s[{ST+2}:{ST+3}], -1\ns_cbranch_scc0 {Lfb}\n{Lok}:")
        with Cap(a) as cap:
            a(f"{Lj0}:")
            a("s_waitcnt vmcnt(0)"); a(self.flag(S_F3P)); a(f"s_branch {Ldone}")
            a(f"{Lfb}:")
            a(f"s_mov_b32 s{ST}, {hex(NEG)}")
            for r in range(16): a(f"v_sub_f32 v{128+r}, s{ST}, v{MD+r}")
            a(f"v_mov_b32 v2, s{ST}\nv_mov_b32 v3, s{ST}\ns_waitcnt vmcnt(0)")
            Lf = a.label('fb_done')
            for (b, t, m) in sorted(allitems, key=lambda x: -x[1]):
                if t < 8 and (t % 2 == 1) and b == 0: a(f"s_cmp_le_u32 s{S_NH}, {(7-t)//2}\ns_cbranch_scc1 {Lf}")
                c = {None: "0", 'D': f"v[{MD}:{MD+15}]", 'F': "v[128:143]"}[m]
                a(f"{MF32} v[16:31], {Kf(t)}, v[{QF[b]}:{QF[b]+3}], {c}\ns_nop 7\ns_nop 3")
                a(J(self.maxreduce(16, 2+b, init=2+b))); a("s_nop 7")
            a(f"{Lf}:")
            for g in self.finish_max(2, 0, None, 4) + self.finish_max(3, 1, None, 4): a(J(g))
            a(f"s_mov_b32 s{S_FB}, 1\ns_branch {Lmain}")
        self.tail_blocks.append(cap.out)

    def tail(self):
        a = self.a
        O = A_O
        if 'wolate' in self.exp:
            Lw = a.label('wo_done')
            a(f"s_cmp_ge_u32 s{S_NH}, 3\ns_cbranch_scc1 {Lw}")
            for g in self.wo_groups: a(J([x.replace('; @wo', '; @cond') for x in g]))
            a(f"s_waitcnt vmcnt(0)\n{Lw}:")
        a("v_rcp_f32 v2, v2\nv_rcp_f32 v3, v3")
        for b in range(2):
            for r in range(8): a(f"v_mul_f32 v{O[b]+r}, v{O[b]+r}, v{2+b}")
            for p in range(4): a(f"v_cvt_pk_bf16_f32 v{16+4*b+p}, v{O[b]+2*p}, v{O[b]+2*p+1}")
            if b == 1: a(f"s_add_u32 s{ST+1}, s{S_OFS}, 32768")
            if b == 0 and 'zfirst' in self.exp: continue
            if b == 1 and 'zfirst' in self.exp: continue
            a(f"buffer_store_dwordx4 v[{16+4*b}:{19+4*b}], v{V_OF}, {WS}, s{S_OFS if b == 0 else ST+1} offen sc1 ; @ost")
        zf = 'zfirst' in self.exp
        a("s_waitcnt vmcnt(0)" if zf else "s_waitcnt vmcnt(2)")
        self.poll_check(S_PF3, "0xffff", 'f3', vt=218, cnt=203)
        a(f"s_add_u32 s{ST+6}, s{S_ZLD}, {8*4096}")
        a(f"buffer_load_dwordx4 v[64:67], v223, {WS}, s{S_ZLD} offen sc1 ; @z")
        a(f"buffer_load_dwordx4 v[68:71], v223, {WS}, s{ST+6} offen sc1 ; @z")
        if zf:
            a(f"buffer_store_dwordx4 v[16:19], v{V_OF}, {WS}, s{S_OFS} offen sc1 ; @ost")
            a(f"buffer_store_dwordx4 v[20:23], v{V_OF}, {WS}, s{ST+1} offen sc1 ; @ost")
        self.stamp('ostored')
        self.poll_check(S_PF5, "-1", 'f5', vt=220, cnt=204)
        a(f"s_lshl_b32 s{ST}, s{S_WAVE}, 11\ns_add_u32 s{ST}, s{ST}, {TP}\nv_add_u32 v25, s{ST}, v{V_L16}")
        a(f"v_lshrrev_b32 v6, 4, v1\nv_bfe_u32 v3, v1, 2, 2\nv_lshl_add_u32 v4, v6, 4, v3\nv_lshlrev_b32 v4, 7, v4\nv_and_b32 v5, 3, v1\nv_lshl_add_u32 v4, v5, 3, v4\ns_lshl_b32 s{ST}, s{S_WAVE}, 5\ns_add_u32 s{ST}, s{ST}, {TP}\nv_add_u32 v26, s{ST}, v4")
        a(f"v_and_b32 v4, 15, v1\nv_lshlrev_b32 v4, 11, v4\nv_lshl_add_u32 v27, v6, 5, v4")
        for i in range(8): a(f"v_lshlrev_b32 v{32+2*i}, 16, v{self.QR+i}\nv_and_b32 v{33+2*i}, 0xffff0000, v{self.QR+i}")
        a("v_lshrrev_b32 v2, 5, v1\nv_bfe_u32 v4, v1, 4, 1\nv_lshlrev_b32 v6, 4, v2\nv_lshl_add_u32 v6, v4, 2, v6\nv_add_u32 v6, v6, v3\nv_lshlrev_b32 v6, 7, v6\nv_lshl_add_u32 v6, v5, 3, v6")
        a("v_lshrrev_b32 v3, 1, v3\nv_lshl_add_u32 v3, v4, 1, v3")
        for t in range(4): a(f"v_xor_b32 v5, {t}, v3\nv_lshl_add_u32 v{84+t}, v5, 5, v6")
        a("v_and_b32 v5, 15, v1\nv_lshlrev_b32 v30, 11, v5\nv_lshl_add_u32 v30, v4, 5, v30\nv_lshl_add_u32 v30, v2, 4, v30")
        rd = [f"ds_read_b64_tr_b16 a[{16*m+4*t_+2*e}:{16*m+4*t_+2*e+1}], v{84+t_} offset:{m*4096 + e*1024}" for m in range(16) for t_ in range(4) for e in range(2)]
        a(J(rd))
        a("s_waitcnt vmcnt(@z)")
        a("ds_write_b128 v25, v[64:67]\nds_write_b128 v25, v[68:71] offset:1024")
        a("s_waitcnt lgkmcnt(0)\ns_barrier")
        self.stamp('zlds')
        for n in range(4): a(f"ds_read_b64_tr_b16 v[{48+2*n}:{49+2*n}], v26 offset:{512*n}")
        OF = 96
        def ofld(m, tag=True, force=False):
            pre = [f"s_add_u32 s{ST+6}, s{S_OFL}, {(m//4)*4096}"] if (m % 4 == 0 or force) else []
            return pre + [f"buffer_load_dwordx4 v[{OF+4*m}:{OF+4*m+3}], v{V_L16}, {WS}, s{ST+6} offen offset:{1024*(m%4)} sc1" + (f" ; @of{m}" if tag else " ; @cond")]
        a("s_waitcnt lgkmcnt(0)")
        comp = []
        for i in range(8): comp += [f"v_lshlrev_b32 v{64+2*i}, 16, v{48+i}", f"v_and_b32 v{65+2*i}, 0xffff0000, v{48+i}"]
        comp += [f"v_mul_f32 v{32+i}, v{32+i}, v{64+i}" for i in range(16)]
        comp += [f"v_cvt_pk_bf16_f32 v{16+i}, v{32+2*i}, v{33+2*i}" for i in range(8)]
        a(J(interleave(comp, [ofld(m) for m in range(16)], every=3)))
        a(f"buffer_store_dwordx4 v[16:19], v27, {S4(SRD_OUT)}, s{S_BOUT} offen{self.OUTF} ; @bst")
        a(f"buffer_store_dwordx4 v[20:23], v27, {S4(SRD_OUT)}, s{S_BOUT} offen offset:16{self.OUTF} ; @bst")
        self.stamp('ofissued')
        a(f"s_mov_b32 s{S_TMO}, 0")
        Lrl = [a.label(f'of_reload{k}') for k in range(4)]
        for m in range(16):
            r = OF + 4*m
            Lc = a.label(f'ofchk{m}'); Lk = a.label(f'ofok{m}')
            a(f"s_waitcnt vmcnt(@of{m})")
            a(f"v_max3_u32 v31, v{r}, v{r+1}, v{r+2}\nv_max_u32 v31, v31, v{r+3}\nv_cmp_eq_u32 vcc, -1, v31")
            if m > 0:
                for t_ in range(4):
                    c = "0" if m-1 == 0 else f"v[{64+4*t_}:{67+4*t_}]"
                    a(f"{MF16} v[{64+4*t_}:{67+4*t_}], a[{16*(m-1)+4*t_}:{16*(m-1)+4*t_+3}], v[{r-4}:{r-1}], {c}")
            else: a("s_nop 3")
            a(f"s_cbranch_vccnz {Lc}_r\n{Lk}:")
            with Cap(a) as cap:
                a(f"{Lc}_r:")
                a(f"s_call_b64 s[30:31], {Lrl[m//4]}")
                a(f"s_cbranch_scc1 {Lk}")
                a(f"v_max3_u32 v31, v{r}, v{r+1}, v{r+2}\nv_max_u32 v31, v31, v{r+3}\nv_cmp_eq_u32 vcc, -1, v31\ns_nop 3\ns_cbranch_vccnz {Lc}_r\ns_branch {Lk}")
            self.tail_blocks.append(cap.out)
        for t_ in range(4): a(f"{MF16} v[{64+4*t_}:{67+4*t_}], a[{16*15+4*t_}:{16*15+4*t_+3}], v[{OF+60}:{OF+63}], v[{64+4*t_}:{67+4*t_}]")
        with Cap(a) as cap:
            for k in range(4):
                a(f"{Lrl[k]}:")
                if self.SLEEP: a(f"s_sleep {self.SLEEP}")
                for m in range(4*k, 16): a(J(ofld(m, False)))
                a("s_waitcnt vmcnt(0)")
                a(f"s_add_u32 s{S_TMO}, s{S_TMO}, 1\ns_cmp_gt_u32 s{S_TMO}, 0x8000\ns_setpc_b64 s[30:31]")
        self.tail_blocks.append(cap.out)
        self.count(206)

        a("s_nop 7")
        for t in range(4): a(f"v_cvt_pk_bf16_f32 v{88+2*t}, v{64+4*t}, v{65+4*t}\nv_cvt_pk_bf16_f32 v{89+2*t}, v{66+4*t}, v{67+4*t}")
        a("s_nop 1\nv_permlane16_swap_b32 v88, v90\nv_permlane16_swap_b32 v89, v91\nv_permlane16_swap_b32 v92, v94\nv_permlane16_swap_b32 v93, v95\ns_nop 1")
        a(f"buffer_store_dwordx4 v[88:91], v30, {S4(SRD_OUT)}, s{S_AOUT} offen{self.OUTF}")
        a(f"buffer_store_dwordx4 v[92:95], v30, {S4(SRD_OUT)}, s{S_AOUT} offen offset:64{self.OUTF}")
        self.stamp('end')

    def mask_table(self):
        rows = []
        for blk in range(6):
            for l in range(64):
                q = l & 31; hi = l >> 5; vals = []
                for e in range(4):
                    r = 4*blk + e
                    if r < 16:
                        key = 8*(r // 4) + 4*hi + (r % 4)
                        vals.append(0 if key <= q else NEG)
                    else:
                        p = r - 16; k = 8*(p // 2) + 4*hi + 2*(p % 2)
                        vals.append((0xffff if k <= q else 0) | (0xffff0000 if k + 1 <= q else 0))
                rows.append(".long " + ", ".join(hex(v) for v in vals))
        return rows

    def build(self):
        a = self.a
        self.startup(); self.pre(); self.qkv(); self.conv(); self.attention(); self.tail()
        self.dump_stamps()
        a("L_end:\ns_endpgm")
        a.lines = resolve_vmcnt(a.lines)
        for blk in self.tail_blocks: a.lines += blk
        probs = check_hazards(a.lines)
        for p in probs[:12]: print(p, file=sys.stderr)
        a(".p2align 6\nL_masktab:")
        a.lines += self.mask_table()
        a("L_codeend:")
        hdr = open('cdna_kernels/' + NAME + '.s.ref').read().split('\n')
        cm = [l for l in hdr if l.startswith(';') and '@launch' not in l and 'Override' not in l and 'grid=ceil' not in l][:13]
        head = J(cm) + f"\n; @launch grid=(256,1,1) block=(256,1,1) lds={LDS_BYTES}\n"
        head += f'.amdgcn_target "amdgcn-amd-amdhsa--gfx950"\n.text\n.globl {NAME}_kernel\n.p2align 8\n.type {NAME}_kernel,@function\n{NAME}_kernel:\n'
        tail = f'''.section .rodata,"a"
.p2align 6
.amdhsa_kernel {NAME}_kernel
  .amdhsa_next_free_vgpr 512
  .amdhsa_next_free_sgpr 102
  .amdhsa_accum_offset 256
  .amdhsa_group_segment_fixed_size 0
  .amdhsa_kernarg_size 96
  .amdhsa_user_sgpr_count 2
  .amdhsa_user_sgpr_kernarg_segment_ptr 1
  .amdhsa_system_sgpr_workgroup_id_x 1
.end_amdhsa_kernel
'''
        return head + a.text() + tail, len(probs), self.stamp_slots

if __name__ == '__main__':
    ap = argparse.ArgumentParser()
    ap.add_argument('-o', default='cdna_kernels/' + NAME + '.s')
    ap.add_argument('--stamps', default=''); ap.add_argument('--exp', default='')
    args = ap.parse_args()
    g = Gen(stamps=[x for x in args.stamps.split(',') if x], exp=args.exp)
    txt, np_, slots = g.build()
    open(args.o, 'w').write(txt)
    print('wrote', args.o, 'lines', txt.count('\n'), 'hazards', np_, 'stamps', slots)
```

```python
import sys, argparse, struct
from asmlib import *

NAME = "concat_heads__sliding_block__ssm_conv_h3__prompt"
import os
FS = int(os.environ.get('FS', 4))
WS_F1, WS_F2, WS_F3, WS_F5 = 0x00000, 0x20000, 0x40000, 0x60000
WS_KVT = 0x100000; WS_ZT = 0x300000; WS_KV = 0x500000; WS_OF = 0xA00000
import os
KVS = int(os.environ.get('KVS', 2304))
WS_STAMP = 0xC00000; WS_SIZE = 0xC40000
TZ = 98304; TZC = 4160
U = TZ + 8*TZC; UC = 4608
TP = U + 2*UC
WSH = TP + 8192
LDS_BYTES = WSH + 1024
EX = 65536
S_WAVE, S_XCD, S_I, S_J, S_P = 3, 4, 5, 6, 7
SRD_X, SRD_W, SRD_K, SRD_V, SRD_Q, SRD_H, SRD_WO, SRD_OUT, SRD_WS, SRD_DBG, SRD_SH = 8,12,16,20,24,28,32,36,40,44,48
S_T = 52; S_D = 54; S_TMO = 55
PTR = 56
S_HT = 72
S_XOFF, S_WOFF, S_M0B, S_NH = 80, 81, 82, 83
ST = 84
S_FB = 94; S_HEAD = 95
S_SEL0, S_SEL1 = 96, 97
S_M0W = 98; S_OFS = 99
S_F1P, S_F2P, S_F5P, S_F3P, S_PF1, S_PF2, S_PF3, S_PF5 = 16, 17, 18, 19, 20, 21, 22, 23
S_KVO, S_ZTO, S_ZLD, S_BOUT, S_AOUT, S_OFL, S_QO, S_WOO, S_WOM, S_UO, S_NHM, S_DV = 56, 57, 58, 59, 60, 61, 62, 63, 66, 67, 68, 69
S_SPEC = 64
S_CH, S_RHO = 70, 71
QSCALE = 0.25 * 1.4426950408889634
def f2u(x): return struct.unpack('<I', struct.pack('<f', x))[0]
def S4(b): return f"s[{b}:{b+3}]"
WS, DBG = S4(SRD_WS), S4(SRD_DBG)
MF32 = "v_mfma_f32_32x32x16_bf16"; MF16 = "v_mfma_f32_16x16x32_bf16"
NEG = 0xf149f2ca
A_S = [16, 32]; A_P = [48, 56]; A_CN = [184, 160]; A_O = [96, 112]; A_MD = 144; A_MK = 200; A_QF = [224, 228]
CACC = 96
V_T = 8; V_FL = 10; V_VV = 11; V_OF = 12; V_L16 = 13; V_CA = 14; V_CB = 15; V_PL = 7
J = '\n'.join
OOB = 0x7ff00000

class Gen:
    STAMP_REGS = [48, 50, 72, 74, 76, 78, 28, 24] if True else []
    def __init__(self, stamps=None, exp=''):
        self.a = Asm(); self.stamps = stamps or []; self.exp = exp.split(',')
        self.stamp_slots = []; self.tail_blocks = []
        self.NT = '' if 'nont' in self.exp else 'nt '
        self.OUTF = ' sc1' if 'outsc1' in self.exp else (' nt' if 'outnt' in self.exp else (' sc0 sc1' if 'outsys' in self.exp else ''))
        self.QR = 72 if 'wolate' in self.exp else 176
        self.SLEEP = next((int(x[2:]) for x in self.exp if x.startswith('sl')), 2)

    def srd(self, base, ptr, size):
        return [f"s_mov_b32 s{base}, s{ptr}", f"s_mov_b32 s{base+1}, s{ptr+1}", f"s_mov_b32 s{base+2}, {size}", f"s_mov_b32 s{base+3}, 0x20000"]
    def stamp(self, name):
        if name not in self.stamps: return
        n = len(self.stamp_slots)
        assert n < (10 if 'blk' in self.exp else 6)
        r = self.STAMP_REGS[n]; self.stamp_slots.append(name)
        if 'blk' in self.exp:
            self.a(f"s_memtime s[92:93]\ns_waitcnt lgkmcnt(0)\nv_mov_b32 v254, s92\nv_accvgpr_write_b32 a{210+n}, v254")
        else:
            self.a(f"s_memtime s[{r}:{r+1}]")
    def dump_stamps(self):
        if not self.stamp_slots: return
        a = self.a
        a("s_waitcnt lgkmcnt(0)")
        if 'dbgs' in self.exp:
            L = a.label('dbgskip')
            a("s_waitcnt vmcnt(0)")
            a(f"s_cmp_lg_u32 s{S_WAVE}, 1\ns_cbranch_scc1 {L}\ns_cmp_lg_u32 s2, 109\ns_cbranch_scc1 {L}")
            a("v_mov_b32 v4, 8\ns_mov_b64 exec, 1")
            for n, r in enumerate(self.STAMP_REGS[:len(self.stamp_slots)]):
                a(f"s_sub_u32 s84, s{r}, s100\nv_mov_b32 v2, s84\nbuffer_store_dword v2, v4, {DBG}, 0 offen offset:{4*n}\ns_nop 1")
            a(f"s_mov_b64 exec, -1\n{L}:")
            return
        a(f"s_lshl_b32 s{ST}, s2, 2\ns_add_u32 s{ST}, s{ST}, s{S_WAVE}\ns_lshl_b32 s{ST}, s{ST}, 7\ns_add_u32 s{ST}, s{ST}, {WS_STAMP}")
        a(f"v_mov_b32 v3, s{ST}\ns_mov_b64 exec, 1")
        for n, r in enumerate([100] + self.STAMP_REGS[:len(self.stamp_slots)]):
            if 'blk' in self.exp and n > 0: a(f"v_accvgpr_read_b32 v2, a{210+n-1}\ns_nop 1\nbuffer_store_dword v2, v3, {WS}, 0 offen offset:{4*n}\ns_nop 1")
            else: a(f"v_mov_b32 v2, s{r}\nbuffer_store_dword v2, v3, {WS}, 0 offen offset:{4*n}\ns_nop 1")
        a(f"v_mov_b32 v2, s101\nbuffer_store_dword v2, v3, {WS}, 0 offen offset:120\ns_nop 1")
        a(f"s_memrealtime s[84:85]\ns_waitcnt lgkmcnt(0)\nv_mov_b32 v2, s84\nbuffer_store_dword v2, v3, {WS}, 0 offen offset:124\ns_nop 1")
        a("s_mov_b64 exec, -1")
    def count(self, k):
        return
        if self.stamps and 'dbgs' not in self.exp: self.a(f"v_mov_b32 v253, s{S_TMO}\nv_accvgpr_write_b32 a{k}, v253")
    def poll_ld(self, sbase, tag='', vt=4):
        return f"buffer_load_dwordx2 v[{vt}:{vt+1}], v{V_PL}, {WS}, s{sbase} offen sc1" + (f" ; @{tag}" if tag else "")
    def cmp_flags(self, mask, vt=4):
        return [f"v_cmp_ne_u64 vcc, s[{S_T}:{S_T+1}], v[{vt}:{vt+1}]", "s_nop 0", f"s_and_b32 vcc_lo, vcc_lo, {mask}"]
    def poll_check(self, sbase, mask, name, vt=4, cnt=None):
        a = self.a
        L = a.label(name); Ld = a.label(name+'_done'); Lc = a.label(name+'_chk')
        a(f"s_mov_b32 s{S_TMO}, 0\ns_branch {Lc}\n{L}:")
        if self.SLEEP: a(f"s_sleep {self.SLEEP}")
        a(self.poll_ld(sbase, 'cond', vt))
        a(f"s_waitcnt vmcnt(0)\n{Lc}:")
        a(f"s_add_u32 s{S_TMO}, s{S_TMO}, 1")
        a(J(self.cmp_flags(mask, vt)))
        a(f"s_cbranch_scc0 {Ld}\ns_cmp_lt_u32 s{S_TMO}, 0x20000\ns_cbranch_scc1 {L}\n{Ld}:")
        if cnt: self.count(cnt)
    def flag(self, sreg, tag='flag'):
        return f"buffer_store_dwordx2 v[{V_T}:{V_T+1}], v{V_FL}, {WS}, s{sreg} offen sc1 ; @{tag}"
    def dma_groups(self, s):
        buf = s % 3
        X, W = S4(SRD_X), S4(SRD_W)
        t = f" ; @dma{s}"
        if 'rot' in self.exp:
            px = [f"s_add_u32 s{ST+9}, s101, {s & 3}", f"s_and_b32 s{ST+9}, s{ST+9}, 3", f"s_mul_i32 s{ST+8}, s{ST+9}, {64*3072}", f"s_lshl_b32 s{ST+9}, s{ST+9}, 7",
                  f"s_add_u32 s{ST+9}, s{ST+9}, s{S_XOFF}", f"s_add_u32 s{ST+8}, s{ST+8}, s{S_WOFF}"]
            if s & 4: px += [f"s_add_u32 s{ST+9}, s{ST+9}, 512", f"s_add_u32 s{ST+8}, s{ST+8}, {4*64*3072}"]
            g0 = px + [f"s_add_u32 m0, s{S_M0B}, {buf*32768}", "s_nop 0", f"buffer_load_dwordx4 v100, {X}, s{ST+9} offen lds" + t]
            g2 = [f"s_add_u32 m0, s{S_M0W}, {buf*32768}", "s_nop 0", f"buffer_load_dwordx4 v102, {W}, s{ST+8} offen lds" + t]
        else:
            g0 = [f"s_add_u32 m0, s{S_M0B}, {buf*32768}", f"s_add_u32 s{ST+9}, s{S_XOFF}, {s*128}", f"buffer_load_dwordx4 v100, {X}, s{ST+9} offen lds" + t]
            g2 = [f"s_add_u32 m0, s{S_M0W}, {buf*32768}", f"s_add_u32 s{ST+8}, s{S_WOFF}, {s*64*3072}", f"buffer_load_dwordx4 v102, {W}, s{ST+8} offen lds" + t]
        return [g0,
                [f"buffer_load_dwordx4 v101, {X}, s{ST+9} offen offset:1024 lds" + t],
                g2,
                [f"buffer_load_dwordx4 v103, {W}, s{ST+8} offen offset:1024 lds" + t],
                [f"buffer_load_dwordx4 v102, {W}, s{ST+8} offen offset:2048 lds" + t, f"s_add_u32 m0, s{S_M0W}, {buf*32768 + 3072}"],
                ["s_nop 0", f"buffer_load_dwordx4 v248, {W}, s{ST+8} offen lds" + t] if s in (0, 1, 2) else [f"buffer_load_dwordx4 v248, {W}, s{ST+8} offen lds" + t],
                [f"buffer_load_dwordx4 v249, {W}, s{ST+8} offen offset:1024 lds" + t],
                [f"buffer_load_dwordx4 v248, {W}, s{ST+8} offen offset:2048 lds" + t]]

    def startup(self):
        a = self.a
        a("L_entry:")
        a(f"s_load_dwordx16 s[{PTR}:{PTR+15}], s[0:1], 0")
        a(f"s_load_dwordx8 s[{PTR+16}:{PTR+23}], s[0:1], 64")
        a(f"s_memrealtime s[{S_T}:{S_T+1}]")
        if self.stamps: a("s_memtime s[100:101]")
        a("s_cmp_ge_u32 s2, 256\ns_cbranch_scc1 L_end")
        a("s_getpc_b64 s[8:9]\nL_pc:")
        a("s_sub_u32 s8, s8, (L_pc - L_entry)\ns_subb_u32 s9, s9, 0\ns_mov_b32 s10, (L_codeend - L_entry)\ns_mov_b32 s11, 0x20000")
        a(f"s_lshr_b32 s{S_I}, s2, 3\ns_and_b32 s{ST}, s{S_I}, 7\ns_lshl_b32 s{ST}, s{ST}, 12\nv_lshlrev_b32 v2, 4, v0")
        a(f"buffer_load_dwordx4 v[216:219], v2, s[8:11], s{ST} offen")
        a("v_and_b32 v1, 63, v0\nv_lshrrev_b32 v2, 6, v0")
        a(f"s_and_b32 s{S_XCD}, s2, 7")
        a(f"v_readfirstlane_b32 s{S_WAVE}, v2")
        a("v_and_b32 v4, 7, v1\nv_lshrrev_b32 v5, 3, v1")
        a(f"s_lshl_b32 s{ST}, s{S_I}, 6\ns_lshl_b32 s{ST+2}, s{S_XCD}, 7\ns_lshl_b32 s{ST+1}, s{S_WAVE}, 4\ns_add_u32 s{ST}, s{ST}, s{ST+1}\ns_lshl_b32 s{ST}, s{ST}, 10\ns_add_u32 s{ST}, s{ST}, s{ST+2}")
        a(f"v_lshlrev_b32 v140, 11, v5\nv_lshl_add_u32 v140, v4, 4, v140\nv_add_u32 v140, s{ST}, v140")
        a("v_subrev_u32 v141, 3072, v140\nv_subrev_u32 v142, 2048, v140\nv_subrev_u32 v143, 1024, v140")
        if 'map3' in self.exp:
            a(f"s_and_b32 s{ST}, s{S_XCD}, 3\ns_lshl_b32 s{ST}, s{ST}, 3\ns_lshr_b32 s{ST+1}, s{S_I}, 2\ns_add_u32 s{S_J}, s{ST}, s{ST+1}")
            a(f"s_lshr_b32 s{ST}, s{S_XCD}, 2\ns_lshl_b32 s{ST}, s{ST}, 2\ns_and_b32 s{ST+1}, s{S_I}, 3\ns_add_u32 s{S_P}, s{ST}, s{ST+1}")
        elif 'map2' in self.exp:
            a(f"s_lshr_b32 s{ST}, s{S_XCD}, 1\ns_lshl_b32 s{ST}, s{ST}, 3\ns_lshr_b32 s{ST+1}, s{S_I}, 2\ns_add_u32 s{S_J}, s{ST}, s{ST+1}")
            a(f"s_and_b32 s{ST}, s{S_XCD}, 1\ns_lshl_b32 s{ST}, s{ST}, 2\ns_and_b32 s{ST+1}, s{S_I}, 3\ns_add_u32 s{S_P}, s{ST}, s{ST+1}")
        else:
            a(f"s_lshr_b32 s{ST}, s{S_XCD}, 1\ns_lshl_b32 s{ST}, s{ST}, 3\ns_and_b32 s{ST+1}, s{S_I}, 7\ns_add_u32 s{S_J}, s{ST}, s{ST+1}")
            a(f"s_and_b32 s{ST}, s{S_XCD}, 1\ns_lshl_b32 s{ST}, s{ST}, 2\ns_lshr_b32 s{ST+1}, s{S_I}, 3\ns_add_u32 s{S_P}, s{ST}, s{ST+1}")
        a(f"s_lshl_b32 s{ST}, s{S_XCD}, 9\nv_lshlrev_b32 v{V_L16}, 4, v1\nv_add_u32 v144, s{ST}, v{V_L16}")
        a("v_lshrrev_b32 v2, 4, v1\nv_xor_b32 v3, v4, v2\nv_lshlrev_b32 v3, 4, v3")
        a(f"s_lshl_b32 s{ST}, s{S_WAVE}, 14\nv_lshl_add_u32 v100, v5, 10, v3\nv_add_u32 v100, s{ST}, v100")
        a(f"v_xor_b32 v101, 64, v100\nv_add_u32 v101, {8192-1024}, v101")
        a("v_lshrrev_b32 v3, 1, v4\nv_and_b32 v2, 1, v2\nv_lshlrev_b32 v2, 1, v2\nv_xor_b32 v3, v3, v2\nv_lshlrev_b32 v3, 5, v3")
        a("v_and_b32 v2, 1, v4\nv_lshl_add_u32 v3, v2, 4, v3\nv_mul_u32_u24 v102, 3072, v5\nv_add_u32 v102, v102, v3\nv_xor_b32 v103, 32, v102")
        a("v_add_u32 v248, 24576, v102\nv_add_u32 v249, 24576, v103")
        a(f"s_lshl_b32 s{S_XOFF}, s{S_J}, 16")
        if 'rot' in self.exp: a(f"s_and_b32 s101, s{S_J}, 3")
        a(f"s_mul_i32 s{S_WOFF}, s{S_WAVE}, {16*3072}\ns_lshl_b32 s{ST}, s{S_P}, 7\ns_add_u32 s{S_WOFF}, s{S_WOFF}, s{ST}")
        a(f"s_lshl_b32 s{S_M0B}, s{S_WAVE}, 11\ns_mul_i32 s{S_M0W}, s{S_WAVE}, 6144\ns_add_u32 s{S_M0W}, s{S_M0W}, 8192")
        a("s_waitcnt lgkmcnt(0)")
        if self.stamps and 'dbgs' not in self.exp:
            a(f"s_mov_b32 s101, s{S_T}")
        a(J(self.srd(SRD_K, PTR+8, 2097152) + self.srd(SRD_V, PTR+10, 2097152) + self.srd(SRD_X, PTR+0, 2097152) + self.srd(SRD_W, PTR+2, 1572864)))
        Ln = a.label('nononce')
        a(f"s_or_b32 s{ST}, s2, s{S_WAVE}\ns_cmp_lg_u32 s{ST}, 0\ns_cbranch_scc1 {Ln}")
        a(J(self.srd(SRD_DBG, PTR+20, 256)))
        a(f"s_or_b32 s{S_T+1}, s{S_T+1}, 0x80000000")
        a(f"v_mov_b32 v14, s{S_T}\nv_mov_b32 v15, s{S_T+1}\nv_mov_b32 v2, 0\ns_mov_b64 exec, 1")
        a(f"buffer_store_dwordx2 v[14:15], v2, {DBG}, 0 offen sc1 ; @cond")
        a(f"s_mov_b64 exec, -1\n{Ln}:")
        K, V = S4(SRD_K), S4(SRD_V)
        for d, v, srd, off in ((28,140,K,0),(32,140,K,1024),(24,143,K,0),(20,142,K,0),(16,141,K,0),(36,140,V,0),(40,140,V,1024)):
            a(f"buffer_load_dwordx4 v[{d}:{d+3}], v{v}, {srd}, 0 offen offset:{off} {self.NT}; @kv")
        a(J(self.srd(SRD_SH, PTR+12, 4096)))
        a(f"s_mov_b32 m0, {WSH}\ns_mov_b32 exec_hi, 0")
        a(f"buffer_load_dwordx4 v144, {S4(SRD_SH)}, 0 offen lds ; @kv")
        a("s_mov_b32 exec_hi, -1")
        for g in self.dma_groups(0): a(J(g))
        a(f"s_lshr_b32 s{ST}, s{S_J}, 3\ns_lshl_b32 s{ST}, s{ST}, 9\ns_lshl_b32 s{ST+1}, s{S_I}, 4\ns_add_u32 s{ST}, s{ST}, s{ST+1}\ns_lshl_b32 s{ST+1}, s{S_WAVE}, 2\ns_add_u32 s{ST+4}, s{ST}, s{ST+1}\ns_lshl_b32 s{ST+4}, s{ST+4}, 10")
        a(f"v_lshlrev_b32 v145, 10, v5\nv_lshl_add_u32 v145, v4, 6, v145\nv_add_u32 v145, s{ST+4}, v145")
        a(f"s_lshl_b32 s{ST}, s{S_I}, 3\ns_lshl_b32 s{ST+1}, s{S_WAVE}, 1\ns_add_u32 s{ST}, s{ST}, s{ST+1}\ns_mul_i32 s{ST}, s{ST}, 3072\ns_lshr_b32 s{ST+1}, s{S_P}, 2\ns_lshl_b32 s{ST+1}, s{ST+1}, 9\ns_add_u32 s{ST}, s{ST}, s{ST+1}")
        a("v_subrev_u32 v7, 24, v1\nv_ashrrev_i32 v3, 31, v7\nv_and_b32 v6, 24, v3\nv_add_u32 v7, v7, v6\nv_not_b32 v3, v3\nv_and_b32 v3, 3072, v3")
        a(f"v_lshrrev_b32 v6, 3, v7\nv_lshl_add_u32 v3, v6, 10, v3\nv_and_b32 v7, 7, v7\nv_lshl_add_u32 v3, v7, 6, v3\nv_add_u32 v146, s{ST}, v3")
        a(f"s_mov_b32 exec_hi, 0xffff\nbuffer_load_dword v252, v146, {S4(SRD_W)}, 0 offen ; @pf\ns_mov_b32 exec_hi, 0\nbuffer_load_dword v252, v145, {S4(SRD_X)}, 0 offen ; @pf\ns_mov_b32 exec_hi, -1")
        self.stamp('issued')
        a(J(self.srd(SRD_WS, PTR+22, WS_SIZE) + self.srd(SRD_DBG, PTR+20, 256) + self.srd(SRD_Q, PTR+6, 2097152) + self.srd(SRD_WO, PTR+4, 524288) + self.srd(SRD_OUT, PTR+18, 4194304)))
        a(f"s_lshl_b32 s{ST}, s{S_XCD}, 7\ns_lshl_b32 s{ST+1}, s{S_I}, 2\ns_add_u32 s{ST}, s{ST}, s{ST+1}")
        a(f"s_load_dword s{S_D}, s[{PTR+16}:{PTR+17}], s{ST}")
        a(f"s_lshl_b32 s{ST}, s{S_XCD}, 6\ns_lshl_b32 s{ST+1}, s{S_I}, 1\ns_add_u32 s{ST}, s{ST}, s{ST+1}\ns_lshr_b32 s{ST+1}, s{S_WAVE}, 1\ns_add_u32 s{ST+3}, s{ST}, s{ST+1}\ns_lshl_b32 s{ST}, s{ST+3}, 12")
        a(f"s_add_u32 s{SRD_H}, s{PTR+14}, s{ST}\ns_addc_u32 s{SRD_H+1}, s{PTR+15}, 0\ns_mov_b32 s{SRD_H+2}, 4096\ns_mov_b32 s{SRD_H+3}, 0x20000")
        a(f"s_mov_b32 s{S_CH}, s{ST+3}\ns_and_b32 s{S_RHO}, s{S_WAVE}, 1")
        a(f"s_load_dwordx8 s[{S_HT}:{S_HT+7}], s[{SRD_H}:{SRD_H+1}], 4064")
        a(f"s_min_u32 s{S_NH}, s{S_J}, 4\ns_lshl_b32 s{S_HEAD}, s{S_P}, 2\ns_add_u32 s{S_HEAD}, s{S_HEAD}, s{S_WAVE}\ns_mov_b32 s{S_FB}, 0")
        a(f"s_mov_b32 s{S_SEL0}, 0x05040100\ns_mov_b32 s{S_SEL1}, 0x07060302")
        a("v_and_b32 v2, 31, v1\nv_lshrrev_b32 v3, 5, v1\nv_bfe_u32 v6, v2, 1, 3\nv_xor_b32 v3, v3, v6\nv_lshlrev_b32 v2, 7, v2")
        for kk in range(4):
            a(f"v_xor_b32 v6, {2*kk}, v3\nv_lshl_add_u32 v{104+kk}, v6, 4, v2\nv_add_u32 v{108+kk}, 0x10000, v{104+kk}")
        a("v_bfe_u32 v2, v1, 4, 1\nv_lshrrev_b32 v3, 5, v1\nv_bfe_u32 v6, v1, 2, 2")
        a("v_mul_u32_u24 v7, 3072, v3\nv_lshl_add_u32 v7, v6, 7, v7\nv_and_b32 v9, 3, v1\nv_lshl_add_u32 v7, v9, 3, v7")
        a(f"v_and_b32 v9, 2, v6\nv_xor_b32 v9, s{S_WAVE}, v9")
        a(f"v_lshl_add_u32 v113, v9, 5, v7\nv_add_u32 v113, {8192+2048}, v113")
        a("v_xor_b32 v9, v9, v2\nv_lshl_add_u32 v112, v9, 5, v7\nv_lshl_add_u32 v112, v2, 10, v112\nv_add_u32 v112, 8192, v112")
        a("v_add_u32 v114, 0x10000, v112\nv_add_u32 v115, 0x10000, v113")
        a(f"s_lshl_b32 s{ST}, s{S_WAVE}, 3\nv_add_u32 v2, s{ST}, v5\nv_sub_u32 v2, 31, v2")
        a("v_lshrrev_b32 v3, 2, v2\nv_xor_b32 v3, v3, v4\nv_lshlrev_b32 v3, 4, v3\nv_and_b32 v2, 3, v2\nv_lshl_add_u32 v3, v2, 2, v3\nv_lshl_add_u32 v3, v4, 10, v3")
        a(f"v_add_u32 v155, {TP}, v3\nv_lshlrev_b32 v153, 6, v4\nv_add_u32 v153, {WSH}, v153")
        a(f"s_lshl_b32 s{ST}, s{S_WAVE}, 1\nv_xor_b32 v156, s{ST}, v4\nv_lshlrev_b32 v156, 4, v156\nv_lshl_add_u32 v156, v5, 7, v156")
        a(f"s_lshl_b32 s{ST+1}, s{S_WAVE}, 11\ns_add_u32 s{ST+1}, s{ST+1}, {TP}\nv_add_u32 v156, s{ST+1}, v156\nv_xor_b32 v157, 16, v156")
        a(f"s_lshl_b32 s{ST}, s{S_XCD}, 6\ns_lshl_b32 s{ST+1}, s{S_WAVE}, 4\ns_add_u32 s{ST}, s{ST}, s{ST+1}\ns_lshl_b32 s{ST}, s{ST}, 12")
        a(f"s_lshl_b32 s{ST+1}, s{S_I}, 7\ns_sub_u32 s{ST}, s{ST}, s{ST+1}\ns_add_u32 s{ST}, s{ST}, {WS_KVT + 1984*2}")
        a(f"v_lshlrev_b32 v158, 12, v5\nv_lshl_add_u32 v158, v4, 4, v158\nv_add_u32 v158, s{ST}, v158\nv_add_u32 v159, {8*4096}, v158")

    def toep_valu(self, D, E, F, G):
        o = [f"v_alignbit_b32 v{E+i}, v{D[i+1]}, v{D[i]}, 16" for i in range(8)]
        o += [f"v_mov_b32 v{F+i}, v{D[i+1]}" for i in range(8)]
        o += [f"v_alignbit_b32 v{G+i}, v{D[i+2]}, v{D[i+1]}, 16" for i in range(8)]
        return o
    def toep_writes(self, D, E, F, G, vaddr):
        o = [f"ds_write_b128 v{vaddr}, v[{D[0]}:{D[0]+3}]", f"ds_write_b128 v{vaddr}, v[{D[4]}:{D[4]+3}] offset:16"]
        for r, R in ((1, E), (2, F), (3, G)):
            o += [f"ds_write_b128 v{vaddr}, v[{R}:{R+3}] offset:{r*TZC}", f"ds_write_b128 v{vaddr}, v[{R+4}:{R+7}] offset:{r*TZC+16}"]
        return o

    def pre(self):
        a = self.a
        for x in self.late_setup():
            if not x.startswith(';#'): a(x)
        a(J(self.flag_scalars()))
        a(J(self.scalar_dep()))
        a("s_waitcnt lgkmcnt(0)")
        pfB = ["s_mov_b32 exec_hi, 0", f"buffer_load_dword v252, v145, {S4(SRD_X)}, 0 offen offset:512 ; @pf", "s_mov_b32 exec_hi, 0xffff", f"s_mov_b32 s{ST+2}, {256*3072}", f"buffer_load_dword v252, v146, {S4(SRD_W)}, s{ST+2} offen ; @pf", "s_mov_b32 exec_hi, -1"]
        misc = [f"s_lshl_b32 s{ST+2}, s{S_RHO}, 11", f"v_lshlrev_b32 v2, 6, v1", "s_mov_b32 exec_hi, 0", f"buffer_load_dword v252, v2, {S4(SRD_H)}, s{ST+2} offen {self.NT}; @pf",
                ] + ([f"s_lshl_b32 s{ST+2}, s{S_I}, 4", f"s_lshl_b32 s{ST+3}, s{S_WAVE}, 2", f"s_add_u32 s{ST+2}, s{ST+2}, s{ST+3}", f"s_lshl_b32 s{ST+2}, s{ST+2}, 10", f"s_and_b32 s{ST+3}, s{S_XCD}, 1", f"s_lshl_b32 s{ST+3}, s{ST+3}, 9", f"s_add_u32 s{ST+2}, s{ST+2}, s{ST+3}",
                "v_lshrrev_b32 v2, 3, v1", "v_and_b32 v3, 7, v1", "v_lshlrev_b32 v2, 10, v2", "v_lshl_add_u32 v2, v3, 6, v2", f"buffer_load_dword v252, v2, {S4(SRD_WO)}, s{ST+2} offen ; @pf"] if 'wopf' in self.exp else []) + [
                "v_lshlrev_b32 v2, 20, v1", "s_mov_b32 exec_lo, 0x1fff", f"buffer_load_dword v252, v2, {WS}, 0 offen ; @pf", f"buffer_load_dword v252, v2, {S4(SRD_OUT)}, 0 offen ; @pf", "s_mov_b64 exec, -1"]
        if 'd1early' in self.exp:
            for g in self.dma_groups(1): a(J(g))
        if 'pfbsplit' in self.exp:
            a(J(pfB))
            self.misc_late = misc
        else:
            a(J(pfB + misc))
        self.stamp('shadowdone')
        a("s_waitcnt vmcnt(@kv)")
        self.stamp('predata')
        for i in range(4): a(f"ds_read_b128 v[{44+4*i}:{47+4*i}], v153 offset:{16*i}")
        seq = self.pre_valu()
        seq = seq[:12] + ["s_waitcnt lgkmcnt(0)"] + seq[12:]
        a(J(safe_interleave(seq, self.dma_groups(1), every=12) if 'd1early' not in self.exp else seq))
        for ch in range(8): a(f"ds_write_b32 v155, v{92+ch} offset:{ch*128}")
        a("s_waitcnt vmcnt(@dma0) lgkmcnt(0)\ns_barrier")
        self.stamp('stage0')
        a("ds_read_b128 v[16:19], v156\nds_read_b128 v[20:23], v157 offset:1024")
        self.qkv_reads(0, 0, 0)
        a(f"v_mov_b32 v3, 0\nbuffer_load_dwordx2 v[{V_T}:{V_T+1}], v3, {DBG}, 0 offen sc1 ; @nonce")
    def pre_valu(self):
        main = []
        for d in range(4):
            for par in range(2):
                sel = f"s{S_SEL1 if par else S_SEL0}"; ch = 2*d + par; o = 224 + 8*(ch % 3)
                r = lambda row: 16 + 4*(row+3) + d
                un = (lambda dst, src: f"v_lshlrev_b32 v{dst}, 16, v{src}") if par == 0 else (lambda dst, src: f"v_and_b32 v{dst}, 0xffff0000, v{src}")
                main.append([f"v_perm_b32 v{o}, v{r(-1)}, v{r(0)}, {sel}", f"v_perm_b32 v{o+1}, v{r(0)}, v{r(1)}, {sel}",
                             f"v_perm_b32 v{o+2}, v{r(-3)}, v{r(-2)}, {sel}", f"v_perm_b32 v{o+3}, v{r(-2)}, v{r(-1)}, {sel}",
                             un(o+4, 36+d), un(o+5, 40+d),
                             f"v_dot2_f32_bf16 v{o+6}, v{o}, v{44+2*ch}, 0", f"v_dot2_f32_bf16 v{o+7}, v{o+1}, v{44+2*ch}, 0",
                             f"v_dot2_f32_bf16 v{o+6}, v{o+2}, v{45+2*ch}, v{o+6}", f"v_dot2_f32_bf16 v{o+7}, v{o+3}, v{45+2*ch}, v{o+7}",
                             f"v_mul_f32 v{o+6}, v{o+6}, v{o+4}", f"v_mul_f32 v{o+7}, v{o+7}, v{o+5}", f"v_cvt_pk_bf16_f32 v{92+ch}, v{o+7}, v{o+6}"])
        seq = []
        for k in range(0, 8, 2):
            A, B = main[k], main[k+1]
            seq += A[:6] + B[:6] + A[6:10] + B[6:10] + A[10:12] + B[10:12] + [A[12], B[12]]
        return seq

    def qkv_reads(self, s, kk, st):
        a = self.a
        buf = s % 3; b = 60 + 16*st
        if buf < 2: xa, wqk, wv, base = 104+kk, 112, 113, buf*32768
        else:       xa, wqk, wv, base = 108+kk, 114, 115, 0
        a(f"ds_read_b128 v[{b}:{b+3}], v{xa} offset:{base}")
        a(f"ds_read_b64_tr_b16 v[{b+8}:{b+9}], v{wqk} offset:{base + kk*6144}")
        a(f"ds_read_b64_tr_b16 v[{b+10}:{b+11}], v{wqk} offset:{base + kk*6144 + 512}")
        a(f"ds_read_b128 v[{b+4}:{b+7}], v{xa} offset:{base + 4096}")
        a(f"ds_read_b64_tr_b16 v[{b+12}:{b+13}], v{wv} offset:{base + kk*6144}")
        a(f"ds_read_b64_tr_b16 v[{b+14}:{b+15}], v{wv} offset:{base + kk*6144 + 512}")
    def qkv_mfma(self, st, first=False):
        b = 60 + 16*st
        c = lambda r: "0" if first else f"v[{r}:{r+15}]"
        return [f"{MF32} v[160:175], v[{b+8}:{b+11}], v[{b}:{b+3}], {c(160)}", f"{MF32} v[176:191], v[{b+8}:{b+11}], v[{b+4}:{b+7}], {c(176)}",
                f"{MF32} v[192:207], v[{b}:{b+3}], v[{b+12}:{b+15}], {c(192)}", f"{MF32} v[208:223], v[{b+4}:{b+7}], v[{b+12}:{b+15}], {c(208)}"]
    def nonce_fix(self):
        a = self.a
        Lok = a.label('nonce_ok'); Lp = a.label('nonce_poll')
        a(f"v_readfirstlane_b32 s{S_T}, v{V_T}\nv_readfirstlane_b32 s{S_T+1}, v{V_T+1}\ns_nop 0")
        a(f"s_cmp_eq_u32 s{S_T+1}, 0\ns_cbranch_scc1 {Lp}\n{Lok}:")
        with Cap(a) as cap:
            a(f"{Lp}:\ns_mov_b32 s{S_TMO}, 0\n{Lp}_l:")
            a(f"v_mov_b32 v3, 0\nbuffer_load_dwordx2 v[{V_T}:{V_T+1}], v3, {DBG}, 0 offen sc1\ns_waitcnt vmcnt(0)")
            a(f"v_readfirstlane_b32 s{S_T}, v{V_T}\nv_readfirstlane_b32 s{S_T+1}, v{V_T+1}")
            a(f"s_add_u32 s{S_TMO}, s{S_TMO}, 1\ns_cmp_gt_u32 s{S_TMO}, 0x20000\ns_cbranch_scc1 {Lok}")
            a(f"s_cmp_eq_u32 s{S_T+1}, 0\ns_cbranch_scc1 {Lp}_l\ns_branch {Lok}")
        self.tail_blocks.append(cap.out)

    def late_setup(self):
        o = []
        A = lambda t: o.extend(split_instrs(t))
        A(f"v_cmp_eq_u32 vcc, 0, v1\nv_mov_b32 v2, {hex(OOB)}\nv_mov_b32 v3, 0\n;#g\nv_cndmask_b32 v{V_FL}, v2, v3, vcc")
        A(f"v_lshlrev_b32 v{V_PL}, {FS}, v1\nv_cmp_gt_u32 vcc, 32, v1\ns_nop 1\n;#g\nv_cndmask_b32 v{V_PL}, v2, v{V_PL}, vcc")
        A(f"s_lshl_b32 s{ST}, s{S_RHO}, 11\nv_lshlrev_b32 v138, 5, v1\nv_add_u32 v138, s{ST}, v138\nv_subrev_u32 v136, 32, v138\nv_subrev_u32 v137, 16, v138")
        A(f"s_lshr_b32 s{ST+1}, s{S_WAVE}, 1\ns_mul_i32 s{ST+2}, s{ST+1}, {4*TZC}\ns_add_u32 s{ST}, s{ST}, s{ST+2}\ns_add_u32 s{ST}, s{ST}, {TZ}\nv_lshlrev_b32 v132, 5, v1\nv_add_u32 v132, s{ST}, v132")
        A(f"s_add_u32 s{ST+2}, s{ST+2}, {TZ + 4096}\nv_mov_b32 v139, s{ST+2}")
        A(f"s_lshl_b32 s{S_UO}, s{S_CH}, 12\ns_lshl_b32 s{ST}, s{S_RHO}, 10\ns_add_u32 s{S_UO}, s{S_UO}, s{ST}\ns_add_u32 s{S_UO}, s{S_UO}, {WS_KVT}")
        A(f"s_mul_i32 s{ST+2}, s{ST+1}, {UC}\ns_add_u32 s{ST+2}, s{ST+2}, s{ST}\ns_add_u32 s{ST+2}, s{ST+2}, {U}\nv_add_u32 v127, s{ST+2}, v{V_L16}")
        A(f"v_mov_b32 v148, 0\nv_mov_b32 v149, 0\nv_mov_b32 v150, 0\nv_mov_b32 v151, 0")
        A(f"v_lshrrev_b32 v2, 5, v1\nv_mul_u32_u24 v2, {UC}, v2\nv_and_b32 v3, 31, v1\nv_lshl_add_u32 v2, v3, 4, v2\nv_add_u32 v152, {U+4096}, v2")
        A(f"v_and_b32 v4, 15, v1\nv_lshrrev_b32 v5, 4, v1\nv_add_u32 v2, 1, v4\nv_and_b32 v3, 3, v2\nv_lshrrev_b32 v2, 2, v2")
        A(f"v_mul_u32_u24 v{V_CA}, {TZC}, v3\nv_lshl_add_u32 v{V_CA}, v2, 3, v{V_CA}\nv_lshl_add_u32 v{V_CA}, v5, 4, v{V_CA}")
        A(f"s_lshr_b32 s{ST}, s{S_WAVE}, 1\ns_mul_i32 s{ST+1}, s{ST}, {4*TZC}\ns_lshl_b32 s{ST+2}, s{S_RHO}, 8\ns_add_u32 s{ST+1}, s{ST+1}, s{ST+2}\ns_add_u32 s{ST+1}, s{ST+1}, {TZ}\nv_add_u32 v{V_CA}, s{ST+1}, v{V_CA}")
        A(f"s_mul_i32 s{ST+1}, s{ST}, {UC}\ns_add_u32 s{ST+1}, s{ST+1}, s{ST+2}\ns_add_u32 s{ST+1}, s{ST+1}, {U+480}")
        A(f"v_lshlrev_b32 v{V_CB}, 4, v5\nv_lshlrev_b32 v2, 5, v4\nv_sub_u32 v{V_CB}, v{V_CB}, v2\nv_add_u32 v{V_CB}, s{ST+1}, v{V_CB}")
        A(f"v_lshrrev_b32 v2, 5, v1\nv_mul_u32_u24 v2, 17, v2\nv_and_b32 v3, 31, v1\nv_add_u32 v2, v2, v3\nv_lshlrev_b32 v{V_VV}, 4, v2\nv_sub_u32 v3, 16, v3\nv_ashrrev_i32 v3, 31, v3\nv_and_b32 v3, {hex(OOB)}, v3\nv_or_b32 v{V_VV}, v{V_VV}, v3")
        A(f"v_bfe_u32 v{V_OF}, v1, 4, 1\nv_lshlrev_b32 v{V_OF}, 14, v{V_OF}\nv_lshrrev_b32 v2, 5, v1\nv_lshl_add_u32 v{V_OF}, v2, 8, v{V_OF}\nv_and_b32 v2, 15, v1\nv_lshl_add_u32 v{V_OF}, v2, 4, v{V_OF}")
        A(f"s_lshl_b32 s{S_OFS}, s{S_J}, 16\ns_lshr_b32 s{ST+1}, s{S_HEAD}, 1\ns_lshl_b32 s{ST+1}, s{ST+1}, 10\ns_add_u32 s{S_OFS}, s{S_OFS}, s{ST+1}\ns_and_b32 s{ST+1}, s{S_HEAD}, 1\ns_lshl_b32 s{ST+1}, s{ST+1}, 9\ns_add_u32 s{S_OFS}, s{S_OFS}, s{ST+1}\ns_add_u32 s{S_OFS}, s{S_OFS}, {WS_OF}")
        A("v_mov_b32 v128, -1\nv_mov_b32 v129, -1\nv_mov_b32 v130, -1\nv_mov_b32 v131, -1")
        A(f"s_lshl_b32 s{S_NHM}, 1, s{S_NH}\ns_sub_u32 s{S_NHM}, s{S_NHM}, 1")
        A(f"s_lshl_b32 s{ST}, s{S_HEAD}, 6\ns_lshl_b32 s{ST+1}, s{S_J}, 1\ns_add_u32 s{ST}, s{ST}, s{ST+1}\ns_mul_i32 s{S_KVO}, s{ST}, {KVS}\ns_add_u32 s{S_KVO}, s{S_KVO}, {WS_KV}")
        A(f"s_lshl_b32 s{S_ZTO}, s{S_CH}, 12\ns_lshl_b32 s{ST}, s{S_RHO}, 11\ns_add_u32 s{S_ZTO}, s{S_ZTO}, s{ST}\ns_add_u32 s{S_ZTO}, s{S_ZTO}, {WS_ZT}")
        A(f"s_lshl_b32 s{ST}, s{S_XCD}, 6\ns_lshl_b32 s{ST+1}, s{S_WAVE}, 4\ns_add_u32 s{ST}, s{ST}, s{ST+1}\ns_lshl_b32 s{ST}, s{ST}, 12\ns_lshl_b32 s{ST+2}, s{S_I}, 7\ns_add_u32 s{ST}, s{ST}, s{ST+2}\ns_add_u32 s{S_ZLD}, s{ST}, {WS_ZT}")
        A(f"s_lshl_b32 s{ST}, s{S_I}, 6\ns_add_u32 s{ST}, s{ST}, s{ST+1}\ns_lshl_b32 s{ST+2}, s{S_XCD}, 7\ns_lshl_b32 s{S_QO}, s{ST}, 10\ns_add_u32 s{S_QO}, s{S_QO}, s{ST+2}\ns_lshl_b32 s{S_BOUT}, s{ST}, 11\ns_add_u32 s{S_BOUT}, s{S_BOUT}, s{ST+2}\ns_add_u32 s{S_BOUT}, s{S_BOUT}, 1024")
        A(f"s_lshl_b32 s{ST}, s{S_J}, 6\ns_add_u32 s{ST}, s{ST}, s{ST+1}\ns_lshl_b32 s{S_AOUT}, s{ST}, 11\ns_lshl_b32 s{ST+2}, s{S_P}, 7\ns_add_u32 s{S_AOUT}, s{S_AOUT}, s{ST+2}")
        A(f"s_lshl_b32 s{S_OFL}, s{S_J}, 2\ns_add_u32 s{S_OFL}, s{S_OFL}, s{S_WAVE}\ns_lshl_b32 s{S_OFL}, s{S_OFL}, 14\ns_add_u32 s{S_OFL}, s{S_OFL}, {WS_OF}")
        A(f"s_lshl_b32 s{S_WOO}, s{S_WAVE}, 17\ns_add_u32 s{S_WOO}, s{S_WOO}, s{ST+2}\ns_lshl_b32 s{S_WOM}, s{S_WAVE}, 14")
        return o
    def scalar_dep(self):
        o = ["s_waitcnt lgkmcnt(0)"]
        A = lambda t: o.extend(split_instrs(t))
        A(J([f"v_mov_b32 v{116+i}, s{S_HT+i}" for i in range(8)]) + "\nv_mov_b32 v124, 0\nv_mov_b32 v125, 0")
        A(J(self.toep_valu(list(range(116, 126)), 224, 232, 240)))
        o.append("ds_write_b128 v152, v[148:151]")
        o.append("s_mov_b64 exec, 1"); o.extend(self.toep_writes(list(range(116, 126)), 224, 232, 240, 139)); o.append("s_mov_b64 exec, -1")
        A(f"s_lshl_b32 s{ST}, s{S_D}, 16\ns_and_b32 s{ST+1}, s{S_D}, 0xffff0000\ns_cmp_lt_u32 s{S_WAVE}, 2\ns_cselect_b32 s{S_DV}, s{ST}, s{ST+1}")
        return o
    def flag_scalars(self):
        o = []
        A = lambda t: o.extend(split_instrs(t))
        A(f"s_lshl_b32 s{ST}, s{S_XCD}, 2\ns_add_u32 s{ST}, s{ST}, s{S_WAVE}\ns_lshl_b32 s{ST}, s{ST}, 5\ns_add_u32 s{ST}, s{ST}, s{S_I}\ns_lshl_b32 s{S_F1P}, s{ST}, {FS}")
        A(f"s_lshl_b32 s{ST}, s{S_XCD}, 2\ns_lshr_b32 s{ST+1}, s{S_I}, 3\ns_add_u32 s{ST}, s{ST}, s{ST+1}\ns_lshl_b32 s{S_PF1}, s{ST}, {5+FS}")
        F2MUL = next((int(x[2:]) for x in self.exp if x.startswith("fm")), 32)
        A(f"s_mul_i32 s{ST}, s{S_HEAD}, {F2MUL}\ns_add_u32 s{ST}, s{ST}, s{S_J}\ns_lshl_b32 s{S_F2P}, s{ST}, {FS}\ns_add_u32 s{S_F2P}, s{S_F2P}, {WS_F2}\ns_lshl_b32 s{ST+1}, s{S_NH}, {FS}\ns_sub_u32 s{S_PF2}, s{S_F2P}, s{ST+1}")
        A(f"s_lshl_b32 s{ST}, s{S_J}, 5\ns_add_u32 s{ST+1}, s{ST}, s{S_HEAD}\ns_lshl_b32 s{S_F5P}, s{ST+1}, {FS}\ns_add_u32 s{S_F5P}, s{S_F5P}, {WS_F5}\ns_lshl_b32 s{S_PF5}, s{ST}, {FS}\ns_add_u32 s{S_PF5}, s{S_PF5}, {WS_F5}")
        A(f"s_lshl_b32 s{ST}, s{S_XCD}, 1\ns_add_u32 s{ST+1}, s{ST}, s{S_RHO}\ns_lshl_b32 s{ST+1}, s{ST+1}, 6\ns_and_b32 s{ST+2}, s{S_CH}, 63\ns_add_u32 s{ST+1}, s{ST+1}, s{ST+2}\ns_lshl_b32 s{S_F3P}, s{ST+1}, {FS}\ns_add_u32 s{S_F3P}, s{S_F3P}, {WS_F3}")
        A(f"s_lshr_b32 s{ST+1}, s{S_I}, 4\ns_add_u32 s{ST}, s{ST}, s{ST+1}\ns_lshl_b32 s{ST}, s{ST}, 6\ns_lshl_b32 s{ST+1}, s{S_WAVE}, 4\ns_add_u32 s{ST}, s{ST}, s{ST+1}\ns_lshl_b32 s{S_PF3}, s{ST}, {FS}\ns_add_u32 s{S_PF3}, s{S_PF3}, {WS_F3}")
        return o

    def qkv(self):
        a = self.a
        DA = list(range(116, 126)); H = S4(SRD_H)
        tzA = self.toep_valu(DA, 136, 24, 92)
        tzW = self.toep_writes(DA, 136, 24, 92, 132)
        pend = self.dma_groups(2); vfill = []
        def emit_mfma(st, first=False, nv=3):
            nonlocal pend
            for i, ins in enumerate(self.qkv_mfma(st, first)):
                a(ins)
                if i % 2 == 1 and pend: a(J(pend.pop(0)))
                for _ in range(nv):
                    if vfill: a(vfill.pop(0))
        def reads_wait(s, kk, st):
            self.qkv_reads(s, kk, st)
            extra = []
            if (s == 6 and kk >= 2) or (s == 7 and kk in (1, 2)): extra = [tzW.pop(0), tzW.pop(0)]
            for x in extra: a(x)
            a(f"s_waitcnt lgkmcnt({6+len(extra)})")
        for s in range(8):
            reads_wait(s, 1, 1)
            emit_mfma(0, first=(s == 0))
            reads_wait(s, 2, 0)
            emit_mfma(1)
            reads_wait(s, 3, 1)
            emit_mfma(0)
            if s == 0:
                while pend: a(J(pend.pop(0)))
                a(f"buffer_store_dwordx4 v[16:19], v158, {WS}, 0 offen sc1 ; @st0")
                a(f"buffer_store_dwordx4 v[20:23], v159, {WS}, 0 offen sc1 ; @st0")
            if s < 7:
                while pend: a(J(pend.pop(0)))
                a(f"s_waitcnt vmcnt(@dma{s+1}) lgkmcnt(0)")
                a("s_barrier")
                if s == 2:
                    self.nonce_fix()
                    a(self.flag(S_F1P))
                if s + 3 < 8: pend = self.dma_groups(s + 3)
                if s == 3:
                    hl = [f"buffer_load_dwordx4 v[116:119], v136, {H}, 0 offen {self.NT}; @h", f"buffer_load_dwordx4 v[120:123], v137, {H}, 0 offen {self.NT}; @h", f"buffer_load_dwordx2 v[124:125], v138, {H}, 0 offen {self.NT}; @h"]
                    d = pend
                    pend = [[hl[0]] + d[0], [hl[1]] + d[1], [hl[2]] + d[2], d[3], d[4], d[5], d[6], d[7]]
                if s == 5:
                    pend = [[self.poll_ld(S_PF1, 'pf1')],
                            [f"s_getpc_b64 s[{ST+4}:{ST+5}]", "L_tabpc:", f"s_add_u32 s{ST+4}, s{ST+4}, (L_masktab - L_tabpc)", f"s_addc_u32 s{ST+5}, s{ST+5}, 0", f"s_mov_b32 s{ST+6}, 6144", f"s_mov_b32 s{ST+7}, 0x20000",
                             f"buffer_load_dwordx4 v[{A_MD}:{A_MD+3}], v{V_L16}, s[{ST+4}:{ST+7}], 0 offen ; @md", f"buffer_load_dwordx4 v[{A_MD+4}:{A_MD+7}], v{V_L16}, s[{ST+4}:{ST+7}], 0 offen offset:1024 ; @md"],
                            [f"buffer_load_dwordx4 v[{A_MD+8}:{A_MD+11}], v{V_L16}, s[{ST+4}:{ST+7}], 0 offen offset:2048 ; @md", f"buffer_load_dwordx4 v[{A_MD+12}:{A_MD+15}], v{V_L16}, s[{ST+4}:{ST+7}], 0 offen offset:3072 ; @md"]]
                    vfill = list(tzA)
                if s == 6:
                    a("s_waitcnt vmcnt(@pf1)")
                    a(J(self.cmp_flags("-1"))); a(f"s_cselect_b32 s{S_SPEC}, 1, 0")
                    a(f"buffer_load_dwordx4 v[16:19], v{V_L16}, {WS}, s{S_UO} offen sc1 ; @u\nbuffer_load_dwordx4 v[20:23], v{V_L16}, {WS}, s{S_UO} offen offset:2048 sc1 ; @u")
                    pend = [[f"buffer_store_dwordx4 v[128:131], v{V_OF}, {WS}, s{S_OFS} offen sc1 ; @sent"], [f"s_add_u32 s{ST+2}, s{S_OFS}, 32768", f"buffer_store_dwordx4 v[128:131], v{V_OF}, {WS}, s{ST+2} offen sc1 ; @sent"]]
                self.qkv_reads(s+1, 0, 0)
                self.stamp(f'b{s}')
                emit_mfma(1, nv=(6 if s == 5 else 3))
            else:
                assert not tzW
                a("s_waitcnt lgkmcnt(0)")
                emit_mfma(1)
        assert not vfill and not pend
        self.stamp('b7')
        a("s_waitcnt vmcnt(@md)\ns_nop 7\ns_nop 1")
        F = self.conv_fillers()
        iq = next(i for i, g in enumerate(F) if isinstance(g, list) and g[0].startswith(f"s_mov_b32 s{ST+2}, {hex(f2u(QSCALE))}"))
        for g in F[:iq]:
            if g is None: continue
            a(J(g))
        self.F1 = F[iq:]
        self.stamp('epi')
        a("s_waitcnt vmcnt(@u)")
        Lu = a.label('u_slow'); Lub = a.label('u_back')
        a(f"s_cmp_lg_u32 s{S_SPEC}, 0\ns_cbranch_scc1 {Lu}\n{Lub}:")
        with Cap(a) as cap:
            a(f"{Lu}:"); self.poll_check(S_PF1, "-1", 'f1', cnt=201)
            a(f"buffer_load_dwordx4 v[16:19], v{V_L16}, {WS}, s{S_UO} offen sc1\nbuffer_load_dwordx4 v[20:23], v{V_L16}, {WS}, s{S_UO} offen offset:2048 sc1\ns_waitcnt vmcnt(0)\ns_branch {Lub}")
        self.tail_blocks.append(cap.out)
        a("ds_write_b128 v127, v[16:19]\nds_write_b128 v127, v[20:23] offset:2048")
        a("s_waitcnt lgkmcnt(0)\ns_barrier")
        a(J(self.conv_reads(0, 0)))

    def conv_reads(self, st, n):
        A = 16 + 64*st; B = 48 + 64*st; o = []
        for i in range(8):
            o.append(f"ds_read_b128 v[{B+4*i}:{B+4*i+3}], v{V_CB} offset:{512*(7-i) + 64*n}")
            o.append(f"ds_read_b64 v[{A+4*i}:{A+4*i+1}], v{V_CA} offset:{512*i + 64*n}")
            o.append(f"ds_read_b64 v[{A+4*i+2}:{A+4*i+3}], v{V_CA} offset:{512*i + 64*n + 8}")
        return o
    def conv_reads_mixed_first(self):
        o = self.conv_reads(0, 0)
        self.deferred = [x for x in o if 'v[76:79]' in x]
        return [x for x in o if 'v[76:79]' not in x]
    def conv_mfmas(self, st, first):
        A = 16 + 64*st; B = 48 + 64*st; o = []
        for i in range(8):
            for t in range(i, 8):
                acc = CACC + 4*t
                c = "0" if (first and i == 0) else f"a[{acc}:{acc+3}]"
                o.append(f"{MF16} a[{acc}:{acc+3}], v[{A+4*i}:{A+4*i+3}], v[{B+4*(t-i)}:{B+4*(t-i)+3}], {c}")
        return o
    def Kf(self, t): return f"a[{4*t}:{4*t+3}]" if t < 8 else f"v[{232+4*(t-8)}:{235+4*(t-8)}]"
    def Vf(self, t, h): return f"a[{32+8*t+4*h}:{35+8*t+4*h}]" if t < 8 else f"v[{240+8*(t-8)+4*h}:{243+8*(t-8)+4*h}]"
    def maxreduce(self, src, dst, init=None):
        o = []
        if init is None: o.append(f"v_max3_f32 v{dst}, v{src}, v{src+1}, v{src+2}"); rest = list(range(src+3, src+16))
        else: rest = list(range(src, src+16))
        while len(rest) >= 2: o.append(f"v_max3_f32 v{dst}, v{dst}, v{rest[0]}, v{rest[1]}"); rest = rest[2:]
        if rest: o.append(f"v_max_f32 v{dst}, v{dst}, v{rest[0]}")
        return o
    def finish_max(self, m, b, bias, tmp):
        o = [[f"v_mov_b32 v{tmp}, v{m}", "s_nop 1", f"v_permlane32_swap_b32 v{m}, v{tmp}", "s_nop 1", f"v_max_f32 v{m}, v{m}, v{tmp}"]]
        if bias: o.append([f"v_add_f32 v{m}, {bias}, v{m}"])
        o.append([f"v_sub_f32 v{m}, 0, v{m}"])
        return o + [[f"v_mov_b32 v{A_CN[b]+r}, v{m}"] for r in range(16)]
    VM = ["s_mov_b32 exec_lo, 0x1ffff", "s_mov_b32 exec_hi, 0x1ffff"]
    def conv_fillers(self):
        F = []
        one = lambda l: F.extend([[x] for x in l])
        QF, MD, MK = A_QF, A_MD, A_MK
        F += [None]*3
        F.append([f"s_add_u32 s{ST+1}, s{S_KVO}, {KVS}"])
        for b in range(2): one([f"v_cvt_pk_bf16_f32 v{232+4*b+p}, v{160+16*b+8+2*p}, v{160+16*b+8+2*p+1}" for p in range(4)])
        F.append([f"buffer_store_dwordx4 v[232:235], v{V_L16}, {WS}, s{S_KVO} offen sc1 ; @kvst"])
        one([f"v_cvt_pk_bf16_f32 v{240+p}, v{192+2*p}, v{192+2*p+1}" for p in range(8)])
        F.append([f"buffer_store_dwordx4 v[236:239], v{V_L16}, {WS}, s{ST+1} offen sc1 ; @kvst"])
        one([f"v_cvt_pk_bf16_f32 v{248+p}, v{208+2*p}, v{208+2*p+1}" for p in range(8)])
        ones = lambda r0: ["s_mov_b32 exec_lo, 0x10000", "s_mov_b32 exec_hi, 0x10000"] + [f"v_mov_b32 v{r}, 0x3f803f80" for r in range(r0, r0+8)]
        F.append(ones(240) + ["s_mov_b64 exec, -1", "s_nop 0"] + [f"buffer_store_dwordx4 v[{240+4*h}:{243+4*h}], v{V_VV}, {WS}, s{S_KVO} offen offset:{1024+640*h} sc1 ; @kvst" for h in range(2)])
        F.append(None)
        F.append(ones(248) + ["s_mov_b64 exec, -1", "s_nop 0"] + [f"buffer_store_dwordx4 v[{248+4*h}:{251+4*h}], v{V_VV}, {WS}, s{ST+1} offen offset:{1024+640*h} sc1 ; @kvst" for h in range(2)])
        F.append([f"s_mov_b32 s{ST+3}, 4096", f"buffer_load_dwordx4 v[{MK}:{MK+3}], v{V_L16}, s[{ST+4}:{ST+7}], s{ST+3} offen ; @mk", f"buffer_load_dwordx4 v[{MK+4}:{MK+7}], v{V_L16}, s[{ST+4}:{ST+7}], s{ST+3} offen offset:1024 ; @mk"])
        F.append([f"s_mov_b32 s{ST+2}, {hex(f2u(QSCALE))}"])
        for b in range(2):
            one([f"v_mul_f32 v{160+16*b+r}, s{ST+2}, v{160+16*b+r}" for r in range(8)])
            one([f"v_cvt_pk_bf16_f32 v{224+4*b+p}, v{160+16*b+2*p}, v{160+16*b+2*p+1}" for p in range(4)])
        one(["v_lshrrev_b32 v2, 4, v1", "v_and_b32 v3, 7, v1", "v_lshrrev_b32 v6, 1, v3", "v_xor_b32 v6, v6, v2", "v_lshlrev_b32 v6, 5, v6", "v_and_b32 v3, 1, v3", "v_lshl_add_u32 v6, v3, 4, v6",
             "v_lshrrev_b32 v3, 3, v1", "v_lshl_add_u32 v176, v3, 10, v6", "v_add_u32 v177, 7168, v176", "v_add_u32 v178, 14336, v176", "v_add_u32 v179, 21504, v176"])
        F.append('WO')
        T = 208
        F.append([f"{MF32} v[{T}:{T+15}], {self.Kf(8)}, v[{QF[0]}:{QF[0]+3}], v[{MD}:{MD+15}]"]); F.append(13)
        one(self.maxreduce(T, 2))
        F.append([f"{MF32} v[{T}:{T+15}], {self.Kf(8)}, v[{QF[1]}:{QF[1]+3}], 0"])
        F.append([f"s_mov_b32 s{ST+2}, 0x42800000"])
        F += self.finish_max(2, 0, f"s{ST+2}", 3)
        one(self.maxreduce(T, 2))
        F.append([f"{MF32} v[{T}:{T+15}], {self.Kf(9)}, v[{QF[1]}:{QF[1]+3}], v[{MD}:{MD+15}]"]); F.append(13)
        one(self.maxreduce(T, 2, init=2))
        F += self.finish_max(2, 1, f"s{ST+2}", 3)
        return F
    def halo_groups(self, p):
        g = []
        for tau in (7-2*p, 6-2*p):
            off = (tau - 8) * KVS
            g.append([f"s_sub_u32 s{ST+6}, s{S_KVO}, {-off}", f"buffer_load_dwordx4 a[{4*tau}:{4*tau+3}], v{V_L16}, {WS}, s{ST+6} offen sc1 ; @pair{p}"])
            g.append([f"buffer_load_dwordx4 a[{32+8*tau}:{35+8*tau}], v{V_VV}, {WS}, s{ST+6} offen offset:1024 sc1 ; @pair{p}",
                      f"buffer_load_dwordx4 a[{36+8*tau}:{39+8*tau}], v{V_VV}, {WS}, s{ST+6} offen offset:1664 sc1 ; @pair{p}"])
        return g
    def conv(self):
        a = self.a
        wo = []
        for n in range(16):
            pre = [f"s_add_u32 m0, s{S_WOM}, {(n//4)*4096}", f"s_add_u32 s{ST+9}, s{S_WOO}, {(n//4)*32768}"] if n % 4 == 0 else []
            wo.append(pre + [f"buffer_load_dwordx4 v{176 + n%4}, {S4(SRD_WO)}, s{ST+9} offen offset:{(n%4)*1024} lds ; @wo"])
        a("s_waitcnt lgkmcnt(0)")
        self.stamp('convstart')
        nwo = 0; wo_on = False; since = 99; wo_at = 0
        F = self.F1
        WOEV = next((int(x[2:]) for x in self.exp if x.startswith('we')), 5)
        GPOST = next((int(x[2:]) for x in self.exp if x.startswith('gp')), 40)
        GPOLL = next((int(x[2:]) for x in self.exp if x.startswith('gq')), 110)
        for n in range(4):
            m = self.conv_mfmas(n & 1, n == 0)
            rd = self.conv_reads((n+1) & 1, n+1) if n < 3 else []
            for i, ins in enumerate(m):
                gi = 36*n + i
                a(ins); since += 1
                slots = 1 if rd else 2
                if rd: a(rd.pop(0)); since += 1
                for _ in range(slots):
                    while F and F[0] == 'WO': wo_on = True; wo_at = gi; F.pop(0)
                    if F and isinstance(F[0], int):
                        if since >= F[0]: F.pop(0)
                        else: continue
                    if F:
                        g = F.pop(0)
                        if g:
                            a(J(g))
                            if any(x.startswith('v_mfma') for x in g): since = 0
                            else: since += len(g)
                if wo_on and nwo < 16 and (gi - wo_at) % WOEV == 1: a(J(wo[nwo])); since += len(wo[nwo]); nwo += 1
                if gi == GPOST: a("s_waitcnt vmcnt(@kvst)"); a(self.flag(S_F2P, 'f2f')); a(self.flag(S_F5P, 'f5f'))
                if gi == GPOLL: a(self.poll_ld(S_PF2, 'pf2', 4))
            if n < 3: a("s_waitcnt lgkmcnt(0)")
        while nwo < 16: a(J(wo[nwo])); nwo += 1
        self.wo_groups = wo
        for g in F:
            if isinstance(g, int): a("s_nop 7\ns_nop 4")
            elif g == 'WO': pass
            elif g: a(J(g))
        print('conv leftover', len(F), 'wo_at', wo_at, file=sys.stderr)
        self.stamp('convmfma')
        a("s_waitcnt vmcnt(@pf2)")
        self.poll_check(S_PF2, f"s{S_NHM}", 'f2', vt=4, cnt=202)
        self.stamp('f2seen')
        for g in self.halo_groups(0): a(J(g))
        with Cap(a) as cap: self.conv_epilogue()
        body = cap.out
        out = []
        for x in body:
            if x.startswith('s_cmp_lg_u32 s71'): out.append(';#noint')
            out.append(x)
            if x.startswith('L_rhojoin'): out.append(';#int')
        a(J(safe_interleave(out, self.halo_groups(1), every=14, start=10)))
    def conv_epilogue(self):
        a = self.a
        Lr1 = a.label('rho1'); Lj = a.label('rhojoin')
        a(f"s_lshl_b32 s{ST}, s{S_WAVE}, 12\ns_add_u32 s{ST}, s{ST}, {EX}\nv_add_u32 v5, s{ST}, v{V_L16}\nv_xor_b32 v6, 0x1000, v5")
        a(f"s_cmp_lg_u32 s{S_RHO}, 0\ns_cbranch_scc1 {Lr1}")
        for t in range(4): a(f"ds_write_b128 v5, a[{CACC+16+4*t}:{CACC+19+4*t}] offset:{1024*t}")
        for r in range(16): a(f"v_accvgpr_read_b32 v{32+r}, a{CACC+r}")
        a(f"s_branch {Lj}\n{Lr1}:")
        for t in range(4): a(f"ds_write_b128 v5, a[{CACC+4*t}:{CACC+4*t+3}] offset:{1024*t}")
        for r in range(16): a(f"v_accvgpr_read_b32 v{32+r}, a{CACC+16+r}")
        a(f"{Lj}:")
        a(f"s_lshr_b32 s{ST}, s{S_WAVE}, 1\ns_mul_i32 s{ST}, s{ST}, {UC}\ns_lshl_b32 s{ST+2}, s{S_RHO}, 11\ns_sub_u32 s{ST}, s{ST}, s{ST+2}\ns_add_u32 s{ST}, s{ST}, {U + 4088 - 1536}")
        a(f"v_and_b32 v2, 15, v1\nv_lshrrev_b32 v3, 4, v1\nv_lshlrev_b32 v2, 5, v2\nv_lshl_add_u32 v2, v3, 3, v2\nv_sub_u32 v3, s{ST}, v2")
        for tl in range(4): a(f"ds_read_b64 v[{48+2*tl}:{49+2*tl}], v3 offset:{512*(3-tl)}")
        a(f"s_lshl_b32 s{ST+1}, s{S_WAVE}, 11\ns_add_u32 s{ST+1}, s{ST+1}, {TP}\nv_add_u32 v2, s{ST+1}, v2\nv_add_u32 v3, s{ST+1}, v{V_L16}")
        a("s_waitcnt lgkmcnt(0)\ns_barrier")
        for t in range(4): a(f"ds_read_b128 v[{16+4*t}:{19+4*t}], v6 offset:{1024*t}")
        for tl in range(4):
            lo, hi = 48+2*tl, 49+2*tl
            a(f"v_and_b32 v56, 0xffff0000, v{hi}\nv_lshlrev_b32 v57, 16, v{hi}\nv_and_b32 v58, 0xffff0000, v{lo}\nv_lshlrev_b32 v59, 16, v{lo}")
            for r in range(4): a(f"v_fmac_f32 v{32+4*tl+r}, s{S_DV}, v{56+r}")
        a("s_waitcnt lgkmcnt(0)")
        for tl in range(4):
            acc = 32 + 4*tl; px = 16 + 4*tl
            for r in range(4): a(f"v_add_f32 v{acc+r}, v{acc+r}, v{px+r}")
            a(f"v_cvt_pk_bf16_f32 v{60+2*tl}, v{acc}, v{acc+1}\nv_cvt_pk_bf16_f32 v{61+2*tl}, v{acc+2}, v{acc+3}")
            a(f"ds_write_b64 v2, v[{60+2*tl}:{61+2*tl}] offset:{512*tl}")
        a("s_waitcnt lgkmcnt(0)")
        a("ds_read_b128 v[208:211], v3\nds_read_b128 v[212:215], v3 offset:1024")

    def attention(self):
        a = self.a
        S, P, CN, O, MD, MK, QF = A_S, A_P, A_CN, A_O, A_MD, A_MK, A_QF
        Kf, Vf = self.Kf, self.Vf
        items = [(0, 8, 'D'), (1, 9, 'D'), (1, 8, None)]
        pairs = [[(0,7,None),(1,7,None),(0,6,None),(1,6,None)], [(0,5,None),(1,5,None),(0,4,None),(1,4,None)],
                 [(0,3,None),(1,3,None),(0,2,None),(1,2,None)], [(0,1,None),(1,1,'F'),(0,0,'F')]]
        allitems = items + [x for p in pairs for x in p]
        def smfma(n):
            b, t, m = allitems[n]
            return f"{MF32} v[{S[n&1]}:{S[n&1]+15}], {Kf(t)}, v[{QF[b]}:{QF[b]+3}], v[{CN[b]}:{CN[b]+15}]"
        a("s_waitcnt lgkmcnt(0)")
        a(f"buffer_store_dwordx4 v[208:211], v{V_L16}, {WS}, s{S_ZTO} offen sc1 ; @zst")
        a(f"buffer_store_dwordx4 v[212:215], v{V_L16}, {WS}, s{S_ZTO} offen offset:1024 sc1 ; @zst")
        Lmain = a.label('attn_main'); Ldone = a.label('attn_done'); Lfb = a.label('attn_fallback'); Lok = a.label('attn_ok'); Lj0 = a.label('attn_j0')
        self.stamp('attnstart')
        a(f"{Lmain}:")
        first_pv = {0: True, 1: True}
        pair_start = {}; n = len(items)
        for pi, p in enumerate(pairs): pair_start[n] = pi; n += len(p)
        late = {0: self.halo_groups(2)[:2], 1: self.halo_groups(2)[2:], 3: self.halo_groups(3)[:2], 4: self.halo_groups(3)[2:],
                2: [[f"buffer_load_dwordx4 v[{self.QR}:{self.QR+3}], v222, {S4(SRD_Q)}, s{S_QO} offen {self.NT}; @q"], [f"buffer_load_dwordx4 v[{self.QR+4}:{self.QR+7}], v222, {S4(SRD_Q)}, s{S_QO} offen offset:16 {self.NT}; @q"]],
                15: [[self.poll_ld(S_PF3, 'pf3', 218)], [self.poll_ld(S_PF5, 'pf5', 220)]]}
        if 'wolate' in self.exp:
            w = self.wo_groups
            for k, it in enumerate(range(5, 13)):
                late[it] = late.get(it, []) + [w[2*k], w[2*k+1]]
        if 'f5early' in self.exp:
            late[15] = [[self.poll_ld(S_PF3, 'pf3', 218)]]
            late[5] = [[self.poll_ld(S_PF5, 'pf5', 220)]]
        if 'f3early' in self.exp:
            late[13] = late[15]; del late[15]
        a(smfma(0))
        a("v_and_b32 v4, 15, v1\nv_lshrrev_b32 v5, 4, v1\nv_lshlrev_b32 v4, 10, v4\nv_lshl_add_u32 v222, v5, 5, v4")
        a(f"v_mov_b32 v218, 0\nv_mov_b32 v219, 0\nv_mov_b32 v220, 0\nv_mov_b32 v221, 0")
        a("v_lshrrev_b32 v4, 3, v1\nv_and_b32 v5, 7, v1\nv_lshlrev_b32 v223, 12, v4\nv_lshl_add_u32 v223, v5, 4, v223")
        pvp = []; N = len(allitems)
        for n, (b, t, m) in enumerate(allitems):
            s = S[n & 1]; p = P[n & 1]; nxt = n + 1
            lg = list(late.get(n, []))
            ex = lambda r0, r1: [a(f"v_exp_f32 v{s+r}, v{s+r}") for r in range(r0, r1)]
            ex(0, 2)
            if pvp: a(pvp[0])
            ex(2, 5)
            if pvp: a(pvp[1])
            pvp = []
            if lg: a(J(lg.pop(0)))
            ex(5, 9)
            if nxt < N:
                if nxt in pair_start:
                    pi = pair_start[nxt]
                    a(f"s_waitcnt vmcnt(@pair{pi})" if pi != 1 else "s_waitcnt vmcnt(@zst)")
                    if pi == 1: a(self.flag(S_F3P))
                a(smfma(nxt))
            ex(9, 13)
            if lg: a(J(lg.pop(0)))
            ex(13, 16)
            for r in range(8): a(f"v_cvt_pk_bf16_f32 v{p+r}, v{s+2*r}, v{s+2*r+1}")
            if m == 'D':
                for r in range(8): a(f"v_and_b32 v{p+r}, v{MK+r}, v{p+r}")
            elif m == 'F':
                for r in range(8): a(f"v_bfi_b32 v{p+r}, v{MK+r}, 0, v{p+r}")
            c = "0" if first_pv[b] else f"v[{O[b]}:{O[b]+15}]"
            first_pv[b] = False
            pv = [f"{MF32} v[{O[b]}:{O[b]+15}], {Vf(t,0)}, v[{p}:{p+3}], {c}", f"{MF32} v[{O[b]}:{O[b]+15}], {Vf(t,1)}, v[{p+4}:{p+7}], v[{O[b]}:{O[b]+15}]"]
            if nxt in pair_start or nxt == N:
                a("s_nop 1"); a(pv[0]); a(pv[1])
                if nxt in pair_start:
                    pi = pair_start[nxt]
                    a(f"s_cmp_le_u32 s{S_NH}, {pi}\ns_cbranch_scc1 {Lj0 if pi == 0 else Ldone}")
            else: pvp = pv
        a(f"{Ldone}:")
        self.stamp('attndone')
        a("s_nop 7\ns_nop 3")
        for b in range(2): a(f"v_mov_b32 v{2+b}, v{O[b]+8}\nv_mov_b32 v4, v{O[b]+8}\ns_nop 1\nv_permlane32_swap_b32 v{2+b}, v4")
        a(f"s_mov_b32 s{ST}, 0x71800000")
        a(f"v_max_f32 v4, v2, v3\ns_nop 0\nv_cmp_gt_f32 vcc, s{ST}, v4")
        a(f"s_nop 3\ns_mov_b64 s[{ST+2}:{ST+3}], vcc\nv_cmp_o_f32 vcc, v2, v3\ns_nop 4\ns_and_b64 s[{ST+2}:{ST+3}], s[{ST+2}:{ST+3}], vcc")
        a(f"s_cmp_lg_u32 s{S_FB}, 0\ns_cbranch_scc1 {Lok}")
        a(f"s_cmp_eq_u64 s[{ST+2}:{ST+3}], -1\ns_cbranch_scc0 {Lfb}\n{Lok}:")
        with Cap(a) as cap:
            a(f"{Lj0}:")
            a("s_waitcnt vmcnt(0)"); a(self.flag(S_F3P)); a(f"s_branch {Ldone}")
            a(f"{Lfb}:")
            a(f"s_mov_b32 s{ST}, {hex(NEG)}")
            for r in range(16): a(f"v_sub_f32 v{128+r}, s{ST}, v{MD+r}")
            a(f"v_mov_b32 v2, s{ST}\nv_mov_b32 v3, s{ST}\ns_waitcnt vmcnt(0)")
            Lf = a.label('fb_done')
            for (b, t, m) in sorted(allitems, key=lambda x: -x[1]):
                if t < 8 and (t % 2 == 1) and b == 0: a(f"s_cmp_le_u32 s{S_NH}, {(7-t)//2}\ns_cbranch_scc1 {Lf}")
                c = {None: "0", 'D': f"v[{MD}:{MD+15}]", 'F': "v[128:143]"}[m]
                a(f"{MF32} v[16:31], {Kf(t)}, v[{QF[b]}:{QF[b]+3}], {c}\ns_nop 7\ns_nop 3")
                a(J(self.maxreduce(16, 2+b, init=2+b))); a("s_nop 7")
            a(f"{Lf}:")
            for g in self.finish_max(2, 0, None, 4) + self.finish_max(3, 1, None, 4): a(J(g))
            a(f"s_mov_b32 s{S_FB}, 1\ns_branch {Lmain}")
        self.tail_blocks.append(cap.out)

    def tail(self):
        a = self.a
        O = A_O
        if 'wolate' in self.exp:
            Lw = a.label('wo_done')
            a(f"s_cmp_ge_u32 s{S_NH}, 3\ns_cbranch_scc1 {Lw}")
            for g in self.wo_groups: a(J([x.replace('; @wo', '; @cond') for x in g]))
            a(f"s_waitcnt vmcnt(0)\n{Lw}:")
        a("v_rcp_f32 v2, v2\nv_rcp_f32 v3, v3")
        for b in range(2):
            for r in range(8): a(f"v_mul_f32 v{O[b]+r}, v{O[b]+r}, v{2+b}")
            for p in range(4): a(f"v_cvt_pk_bf16_f32 v{16+4*b+p}, v{O[b]+2*p}, v{O[b]+2*p+1}")
            if b == 1: a(f"s_add_u32 s{ST+1}, s{S_OFS}, 32768")
            if b == 0 and 'zfirst' in self.exp: continue
            if b == 1 and 'zfirst' in self.exp: continue
            a(f"buffer_store_dwordx4 v[{16+4*b}:{19+4*b}], v{V_OF}, {WS}, s{S_OFS if b == 0 else ST+1} offen sc1 ; @ost")
        zf = 'zfirst' in self.exp
        a("s_waitcnt vmcnt(0)" if zf else "s_waitcnt vmcnt(2)")
        self.poll_check(S_PF3, "0xffff", 'f3', vt=218, cnt=203)
        a(f"s_add_u32 s{ST+6}, s{S_ZLD}, {8*4096}")
        a(f"buffer_load_dwordx4 v[64:67], v223, {WS}, s{S_ZLD} offen sc1 ; @z")
        a(f"buffer_load_dwordx4 v[68:71], v223, {WS}, s{ST+6} offen sc1 ; @z")
        if zf:
            a(f"buffer_store_dwordx4 v[16:19], v{V_OF}, {WS}, s{S_OFS} offen sc1 ; @ost")
            a(f"buffer_store_dwordx4 v[20:23], v{V_OF}, {WS}, s{ST+1} offen sc1 ; @ost")
        self.stamp('ostored')
        self.poll_check(S_PF5, "-1", 'f5', vt=220, cnt=204)
        a(f"s_lshl_b32 s{ST}, s{S_WAVE}, 11\ns_add_u32 s{ST}, s{ST}, {TP}\nv_add_u32 v25, s{ST}, v{V_L16}")
        a(f"v_lshrrev_b32 v6, 4, v1\nv_bfe_u32 v3, v1, 2, 2\nv_lshl_add_u32 v4, v6, 4, v3\nv_lshlrev_b32 v4, 7, v4\nv_and_b32 v5, 3, v1\nv_lshl_add_u32 v4, v5, 3, v4\ns_lshl_b32 s{ST}, s{S_WAVE}, 5\ns_add_u32 s{ST}, s{ST}, {TP}\nv_add_u32 v26, s{ST}, v4")
        a(f"v_and_b32 v4, 15, v1\nv_lshlrev_b32 v4, 11, v4\nv_lshl_add_u32 v27, v6, 5, v4")
        for i in range(8): a(f"v_lshlrev_b32 v{32+2*i}, 16, v{self.QR+i}\nv_and_b32 v{33+2*i}, 0xffff0000, v{self.QR+i}")
        a("v_lshrrev_b32 v2, 5, v1\nv_bfe_u32 v4, v1, 4, 1\nv_lshlrev_b32 v6, 4, v2\nv_lshl_add_u32 v6, v4, 2, v6\nv_add_u32 v6, v6, v3\nv_lshlrev_b32 v6, 7, v6\nv_lshl_add_u32 v6, v5, 3, v6")
        a("v_lshrrev_b32 v3, 1, v3\nv_lshl_add_u32 v3, v4, 1, v3")
        for t in range(4): a(f"v_xor_b32 v5, {t}, v3\nv_lshl_add_u32 v{84+t}, v5, 5, v6")
        a("v_and_b32 v5, 15, v1\nv_lshlrev_b32 v30, 11, v5\nv_lshl_add_u32 v30, v4, 5, v30\nv_lshl_add_u32 v30, v2, 4, v30")
        OF = 96
        def ofld(m, tag=True, force=False):
            pre = [f"s_add_u32 s{ST+6}, s{S_OFL}, {(m//4)*4096}"] if (m % 4 == 0 or force) else []
            return pre + [f"buffer_load_dwordx4 v[{OF+4*m}:{OF+4*m+3}], v{V_L16}, {WS}, s{ST+6} offen offset:{1024*(m%4)} sc1" + (f" ; @of{m}" if tag else " ; @cond")]
        rd = [f"ds_read_b64_tr_b16 a[{16*m+4*t_+2*e}:{16*m+4*t_+2*e+1}], v{84+t_} offset:{m*4096 + e*1024}" for m in range(16) for t_ in range(4) for e in range(2)]
        if 'ofearly' in self.exp:
            a(J(interleave(rd, [ofld(m) for m in range(16)], every=4, start=64)))
        else:
            a(J(rd))
        a("s_waitcnt vmcnt(@z)")
        a("ds_write_b128 v25, v[64:67]\nds_write_b128 v25, v[68:71] offset:1024")
        a("s_waitcnt lgkmcnt(0)\ns_barrier")
        self.stamp('zlds')
        for n in range(4): a(f"ds_read_b64_tr_b16 v[{48+2*n}:{49+2*n}], v26 offset:{512*n}")
        a("s_waitcnt lgkmcnt(0)")
        comp = []
        for i in range(8): comp += [f"v_lshlrev_b32 v{64+2*i}, 16, v{48+i}", f"v_and_b32 v{65+2*i}, 0xffff0000, v{48+i}"]
        comp += [f"v_mul_f32 v{32+i}, v{32+i}, v{64+i}" for i in range(16)]
        comp += [f"v_cvt_pk_bf16_f32 v{16+i}, v{32+2*i}, v{33+2*i}" for i in range(8)]
        a(J(interleave(comp, [ofld(m) for m in range(16)], every=3) if 'ofearly' not in self.exp else comp))
        a(f"buffer_store_dwordx4 v[16:19], v27, {S4(SRD_OUT)}, s{S_BOUT} offen{self.OUTF} ; @bst")
        a(f"buffer_store_dwordx4 v[20:23], v27, {S4(SRD_OUT)}, s{S_BOUT} offen offset:16{self.OUTF} ; @bst")
        self.stamp('ofissued')
        a(f"s_mov_b32 s{S_TMO}, 0")
        Lrl = [a.label(f'of_reload{k}') for k in range(4)]
        for m in range(16):
            r = OF + 4*m
            Lc = a.label(f'ofchk{m}'); Lk = a.label(f'ofok{m}')
            a(f"s_waitcnt vmcnt(@of{m})")
            a(f"v_max3_u32 v31, v{r}, v{r+1}, v{r+2}\nv_max_u32 v31, v31, v{r+3}\nv_cmp_eq_u32 vcc, -1, v31")
            if m > 0:
                for t_ in range(4):
                    c = "0" if m-1 == 0 else f"v[{64+4*t_}:{67+4*t_}]"
                    a(f"{MF16} v[{64+4*t_}:{67+4*t_}], a[{16*(m-1)+4*t_}:{16*(m-1)+4*t_+3}], v[{r-4}:{r-1}], {c}")
            else: a("s_nop 3")
            a(f"s_cbranch_vccnz {Lc}_r\n{Lk}:")
            with Cap(a) as cap:
                a(f"{Lc}_r:")
                if 'retry1' in self.exp:
                    a(f"s_add_u32 s{ST+6}, s{S_OFL}, {(m//4)*4096}")
                    a(f"buffer_load_dwordx4 v[{r}:{r+3}], v{V_L16}, {WS}, s{ST+6} offen offset:{1024*(m%4)} sc1\ns_waitcnt vmcnt(0)")
                    a(f"s_add_u32 s{S_TMO}, s{S_TMO}, 1\ns_cmp_gt_u32 s{S_TMO}, 0x8000\ns_cbranch_scc1 {Lk}")
                    a(f"v_max3_u32 v31, v{r}, v{r+1}, v{r+2}\nv_max_u32 v31, v31, v{r+3}\nv_cmp_eq_u32 vcc, -1, v31\ns_nop 3\ns_cbranch_vccnz {Lc}_r")
                    if m < 15: a(f"s_call_b64 s[30:31], {Lrl[(m+1)//4]}")
                    a(f"s_branch {Lk}")
                else:
                    a(f"s_call_b64 s[30:31], {Lrl[m//4]}")
                    a(f"s_cbranch_scc1 {Lk}")
                    a(f"v_max3_u32 v31, v{r}, v{r+1}, v{r+2}\nv_max_u32 v31, v31, v{r+3}\nv_cmp_eq_u32 vcc, -1, v31\ns_nop 3\ns_cbranch_vccnz {Lc}_r\ns_branch {Lk}")
            self.tail_blocks.append(cap.out)
        for t_ in range(4): a(f"{MF16} v[{64+4*t_}:{67+4*t_}], a[{16*15+4*t_}:{16*15+4*t_+3}], v[{OF+60}:{OF+63}], v[{64+4*t_}:{67+4*t_}]")
        with Cap(a) as cap:
            for k in range(4):
                a(f"{Lrl[k]}:")
                if self.SLEEP: a(f"s_sleep {self.SLEEP}")
                for m in range(4*k, 16): a(J(ofld(m, False)))
                a("s_waitcnt vmcnt(0)")
                a(f"s_add_u32 s{S_TMO}, s{S_TMO}, 1\ns_cmp_gt_u32 s{S_TMO}, 0x8000\ns_setpc_b64 s[30:31]")
        self.tail_blocks.append(cap.out)
        self.count(206)

        a("s_nop 7")
        for t in range(4): a(f"v_cvt_pk_bf16_f32 v{88+2*t}, v{64+4*t}, v{65+4*t}\nv_cvt_pk_bf16_f32 v{89+2*t}, v{66+4*t}, v{67+4*t}")
        a("s_nop 1\nv_permlane16_swap_b32 v88, v90\nv_permlane16_swap_b32 v89, v91\nv_permlane16_swap_b32 v92, v94\nv_permlane16_swap_b32 v93, v95\ns_nop 1")
        a(f"buffer_store_dwordx4 v[88:91], v30, {S4(SRD_OUT)}, s{S_AOUT} offen{self.OUTF}")
        a(f"buffer_store_dwordx4 v[92:95], v30, {S4(SRD_OUT)}, s{S_AOUT} offen offset:64{self.OUTF}")
        self.stamp('end')

    def mask_table(self):
        rows = []
        for blk in range(6):
            for l in range(64):
                q = l & 31; hi = l >> 5; vals = []
                for e in range(4):
                    r = 4*blk + e
                    if r < 16:
                        key = 8*(r // 4) + 4*hi + (r % 4)
                        vals.append(0 if key <= q else NEG)
                    else:
                        p = r - 16; k = 8*(p // 2) + 4*hi + 2*(p % 2)
                        vals.append((0xffff if k <= q else 0) | (0xffff0000 if k + 1 <= q else 0))
                rows.append(".long " + ", ".join(hex(v) for v in vals))
        return rows

    def build(self):
        a = self.a
        self.startup(); self.pre(); self.qkv(); self.conv(); self.attention(); self.tail()
        self.dump_stamps()
        a("L_end:\ns_endpgm")
        a.lines = resolve_vmcnt(a.lines)
        for blk in self.tail_blocks: a.lines += blk
        probs = check_hazards(a.lines)
        for p in probs[:12]: print(p, file=sys.stderr)
        a(".p2align 6\nL_masktab:")
        a.lines += self.mask_table()
        a("L_codeend:")
        hdr = open('cdna_kernels/' + NAME + '.s.ref').read().split('\n')
        cm = [l for l in hdr if l.startswith(';') and '@launch' not in l and 'Override' not in l and 'grid=ceil' not in l][:13]
        head = J(cm) + f"\n; @launch grid=(256,1,1) block=(256,1,1) lds={LDS_BYTES}\n"
        head += f'.amdgcn_target "amdgcn-amd-amdhsa--gfx950"\n.text\n.globl {NAME}_kernel\n.p2align 8\n.type {NAME}_kernel,@function\n{NAME}_kernel:\n'
        tail = f'''.section .rodata,"a"
.p2align 6
.amdhsa_kernel {NAME}_kernel
  .amdhsa_next_free_vgpr 512
  .amdhsa_next_free_sgpr 102
  .amdhsa_accum_offset 256
  .amdhsa_group_segment_fixed_size 0
  .amdhsa_kernarg_size 96
  .amdhsa_user_sgpr_count 2
  .amdhsa_user_sgpr_kernarg_segment_ptr 1
  .amdhsa_system_sgpr_workgroup_id_x 1
.end_amdhsa_kernel
'''
        return head + a.text() + tail, len(probs), self.stamp_slots

if __name__ == '__main__':
    ap = argparse.ArgumentParser()
    ap.add_argument('-o', default='cdna_kernels/' + NAME + '.s')
    ap.add_argument('--stamps', default=''); ap.add_argument('--exp', default='')
    args = ap.parse_args()
    g = Gen(stamps=[x for x in args.stamps.split(',') if x], exp=args.exp)
    txt, np_, slots = g.build()
    open(args.o, 'w').write(txt)
    print('wrote', args.o, 'lines', txt.count('\n'), 'hazards', np_, 'stamps', slots)
```

```python
import sys, argparse, struct
from asmlib import *

NAME = "concat_heads__sliding_block__ssm_conv_h3__prompt"
import os
FS = int(os.environ.get('FS', 4))
WS_F1, WS_F2, WS_F3, WS_F5 = 0x00000, 0x20000, 0x40000, 0x60000
WS_KVT = 0x100000; WS_ZT = 0x300000; WS_KV = 0x500000; WS_OF = 0xA00000
import os
KVS = int(os.environ.get('KVS', 2304))
WS_STAMP = 0xC00000; WS_SIZE = 0xC40000
TZ = 98304; TZC = 4160
U = TZ + 8*TZC; UC = 4608
TP = U + 2*UC
WSH = TP + 8192
LDS_BYTES = WSH + 1024
EX = 65536
S_WAVE, S_XCD, S_I, S_J, S_P = 3, 4, 5, 6, 7
SRD_X, SRD_W, SRD_K, SRD_V, SRD_Q, SRD_H, SRD_WO, SRD_OUT, SRD_WS, SRD_DBG, SRD_SH = 8,12,16,20,24,28,32,36,40,44,48
S_T = 52; S_D = 54; S_TMO = 55
PTR = 56
S_HT = 72
S_XOFF, S_WOFF, S_M0B, S_NH = 80, 81, 82, 83
ST = 84
S_FB = 94; S_HEAD = 95
S_SEL0, S_SEL1 = 96, 97
S_M0W = 98; S_OFS = 99
S_F1P, S_F2P, S_F5P, S_F3P, S_PF1, S_PF2, S_PF3, S_PF5 = 16, 17, 18, 19, 20, 21, 22, 23
S_KVO, S_ZTO, S_ZLD, S_BOUT, S_AOUT, S_OFL, S_QO, S_WOO, S_WOM, S_UO, S_NHM, S_DV = 56, 57, 58, 59, 60, 61, 62, 63, 66, 67, 68, 69
S_SPEC = 64
S_CH, S_RHO = 70, 71
QSCALE = 0.25 * 1.4426950408889634
def f2u(x): return struct.unpack('<I', struct.pack('<f', x))[0]
def S4(b): return f"s[{b}:{b+3}]"
WS, DBG = S4(SRD_WS), S4(SRD_DBG)
MF32 = "v_mfma_f32_32x32x16_bf16"; MF16 = "v_mfma_f32_16x16x32_bf16"
NEG = 0xf149f2ca
A_S = [16, 32]; A_P = [48, 56]; A_CN = [184, 160]; A_O = [96, 112]; A_MD = 144; A_MK = 200; A_QF = [224, 228]
CACC = 96
V_T = 8; V_FL = 10; V_VV = 11; V_OF = 12; V_L16 = 13; V_CA = 14; V_CB = 15; V_PL = 7
J = '\n'.join
OOB = 0x7ff00000

class Gen:
    STAMP_REGS = [48, 50, 72, 74, 76, 78, 28, 24] if True else []
    def __init__(self, stamps=None, exp=''):
        self.a = Asm(); self.stamps = stamps or []; self.exp = exp.split(',')
        self.stamp_slots = []; self.tail_blocks = []
        self.NT = '' if 'nont' in self.exp else 'nt '
        self.OUTF = ' sc1' if 'outsc1' in self.exp else (' nt' if 'outnt' in self.exp else (' sc0 sc1' if 'outsys' in self.exp else ''))
        self.QR = 72 if 'wolate' in self.exp else 176
        self.SLEEP = next((int(x[2:]) for x in self.exp if x.startswith('sl')), 2)

    def srd(self, base, ptr, size):
        return [f"s_mov_b32 s{base}, s{ptr}", f"s_mov_b32 s{base+1}, s{ptr+1}", f"s_mov_b32 s{base+2}, {size}", f"s_mov_b32 s{base+3}, 0x20000"]
    def stamp(self, name):
        if name not in self.stamps: return
        n = len(self.stamp_slots)
        assert n < (10 if 'blk' in self.exp else 6)
        r = self.STAMP_REGS[n]; self.stamp_slots.append(name)
        if 'blk' in self.exp:
            self.a(f"s_memtime s[92:93]\ns_waitcnt lgkmcnt(0)\nv_mov_b32 v254, s92\nv_accvgpr_write_b32 a{210+n}, v254")
        else:
            self.a(f"s_memtime s[{r}:{r+1}]")
    def dump_stamps(self):
        if not self.stamp_slots: return
        a = self.a
        a("s_waitcnt lgkmcnt(0)")
        if 'dbgs' in self.exp:
            L = a.label('dbgskip')
            a("s_waitcnt vmcnt(0)")
            a(f"s_cmp_lg_u32 s{S_WAVE}, 1\ns_cbranch_scc1 {L}\ns_cmp_lg_u32 s2, 109\ns_cbranch_scc1 {L}")
            a("v_mov_b32 v4, 8\ns_mov_b64 exec, 1")
            for n, r in enumerate(self.STAMP_REGS[:len(self.stamp_slots)]):
                a(f"s_sub_u32 s84, s{r}, s100\nv_mov_b32 v2, s84\nbuffer_store_dword v2, v4, {DBG}, 0 offen offset:{4*n}\ns_nop 1")
            a(f"s_mov_b64 exec, -1\n{L}:")
            return
        a(f"s_lshl_b32 s{ST}, s2, 2\ns_add_u32 s{ST}, s{ST}, s{S_WAVE}\ns_lshl_b32 s{ST}, s{ST}, 7\ns_add_u32 s{ST}, s{ST}, {WS_STAMP}")
        a(f"v_mov_b32 v3, s{ST}\ns_mov_b64 exec, 1")
        for n, r in enumerate([100] + self.STAMP_REGS[:len(self.stamp_slots)]):
            if 'blk' in self.exp and n > 0: a(f"v_accvgpr_read_b32 v2, a{210+n-1}\ns_nop 1\nbuffer_store_dword v2, v3, {WS}, 0 offen offset:{4*n}\ns_nop 1")
            else: a(f"v_mov_b32 v2, s{r}\nbuffer_store_dword v2, v3, {WS}, 0 offen offset:{4*n}\ns_nop 1")
        a(f"v_mov_b32 v2, s101\nbuffer_store_dword v2, v3, {WS}, 0 offen offset:120\ns_nop 1")
        a(f"s_memrealtime s[84:85]\ns_waitcnt lgkmcnt(0)\nv_mov_b32 v2, s84\nbuffer_store_dword v2, v3, {WS}, 0 offen offset:124\ns_nop 1")
        a("s_mov_b64 exec, -1")
    def count(self, k):
        return
        if self.stamps and 'dbgs' not in self.exp: self.a(f"v_mov_b32 v253, s{S_TMO}\nv_accvgpr_write_b32 a{k}, v253")
    def poll_ld(self, sbase, tag='', vt=4):
        return f"buffer_load_dwordx2 v[{vt}:{vt+1}], v{V_PL}, {WS}, s{sbase} offen sc1" + (f" ; @{tag}" if tag else "")
    def cmp_flags(self, mask, vt=4):
        return [f"v_cmp_ne_u64 vcc, s[{S_T}:{S_T+1}], v[{vt}:{vt+1}]", "s_nop 0", f"s_and_b32 vcc_lo, vcc_lo, {mask}"]
    def poll_check(self, sbase, mask, name, vt=4, cnt=None):
        a = self.a
        L = a.label(name); Ld = a.label(name+'_done'); Lc = a.label(name+'_chk')
        a(f"s_mov_b32 s{S_TMO}, 0\ns_branch {Lc}\n{L}:")
        if self.SLEEP: a(f"s_sleep {self.SLEEP}")
        a(self.poll_ld(sbase, 'cond', vt))
        a(f"s_waitcnt vmcnt(0)\n{Lc}:")
        a(f"s_add_u32 s{S_TMO}, s{S_TMO}, 1")
        a(J(self.cmp_flags(mask, vt)))
        a(f"s_cbranch_scc0 {Ld}\ns_cmp_lt_u32 s{S_TMO}, 0x20000\ns_cbranch_scc1 {L}\n{Ld}:")
        if cnt: self.count(cnt)
    def flag(self, sreg, tag='flag'):
        return f"buffer_store_dwordx2 v[{V_T}:{V_T+1}], v{V_FL}, {WS}, s{sreg} offen sc1 ; @{tag}"
    def dma_groups(self, s):
        buf = s % 3
        X, W = S4(SRD_X), S4(SRD_W)
        t = f" ; @dma{s}"
        if 'rot' in self.exp:
            px = [f"s_add_u32 s{ST+9}, s101, {s & 3}", f"s_and_b32 s{ST+9}, s{ST+9}, 3", f"s_mul_i32 s{ST+8}, s{ST+9}, {64*3072}", f"s_lshl_b32 s{ST+9}, s{ST+9}, 7",
                  f"s_add_u32 s{ST+9}, s{ST+9}, s{S_XOFF}", f"s_add_u32 s{ST+8}, s{ST+8}, s{S_WOFF}"]
            if s & 4: px += [f"s_add_u32 s{ST+9}, s{ST+9}, 512", f"s_add_u32 s{ST+8}, s{ST+8}, {4*64*3072}"]
            g0 = px + [f"s_add_u32 m0, s{S_M0B}, {buf*32768}", "s_nop 0", f"buffer_load_dwordx4 v100, {X}, s{ST+9} offen lds" + t]
            g2 = [f"s_add_u32 m0, s{S_M0W}, {buf*32768}", "s_nop 0", f"buffer_load_dwordx4 v102, {W}, s{ST+8} offen lds" + t]
        else:
            g0 = [f"s_add_u32 m0, s{S_M0B}, {buf*32768}", f"s_add_u32 s{ST+9}, s{S_XOFF}, {s*128}", f"buffer_load_dwordx4 v100, {X}, s{ST+9} offen lds" + t]
            g2 = [f"s_add_u32 m0, s{S_M0W}, {buf*32768}", f"s_add_u32 s{ST+8}, s{S_WOFF}, {s*64*3072}", f"buffer_load_dwordx4 v102, {W}, s{ST+8} offen lds" + t]
        return [g0,
                [f"buffer_load_dwordx4 v101, {X}, s{ST+9} offen offset:1024 lds" + t],
                g2,
                [f"buffer_load_dwordx4 v103, {W}, s{ST+8} offen offset:1024 lds" + t],
                [f"buffer_load_dwordx4 v102, {W}, s{ST+8} offen offset:2048 lds" + t, f"s_add_u32 m0, s{S_M0W}, {buf*32768 + 3072}"],
                ["s_nop 0", f"buffer_load_dwordx4 v248, {W}, s{ST+8} offen lds" + t] if s in (0, 1, 2) else [f"buffer_load_dwordx4 v248, {W}, s{ST+8} offen lds" + t],
                [f"buffer_load_dwordx4 v249, {W}, s{ST+8} offen offset:1024 lds" + t],
                [f"buffer_load_dwordx4 v248, {W}, s{ST+8} offen offset:2048 lds" + t]]

    def startup(self):
        a = self.a
        a("L_entry:")
        a(f"s_load_dwordx16 s[{PTR}:{PTR+15}], s[0:1], 0")
        a(f"s_load_dwordx8 s[{PTR+16}:{PTR+23}], s[0:1], 64")
        a(f"s_memrealtime s[{S_T}:{S_T+1}]")
        if self.stamps: a("s_memtime s[100:101]")
        a("s_cmp_ge_u32 s2, 256\ns_cbranch_scc1 L_end")
        a("s_getpc_b64 s[8:9]\nL_pc:")
        a("s_sub_u32 s8, s8, (L_pc - L_entry)\ns_subb_u32 s9, s9, 0\ns_mov_b32 s10, (L_codeend - L_entry)\ns_mov_b32 s11, 0x20000")
        a(f"s_lshr_b32 s{S_I}, s2, 3\ns_and_b32 s{ST}, s{S_I}, 7\ns_lshl_b32 s{ST}, s{ST}, 12\nv_lshlrev_b32 v2, 4, v0")
        a(f"buffer_load_dwordx4 v[216:219], v2, s[8:11], s{ST} offen")
        a("v_and_b32 v1, 63, v0\nv_lshrrev_b32 v2, 6, v0")
        a(f"s_and_b32 s{S_XCD}, s2, 7")
        a(f"v_readfirstlane_b32 s{S_WAVE}, v2")
        a("v_and_b32 v4, 7, v1\nv_lshrrev_b32 v5, 3, v1")
        a(f"s_lshl_b32 s{ST}, s{S_I}, 6\ns_lshl_b32 s{ST+2}, s{S_XCD}, 7\ns_lshl_b32 s{ST+1}, s{S_WAVE}, 4\ns_add_u32 s{ST}, s{ST}, s{ST+1}\ns_lshl_b32 s{ST}, s{ST}, 10\ns_add_u32 s{ST}, s{ST}, s{ST+2}")
        a(f"v_lshlrev_b32 v140, 11, v5\nv_lshl_add_u32 v140, v4, 4, v140\nv_add_u32 v140, s{ST}, v140")
        a("v_subrev_u32 v141, 3072, v140\nv_subrev_u32 v142, 2048, v140\nv_subrev_u32 v143, 1024, v140")
        if 'map3' in self.exp:
            a(f"s_and_b32 s{ST}, s{S_XCD}, 3\ns_lshl_b32 s{ST}, s{ST}, 3\ns_lshr_b32 s{ST+1}, s{S_I}, 2\ns_add_u32 s{S_J}, s{ST}, s{ST+1}")
            a(f"s_lshr_b32 s{ST}, s{S_XCD}, 2\ns_lshl_b32 s{ST}, s{ST}, 2\ns_and_b32 s{ST+1}, s{S_I}, 3\ns_add_u32 s{S_P}, s{ST}, s{ST+1}")
        elif 'map2' in self.exp:
            a(f"s_lshr_b32 s{ST}, s{S_XCD}, 1\ns_lshl_b32 s{ST}, s{ST}, 3\ns_lshr_b32 s{ST+1}, s{S_I}, 2\ns_add_u32 s{S_J}, s{ST}, s{ST+1}")
            a(f"s_and_b32 s{ST}, s{S_XCD}, 1\ns_lshl_b32 s{ST}, s{ST}, 2\ns_and_b32 s{ST+1}, s{S_I}, 3\ns_add_u32 s{S_P}, s{ST}, s{ST+1}")
        else:
            a(f"s_lshr_b32 s{ST}, s{S_XCD}, 1\ns_lshl_b32 s{ST}, s{ST}, 3\ns_and_b32 s{ST+1}, s{S_I}, 7\ns_add_u32 s{S_J}, s{ST}, s{ST+1}")
            a(f"s_and_b32 s{ST}, s{S_XCD}, 1\ns_lshl_b32 s{ST}, s{ST}, 2\ns_lshr_b32 s{ST+1}, s{S_I}, 3\ns_add_u32 s{S_P}, s{ST}, s{ST+1}")
        a(f"s_lshl_b32 s{ST}, s{S_XCD}, 9\nv_lshlrev_b32 v{V_L16}, 4, v1\nv_add_u32 v144, s{ST}, v{V_L16}")
        a("v_lshrrev_b32 v2, 4, v1\nv_xor_b32 v3, v4, v2\nv_lshlrev_b32 v3, 4, v3")
        a(f"s_lshl_b32 s{ST}, s{S_WAVE}, 14\nv_lshl_add_u32 v100, v5, 10, v3\nv_add_u32 v100, s{ST}, v100")
        a(f"v_xor_b32 v101, 64, v100\nv_add_u32 v101, {8192-1024}, v101")
        a("v_lshrrev_b32 v3, 1, v4\nv_and_b32 v2, 1, v2\nv_lshlrev_b32 v2, 1, v2\nv_xor_b32 v3, v3, v2\nv_lshlrev_b32 v3, 5, v3")
        a("v_and_b32 v2, 1, v4\nv_lshl_add_u32 v3, v2, 4, v3\nv_mul_u32_u24 v102, 3072, v5\nv_add_u32 v102, v102, v3\nv_xor_b32 v103, 32, v102")
        a("v_add_u32 v248, 24576, v102\nv_add_u32 v249, 24576, v103")
        a(f"s_lshl_b32 s{S_XOFF}, s{S_J}, 16")
        if 'rot' in self.exp: a(f"s_and_b32 s101, s{S_J}, 3")
        a(f"s_mul_i32 s{S_WOFF}, s{S_WAVE}, {16*3072}\ns_lshl_b32 s{ST}, s{S_P}, 7\ns_add_u32 s{S_WOFF}, s{S_WOFF}, s{ST}")
        a(f"s_lshl_b32 s{S_M0B}, s{S_WAVE}, 11\ns_mul_i32 s{S_M0W}, s{S_WAVE}, 6144\ns_add_u32 s{S_M0W}, s{S_M0W}, 8192")
        a("s_waitcnt lgkmcnt(0)")
        if self.stamps and 'dbgs' not in self.exp:
            a(f"s_mov_b32 s101, s{S_T}")
        a(J(self.srd(SRD_K, PTR+8, 2097152) + self.srd(SRD_V, PTR+10, 2097152) + self.srd(SRD_X, PTR+0, 2097152) + self.srd(SRD_W, PTR+2, 1572864)))
        Ln = a.label('nononce')
        a(f"s_or_b32 s{ST}, s2, s{S_WAVE}\ns_cmp_lg_u32 s{ST}, 0\ns_cbranch_scc1 {Ln}")
        a(J(self.srd(SRD_DBG, PTR+20, 256)))
        a(f"s_or_b32 s{S_T+1}, s{S_T+1}, 0x80000000")
        a(f"v_mov_b32 v14, s{S_T}\nv_mov_b32 v15, s{S_T+1}\nv_mov_b32 v2, 0\ns_mov_b64 exec, 1")
        a(f"buffer_store_dwordx2 v[14:15], v2, {DBG}, 0 offen sc1 ; @cond")
        a(f"s_mov_b64 exec, -1\n{Ln}:")
        K, V = S4(SRD_K), S4(SRD_V)
        for d, v, srd, off in ((28,140,K,0),(32,140,K,1024),(24,143,K,0),(20,142,K,0),(16,141,K,0),(36,140,V,0),(40,140,V,1024)):
            a(f"buffer_load_dwordx4 v[{d}:{d+3}], v{v}, {srd}, 0 offen offset:{off} {self.NT}; @kv")
        a(J(self.srd(SRD_SH, PTR+12, 4096)))
        a(f"s_mov_b32 m0, {WSH}\ns_mov_b32 exec_hi, 0")
        a(f"buffer_load_dwordx4 v144, {S4(SRD_SH)}, 0 offen lds ; @kv")
        a("s_mov_b32 exec_hi, -1")
        for g in self.dma_groups(0): a(J(g))
        a(f"s_lshr_b32 s{ST}, s{S_J}, 3\ns_lshl_b32 s{ST}, s{ST}, 9\ns_lshl_b32 s{ST+1}, s{S_I}, 4\ns_add_u32 s{ST}, s{ST}, s{ST+1}\ns_lshl_b32 s{ST+1}, s{S_WAVE}, 2\ns_add_u32 s{ST+4}, s{ST}, s{ST+1}\ns_lshl_b32 s{ST+4}, s{ST+4}, 10")
        a(f"v_lshlrev_b32 v145, 10, v5\nv_lshl_add_u32 v145, v4, 6, v145\nv_add_u32 v145, s{ST+4}, v145")
        a(f"s_lshl_b32 s{ST}, s{S_I}, 3\ns_lshl_b32 s{ST+1}, s{S_WAVE}, 1\ns_add_u32 s{ST}, s{ST}, s{ST+1}\ns_mul_i32 s{ST}, s{ST}, 3072\ns_lshr_b32 s{ST+1}, s{S_P}, 2\ns_lshl_b32 s{ST+1}, s{ST+1}, 9\ns_add_u32 s{ST}, s{ST}, s{ST+1}")
        a("v_subrev_u32 v7, 24, v1\nv_ashrrev_i32 v3, 31, v7\nv_and_b32 v6, 24, v3\nv_add_u32 v7, v7, v6\nv_not_b32 v3, v3\nv_and_b32 v3, 3072, v3")
        a(f"v_lshrrev_b32 v6, 3, v7\nv_lshl_add_u32 v3, v6, 10, v3\nv_and_b32 v7, 7, v7\nv_lshl_add_u32 v3, v7, 6, v3\nv_add_u32 v146, s{ST}, v3")
        a(f"s_mov_b32 exec_hi, 0xffff\nbuffer_load_dword v252, v146, {S4(SRD_W)}, 0 offen ; @pf\ns_mov_b32 exec_hi, 0\nbuffer_load_dword v252, v145, {S4(SRD_X)}, 0 offen ; @pf\ns_mov_b32 exec_hi, -1")
        if 'pfbearly' in self.exp:
            a(f"s_mov_b32 exec_hi, 0\nbuffer_load_dword v252, v145, {S4(SRD_X)}, 0 offen offset:512 ; @pf\ns_mov_b32 exec_hi, 0xffff\ns_mov_b32 s{ST+2}, {256*3072}\nbuffer_load_dword v252, v146, {S4(SRD_W)}, s{ST+2} offen ; @pf\ns_mov_b32 exec_hi, -1")
        self.stamp('issued')
        a(J(self.srd(SRD_WS, PTR+22, WS_SIZE) + self.srd(SRD_DBG, PTR+20, 256) + self.srd(SRD_Q, PTR+6, 2097152) + self.srd(SRD_WO, PTR+4, 524288) + self.srd(SRD_OUT, PTR+18, 4194304)))
        a(f"s_lshl_b32 s{ST}, s{S_XCD}, 7\ns_lshl_b32 s{ST+1}, s{S_I}, 2\ns_add_u32 s{ST}, s{ST}, s{ST+1}")
        a(f"s_load_dword s{S_D}, s[{PTR+16}:{PTR+17}], s{ST}")
        a(f"s_lshl_b32 s{ST}, s{S_XCD}, 6\ns_lshl_b32 s{ST+1}, s{S_I}, 1\ns_add_u32 s{ST}, s{ST}, s{ST+1}\ns_lshr_b32 s{ST+1}, s{S_WAVE}, 1\ns_add_u32 s{ST+3}, s{ST}, s{ST+1}\ns_lshl_b32 s{ST}, s{ST+3}, 12")
        a(f"s_add_u32 s{SRD_H}, s{PTR+14}, s{ST}\ns_addc_u32 s{SRD_H+1}, s{PTR+15}, 0\ns_mov_b32 s{SRD_H+2}, 4096\ns_mov_b32 s{SRD_H+3}, 0x20000")
        a(f"s_mov_b32 s{S_CH}, s{ST+3}\ns_and_b32 s{S_RHO}, s{S_WAVE}, 1")
        a(f"s_load_dwordx8 s[{S_HT}:{S_HT+7}], s[{SRD_H}:{SRD_H+1}], 4064")
        a(f"s_min_u32 s{S_NH}, s{S_J}, 4\ns_lshl_b32 s{S_HEAD}, s{S_P}, 2\ns_add_u32 s{S_HEAD}, s{S_HEAD}, s{S_WAVE}\ns_mov_b32 s{S_FB}, 0")
        a(f"s_mov_b32 s{S_SEL0}, 0x05040100\ns_mov_b32 s{S_SEL1}, 0x07060302")
        a("v_and_b32 v2, 31, v1\nv_lshrrev_b32 v3, 5, v1\nv_bfe_u32 v6, v2, 1, 3\nv_xor_b32 v3, v3, v6\nv_lshlrev_b32 v2, 7, v2")
        for kk in range(4):
            a(f"v_xor_b32 v6, {2*kk}, v3\nv_lshl_add_u32 v{104+kk}, v6, 4, v2\nv_add_u32 v{108+kk}, 0x10000, v{104+kk}")
        a("v_bfe_u32 v2, v1, 4, 1\nv_lshrrev_b32 v3, 5, v1\nv_bfe_u32 v6, v1, 2, 2")
        a("v_mul_u32_u24 v7, 3072, v3\nv_lshl_add_u32 v7, v6, 7, v7\nv_and_b32 v9, 3, v1\nv_lshl_add_u32 v7, v9, 3, v7")
        a(f"v_and_b32 v9, 2, v6\nv_xor_b32 v9, s{S_WAVE}, v9")
        a(f"v_lshl_add_u32 v113, v9, 5, v7\nv_add_u32 v113, {8192+2048}, v113")
        a("v_xor_b32 v9, v9, v2\nv_lshl_add_u32 v112, v9, 5, v7\nv_lshl_add_u32 v112, v2, 10, v112\nv_add_u32 v112, 8192, v112")
        a("v_add_u32 v114, 0x10000, v112\nv_add_u32 v115, 0x10000, v113")
        a(f"s_lshl_b32 s{ST}, s{S_WAVE}, 3\nv_add_u32 v2, s{ST}, v5\nv_sub_u32 v2, 31, v2")
        a("v_lshrrev_b32 v3, 2, v2\nv_xor_b32 v3, v3, v4\nv_lshlrev_b32 v3, 4, v3\nv_and_b32 v2, 3, v2\nv_lshl_add_u32 v3, v2, 2, v3\nv_lshl_add_u32 v3, v4, 10, v3")
        a(f"v_add_u32 v155, {TP}, v3\nv_lshlrev_b32 v153, 6, v4\nv_add_u32 v153, {WSH}, v153")
        a(f"s_lshl_b32 s{ST}, s{S_WAVE}, 1\nv_xor_b32 v156, s{ST}, v4\nv_lshlrev_b32 v156, 4, v156\nv_lshl_add_u32 v156, v5, 7, v156")
        a(f"s_lshl_b32 s{ST+1}, s{S_WAVE}, 11\ns_add_u32 s{ST+1}, s{ST+1}, {TP}\nv_add_u32 v156, s{ST+1}, v156\nv_xor_b32 v157, 16, v156")
        a(f"s_lshl_b32 s{ST}, s{S_XCD}, 6\ns_lshl_b32 s{ST+1}, s{S_WAVE}, 4\ns_add_u32 s{ST}, s{ST}, s{ST+1}\ns_lshl_b32 s{ST}, s{ST}, 12")
        a(f"s_lshl_b32 s{ST+1}, s{S_I}, 7\ns_sub_u32 s{ST}, s{ST}, s{ST+1}\ns_add_u32 s{ST}, s{ST}, {WS_KVT + 1984*2}")
        a(f"v_lshlrev_b32 v158, 12, v5\nv_lshl_add_u32 v158, v4, 4, v158\nv_add_u32 v158, s{ST}, v158\nv_add_u32 v159, {8*4096}, v158")

    def toep_valu(self, D, E, F, G):
        o = [f"v_alignbit_b32 v{E+i}, v{D[i+1]}, v{D[i]}, 16" for i in range(8)]
        o += [f"v_mov_b32 v{F+i}, v{D[i+1]}" for i in range(8)]
        o += [f"v_alignbit_b32 v{G+i}, v{D[i+2]}, v{D[i+1]}, 16" for i in range(8)]
        return o
    def toep_writes(self, D, E, F, G, vaddr):
        o = [f"ds_write_b128 v{vaddr}, v[{D[0]}:{D[0]+3}]", f"ds_write_b128 v{vaddr}, v[{D[4]}:{D[4]+3}] offset:16"]
        for r, R in ((1, E), (2, F), (3, G)):
            o += [f"ds_write_b128 v{vaddr}, v[{R}:{R+3}] offset:{r*TZC}", f"ds_write_b128 v{vaddr}, v[{R+4}:{R+7}] offset:{r*TZC+16}"]
        return o

    def pre(self):
        a = self.a
        for x in self.late_setup():
            if not x.startswith(';#'): a(x)
        a(J(self.flag_scalars()))
        a(J(self.scalar_dep()))
        a("s_waitcnt lgkmcnt(0)")
        pfB = ["s_mov_b32 exec_hi, 0", f"buffer_load_dword v252, v145, {S4(SRD_X)}, 0 offen offset:512 ; @pf", "s_mov_b32 exec_hi, 0xffff", f"s_mov_b32 s{ST+2}, {256*3072}", f"buffer_load_dword v252, v146, {S4(SRD_W)}, s{ST+2} offen ; @pf", "s_mov_b32 exec_hi, -1"]
        misc = [f"s_lshl_b32 s{ST+2}, s{S_RHO}, 11", f"v_lshlrev_b32 v2, 6, v1", "s_mov_b32 exec_hi, 0", f"buffer_load_dword v252, v2, {S4(SRD_H)}, s{ST+2} offen {self.NT}; @pf",
                ] + ([f"s_lshl_b32 s{ST+2}, s{S_I}, 4", f"s_lshl_b32 s{ST+3}, s{S_WAVE}, 2", f"s_add_u32 s{ST+2}, s{ST+2}, s{ST+3}", f"s_lshl_b32 s{ST+2}, s{ST+2}, 10", f"s_and_b32 s{ST+3}, s{S_XCD}, 1", f"s_lshl_b32 s{ST+3}, s{ST+3}, 9", f"s_add_u32 s{ST+2}, s{ST+2}, s{ST+3}",
                "v_lshrrev_b32 v2, 3, v1", "v_and_b32 v3, 7, v1", "v_lshlrev_b32 v2, 10, v2", "v_lshl_add_u32 v2, v3, 6, v2", f"buffer_load_dword v252, v2, {S4(SRD_WO)}, s{ST+2} offen ; @pf"] if 'wopf' in self.exp else []) + [
                "v_lshlrev_b32 v2, 20, v1", "s_mov_b32 exec_lo, 0x1fff", f"buffer_load_dword v252, v2, {WS}, 0 offen ; @pf", f"buffer_load_dword v252, v2, {S4(SRD_OUT)}, 0 offen ; @pf", "s_mov_b64 exec, -1"]
        if 'd1early' in self.exp:
            for g in self.dma_groups(1): a(J(g))
        if 'notouch' in self.exp:
            k = next(i for i, x in enumerate(misc) if x.startswith('v_lshlrev_b32 v2, 20'))
            misc = misc[:k] + ["s_mov_b64 exec, -1"]
        if 'nohpf' in self.exp:
            k = next(i for i, x in enumerate(misc) if x.startswith('v_lshlrev_b32 v2, 20'))
            misc = ["s_mov_b32 exec_hi, 0"] + misc[k:]
        if 'pfbafter' in self.exp: pass
        elif 'pfbearly' in self.exp: a(J(misc))
        elif 'miscafter' in self.exp: a(J(pfB))
        else:
            a(J(pfB + misc))
        self.stamp('shadowdone')
        a("s_waitcnt vmcnt(@kv)")
        self.stamp('predata')
        for i in range(4): a(f"ds_read_b128 v[{44+4*i}:{47+4*i}], v153 offset:{16*i}")
        seq = self.pre_valu()
        seq = seq[:12] + ["s_waitcnt lgkmcnt(0)"] + seq[12:]
        a(J(safe_interleave(seq, self.dma_groups(1), every=12) if 'd1early' not in self.exp else seq))
        for ch in range(8): a(f"ds_write_b32 v155, v{92+ch} offset:{ch*128}")
        if 'pfbafter' in self.exp: a(J(pfB + misc))
        if 'miscafter' in self.exp: a(J(misc))
        a("s_waitcnt vmcnt(@dma0) lgkmcnt(0)\ns_barrier")
        self.stamp('stage0')
        a("ds_read_b128 v[16:19], v156\nds_read_b128 v[20:23], v157 offset:1024")
        self.qkv_reads(0, 0, 0)
        a(f"v_mov_b32 v3, 0\nbuffer_load_dwordx2 v[{V_T}:{V_T+1}], v3, {DBG}, 0 offen sc1 ; @nonce")
    def pre_valu(self):
        main = []
        for d in range(4):
            for par in range(2):
                sel = f"s{S_SEL1 if par else S_SEL0}"; ch = 2*d + par; o = 224 + 8*(ch % 3)
                r = lambda row: 16 + 4*(row+3) + d
                un = (lambda dst, src: f"v_lshlrev_b32 v{dst}, 16, v{src}") if par == 0 else (lambda dst, src: f"v_and_b32 v{dst}, 0xffff0000, v{src}")
                main.append([f"v_perm_b32 v{o}, v{r(-1)}, v{r(0)}, {sel}", f"v_perm_b32 v{o+1}, v{r(0)}, v{r(1)}, {sel}",
                             f"v_perm_b32 v{o+2}, v{r(-3)}, v{r(-2)}, {sel}", f"v_perm_b32 v{o+3}, v{r(-2)}, v{r(-1)}, {sel}",
                             un(o+4, 36+d), un(o+5, 40+d),
                             f"v_dot2_f32_bf16 v{o+6}, v{o}, v{44+2*ch}, 0", f"v_dot2_f32_bf16 v{o+7}, v{o+1}, v{44+2*ch}, 0",
                             f"v_dot2_f32_bf16 v{o+6}, v{o+2}, v{45+2*ch}, v{o+6}", f"v_dot2_f32_bf16 v{o+7}, v{o+3}, v{45+2*ch}, v{o+7}",
                             f"v_mul_f32 v{o+6}, v{o+6}, v{o+4}", f"v_mul_f32 v{o+7}, v{o+7}, v{o+5}", f"v_cvt_pk_bf16_f32 v{92+ch}, v{o+7}, v{o+6}"])
        seq = []
        for k in range(0, 8, 2):
            A, B = main[k], main[k+1]
            seq += A[:6] + B[:6] + A[6:10] + B[6:10] + A[10:12] + B[10:12] + [A[12], B[12]]
        return seq

    def qkv_reads(self, s, kk, st):
        a = self.a
        buf = s % 3; b = 60 + 16*st
        if buf < 2: xa, wqk, wv, base = 104+kk, 112, 113, buf*32768
        else:       xa, wqk, wv, base = 108+kk, 114, 115, 0
        a(f"ds_read_b128 v[{b}:{b+3}], v{xa} offset:{base}")
        a(f"ds_read_b64_tr_b16 v[{b+8}:{b+9}], v{wqk} offset:{base + kk*6144}")
        a(f"ds_read_b64_tr_b16 v[{b+10}:{b+11}], v{wqk} offset:{base + kk*6144 + 512}")
        a(f"ds_read_b128 v[{b+4}:{b+7}], v{xa} offset:{base + 4096}")
        a(f"ds_read_b64_tr_b16 v[{b+12}:{b+13}], v{wv} offset:{base + kk*6144}")
        a(f"ds_read_b64_tr_b16 v[{b+14}:{b+15}], v{wv} offset:{base + kk*6144 + 512}")
    def qkv_mfma(self, st, first=False):
        b = 60 + 16*st
        c = lambda r: "0" if first else f"v[{r}:{r+15}]"
        return [f"{MF32} v[160:175], v[{b+8}:{b+11}], v[{b}:{b+3}], {c(160)}", f"{MF32} v[176:191], v[{b+8}:{b+11}], v[{b+4}:{b+7}], {c(176)}",
                f"{MF32} v[192:207], v[{b}:{b+3}], v[{b+12}:{b+15}], {c(192)}", f"{MF32} v[208:223], v[{b+4}:{b+7}], v[{b+12}:{b+15}], {c(208)}"]
    def nonce_fix(self):
        a = self.a
        Lok = a.label('nonce_ok'); Lp = a.label('nonce_poll')
        a(f"v_readfirstlane_b32 s{S_T}, v{V_T}\nv_readfirstlane_b32 s{S_T+1}, v{V_T+1}\ns_nop 0")
        a(f"s_cmp_eq_u32 s{S_T+1}, 0\ns_cbranch_scc1 {Lp}\n{Lok}:")
        with Cap(a) as cap:
            a(f"{Lp}:\ns_mov_b32 s{S_TMO}, 0\n{Lp}_l:")
            a(f"v_mov_b32 v3, 0\nbuffer_load_dwordx2 v[{V_T}:{V_T+1}], v3, {DBG}, 0 offen sc1\ns_waitcnt vmcnt(0)")
            a(f"v_readfirstlane_b32 s{S_T}, v{V_T}\nv_readfirstlane_b32 s{S_T+1}, v{V_T+1}")
            a(f"s_add_u32 s{S_TMO}, s{S_TMO}, 1\ns_cmp_gt_u32 s{S_TMO}, 0x20000\ns_cbranch_scc1 {Lok}")
            a(f"s_cmp_eq_u32 s{S_T+1}, 0\ns_cbranch_scc1 {Lp}_l\ns_branch {Lok}")
        self.tail_blocks.append(cap.out)

    def late_setup(self):
        o = []
        A = lambda t: o.extend(split_instrs(t))
        A(f"v_cmp_eq_u32 vcc, 0, v1\nv_mov_b32 v2, {hex(OOB)}\nv_mov_b32 v3, 0\n;#g\nv_cndmask_b32 v{V_FL}, v2, v3, vcc")
        A(f"v_lshlrev_b32 v{V_PL}, {FS}, v1\nv_cmp_gt_u32 vcc, 32, v1\ns_nop 1\n;#g\nv_cndmask_b32 v{V_PL}, v2, v{V_PL}, vcc")
        A(f"s_lshl_b32 s{ST}, s{S_RHO}, 11\nv_lshlrev_b32 v138, 5, v1\nv_add_u32 v138, s{ST}, v138\nv_subrev_u32 v136, 32, v138\nv_subrev_u32 v137, 16, v138")
        A(f"s_lshr_b32 s{ST+1}, s{S_WAVE}, 1\ns_mul_i32 s{ST+2}, s{ST+1}, {4*TZC}\ns_add_u32 s{ST}, s{ST}, s{ST+2}\ns_add_u32 s{ST}, s{ST}, {TZ}\nv_lshlrev_b32 v132, 5, v1\nv_add_u32 v132, s{ST}, v132")
        A(f"s_add_u32 s{ST+2}, s{ST+2}, {TZ + 4096}\nv_mov_b32 v139, s{ST+2}")
        A(f"s_lshl_b32 s{S_UO}, s{S_CH}, 12\ns_lshl_b32 s{ST}, s{S_RHO}, 10\ns_add_u32 s{S_UO}, s{S_UO}, s{ST}\ns_add_u32 s{S_UO}, s{S_UO}, {WS_KVT}")
        A(f"s_mul_i32 s{ST+2}, s{ST+1}, {UC}\ns_add_u32 s{ST+2}, s{ST+2}, s{ST}\ns_add_u32 s{ST+2}, s{ST+2}, {U}\nv_add_u32 v127, s{ST+2}, v{V_L16}")
        A(f"v_mov_b32 v148, 0\nv_mov_b32 v149, 0\nv_mov_b32 v150, 0\nv_mov_b32 v151, 0")
        A(f"v_lshrrev_b32 v2, 5, v1\nv_mul_u32_u24 v2, {UC}, v2\nv_and_b32 v3, 31, v1\nv_lshl_add_u32 v2, v3, 4, v2\nv_add_u32 v152, {U+4096}, v2")
        A(f"v_and_b32 v4, 15, v1\nv_lshrrev_b32 v5, 4, v1\nv_add_u32 v2, 1, v4\nv_and_b32 v3, 3, v2\nv_lshrrev_b32 v2, 2, v2")
        A(f"v_mul_u32_u24 v{V_CA}, {TZC}, v3\nv_lshl_add_u32 v{V_CA}, v2, 3, v{V_CA}\nv_lshl_add_u32 v{V_CA}, v5, 4, v{V_CA}")
        A(f"s_lshr_b32 s{ST}, s{S_WAVE}, 1\ns_mul_i32 s{ST+1}, s{ST}, {4*TZC}\ns_lshl_b32 s{ST+2}, s{S_RHO}, 8\ns_add_u32 s{ST+1}, s{ST+1}, s{ST+2}\ns_add_u32 s{ST+1}, s{ST+1}, {TZ}\nv_add_u32 v{V_CA}, s{ST+1}, v{V_CA}")
        A(f"s_mul_i32 s{ST+1}, s{ST}, {UC}\ns_add_u32 s{ST+1}, s{ST+1}, s{ST+2}\ns_add_u32 s{ST+1}, s{ST+1}, {U+480}")
        A(f"v_lshlrev_b32 v{V_CB}, 4, v5\nv_lshlrev_b32 v2, 5, v4\nv_sub_u32 v{V_CB}, v{V_CB}, v2\nv_add_u32 v{V_CB}, s{ST+1}, v{V_CB}")
        A(f"v_lshrrev_b32 v2, 5, v1\nv_mul_u32_u24 v2, 17, v2\nv_and_b32 v3, 31, v1\nv_add_u32 v2, v2, v3\nv_lshlrev_b32 v{V_VV}, 4, v2\nv_sub_u32 v3, 16, v3\nv_ashrrev_i32 v3, 31, v3\nv_and_b32 v3, {hex(OOB)}, v3\nv_or_b32 v{V_VV}, v{V_VV}, v3")
        A(f"v_bfe_u32 v{V_OF}, v1, 4, 1\nv_lshlrev_b32 v{V_OF}, 14, v{V_OF}\nv_lshrrev_b32 v2, 5, v1\nv_lshl_add_u32 v{V_OF}, v2, 8, v{V_OF}\nv_and_b32 v2, 15, v1\nv_lshl_add_u32 v{V_OF}, v2, 4, v{V_OF}")
        A(f"s_lshl_b32 s{S_OFS}, s{S_J}, 16\ns_lshr_b32 s{ST+1}, s{S_HEAD}, 1\ns_lshl_b32 s{ST+1}, s{ST+1}, 10\ns_add_u32 s{S_OFS}, s{S_OFS}, s{ST+1}\ns_and_b32 s{ST+1}, s{S_HEAD}, 1\ns_lshl_b32 s{ST+1}, s{ST+1}, 9\ns_add_u32 s{S_OFS}, s{S_OFS}, s{ST+1}\ns_add_u32 s{S_OFS}, s{S_OFS}, {WS_OF}")
        A("v_mov_b32 v128, -1\nv_mov_b32 v129, -1\nv_mov_b32 v130, -1\nv_mov_b32 v131, -1")
        A(f"s_lshl_b32 s{S_NHM}, 1, s{S_NH}\ns_sub_u32 s{S_NHM}, s{S_NHM}, 1")
        A(f"s_lshl_b32 s{ST}, s{S_HEAD}, 6\ns_lshl_b32 s{ST+1}, s{S_J}, 1\ns_add_u32 s{ST}, s{ST}, s{ST+1}\ns_mul_i32 s{S_KVO}, s{ST}, {KVS}\ns_add_u32 s{S_KVO}, s{S_KVO}, {WS_KV}")
        A(f"s_lshl_b32 s{S_ZTO}, s{S_CH}, 12\ns_lshl_b32 s{ST}, s{S_RHO}, 11\ns_add_u32 s{S_ZTO}, s{S_ZTO}, s{ST}\ns_add_u32 s{S_ZTO}, s{S_ZTO}, {WS_ZT}")
        A(f"s_lshl_b32 s{ST}, s{S_XCD}, 6\ns_lshl_b32 s{ST+1}, s{S_WAVE}, 4\ns_add_u32 s{ST}, s{ST}, s{ST+1}\ns_lshl_b32 s{ST}, s{ST}, 12\ns_lshl_b32 s{ST+2}, s{S_I}, 7\ns_add_u32 s{ST}, s{ST}, s{ST+2}\ns_add_u32 s{S_ZLD}, s{ST}, {WS_ZT}")
        A(f"s_lshl_b32 s{ST}, s{S_I}, 6\ns_add_u32 s{ST}, s{ST}, s{ST+1}\ns_lshl_b32 s{ST+2}, s{S_XCD}, 7\ns_lshl_b32 s{S_QO}, s{ST}, 10\ns_add_u32 s{S_QO}, s{S_QO}, s{ST+2}\ns_lshl_b32 s{S_BOUT}, s{ST}, 11\ns_add_u32 s{S_BOUT}, s{S_BOUT}, s{ST+2}\ns_add_u32 s{S_BOUT}, s{S_BOUT}, 1024")
        A(f"s_lshl_b32 s{ST}, s{S_J}, 6\ns_add_u32 s{ST}, s{ST}, s{ST+1}\ns_lshl_b32 s{S_AOUT}, s{ST}, 11\ns_lshl_b32 s{ST+2}, s{S_P}, 7\ns_add_u32 s{S_AOUT}, s{S_AOUT}, s{ST+2}")
        A(f"s_lshl_b32 s{S_OFL}, s{S_J}, 2\ns_add_u32 s{S_OFL}, s{S_OFL}, s{S_WAVE}\ns_lshl_b32 s{S_OFL}, s{S_OFL}, 14\ns_add_u32 s{S_OFL}, s{S_OFL}, {WS_OF}")
        A(f"s_lshl_b32 s{S_WOO}, s{S_WAVE}, 17\ns_add_u32 s{S_WOO}, s{S_WOO}, s{ST+2}\ns_lshl_b32 s{S_WOM}, s{S_WAVE}, 14")
        return o
    def scalar_dep(self):
        o = ["s_waitcnt lgkmcnt(0)"]
        A = lambda t: o.extend(split_instrs(t))
        A(J([f"v_mov_b32 v{116+i}, s{S_HT+i}" for i in range(8)]) + "\nv_mov_b32 v124, 0\nv_mov_b32 v125, 0")
        A(J(self.toep_valu(list(range(116, 126)), 224, 232, 240)))
        o.append("ds_write_b128 v152, v[148:151]")
        o.append("s_mov_b64 exec, 1"); o.extend(self.toep_writes(list(range(116, 126)), 224, 232, 240, 139)); o.append("s_mov_b64 exec, -1")
        A(f"s_lshl_b32 s{ST}, s{S_D}, 16\ns_and_b32 s{ST+1}, s{S_D}, 0xffff0000\ns_cmp_lt_u32 s{S_WAVE}, 2\ns_cselect_b32 s{S_DV}, s{ST}, s{ST+1}")
        return o
    def flag_scalars(self):
        o = []
        A = lambda t: o.extend(split_instrs(t))
        A(f"s_lshl_b32 s{ST}, s{S_XCD}, 2\ns_add_u32 s{ST}, s{ST}, s{S_WAVE}\ns_lshl_b32 s{ST}, s{ST}, 5\ns_add_u32 s{ST}, s{ST}, s{S_I}\ns_lshl_b32 s{S_F1P}, s{ST}, {FS}")
        A(f"s_lshl_b32 s{ST}, s{S_XCD}, 2\ns_lshr_b32 s{ST+1}, s{S_I}, 3\ns_add_u32 s{ST}, s{ST}, s{ST+1}\ns_lshl_b32 s{S_PF1}, s{ST}, {5+FS}")
        F2MUL = next((int(x[2:]) for x in self.exp if x.startswith("fm")), 32)
        A(f"s_mul_i32 s{ST}, s{S_HEAD}, {F2MUL}\ns_add_u32 s{ST}, s{ST}, s{S_J}\ns_lshl_b32 s{S_F2P}, s{ST}, {FS}\ns_add_u32 s{S_F2P}, s{S_F2P}, {WS_F2}\ns_lshl_b32 s{ST+1}, s{S_NH}, {FS}\ns_sub_u32 s{S_PF2}, s{S_F2P}, s{ST+1}")
        A(f"s_lshl_b32 s{ST}, s{S_J}, 5\ns_add_u32 s{ST+1}, s{ST}, s{S_HEAD}\ns_lshl_b32 s{S_F5P}, s{ST+1}, {FS}\ns_add_u32 s{S_F5P}, s{S_F5P}, {WS_F5}\ns_lshl_b32 s{S_PF5}, s{ST}, {FS}\ns_add_u32 s{S_PF5}, s{S_PF5}, {WS_F5}")
        A(f"s_lshl_b32 s{ST}, s{S_XCD}, 1\ns_add_u32 s{ST+1}, s{ST}, s{S_RHO}\ns_lshl_b32 s{ST+1}, s{ST+1}, 6\ns_and_b32 s{ST+2}, s{S_CH}, 63\ns_add_u32 s{ST+1}, s{ST+1}, s{ST+2}\ns_lshl_b32 s{S_F3P}, s{ST+1}, {FS}\ns_add_u32 s{S_F3P}, s{S_F3P}, {WS_F3}")
        A(f"s_lshr_b32 s{ST+1}, s{S_I}, 4\ns_add_u32 s{ST}, s{ST}, s{ST+1}\ns_lshl_b32 s{ST}, s{ST}, 6\ns_lshl_b32 s{ST+1}, s{S_WAVE}, 4\ns_add_u32 s{ST}, s{ST}, s{ST+1}\ns_lshl_b32 s{S_PF3}, s{ST}, {FS}\ns_add_u32 s{S_PF3}, s{S_PF3}, {WS_F3}")
        return o

    def qkv(self):
        a = self.a
        DA = list(range(116, 126)); H = S4(SRD_H)
        tzA = self.toep_valu(DA, 136, 24, 92)
        tzW = self.toep_writes(DA, 136, 24, 92, 132)
        pend = self.dma_groups(2); vfill = []
        def emit_mfma(st, first=False, nv=3):
            nonlocal pend
            for i, ins in enumerate(self.qkv_mfma(st, first)):
                a(ins)
                if i % 2 == 1 and pend: a(J(pend.pop(0)))
                for _ in range(nv):
                    if vfill: a(vfill.pop(0))
        def reads_wait(s, kk, st):
            self.qkv_reads(s, kk, st)
            extra = []
            if (s == 6 and kk >= 2) or (s == 7 and kk in (1, 2)): extra = [tzW.pop(0), tzW.pop(0)]
            for x in extra: a(x)
            a(f"s_waitcnt lgkmcnt({6+len(extra)})")
        for s in range(8):
            reads_wait(s, 1, 1)
            emit_mfma(0, first=(s == 0))
            reads_wait(s, 2, 0)
            emit_mfma(1)
            reads_wait(s, 3, 1)
            emit_mfma(0)
            if s == 0:
                while pend: a(J(pend.pop(0)))
                a(f"buffer_store_dwordx4 v[16:19], v158, {WS}, 0 offen sc1 ; @st0")
                a(f"buffer_store_dwordx4 v[20:23], v159, {WS}, 0 offen sc1 ; @st0")
            if s < 7:
                while pend: a(J(pend.pop(0)))
                a(f"s_waitcnt vmcnt(@dma{s+1}) lgkmcnt(0)")
                a("s_barrier")
                if s == 2:
                    self.nonce_fix()
                    a(self.flag(S_F1P))
                if s + 3 < 8: pend = self.dma_groups(s + 3)
                if s == 3:
                    hl = [f"buffer_load_dwordx4 v[116:119], v136, {H}, 0 offen {self.NT}; @h", f"buffer_load_dwordx4 v[120:123], v137, {H}, 0 offen {self.NT}; @h", f"buffer_load_dwordx2 v[124:125], v138, {H}, 0 offen {self.NT}; @h"]
                    d = pend
                    pend = [[hl[0]] + d[0], [hl[1]] + d[1], [hl[2]] + d[2], d[3], d[4], d[5], d[6], d[7]]
                if s == 5:
                    pend = [[self.poll_ld(S_PF1, 'pf1')],
                            [f"s_getpc_b64 s[{ST+4}:{ST+5}]", "L_tabpc:", f"s_add_u32 s{ST+4}, s{ST+4}, (L_masktab - L_tabpc)", f"s_addc_u32 s{ST+5}, s{ST+5}, 0", f"s_mov_b32 s{ST+6}, 6144", f"s_mov_b32 s{ST+7}, 0x20000",
                             f"buffer_load_dwordx4 v[{A_MD}:{A_MD+3}], v{V_L16}, s[{ST+4}:{ST+7}], 0 offen ; @md", f"buffer_load_dwordx4 v[{A_MD+4}:{A_MD+7}], v{V_L16}, s[{ST+4}:{ST+7}], 0 offen offset:1024 ; @md"],
                            [f"buffer_load_dwordx4 v[{A_MD+8}:{A_MD+11}], v{V_L16}, s[{ST+4}:{ST+7}], 0 offen offset:2048 ; @md", f"buffer_load_dwordx4 v[{A_MD+12}:{A_MD+15}], v{V_L16}, s[{ST+4}:{ST+7}], 0 offen offset:3072 ; @md"]]
                    vfill = list(tzA)
                if s == 6:
                    a("s_waitcnt vmcnt(@pf1)")
                    a(J(self.cmp_flags("-1"))); a(f"s_cselect_b32 s{S_SPEC}, 1, 0")
                    a(f"buffer_load_dwordx4 v[16:19], v{V_L16}, {WS}, s{S_UO} offen sc1 ; @u\nbuffer_load_dwordx4 v[20:23], v{V_L16}, {WS}, s{S_UO} offen offset:2048 sc1 ; @u")
                    pend = [[f"buffer_store_dwordx4 v[128:131], v{V_OF}, {WS}, s{S_OFS} offen sc1 ; @sent"], [f"s_add_u32 s{ST+2}, s{S_OFS}, 32768", f"buffer_store_dwordx4 v[128:131], v{V_OF}, {WS}, s{ST+2} offen sc1 ; @sent"]]
                if 'ilv' in self.exp:
                    with Cap(a) as c1: self.qkv_reads(s+1, 0, 0)
                    with Cap(a) as c2: emit_mfma(1, nv=(6 if s == 5 else 3))
                    rd_ = c1.out; mm = c2.out
                    out = []; k = 0
                    for x in mm:
                        out.append(x)
                        if x.startswith('v_mfma') and k < 2:
                            out += rd_[3*k:3*k+3]; k += 1
                    a(J(out))
                    self.stamp(f'b{s}')
                else:
                    self.qkv_reads(s+1, 0, 0)
                    self.stamp(f'b{s}')
                    emit_mfma(1, nv=(6 if s == 5 else 3))
            else:
                assert not tzW
                a("s_waitcnt lgkmcnt(0)")
                emit_mfma(1)
        assert not vfill and not pend
        self.stamp('b7')
        a("s_waitcnt vmcnt(@md)\ns_nop 7\ns_nop 1")
        F = self.conv_fillers()
        iq = next(i for i, g in enumerate(F) if isinstance(g, list) and g[0].startswith(f"s_mov_b32 s{ST+2}, {hex(f2u(QSCALE))}"))
        for g in F[:iq]:
            if g is None: continue
            a(J(g))
        self.F1 = F[iq:]
        self.stamp('epi')
        a("s_waitcnt vmcnt(@u)")
        Lu = a.label('u_slow'); Lub = a.label('u_back')
        a(f"s_cmp_lg_u32 s{S_SPEC}, 0\ns_cbranch_scc1 {Lu}\n{Lub}:")
        with Cap(a) as cap:
            a(f"{Lu}:"); self.poll_check(S_PF1, "-1", 'f1', cnt=201)
            a(f"buffer_load_dwordx4 v[16:19], v{V_L16}, {WS}, s{S_UO} offen sc1\nbuffer_load_dwordx4 v[20:23], v{V_L16}, {WS}, s{S_UO} offen offset:2048 sc1\ns_waitcnt vmcnt(0)\ns_branch {Lub}")
        self.tail_blocks.append(cap.out)
        a("ds_write_b128 v127, v[16:19]\nds_write_b128 v127, v[20:23] offset:2048")
        a("s_waitcnt lgkmcnt(0)\ns_barrier")
        a(J(self.conv_reads(0, 0)))

    def conv_reads(self, st, n):
        A = 16 + 64*st; B = 48 + 64*st; o = []
        for i in range(8):
            o.append(f"ds_read_b128 v[{B+4*i}:{B+4*i+3}], v{V_CB} offset:{512*(7-i) + 64*n}")
            o.append(f"ds_read_b64 v[{A+4*i}:{A+4*i+1}], v{V_CA} offset:{512*i + 64*n}")
            o.append(f"ds_read_b64 v[{A+4*i+2}:{A+4*i+3}], v{V_CA} offset:{512*i + 64*n + 8}")
        return o
    def conv_reads_mixed_first(self):
        o = self.conv_reads(0, 0)
        self.deferred = [x for x in o if 'v[76:79]' in x]
        return [x for x in o if 'v[76:79]' not in x]
    def conv_mfmas(self, st, first):
        A = 16 + 64*st; B = 48 + 64*st; o = []
        for i in range(8):
            for t in range(i, 8):
                acc = CACC + 4*t
                c = "0" if (first and i == 0) else f"a[{acc}:{acc+3}]"
                o.append(f"{MF16} a[{acc}:{acc+3}], v[{A+4*i}:{A+4*i+3}], v[{B+4*(t-i)}:{B+4*(t-i)+3}], {c}")
        return o
    def Kf(self, t): return f"a[{4*t}:{4*t+3}]" if t < 8 else f"v[{232+4*(t-8)}:{235+4*(t-8)}]"
    def Vf(self, t, h): return f"a[{32+8*t+4*h}:{35+8*t+4*h}]" if t < 8 else f"v[{240+8*(t-8)+4*h}:{243+8*(t-8)+4*h}]"
    def maxreduce(self, src, dst, init=None):
        o = []
        if init is None: o.append(f"v_max3_f32 v{dst}, v{src}, v{src+1}, v{src+2}"); rest = list(range(src+3, src+16))
        else: rest = list(range(src, src+16))
        while len(rest) >= 2: o.append(f"v_max3_f32 v{dst}, v{dst}, v{rest[0]}, v{rest[1]}"); rest = rest[2:]
        if rest: o.append(f"v_max_f32 v{dst}, v{dst}, v{rest[0]}")
        return o
    def finish_max(self, m, b, bias, tmp):
        o = [[f"v_mov_b32 v{tmp}, v{m}", "s_nop 1", f"v_permlane32_swap_b32 v{m}, v{tmp}", "s_nop 1", f"v_max_f32 v{m}, v{m}, v{tmp}"]]
        if bias: o.append([f"v_add_f32 v{m}, {bias}, v{m}"])
        o.append([f"v_sub_f32 v{m}, 0, v{m}"])
        return o + [[f"v_mov_b32 v{A_CN[b]+r}, v{m}"] for r in range(16)]
    VM = ["s_mov_b32 exec_lo, 0x1ffff", "s_mov_b32 exec_hi, 0x1ffff"]
    def conv_fillers(self):
        F = []
        one = lambda l: F.extend([[x] for x in l])
        QF, MD, MK = A_QF, A_MD, A_MK
        F += [None]*3
        F.append([f"s_add_u32 s{ST+1}, s{S_KVO}, {KVS}"])
        for b in range(2): one([f"v_cvt_pk_bf16_f32 v{232+4*b+p}, v{160+16*b+8+2*p}, v{160+16*b+8+2*p+1}" for p in range(4)])
        F.append([f"buffer_store_dwordx4 v[232:235], v{V_L16}, {WS}, s{S_KVO} offen sc1 ; @kvst"])
        one([f"v_cvt_pk_bf16_f32 v{240+p}, v{192+2*p}, v{192+2*p+1}" for p in range(8)])
        F.append([f"buffer_store_dwordx4 v[236:239], v{V_L16}, {WS}, s{ST+1} offen sc1 ; @kvst"])
        one([f"v_cvt_pk_bf16_f32 v{248+p}, v{208+2*p}, v{208+2*p+1}" for p in range(8)])
        ones = lambda r0: ["s_mov_b32 exec_lo, 0x10000", "s_mov_b32 exec_hi, 0x10000"] + [f"v_mov_b32 v{r}, 0x3f803f80" for r in range(r0, r0+8)]
        F.append(ones(240) + ["s_mov_b64 exec, -1", "s_nop 0"] + [f"buffer_store_dwordx4 v[{240+4*h}:{243+4*h}], v{V_VV}, {WS}, s{S_KVO} offen offset:{1024+640*h} sc1 ; @kvst" for h in range(2)])
        F.append(None)
        F.append(ones(248) + ["s_mov_b64 exec, -1", "s_nop 0"] + [f"buffer_store_dwordx4 v[{248+4*h}:{251+4*h}], v{V_VV}, {WS}, s{ST+1} offen offset:{1024+640*h} sc1 ; @kvst" for h in range(2)])
        F.append([f"s_mov_b32 s{ST+3}, 4096", f"buffer_load_dwordx4 v[{MK}:{MK+3}], v{V_L16}, s[{ST+4}:{ST+7}], s{ST+3} offen ; @mk", f"buffer_load_dwordx4 v[{MK+4}:{MK+7}], v{V_L16}, s[{ST+4}:{ST+7}], s{ST+3} offen offset:1024 ; @mk"])
        F.append([f"s_mov_b32 s{ST+2}, {hex(f2u(QSCALE))}"])
        for b in range(2):
            one([f"v_mul_f32 v{160+16*b+r}, s{ST+2}, v{160+16*b+r}" for r in range(8)])
            one([f"v_cvt_pk_bf16_f32 v{224+4*b+p}, v{160+16*b+2*p}, v{160+16*b+2*p+1}" for p in range(4)])
        one(["v_lshrrev_b32 v2, 4, v1", "v_and_b32 v3, 7, v1", "v_lshrrev_b32 v6, 1, v3", "v_xor_b32 v6, v6, v2", "v_lshlrev_b32 v6, 5, v6", "v_and_b32 v3, 1, v3", "v_lshl_add_u32 v6, v3, 4, v6",
             "v_lshrrev_b32 v3, 3, v1", "v_lshl_add_u32 v176, v3, 10, v6", "v_add_u32 v177, 7168, v176", "v_add_u32 v178, 14336, v176", "v_add_u32 v179, 21504, v176"])
        F.append('WO')
        T = 208
        F.append([f"{MF32} v[{T}:{T+15}], {self.Kf(8)}, v[{QF[0]}:{QF[0]+3}], v[{MD}:{MD+15}]"]); F.append(13)
        one(self.maxreduce(T, 2))
        F.append([f"{MF32} v[{T}:{T+15}], {self.Kf(8)}, v[{QF[1]}:{QF[1]+3}], 0"])
        F.append([f"s_mov_b32 s{ST+2}, 0x42800000"])
        F += self.finish_max(2, 0, f"s{ST+2}", 3)
        one(self.maxreduce(T, 2))
        F.append([f"{MF32} v[{T}:{T+15}], {self.Kf(9)}, v[{QF[1]}:{QF[1]+3}], v[{MD}:{MD+15}]"]); F.append(13)
        one(self.maxreduce(T, 2, init=2))
        F += self.finish_max(2, 1, f"s{ST+2}", 3)
        return F
    def halo_groups(self, p):
        g = []
        for tau in (7-2*p, 6-2*p):
            off = (tau - 8) * KVS
            g.append([f"s_sub_u32 s{ST+6}, s{S_KVO}, {-off}", f"buffer_load_dwordx4 a[{4*tau}:{4*tau+3}], v{V_L16}, {WS}, s{ST+6} offen sc1 ; @pair{p}"])
            g.append([f"buffer_load_dwordx4 a[{32+8*tau}:{35+8*tau}], v{V_VV}, {WS}, s{ST+6} offen offset:1024 sc1 ; @pair{p}",
                      f"buffer_load_dwordx4 a[{36+8*tau}:{39+8*tau}], v{V_VV}, {WS}, s{ST+6} offen offset:1664 sc1 ; @pair{p}"])
        return g
    def conv(self):
        a = self.a
        wo = []
        for n in range(16):
            pre = [f"s_add_u32 m0, s{S_WOM}, {(n//4)*4096}", f"s_add_u32 s{ST+9}, s{S_WOO}, {(n//4)*32768}"] if n % 4 == 0 else []
            wo.append(pre + [f"buffer_load_dwordx4 v{176 + n%4}, {S4(SRD_WO)}, s{ST+9} offen offset:{(n%4)*1024} lds ; @wo"])
        a("s_waitcnt lgkmcnt(0)")
        self.stamp('convstart')
        nwo = 0; wo_on = False; since = 99; wo_at = 0
        F = self.F1
        WOEV = next((int(x[2:]) for x in self.exp if x.startswith('we')), 5)
        GPOST = next((int(x[2:]) for x in self.exp if x.startswith('gp')), 40)
        GPOLL = next((int(x[2:]) for x in self.exp if x.startswith('gq')), 110)
        for n in range(4):
            m = self.conv_mfmas(n & 1, n == 0)
            rd = self.conv_reads((n+1) & 1, n+1) if n < 3 else []
            for i, ins in enumerate(m):
                gi = 36*n + i
                a(ins); since += 1
                slots = 1 if rd else 2
                if rd: a(rd.pop(0)); since += 1
                for _ in range(slots):
                    while F and F[0] == 'WO': wo_on = True; wo_at = gi; F.pop(0)
                    if F and isinstance(F[0], int):
                        if since >= F[0]: F.pop(0)
                        else: continue
                    if F:
                        g = F.pop(0)
                        if g:
                            a(J(g))
                            if any(x.startswith('v_mfma') for x in g): since = 0
                            else: since += len(g)
                if wo_on and nwo < 16 and (gi - wo_at) % WOEV == 1: a(J(wo[nwo])); since += len(wo[nwo]); nwo += 1
                if gi == GPOST: a("s_waitcnt vmcnt(@kvst)"); a(self.flag(S_F2P, 'f2f')); a(self.flag(S_F5P, 'f5f'))
                if gi == GPOLL: a(self.poll_ld(S_PF2, 'pf2', 4))
            if n < 3: a("s_waitcnt lgkmcnt(0)")
        while nwo < 16: a(J(wo[nwo])); nwo += 1
        self.wo_groups = wo
        for g in F:
            if isinstance(g, int): a("s_nop 7\ns_nop 4")
            elif g == 'WO': pass
            elif g: a(J(g))
        print('conv leftover', len(F), 'wo_at', wo_at, file=sys.stderr)
        self.stamp('convmfma')
        a("s_waitcnt vmcnt(@pf2)")
        self.poll_check(S_PF2, f"s{S_NHM}", 'f2', vt=4, cnt=202)
        self.stamp('f2seen')
        for g in self.halo_groups(0): a(J(g))
        with Cap(a) as cap: self.conv_epilogue()
        body = cap.out
        out = []
        for x in body:
            if x.startswith('s_cmp_lg_u32 s71'): out.append(';#noint')
            out.append(x)
            if x.startswith('L_rhojoin'): out.append(';#int')
        a(J(safe_interleave(out, self.halo_groups(1), every=14, start=10)))
    def conv_epilogue(self):
        a = self.a
        Lr1 = a.label('rho1'); Lj = a.label('rhojoin')
        a(f"s_lshl_b32 s{ST}, s{S_WAVE}, 12\ns_add_u32 s{ST}, s{ST}, {EX}\nv_add_u32 v5, s{ST}, v{V_L16}\nv_xor_b32 v6, 0x1000, v5")
        a(f"s_cmp_lg_u32 s{S_RHO}, 0\ns_cbranch_scc1 {Lr1}")
        for t in range(4): a(f"ds_write_b128 v5, a[{CACC+16+4*t}:{CACC+19+4*t}] offset:{1024*t}")
        for r in range(16): a(f"v_accvgpr_read_b32 v{32+r}, a{CACC+r}")
        a(f"s_branch {Lj}\n{Lr1}:")
        for t in range(4): a(f"ds_write_b128 v5, a[{CACC+4*t}:{CACC+4*t+3}] offset:{1024*t}")
        for r in range(16): a(f"v_accvgpr_read_b32 v{32+r}, a{CACC+16+r}")
        a(f"{Lj}:")
        a(f"s_lshr_b32 s{ST}, s{S_WAVE}, 1\ns_mul_i32 s{ST}, s{ST}, {UC}\ns_lshl_b32 s{ST+2}, s{S_RHO}, 11\ns_sub_u32 s{ST}, s{ST}, s{ST+2}\ns_add_u32 s{ST}, s{ST}, {U + 4088 - 1536}")
        a(f"v_and_b32 v2, 15, v1\nv_lshrrev_b32 v3, 4, v1\nv_lshlrev_b32 v2, 5, v2\nv_lshl_add_u32 v2, v3, 3, v2\nv_sub_u32 v3, s{ST}, v2")
        for tl in range(4): a(f"ds_read_b64 v[{48+2*tl}:{49+2*tl}], v3 offset:{512*(3-tl)}")
        a(f"s_lshl_b32 s{ST+1}, s{S_WAVE}, 11\ns_add_u32 s{ST+1}, s{ST+1}, {TP}\nv_add_u32 v2, s{ST+1}, v2\nv_add_u32 v3, s{ST+1}, v{V_L16}")
        a("s_waitcnt lgkmcnt(0)\ns_barrier")
        for t in range(4): a(f"ds_read_b128 v[{16+4*t}:{19+4*t}], v6 offset:{1024*t}")
        for tl in range(4):
            lo, hi = 48+2*tl, 49+2*tl
            a(f"v_and_b32 v56, 0xffff0000, v{hi}\nv_lshlrev_b32 v57, 16, v{hi}\nv_and_b32 v58, 0xffff0000, v{lo}\nv_lshlrev_b32 v59, 16, v{lo}")
            for r in range(4): a(f"v_fmac_f32 v{32+4*tl+r}, s{S_DV}, v{56+r}")
        a("s_waitcnt lgkmcnt(0)")
        for tl in range(4):
            acc = 32 + 4*tl; px = 16 + 4*tl
            for r in range(4): a(f"v_add_f32 v{acc+r}, v{acc+r}, v{px+r}")
            a(f"v_cvt_pk_bf16_f32 v{60+2*tl}, v{acc}, v{acc+1}\nv_cvt_pk_bf16_f32 v{61+2*tl}, v{acc+2}, v{acc+3}")
            a(f"ds_write_b64 v2, v[{60+2*tl}:{61+2*tl}] offset:{512*tl}")
        a("s_waitcnt lgkmcnt(0)")
        a("ds_read_b128 v[208:211], v3\nds_read_b128 v[212:215], v3 offset:1024")

    def attention(self):
        a = self.a
        S, P, CN, O, MD, MK, QF = A_S, A_P, A_CN, A_O, A_MD, A_MK, A_QF
        Kf, Vf = self.Kf, self.Vf
        items = [(0, 8, 'D'), (1, 9, 'D'), (1, 8, None)]
        pairs = [[(0,7,None),(1,7,None),(0,6,None),(1,6,None)], [(0,5,None),(1,5,None),(0,4,None),(1,4,None)],
                 [(0,3,None),(1,3,None),(0,2,None),(1,2,None)], [(0,1,None),(1,1,'F'),(0,0,'F')]]
        allitems = items + [x for p in pairs for x in p]
        def smfma(n):
            b, t, m = allitems[n]
            return f"{MF32} v[{S[n&1]}:{S[n&1]+15}], {Kf(t)}, v[{QF[b]}:{QF[b]+3}], v[{CN[b]}:{CN[b]+15}]"
        a("s_waitcnt lgkmcnt(0)")
        a(f"buffer_store_dwordx4 v[208:211], v{V_L16}, {WS}, s{S_ZTO} offen sc1 ; @zst")
        a(f"buffer_store_dwordx4 v[212:215], v{V_L16}, {WS}, s{S_ZTO} offen offset:1024 sc1 ; @zst")
        Lmain = a.label('attn_main'); Ldone = a.label('attn_done'); Lfb = a.label('attn_fallback'); Lok = a.label('attn_ok'); Lj0 = a.label('attn_j0')
        self.stamp('attnstart')
        a(f"{Lmain}:")
        first_pv = {0: True, 1: True}
        pair_start = {}; n = len(items)
        for pi, p in enumerate(pairs): pair_start[n] = pi; n += len(p)
        late = {0: self.halo_groups(2)[:2], 1: self.halo_groups(2)[2:], 3: self.halo_groups(3)[:2], 4: self.halo_groups(3)[2:],
                2: [[f"buffer_load_dwordx4 v[{self.QR}:{self.QR+3}], v222, {S4(SRD_Q)}, s{S_QO} offen {self.NT}; @q"], [f"buffer_load_dwordx4 v[{self.QR+4}:{self.QR+7}], v222, {S4(SRD_Q)}, s{S_QO} offen offset:16 {self.NT}; @q"]],
                15: [[self.poll_ld(S_PF3, 'pf3', 218)], [self.poll_ld(S_PF5, 'pf5', 220)]]}
        if 'wolate' in self.exp:
            w = self.wo_groups
            for k, it in enumerate(range(5, 13)):
                late[it] = late.get(it, []) + [w[2*k], w[2*k+1]]
        if 'f5early' in self.exp:
            late[15] = [[self.poll_ld(S_PF3, 'pf3', 218)]]
            late[5] = [[self.poll_ld(S_PF5, 'pf5', 220)]]
        if 'f3early' in self.exp:
            late[13] = late[15]; del late[15]
        a(smfma(0))
        a("v_and_b32 v4, 15, v1\nv_lshrrev_b32 v5, 4, v1\nv_lshlrev_b32 v4, 10, v4\nv_lshl_add_u32 v222, v5, 5, v4")
        a(f"v_mov_b32 v218, 0\nv_mov_b32 v219, 0\nv_mov_b32 v220, 0\nv_mov_b32 v221, 0")
        a("v_lshrrev_b32 v4, 3, v1\nv_and_b32 v5, 7, v1\nv_lshlrev_b32 v223, 12, v4\nv_lshl_add_u32 v223, v5, 4, v223")
        pvp = []; N = len(allitems)
        for n, (b, t, m) in enumerate(allitems):
            s = S[n & 1]; p = P[n & 1]; nxt = n + 1
            lg = list(late.get(n, []))
            ex = lambda r0, r1: [a(f"v_exp_f32 v{s+r}, v{s+r}") for r in range(r0, r1)]
            ex(0, 2)
            if pvp: a(pvp[0])
            ex(2, 5)
            if pvp: a(pvp[1])
            pvp = []
            if lg: a(J(lg.pop(0)))
            ex(5, 9)
            if nxt < N:
                if nxt in pair_start:
                    pi = pair_start[nxt]
                    a(f"s_waitcnt vmcnt(@pair{pi})" if pi != 1 else "s_waitcnt vmcnt(@zst)")
                    if pi == 1: a(self.flag(S_F3P))
                a(smfma(nxt))
            ex(9, 13)
            if lg: a(J(lg.pop(0)))
            ex(13, 16)
            for r in range(8): a(f"v_cvt_pk_bf16_f32 v{p+r}, v{s+2*r}, v{s+2*r+1}")
            if m == 'D':
                for r in range(8): a(f"v_and_b32 v{p+r}, v{MK+r}, v{p+r}")
            elif m == 'F':
                for r in range(8): a(f"v_bfi_b32 v{p+r}, v{MK+r}, 0, v{p+r}")
            c = "0" if first_pv[b] else f"v[{O[b]}:{O[b]+15}]"
            first_pv[b] = False
            pv = [f"{MF32} v[{O[b]}:{O[b]+15}], {Vf(t,0)}, v[{p}:{p+3}], {c}", f"{MF32} v[{O[b]}:{O[b]+15}], {Vf(t,1)}, v[{p+4}:{p+7}], v[{O[b]}:{O[b]+15}]"]
            if nxt in pair_start or nxt == N:
                a("s_nop 1"); a(pv[0]); a(pv[1])
                if nxt in pair_start:
                    pi = pair_start[nxt]
                    a(f"s_cmp_le_u32 s{S_NH}, {pi}\ns_cbranch_scc1 {Lj0 if pi == 0 else Ldone}")
            else: pvp = pv
        a(f"{Ldone}:")
        self.stamp('attndone')
        a("s_nop 7\ns_nop 3")
        for b in range(2): a(f"v_mov_b32 v{2+b}, v{O[b]+8}\nv_mov_b32 v4, v{O[b]+8}\ns_nop 1\nv_permlane32_swap_b32 v{2+b}, v4")
        a(f"s_mov_b32 s{ST}, {'0x00000000' if 'forcefb' in self.exp else '0x71800000'}")
        a(f"v_max_f32 v4, v2, v3\ns_nop 0\nv_cmp_gt_f32 vcc, s{ST}, v4")
        a(f"s_nop 3\ns_mov_b64 s[{ST+2}:{ST+3}], vcc\nv_cmp_o_f32 vcc, v2, v3\ns_nop 4\ns_and_b64 s[{ST+2}:{ST+3}], s[{ST+2}:{ST+3}], vcc")
        a(f"s_cmp_lg_u32 s{S_FB}, 0\ns_cbranch_scc1 {Lok}")
        a(f"s_cmp_eq_u64 s[{ST+2}:{ST+3}], -1\ns_cbranch_scc0 {Lfb}\n{Lok}:")
        with Cap(a) as cap:
            a(f"{Lj0}:")
            a("s_waitcnt vmcnt(0)"); a(self.flag(S_F3P)); a(f"s_branch {Ldone}")
            a(f"{Lfb}:")
            a(f"s_mov_b32 s{ST}, {hex(NEG)}")
            for r in range(16): a(f"v_sub_f32 v{128+r}, s{ST}, v{MD+r}")
            a(f"v_mov_b32 v2, s{ST}\nv_mov_b32 v3, s{ST}\ns_waitcnt vmcnt(0)")
            Lf = a.label('fb_done')
            for (b, t, m) in sorted(allitems, key=lambda x: -x[1]):
                if t < 8 and (t % 2 == 1) and b == 0: a(f"s_cmp_le_u32 s{S_NH}, {(7-t)//2}\ns_cbranch_scc1 {Lf}")
                c = {None: "0", 'D': f"v[{MD}:{MD+15}]", 'F': "v[128:143]"}[m]
                a(f"{MF32} v[16:31], {Kf(t)}, v[{QF[b]}:{QF[b]+3}], {c}\ns_nop 7\ns_nop 3")
                a(J(self.maxreduce(16, 2+b, init=2+b))); a("s_nop 7")
            a(f"{Lf}:")
            for g in self.finish_max(2, 0, None, 4) + self.finish_max(3, 1, None, 4): a(J(g))
            a(f"s_mov_b32 s{S_FB}, 1\ns_branch {Lmain}")
        self.tail_blocks.append(cap.out)

    def tail(self):
        a = self.a
        O = A_O
        if 'wolate' in self.exp:
            Lw = a.label('wo_done')
            a(f"s_cmp_ge_u32 s{S_NH}, 3\ns_cbranch_scc1 {Lw}")
            for g in self.wo_groups: a(J([x.replace('; @wo', '; @cond') for x in g]))
            a(f"s_waitcnt vmcnt(0)\n{Lw}:")
        a("v_rcp_f32 v2, v2\nv_rcp_f32 v3, v3")
        for b in range(2):
            for r in range(8): a(f"v_mul_f32 v{O[b]+r}, v{O[b]+r}, v{2+b}")
            for p in range(4): a(f"v_cvt_pk_bf16_f32 v{16+4*b+p}, v{O[b]+2*p}, v{O[b]+2*p+1}")
            if b == 1: a(f"s_add_u32 s{ST+1}, s{S_OFS}, 32768")
            if b == 0 and 'zfirst' in self.exp: continue
            if b == 1 and 'zfirst' in self.exp: continue
            a(f"buffer_store_dwordx4 v[{16+4*b}:{19+4*b}], v{V_OF}, {WS}, s{S_OFS if b == 0 else ST+1} offen sc1 ; @ost")
        zf = 'zfirst' in self.exp
        a("s_waitcnt vmcnt(0)" if zf else "s_waitcnt vmcnt(2)")
        self.poll_check(S_PF3, "0xffff", 'f3', vt=218, cnt=203)
        a(f"s_add_u32 s{ST+6}, s{S_ZLD}, {8*4096}")
        a(f"buffer_load_dwordx4 v[64:67], v223, {WS}, s{S_ZLD} offen sc1 ; @z")
        a(f"buffer_load_dwordx4 v[68:71], v223, {WS}, s{ST+6} offen sc1 ; @z")
        if zf:
            a(f"buffer_store_dwordx4 v[16:19], v{V_OF}, {WS}, s{S_OFS} offen sc1 ; @ost")
            a(f"buffer_store_dwordx4 v[20:23], v{V_OF}, {WS}, s{ST+1} offen sc1 ; @ost")
        self.stamp('ostored')
        self.poll_check(S_PF5, "-1", 'f5', vt=220, cnt=204)
        a(f"s_lshl_b32 s{ST}, s{S_WAVE}, 11\ns_add_u32 s{ST}, s{ST}, {TP}\nv_add_u32 v25, s{ST}, v{V_L16}")
        a(f"v_lshrrev_b32 v6, 4, v1\nv_bfe_u32 v3, v1, 2, 2\nv_lshl_add_u32 v4, v6, 4, v3\nv_lshlrev_b32 v4, 7, v4\nv_and_b32 v5, 3, v1\nv_lshl_add_u32 v4, v5, 3, v4\ns_lshl_b32 s{ST}, s{S_WAVE}, 5\ns_add_u32 s{ST}, s{ST}, {TP}\nv_add_u32 v26, s{ST}, v4")
        a(f"v_and_b32 v4, 15, v1\nv_lshlrev_b32 v4, 11, v4\nv_lshl_add_u32 v27, v6, 5, v4")
        for i in range(8): a(f"v_lshlrev_b32 v{32+2*i}, 16, v{self.QR+i}\nv_and_b32 v{33+2*i}, 0xffff0000, v{self.QR+i}")
        a("v_lshrrev_b32 v2, 5, v1\nv_bfe_u32 v4, v1, 4, 1\nv_lshlrev_b32 v6, 4, v2\nv_lshl_add_u32 v6, v4, 2, v6\nv_add_u32 v6, v6, v3\nv_lshlrev_b32 v6, 7, v6\nv_lshl_add_u32 v6, v5, 3, v6")
        a("v_lshrrev_b32 v3, 1, v3\nv_lshl_add_u32 v3, v4, 1, v3")
        for t in range(4): a(f"v_xor_b32 v5, {t}, v3\nv_lshl_add_u32 v{84+t}, v5, 5, v6")
        a("v_and_b32 v5, 15, v1\nv_lshlrev_b32 v30, 11, v5\nv_lshl_add_u32 v30, v4, 5, v30\nv_lshl_add_u32 v30, v2, 4, v30")
        OF = 96
        def ofld(m, tag=True, force=False):
            pre = [f"s_add_u32 s{ST+6}, s{S_OFL}, {(m//4)*4096}"] if (m % 4 == 0 or force) else []
            return pre + [f"buffer_load_dwordx4 v[{OF+4*m}:{OF+4*m+3}], v{V_L16}, {WS}, s{ST+6} offen offset:{1024*(m%4)} sc1" + (f" ; @of{m}" if tag else " ; @cond")]
        rd = [f"ds_read_b64_tr_b16 a[{16*m+4*t_+2*e}:{16*m+4*t_+2*e+1}], v{84+t_} offset:{m*4096 + e*1024}" for m in range(16) for t_ in range(4) for e in range(2)]
        if 'ofearly' in self.exp:
            a(J(interleave(rd, [ofld(m) for m in range(16)], every=4, start=64)))
        else:
            a(J(rd))
        a("s_waitcnt vmcnt(@z)")
        a("ds_write_b128 v25, v[64:67]\nds_write_b128 v25, v[68:71] offset:1024")
        a("s_waitcnt lgkmcnt(0)\ns_barrier")
        self.stamp('zlds')
        for n in range(4): a(f"ds_read_b64_tr_b16 v[{48+2*n}:{49+2*n}], v26 offset:{512*n}")
        a("s_waitcnt lgkmcnt(0)")
        comp = []
        for i in range(8): comp += [f"v_lshlrev_b32 v{64+2*i}, 16, v{48+i}", f"v_and_b32 v{65+2*i}, 0xffff0000, v{48+i}"]
        comp += [f"v_mul_f32 v{32+i}, v{32+i}, v{64+i}" for i in range(16)]
        comp += [f"v_cvt_pk_bf16_f32 v{16+i}, v{32+2*i}, v{33+2*i}" for i in range(8)]
        a(J(interleave(comp, [ofld(m) for m in range(16)], every=3) if 'ofearly' not in self.exp else comp))
        a(f"buffer_store_dwordx4 v[16:19], v27, {S4(SRD_OUT)}, s{S_BOUT} offen{self.OUTF} ; @bst")
        a(f"buffer_store_dwordx4 v[20:23], v27, {S4(SRD_OUT)}, s{S_BOUT} offen offset:16{self.OUTF} ; @bst")
        self.stamp('ofissued')
        a(f"s_mov_b32 s{S_TMO}, 0")
        Lrl = [a.label(f'of_reload{k}') for k in range(4)]
        for m in range(16):
            r = OF + 4*m
            Lc = a.label(f'ofchk{m}'); Lk = a.label(f'ofok{m}')
            a(f"s_waitcnt vmcnt(@of{m})")
            a(f"v_max3_u32 v31, v{r}, v{r+1}, v{r+2}\nv_max_u32 v31, v31, v{r+3}\nv_cmp_eq_u32 vcc, -1, v31")
            if m > 0:
                for t_ in range(4):
                    c = "0" if m-1 == 0 else f"v[{64+4*t_}:{67+4*t_}]"
                    a(f"{MF16} v[{64+4*t_}:{67+4*t_}], a[{16*(m-1)+4*t_}:{16*(m-1)+4*t_+3}], v[{r-4}:{r-1}], {c}")
            else: a("s_nop 3")
            a(f"s_cbranch_vccnz {Lc}_r\n{Lk}:")
            with Cap(a) as cap:
                a(f"{Lc}_r:")
                if 'retry1' in self.exp:
                    a(f"s_add_u32 s{ST+6}, s{S_OFL}, {(m//4)*4096}")
                    a(f"buffer_load_dwordx4 v[{r}:{r+3}], v{V_L16}, {WS}, s{ST+6} offen offset:{1024*(m%4)} sc1\ns_waitcnt vmcnt(0)")
                    a(f"s_add_u32 s{S_TMO}, s{S_TMO}, 1\ns_cmp_gt_u32 s{S_TMO}, 0x8000\ns_cbranch_scc1 {Lk}")
                    a(f"v_max3_u32 v31, v{r}, v{r+1}, v{r+2}\nv_max_u32 v31, v31, v{r+3}\nv_cmp_eq_u32 vcc, -1, v31\ns_nop 3\ns_cbranch_vccnz {Lc}_r")
                    if m < 15: a(f"s_call_b64 s[30:31], {Lrl[(m+1)//4]}")
                    a(f"s_branch {Lk}")
                else:
                    a(f"s_call_b64 s[30:31], {Lrl[m//4]}")
                    a(f"s_cbranch_scc1 {Lk}")
                    a(f"v_max3_u32 v31, v{r}, v{r+1}, v{r+2}\nv_max_u32 v31, v31, v{r+3}\nv_cmp_eq_u32 vcc, -1, v31\ns_nop 3\ns_cbranch_vccnz {Lc}_r\ns_branch {Lk}")
            self.tail_blocks.append(cap.out)
        for t_ in range(4): a(f"{MF16} v[{64+4*t_}:{67+4*t_}], a[{16*15+4*t_}:{16*15+4*t_+3}], v[{OF+60}:{OF+63}], v[{64+4*t_}:{67+4*t_}]")
        with Cap(a) as cap:
            for k in range(4):
                a(f"{Lrl[k]}:")
                if self.SLEEP: a(f"s_sleep {self.SLEEP}")
                for m in range(4*k, 16): a(J(ofld(m, False)))
                a("s_waitcnt vmcnt(0)")
                a(f"s_add_u32 s{S_TMO}, s{S_TMO}, 1\ns_cmp_gt_u32 s{S_TMO}, 0x8000\ns_setpc_b64 s[30:31]")
        self.tail_blocks.append(cap.out)
        self.count(206)

        a("s_nop 7")
        for t in range(4): a(f"v_cvt_pk_bf16_f32 v{88+2*t}, v{64+4*t}, v{65+4*t}\nv_cvt_pk_bf16_f32 v{89+2*t}, v{66+4*t}, v{67+4*t}")
        a("s_nop 1\nv_permlane16_swap_b32 v88, v90\nv_permlane16_swap_b32 v89, v91\nv_permlane16_swap_b32 v92, v94\nv_permlane16_swap_b32 v93, v95\ns_nop 1")
        a(f"buffer_store_dwordx4 v[88:91], v30, {S4(SRD_OUT)}, s{S_AOUT} offen{self.OUTF}")
        a(f"buffer_store_dwordx4 v[92:95], v30, {S4(SRD_OUT)}, s{S_AOUT} offen offset:64{self.OUTF}")
        self.stamp('end')

    def mask_table(self):
        rows = []
        for blk in range(6):
            for l in range(64):
                q = l & 31; hi = l >> 5; vals = []
                for e in range(4):
                    r = 4*blk + e
                    if r < 16:
                        key = 8*(r // 4) + 4*hi + (r % 4)
                        vals.append(0 if key <= q else NEG)
                    else:
                        p = r - 16; k = 8*(p // 2) + 4*hi + 2*(p % 2)
                        vals.append((0xffff if k <= q else 0) | (0xffff0000 if k + 1 <= q else 0))
                rows.append(".long " + ", ".join(hex(v) for v in vals))
        return rows

    def build(self):
        a = self.a
        self.startup(); self.pre(); self.qkv(); self.conv(); self.attention(); self.tail()
        self.dump_stamps()
        a("L_end:\ns_endpgm")
        a.lines = resolve_vmcnt(a.lines)
        for blk in self.tail_blocks: a.lines += blk
        probs = check_hazards(a.lines)
        for p in probs[:12]: print(p, file=sys.stderr)
        a(".p2align 6\nL_masktab:")
        a.lines += self.mask_table()
        a("L_codeend:")
        hdr = open('cdna_kernels/' + NAME + '.s.ref').read().split('\n')
        cm = [l for l in hdr if l.startswith(';') and '@launch' not in l and 'Override' not in l and 'grid=ceil' not in l][:13]
        head = J(cm) + f"\n; @launch grid=(256,1,1) block=(256,1,1) lds={LDS_BYTES}\n"
        head += f'.amdgcn_target "amdgcn-amd-amdhsa--gfx950"\n.text\n.globl {NAME}_kernel\n.p2align 8\n.type {NAME}_kernel,@function\n{NAME}_kernel:\n'
        tail = f'''.section .rodata,"a"
.p2align 6
.amdhsa_kernel {NAME}_kernel
  .amdhsa_next_free_vgpr 512
  .amdhsa_next_free_sgpr 102
  .amdhsa_accum_offset 256
  .amdhsa_group_segment_fixed_size 0
  .amdhsa_kernarg_size 96
  .amdhsa_user_sgpr_count 2
  .amdhsa_user_sgpr_kernarg_segment_ptr 1
  .amdhsa_system_sgpr_workgroup_id_x 1
.end_amdhsa_kernel
'''
        return head + a.text() + tail, len(probs), self.stamp_slots

if __name__ == '__main__':
    ap = argparse.ArgumentParser()
    ap.add_argument('-o', default='cdna_kernels/' + NAME + '.s')
    ap.add_argument('--stamps', default=''); ap.add_argument('--exp', default='')
    args = ap.parse_args()
    g = Gen(stamps=[x for x in args.stamps.split(',') if x], exp=args.exp)
    txt, np_, slots = g.build()
    open(args.o, 'w').write(txt)
    print('wrote', args.o, 'lines', txt.count('\n'), 'hazards', np_, 'stamps', slots)
```

```python
import sys, argparse, struct
from asmlib import *

NAME = "concat_heads__sliding_block__ssm_conv_h3__prompt"
import os
FS = int(os.environ.get('FS', 4))
WS_F1, WS_F2, WS_F3, WS_F5 = 0x00000, 0x20000, 0x40000, 0x60000
WS_KVT = 0x100000; WS_ZT = 0x300000; WS_KV = 0x500000; WS_OF = 0xA00000
import os
KVS = int(os.environ.get('KVS', 2304))
WS_STAMP = 0xC00000; WS_SIZE = 0xC40000
TZ = 98304; TZC = 4160
U = TZ + 8*TZC; UC = 4608
TP = U + 2*UC
WSH = TP + 8192
LDS_BYTES = WSH + 1024
EX = 65536
S_WAVE, S_XCD, S_I, S_J, S_P = 3, 4, 5, 6, 7
SRD_X, SRD_W, SRD_K, SRD_V, SRD_Q, SRD_H, SRD_WO, SRD_OUT, SRD_WS, SRD_DBG, SRD_SH = 8,12,16,20,24,28,32,36,40,44,48
S_T = 52; S_D = 54; S_TMO = 55
PTR = 56
S_HT = 72
S_XOFF, S_WOFF, S_M0B, S_NH = 80, 81, 82, 83
ST = 84
S_FB = 94; S_HEAD = 95
S_SEL0, S_SEL1 = 96, 97
S_M0W = 98; S_OFS = 99
S_F1P, S_F2P, S_F5P, S_F3P, S_PF1, S_PF2, S_PF3, S_PF5 = 16, 17, 18, 19, 20, 21, 22, 23
S_KVO, S_ZTO, S_ZLD, S_BOUT, S_AOUT, S_OFL, S_QO, S_WOO, S_WOM, S_UO, S_NHM, S_DV = 56, 57, 58, 59, 60, 61, 62, 63, 66, 67, 68, 69
S_SPEC = 64
S_CH, S_RHO = 70, 71
QSCALE = 0.25 * 1.4426950408889634
def f2u(x): return struct.unpack('<I', struct.pack('<f', x))[0]
def S4(b): return f"s[{b}:{b+3}]"
WS, DBG = S4(SRD_WS), S4(SRD_DBG)
MF32 = "v_mfma_f32_32x32x16_bf16"; MF16 = "v_mfma_f32_16x16x32_bf16"
NEG = 0xf149f2ca
A_S = [16, 32]; A_P = [48, 56]; A_CN = [184, 160]; A_O = [96, 112]; A_MD = 144; A_MK = 200; A_QF = [224, 228]
CACC = 96
V_T = 8; V_FL = 10; V_VV = 11; V_OF = 12; V_L16 = 13; V_CA = 14; V_CB = 15; V_PL = 7
J = '\n'.join
OOB = 0x7ff00000

class Gen:
    STAMP_REGS = [48, 50, 72, 74, 76, 78, 28, 24] if True else []
    def __init__(self, stamps=None, exp=''):
        self.a = Asm(); self.stamps = stamps or []; self.exp = exp.split(',')
        self.stamp_slots = []; self.tail_blocks = []
        self.NT = '' if 'nont' in self.exp else 'nt '
        self.OUTF = ' sc1' if 'outsc1' in self.exp else (' nt' if 'outnt' in self.exp else (' sc0 sc1' if 'outsys' in self.exp else ''))
        self.QR = 72 if 'wolate' in self.exp else 176
        self.SLEEP = next((int(x[2:]) for x in self.exp if x.startswith('sl')), 2)

    def srd(self, base, ptr, size):
        return [f"s_mov_b32 s{base}, s{ptr}", f"s_mov_b32 s{base+1}, s{ptr+1}", f"s_mov_b32 s{base+2}, {size}", f"s_mov_b32 s{base+3}, 0x20000"]
    def stamp(self, name):
        if name not in self.stamps: return
        n = len(self.stamp_slots)
        assert n < (10 if 'blk' in self.exp else 6)
        r = self.STAMP_REGS[n]; self.stamp_slots.append(name)
        if 'blk' in self.exp:
            self.a(f"s_memtime s[92:93]\ns_waitcnt lgkmcnt(0)\nv_mov_b32 v254, s92\nv_accvgpr_write_b32 a{210+n}, v254")
        else:
            self.a(f"s_memtime s[{r}:{r+1}]")
    def dump_stamps(self):
        if not self.stamp_slots: return
        a = self.a
        a("s_waitcnt lgkmcnt(0)")
        if 'dbgs' in self.exp:
            L = a.label('dbgskip')
            a("s_waitcnt vmcnt(0)")
            a(f"s_cmp_lg_u32 s{S_WAVE}, 1\ns_cbranch_scc1 {L}\ns_cmp_lg_u32 s2, 109\ns_cbranch_scc1 {L}")
            a("v_mov_b32 v4, 8\ns_mov_b64 exec, 1")
            for n, r in enumerate(self.STAMP_REGS[:len(self.stamp_slots)]):
                a(f"s_sub_u32 s84, s{r}, s100\nv_mov_b32 v2, s84\nbuffer_store_dword v2, v4, {DBG}, 0 offen offset:{4*n}\ns_nop 1")
            a(f"s_mov_b64 exec, -1\n{L}:")
            return
        a(f"s_lshl_b32 s{ST}, s2, 2\ns_add_u32 s{ST}, s{ST}, s{S_WAVE}\ns_lshl_b32 s{ST}, s{ST}, 7\ns_add_u32 s{ST}, s{ST}, {WS_STAMP}")
        a(f"v_mov_b32 v3, s{ST}\ns_mov_b64 exec, 1")
        for n, r in enumerate([100] + self.STAMP_REGS[:len(self.stamp_slots)]):
            if 'blk' in self.exp and n > 0: a(f"v_accvgpr_read_b32 v2, a{210+n-1}\ns_nop 1\nbuffer_store_dword v2, v3, {WS}, 0 offen offset:{4*n}\ns_nop 1")
            else: a(f"v_mov_b32 v2, s{r}\nbuffer_store_dword v2, v3, {WS}, 0 offen offset:{4*n}\ns_nop 1")
        a(f"v_mov_b32 v2, s101\nbuffer_store_dword v2, v3, {WS}, 0 offen offset:120\ns_nop 1")
        a(f"s_memrealtime s[84:85]\ns_waitcnt lgkmcnt(0)\nv_mov_b32 v2, s84\nbuffer_store_dword v2, v3, {WS}, 0 offen offset:124\ns_nop 1")
        a("s_mov_b64 exec, -1")
    def count(self, k):
        return
        if self.stamps and 'dbgs' not in self.exp: self.a(f"v_mov_b32 v253, s{S_TMO}\nv_accvgpr_write_b32 a{k}, v253")
    def poll_ld(self, sbase, tag='', vt=4):
        return f"buffer_load_dwordx2 v[{vt}:{vt+1}], v{V_PL}, {WS}, s{sbase} offen sc1" + (f" ; @{tag}" if tag else "")
    def cmp_flags(self, mask, vt=4):
        return [f"v_cmp_ne_u64 vcc, s[{S_T}:{S_T+1}], v[{vt}:{vt+1}]", "s_nop 0", f"s_and_b32 vcc_lo, vcc_lo, {mask}"]
    def poll_check(self, sbase, mask, name, vt=4, cnt=None):
        a = self.a
        L = a.label(name); Ld = a.label(name+'_done'); Lc = a.label(name+'_chk')
        a(f"s_mov_b32 s{S_TMO}, 0\ns_branch {Lc}\n{L}:")
        if self.SLEEP: a(f"s_sleep {self.SLEEP}")
        a(self.poll_ld(sbase, 'cond', vt))
        a(f"s_waitcnt vmcnt(0)\n{Lc}:")
        a(f"s_add_u32 s{S_TMO}, s{S_TMO}, 1")
        a(J(self.cmp_flags(mask, vt)))
        a(f"s_cbranch_scc0 {Ld}\ns_cmp_lt_u32 s{S_TMO}, 0x20000\ns_cbranch_scc1 {L}\n{Ld}:")
        if cnt: self.count(cnt)
    def flag(self, sreg, tag='flag'):
        return f"buffer_store_dwordx2 v[{V_T}:{V_T+1}], v{V_FL}, {WS}, s{sreg} offen sc1 ; @{tag}"
    def dma_groups(self, s):
        buf = s % 3
        X, W = S4(SRD_X), S4(SRD_W)
        t = f" ; @dma{s}"
        if 'rot' in self.exp:
            px = [f"s_add_u32 s{ST+9}, s101, {s & 3}", f"s_and_b32 s{ST+9}, s{ST+9}, 3", f"s_mul_i32 s{ST+8}, s{ST+9}, {64*3072}", f"s_lshl_b32 s{ST+9}, s{ST+9}, 7",
                  f"s_add_u32 s{ST+9}, s{ST+9}, s{S_XOFF}", f"s_add_u32 s{ST+8}, s{ST+8}, s{S_WOFF}"]
            if s & 4: px += [f"s_add_u32 s{ST+9}, s{ST+9}, 512", f"s_add_u32 s{ST+8}, s{ST+8}, {4*64*3072}"]
            g0 = px + [f"s_add_u32 m0, s{S_M0B}, {buf*32768}", "s_nop 0", f"buffer_load_dwordx4 v100, {X}, s{ST+9} offen lds" + t]
            g2 = [f"s_add_u32 m0, s{S_M0W}, {buf*32768}", "s_nop 0", f"buffer_load_dwordx4 v102, {W}, s{ST+8} offen lds" + t]
        else:
            g0 = [f"s_add_u32 m0, s{S_M0B}, {buf*32768}", f"s_add_u32 s{ST+9}, s{S_XOFF}, {s*128}", f"buffer_load_dwordx4 v100, {X}, s{ST+9} offen lds" + t]
            g2 = [f"s_add_u32 m0, s{S_M0W}, {buf*32768}", f"s_add_u32 s{ST+8}, s{S_WOFF}, {s*64*3072}", f"buffer_load_dwordx4 v102, {W}, s{ST+8} offen lds" + t]
        return [g0,
                [f"buffer_load_dwordx4 v101, {X}, s{ST+9} offen offset:1024 lds" + t],
                g2,
                [f"buffer_load_dwordx4 v103, {W}, s{ST+8} offen offset:1024 lds" + t],
                [f"buffer_load_dwordx4 v102, {W}, s{ST+8} offen offset:2048 lds" + t, f"s_add_u32 m0, s{S_M0W}, {buf*32768 + 3072}"],
                ["s_nop 0", f"buffer_load_dwordx4 v248, {W}, s{ST+8} offen lds" + t] if s in (0, 1, 2) else [f"buffer_load_dwordx4 v248, {W}, s{ST+8} offen lds" + t],
                [f"buffer_load_dwordx4 v249, {W}, s{ST+8} offen offset:1024 lds" + t],
                [f"buffer_load_dwordx4 v248, {W}, s{ST+8} offen offset:2048 lds" + t]]

    def startup(self):
        a = self.a
        a("L_entry:")
        a(f"s_load_dwordx16 s[{PTR}:{PTR+15}], s[0:1], 0")
        a(f"s_load_dwordx8 s[{PTR+16}:{PTR+23}], s[0:1], 64")
        a(f"s_memrealtime s[{S_T}:{S_T+1}]")
        if self.stamps: a("s_memtime s[100:101]")
        a("s_cmp_ge_u32 s2, 256\ns_cbranch_scc1 L_end")
        a("s_getpc_b64 s[8:9]\nL_pc:")
        a("s_sub_u32 s8, s8, (L_pc - L_entry)\ns_subb_u32 s9, s9, 0\ns_mov_b32 s10, (L_codeend - L_entry)\ns_mov_b32 s11, 0x20000")
        a(f"s_lshr_b32 s{S_I}, s2, 3\ns_and_b32 s{ST}, s{S_I}, 7\ns_lshl_b32 s{ST}, s{ST}, 12\nv_lshlrev_b32 v2, 4, v0")
        a(f"buffer_load_dwordx4 v[216:219], v2, s[8:11], s{ST} offen")
        a("v_and_b32 v1, 63, v0\nv_lshrrev_b32 v2, 6, v0")
        a(f"s_and_b32 s{S_XCD}, s2, 7")
        a(f"v_readfirstlane_b32 s{S_WAVE}, v2")
        a("v_and_b32 v4, 7, v1\nv_lshrrev_b32 v5, 3, v1")
        a(f"s_lshl_b32 s{ST}, s{S_I}, 6\ns_lshl_b32 s{ST+2}, s{S_XCD}, 7\ns_lshl_b32 s{ST+1}, s{S_WAVE}, 4\ns_add_u32 s{ST}, s{ST}, s{ST+1}\ns_lshl_b32 s{ST}, s{ST}, 10\ns_add_u32 s{ST}, s{ST}, s{ST+2}")
        a(f"v_lshlrev_b32 v140, 11, v5\nv_lshl_add_u32 v140, v4, 4, v140\nv_add_u32 v140, s{ST}, v140")
        a("v_subrev_u32 v141, 3072, v140\nv_subrev_u32 v142, 2048, v140\nv_subrev_u32 v143, 1024, v140")
        if 'map3' in self.exp:
            a(f"s_and_b32 s{ST}, s{S_XCD}, 3\ns_lshl_b32 s{ST}, s{ST}, 3\ns_lshr_b32 s{ST+1}, s{S_I}, 2\ns_add_u32 s{S_J}, s{ST}, s{ST+1}")
            a(f"s_lshr_b32 s{ST}, s{S_XCD}, 2\ns_lshl_b32 s{ST}, s{ST}, 2\ns_and_b32 s{ST+1}, s{S_I}, 3\ns_add_u32 s{S_P}, s{ST}, s{ST+1}")
        elif 'map2' in self.exp:
            a(f"s_lshr_b32 s{ST}, s{S_XCD}, 1\ns_lshl_b32 s{ST}, s{ST}, 3\ns_lshr_b32 s{ST+1}, s{S_I}, 2\ns_add_u32 s{S_J}, s{ST}, s{ST+1}")
            a(f"s_and_b32 s{ST}, s{S_XCD}, 1\ns_lshl_b32 s{ST}, s{ST}, 2\ns_and_b32 s{ST+1}, s{S_I}, 3\ns_add_u32 s{S_P}, s{ST}, s{ST+1}")
        else:
            a(f"s_lshr_b32 s{ST}, s{S_XCD}, 1\ns_lshl_b32 s{ST}, s{ST}, 3\ns_and_b32 s{ST+1}, s{S_I}, 7\ns_add_u32 s{S_J}, s{ST}, s{ST+1}")
            a(f"s_and_b32 s{ST}, s{S_XCD}, 1\ns_lshl_b32 s{ST}, s{ST}, 2\ns_lshr_b32 s{ST+1}, s{S_I}, 3\ns_add_u32 s{S_P}, s{ST}, s{ST+1}")
        a(f"s_lshl_b32 s{ST}, s{S_XCD}, 9\nv_lshlrev_b32 v{V_L16}, 4, v1\nv_add_u32 v144, s{ST}, v{V_L16}")
        a("v_lshrrev_b32 v2, 4, v1\nv_xor_b32 v3, v4, v2\nv_lshlrev_b32 v3, 4, v3")
        a(f"s_lshl_b32 s{ST}, s{S_WAVE}, 14\nv_lshl_add_u32 v100, v5, 10, v3\nv_add_u32 v100, s{ST}, v100")
        a(f"v_xor_b32 v101, 64, v100\nv_add_u32 v101, {8192-1024}, v101")
        a("v_lshrrev_b32 v3, 1, v4\nv_and_b32 v2, 1, v2\nv_lshlrev_b32 v2, 1, v2\nv_xor_b32 v3, v3, v2\nv_lshlrev_b32 v3, 5, v3")
        a("v_and_b32 v2, 1, v4\nv_lshl_add_u32 v3, v2, 4, v3\nv_mul_u32_u24 v102, 3072, v5\nv_add_u32 v102, v102, v3\nv_xor_b32 v103, 32, v102")
        a("v_add_u32 v248, 24576, v102\nv_add_u32 v249, 24576, v103")
        a(f"s_lshl_b32 s{S_XOFF}, s{S_J}, 16")
        if 'rot' in self.exp: a(f"s_and_b32 s101, s{S_J}, 3")
        a(f"s_mul_i32 s{S_WOFF}, s{S_WAVE}, {16*3072}\ns_lshl_b32 s{ST}, s{S_P}, 7\ns_add_u32 s{S_WOFF}, s{S_WOFF}, s{ST}")
        a(f"s_lshl_b32 s{S_M0B}, s{S_WAVE}, 11\ns_mul_i32 s{S_M0W}, s{S_WAVE}, 6144\ns_add_u32 s{S_M0W}, s{S_M0W}, 8192")
        a("s_waitcnt lgkmcnt(0)")
        if self.stamps and 'dbgs' not in self.exp:
            a(f"s_mov_b32 s101, s{S_T}")
        a(J(self.srd(SRD_K, PTR+8, 2097152) + self.srd(SRD_V, PTR+10, 2097152) + self.srd(SRD_X, PTR+0, 2097152) + self.srd(SRD_W, PTR+2, 1572864)))
        Ln = a.label('nononce')
        a(f"s_or_b32 s{ST}, s2, s{S_WAVE}\ns_cmp_lg_u32 s{ST}, 0\ns_cbranch_scc1 {Ln}")
        a(J(self.srd(SRD_DBG, PTR+20, 256)))
        a(f"s_or_b32 s{S_T+1}, s{S_T+1}, 0x80000000")
        a(f"v_mov_b32 v14, s{S_T}\nv_mov_b32 v15, s{S_T+1}\nv_mov_b32 v2, 0\ns_mov_b64 exec, 1")
        a(f"buffer_store_dwordx2 v[14:15], v2, {DBG}, 0 offen sc1 ; @cond")
        a(f"s_mov_b64 exec, -1\n{Ln}:")
        K, V = S4(SRD_K), S4(SRD_V)
        if 'kvafter' not in self.exp:
            for d, v, srd, off in ((28,140,K,0),(32,140,K,1024),(24,143,K,0),(20,142,K,0),(16,141,K,0),(36,140,V,0),(40,140,V,1024)):
                a(f"buffer_load_dwordx4 v[{d}:{d+3}], v{v}, {srd}, 0 offen offset:{off} {self.NT}; @kv")
            a(J(self.srd(SRD_SH, PTR+12, 4096)))
            a(f"s_mov_b32 m0, {WSH}\ns_mov_b32 exec_hi, 0")
            a(f"buffer_load_dwordx4 v144, {S4(SRD_SH)}, 0 offen lds ; @kv")
            a("s_mov_b32 exec_hi, -1")
        for g in self.dma_groups(0): a(J(g))
        a(f"s_lshr_b32 s{ST}, s{S_J}, 3\ns_lshl_b32 s{ST}, s{ST}, 9\ns_lshl_b32 s{ST+1}, s{S_I}, 4\ns_add_u32 s{ST}, s{ST}, s{ST+1}\ns_lshl_b32 s{ST+1}, s{S_WAVE}, 2\ns_add_u32 s{ST+4}, s{ST}, s{ST+1}\ns_lshl_b32 s{ST+4}, s{ST+4}, 10")
        a(f"v_lshlrev_b32 v145, 10, v5\nv_lshl_add_u32 v145, v4, 6, v145\nv_add_u32 v145, s{ST+4}, v145")
        a(f"s_lshl_b32 s{ST}, s{S_I}, 3\ns_lshl_b32 s{ST+1}, s{S_WAVE}, 1\ns_add_u32 s{ST}, s{ST}, s{ST+1}\ns_mul_i32 s{ST}, s{ST}, 3072\ns_lshr_b32 s{ST+1}, s{S_P}, 2\ns_lshl_b32 s{ST+1}, s{ST+1}, 9\ns_add_u32 s{ST}, s{ST}, s{ST+1}")
        a("v_subrev_u32 v7, 24, v1\nv_ashrrev_i32 v3, 31, v7\nv_and_b32 v6, 24, v3\nv_add_u32 v7, v7, v6\nv_not_b32 v3, v3\nv_and_b32 v3, 3072, v3")
        a(f"v_lshrrev_b32 v6, 3, v7\nv_lshl_add_u32 v3, v6, 10, v3\nv_and_b32 v7, 7, v7\nv_lshl_add_u32 v3, v7, 6, v3\nv_add_u32 v146, s{ST}, v3")
        a(f"s_mov_b32 exec_hi, 0xffff\nbuffer_load_dword v252, v146, {S4(SRD_W)}, 0 offen ; @pf\ns_mov_b32 exec_hi, 0\nbuffer_load_dword v252, v145, {S4(SRD_X)}, 0 offen ; @pf\ns_mov_b32 exec_hi, -1")
        if 'kvafter' in self.exp:
            for d, v, srd, off in ((28,140,K,0),(32,140,K,1024),(24,143,K,0),(20,142,K,0),(16,141,K,0),(36,140,V,0),(40,140,V,1024)):
                a(f"buffer_load_dwordx4 v[{d}:{d+3}], v{v}, {srd}, 0 offen offset:{off} {self.NT}; @kv")
            a(J(self.srd(SRD_SH, PTR+12, 4096)))
            a(f"s_mov_b32 m0, {WSH}\ns_mov_b32 exec_hi, 0")
            a(f"buffer_load_dwordx4 v144, {S4(SRD_SH)}, 0 offen lds ; @kv")
            a("s_mov_b32 exec_hi, -1")
        if 'pfbearly' in self.exp:
            a(f"s_mov_b32 exec_hi, 0\nbuffer_load_dword v252, v145, {S4(SRD_X)}, 0 offen offset:512 ; @pf\ns_mov_b32 exec_hi, 0xffff\ns_mov_b32 s{ST+2}, {256*3072}\nbuffer_load_dword v252, v146, {S4(SRD_W)}, s{ST+2} offen ; @pf\ns_mov_b32 exec_hi, -1")
        self.stamp('issued')
        a(J(self.srd(SRD_WS, PTR+22, WS_SIZE) + self.srd(SRD_DBG, PTR+20, 256) + self.srd(SRD_Q, PTR+6, 2097152) + self.srd(SRD_WO, PTR+4, 524288) + self.srd(SRD_OUT, PTR+18, 4194304)))
        a(f"s_lshl_b32 s{ST}, s{S_XCD}, 7\ns_lshl_b32 s{ST+1}, s{S_I}, 2\ns_add_u32 s{ST}, s{ST}, s{ST+1}")
        a(f"s_load_dword s{S_D}, s[{PTR+16}:{PTR+17}], s{ST}")
        a(f"s_lshl_b32 s{ST}, s{S_XCD}, 6\ns_lshl_b32 s{ST+1}, s{S_I}, 1\ns_add_u32 s{ST}, s{ST}, s{ST+1}\ns_lshr_b32 s{ST+1}, s{S_WAVE}, 1\ns_add_u32 s{ST+3}, s{ST}, s{ST+1}\ns_lshl_b32 s{ST}, s{ST+3}, 12")
        a(f"s_add_u32 s{SRD_H}, s{PTR+14}, s{ST}\ns_addc_u32 s{SRD_H+1}, s{PTR+15}, 0\ns_mov_b32 s{SRD_H+2}, 4096\ns_mov_b32 s{SRD_H+3}, 0x20000")
        a(f"s_mov_b32 s{S_CH}, s{ST+3}\ns_and_b32 s{S_RHO}, s{S_WAVE}, 1")
        a(f"s_load_dwordx8 s[{S_HT}:{S_HT+7}], s[{SRD_H}:{SRD_H+1}], 4064")
        a(f"s_min_u32 s{S_NH}, s{S_J}, 4\ns_lshl_b32 s{S_HEAD}, s{S_P}, 2\ns_add_u32 s{S_HEAD}, s{S_HEAD}, s{S_WAVE}\ns_mov_b32 s{S_FB}, 0")
        a(f"s_mov_b32 s{S_SEL0}, 0x05040100\ns_mov_b32 s{S_SEL1}, 0x07060302")
        a("v_and_b32 v2, 31, v1\nv_lshrrev_b32 v3, 5, v1\nv_bfe_u32 v6, v2, 1, 3\nv_xor_b32 v3, v3, v6\nv_lshlrev_b32 v2, 7, v2")
        for kk in range(4):
            a(f"v_xor_b32 v6, {2*kk}, v3\nv_lshl_add_u32 v{104+kk}, v6, 4, v2\nv_add_u32 v{108+kk}, 0x10000, v{104+kk}")
        a("v_bfe_u32 v2, v1, 4, 1\nv_lshrrev_b32 v3, 5, v1\nv_bfe_u32 v6, v1, 2, 2")
        a("v_mul_u32_u24 v7, 3072, v3\nv_lshl_add_u32 v7, v6, 7, v7\nv_and_b32 v9, 3, v1\nv_lshl_add_u32 v7, v9, 3, v7")
        a(f"v_and_b32 v9, 2, v6\nv_xor_b32 v9, s{S_WAVE}, v9")
        a(f"v_lshl_add_u32 v113, v9, 5, v7\nv_add_u32 v113, {8192+2048}, v113")
        a("v_xor_b32 v9, v9, v2\nv_lshl_add_u32 v112, v9, 5, v7\nv_lshl_add_u32 v112, v2, 10, v112\nv_add_u32 v112, 8192, v112")
        a("v_add_u32 v114, 0x10000, v112\nv_add_u32 v115, 0x10000, v113")
        a(f"s_lshl_b32 s{ST}, s{S_WAVE}, 3\nv_add_u32 v2, s{ST}, v5\nv_sub_u32 v2, 31, v2")
        a("v_lshrrev_b32 v3, 2, v2\nv_xor_b32 v3, v3, v4\nv_lshlrev_b32 v3, 4, v3\nv_and_b32 v2, 3, v2\nv_lshl_add_u32 v3, v2, 2, v3\nv_lshl_add_u32 v3, v4, 10, v3")
        a(f"v_add_u32 v155, {TP}, v3\nv_lshlrev_b32 v153, 6, v4\nv_add_u32 v153, {WSH}, v153")
        a(f"s_lshl_b32 s{ST}, s{S_WAVE}, 1\nv_xor_b32 v156, s{ST}, v4\nv_lshlrev_b32 v156, 4, v156\nv_lshl_add_u32 v156, v5, 7, v156")
        a(f"s_lshl_b32 s{ST+1}, s{S_WAVE}, 11\ns_add_u32 s{ST+1}, s{ST+1}, {TP}\nv_add_u32 v156, s{ST+1}, v156\nv_xor_b32 v157, 16, v156")
        a(f"s_lshl_b32 s{ST}, s{S_XCD}, 6\ns_lshl_b32 s{ST+1}, s{S_WAVE}, 4\ns_add_u32 s{ST}, s{ST}, s{ST+1}\ns_lshl_b32 s{ST}, s{ST}, 12")
        a(f"s_lshl_b32 s{ST+1}, s{S_I}, 7\ns_sub_u32 s{ST}, s{ST}, s{ST+1}\ns_add_u32 s{ST}, s{ST}, {WS_KVT + 1984*2}")
        a(f"v_lshlrev_b32 v158, 12, v5\nv_lshl_add_u32 v158, v4, 4, v158\nv_add_u32 v158, s{ST}, v158\nv_add_u32 v159, {8*4096}, v158")

    def toep_valu(self, D, E, F, G):
        o = [f"v_alignbit_b32 v{E+i}, v{D[i+1]}, v{D[i]}, 16" for i in range(8)]
        o += [f"v_mov_b32 v{F+i}, v{D[i+1]}" for i in range(8)]
        o += [f"v_alignbit_b32 v{G+i}, v{D[i+2]}, v{D[i+1]}, 16" for i in range(8)]
        return o
    def toep_writes(self, D, E, F, G, vaddr):
        o = [f"ds_write_b128 v{vaddr}, v[{D[0]}:{D[0]+3}]", f"ds_write_b128 v{vaddr}, v[{D[4]}:{D[4]+3}] offset:16"]
        for r, R in ((1, E), (2, F), (3, G)):
            o += [f"ds_write_b128 v{vaddr}, v[{R}:{R+3}] offset:{r*TZC}", f"ds_write_b128 v{vaddr}, v[{R+4}:{R+7}] offset:{r*TZC+16}"]
        return o

    def pre(self):
        a = self.a
        for x in self.late_setup():
            if not x.startswith(';#'): a(x)
        a(J(self.flag_scalars()))
        a(J(self.scalar_dep()))
        a("s_waitcnt lgkmcnt(0)")
        pfB = ["s_mov_b32 exec_hi, 0", f"buffer_load_dword v252, v145, {S4(SRD_X)}, 0 offen offset:512 ; @pf", "s_mov_b32 exec_hi, 0xffff", f"s_mov_b32 s{ST+2}, {256*3072}", f"buffer_load_dword v252, v146, {S4(SRD_W)}, s{ST+2} offen ; @pf", "s_mov_b32 exec_hi, -1"]
        misc = [f"s_lshl_b32 s{ST+2}, s{S_RHO}, 11", f"v_lshlrev_b32 v2, 6, v1", "s_mov_b32 exec_hi, 0", f"buffer_load_dword v252, v2, {S4(SRD_H)}, s{ST+2} offen {self.NT}; @pf",
                ] + ([f"s_lshl_b32 s{ST+2}, s{S_I}, 4", f"s_lshl_b32 s{ST+3}, s{S_WAVE}, 2", f"s_add_u32 s{ST+2}, s{ST+2}, s{ST+3}", f"s_lshl_b32 s{ST+2}, s{ST+2}, 10", f"s_and_b32 s{ST+3}, s{S_XCD}, 1", f"s_lshl_b32 s{ST+3}, s{ST+3}, 9", f"s_add_u32 s{ST+2}, s{ST+2}, s{ST+3}",
                "v_lshrrev_b32 v2, 3, v1", "v_and_b32 v3, 7, v1", "v_lshlrev_b32 v2, 10, v2", "v_lshl_add_u32 v2, v3, 6, v2", f"buffer_load_dword v252, v2, {S4(SRD_WO)}, s{ST+2} offen ; @pf"] if 'wopf' in self.exp else []) + [
                "v_lshlrev_b32 v2, 20, v1", "s_mov_b32 exec_lo, 0x1fff", f"buffer_load_dword v252, v2, {WS}, 0 offen ; @pf", f"buffer_load_dword v252, v2, {S4(SRD_OUT)}, 0 offen ; @pf", "s_mov_b64 exec, -1"]
        if 'd1early' in self.exp:
            for g in self.dma_groups(1): a(J(g))
        if 'notouch' in self.exp:
            k = next(i for i, x in enumerate(misc) if x.startswith('v_lshlrev_b32 v2, 20'))
            misc = misc[:k] + ["s_mov_b64 exec, -1"]
        if 'nomisc' in self.exp: misc = []
        if 'nohpf' in self.exp:
            k = next(i for i, x in enumerate(misc) if x.startswith('v_lshlrev_b32 v2, 20'))
            misc = ["s_mov_b32 exec_hi, 0"] + misc[k:]
        if 'pfbafter' in self.exp: pass
        elif 'pfbearly' in self.exp: a(J(misc))
        elif 'miscafter' in self.exp: a(J(pfB))
        else:
            a(J(pfB + misc))
        self.stamp('shadowdone')
        a("s_waitcnt vmcnt(@kv)")
        self.stamp('predata')
        for i in range(4): a(f"ds_read_b128 v[{44+4*i}:{47+4*i}], v153 offset:{16*i}")
        seq = self.pre_valu()
        seq = seq[:12] + ["s_waitcnt lgkmcnt(0)"] + seq[12:]
        a(J(safe_interleave(seq, self.dma_groups(1), every=12) if 'd1early' not in self.exp else seq))
        for ch in range(8): a(f"ds_write_b32 v155, v{92+ch} offset:{ch*128}")
        if 'pfbafter' in self.exp: a(J(pfB + misc))
        if 'miscafter' in self.exp: a(J(misc))
        a("s_waitcnt vmcnt(@dma0) lgkmcnt(0)\ns_barrier")
        self.stamp('stage0')
        a("ds_read_b128 v[16:19], v156\nds_read_b128 v[20:23], v157 offset:1024")
        self.qkv_reads(0, 0, 0)
        a(f"v_mov_b32 v3, 0\nbuffer_load_dwordx2 v[{V_T}:{V_T+1}], v3, {DBG}, 0 offen sc1 ; @nonce")
    def pre_valu(self):
        main = []
        for d in range(4):
            for par in range(2):
                sel = f"s{S_SEL1 if par else S_SEL0}"; ch = 2*d + par; o = 224 + 8*(ch % 3)
                r = lambda row: 16 + 4*(row+3) + d
                un = (lambda dst, src: f"v_lshlrev_b32 v{dst}, 16, v{src}") if par == 0 else (lambda dst, src: f"v_and_b32 v{dst}, 0xffff0000, v{src}")
                main.append([f"v_perm_b32 v{o}, v{r(-1)}, v{r(0)}, {sel}", f"v_perm_b32 v{o+1}, v{r(0)}, v{r(1)}, {sel}",
                             f"v_perm_b32 v{o+2}, v{r(-3)}, v{r(-2)}, {sel}", f"v_perm_b32 v{o+3}, v{r(-2)}, v{r(-1)}, {sel}",
                             un(o+4, 36+d), un(o+5, 40+d),
                             f"v_dot2_f32_bf16 v{o+6}, v{o}, v{44+2*ch}, 0", f"v_dot2_f32_bf16 v{o+7}, v{o+1}, v{44+2*ch}, 0",
                             f"v_dot2_f32_bf16 v{o+6}, v{o+2}, v{45+2*ch}, v{o+6}", f"v_dot2_f32_bf16 v{o+7}, v{o+3}, v{45+2*ch}, v{o+7}",
                             f"v_mul_f32 v{o+6}, v{o+6}, v{o+4}", f"v_mul_f32 v{o+7}, v{o+7}, v{o+5}", f"v_cvt_pk_bf16_f32 v{92+ch}, v{o+7}, v{o+6}"])
        seq = []
        for k in range(0, 8, 2):
            A, B = main[k], main[k+1]
            seq += A[:6] + B[:6] + A[6:10] + B[6:10] + A[10:12] + B[10:12] + [A[12], B[12]]
        return seq

    def qkv_reads(self, s, kk, st):
        a = self.a
        buf = s % 3; b = 60 + 16*st
        if buf < 2: xa, wqk, wv, base = 104+kk, 112, 113, buf*32768
        else:       xa, wqk, wv, base = 108+kk, 114, 115, 0
        a(f"ds_read_b128 v[{b}:{b+3}], v{xa} offset:{base}")
        a(f"ds_read_b64_tr_b16 v[{b+8}:{b+9}], v{wqk} offset:{base + kk*6144}")
        a(f"ds_read_b64_tr_b16 v[{b+10}:{b+11}], v{wqk} offset:{base + kk*6144 + 512}")
        a(f"ds_read_b128 v[{b+4}:{b+7}], v{xa} offset:{base + 4096}")
        a(f"ds_read_b64_tr_b16 v[{b+12}:{b+13}], v{wv} offset:{base + kk*6144}")
        a(f"ds_read_b64_tr_b16 v[{b+14}:{b+15}], v{wv} offset:{base + kk*6144 + 512}")
    def qkv_mfma(self, st, first=False):
        b = 60 + 16*st
        c = lambda r: "0" if first else f"v[{r}:{r+15}]"
        return [f"{MF32} v[160:175], v[{b+8}:{b+11}], v[{b}:{b+3}], {c(160)}", f"{MF32} v[176:191], v[{b+8}:{b+11}], v[{b+4}:{b+7}], {c(176)}",
                f"{MF32} v[192:207], v[{b}:{b+3}], v[{b+12}:{b+15}], {c(192)}", f"{MF32} v[208:223], v[{b+4}:{b+7}], v[{b+12}:{b+15}], {c(208)}"]
    def nonce_fix(self):
        a = self.a
        Lok = a.label('nonce_ok'); Lp = a.label('nonce_poll')
        a(f"v_readfirstlane_b32 s{S_T}, v{V_T}\nv_readfirstlane_b32 s{S_T+1}, v{V_T+1}\ns_nop 0")
        a(f"s_cmp_eq_u32 s{S_T+1}, 0\ns_cbranch_scc1 {Lp}\n{Lok}:")
        with Cap(a) as cap:
            a(f"{Lp}:\ns_mov_b32 s{S_TMO}, 0\n{Lp}_l:")
            a(f"v_mov_b32 v3, 0\nbuffer_load_dwordx2 v[{V_T}:{V_T+1}], v3, {DBG}, 0 offen sc1\ns_waitcnt vmcnt(0)")
            a(f"v_readfirstlane_b32 s{S_T}, v{V_T}\nv_readfirstlane_b32 s{S_T+1}, v{V_T+1}")
            a(f"s_add_u32 s{S_TMO}, s{S_TMO}, 1\ns_cmp_gt_u32 s{S_TMO}, 0x20000\ns_cbranch_scc1 {Lok}")
            a(f"s_cmp_eq_u32 s{S_T+1}, 0\ns_cbranch_scc1 {Lp}_l\ns_branch {Lok}")
        self.tail_blocks.append(cap.out)

    def late_setup(self):
        o = []
        A = lambda t: o.extend(split_instrs(t))
        A(f"v_cmp_eq_u32 vcc, 0, v1\nv_mov_b32 v2, {hex(OOB)}\nv_mov_b32 v3, 0\n;#g\nv_cndmask_b32 v{V_FL}, v2, v3, vcc")
        A(f"v_lshlrev_b32 v{V_PL}, {FS}, v1\nv_cmp_gt_u32 vcc, 32, v1\ns_nop 1\n;#g\nv_cndmask_b32 v{V_PL}, v2, v{V_PL}, vcc")
        A(f"s_lshl_b32 s{ST}, s{S_RHO}, 11\nv_lshlrev_b32 v138, 5, v1\nv_add_u32 v138, s{ST}, v138\nv_subrev_u32 v136, 32, v138\nv_subrev_u32 v137, 16, v138")
        A(f"s_lshr_b32 s{ST+1}, s{S_WAVE}, 1\ns_mul_i32 s{ST+2}, s{ST+1}, {4*TZC}\ns_add_u32 s{ST}, s{ST}, s{ST+2}\ns_add_u32 s{ST}, s{ST}, {TZ}\nv_lshlrev_b32 v132, 5, v1\nv_add_u32 v132, s{ST}, v132")
        A(f"s_add_u32 s{ST+2}, s{ST+2}, {TZ + 4096}\nv_mov_b32 v139, s{ST+2}")
        A(f"s_lshl_b32 s{S_UO}, s{S_CH}, 12\ns_lshl_b32 s{ST}, s{S_RHO}, 10\ns_add_u32 s{S_UO}, s{S_UO}, s{ST}\ns_add_u32 s{S_UO}, s{S_UO}, {WS_KVT}")
        A(f"s_mul_i32 s{ST+2}, s{ST+1}, {UC}\ns_add_u32 s{ST+2}, s{ST+2}, s{ST}\ns_add_u32 s{ST+2}, s{ST+2}, {U}\nv_add_u32 v127, s{ST+2}, v{V_L16}")
        A(f"v_mov_b32 v148, 0\nv_mov_b32 v149, 0\nv_mov_b32 v150, 0\nv_mov_b32 v151, 0")
        A(f"v_lshrrev_b32 v2, 5, v1\nv_mul_u32_u24 v2, {UC}, v2\nv_and_b32 v3, 31, v1\nv_lshl_add_u32 v2, v3, 4, v2\nv_add_u32 v152, {U+4096}, v2")
        A(f"v_and_b32 v4, 15, v1\nv_lshrrev_b32 v5, 4, v1\nv_add_u32 v2, 1, v4\nv_and_b32 v3, 3, v2\nv_lshrrev_b32 v2, 2, v2")
        A(f"v_mul_u32_u24 v{V_CA}, {TZC}, v3\nv_lshl_add_u32 v{V_CA}, v2, 3, v{V_CA}\nv_lshl_add_u32 v{V_CA}, v5, 4, v{V_CA}")
        A(f"s_lshr_b32 s{ST}, s{S_WAVE}, 1\ns_mul_i32 s{ST+1}, s{ST}, {4*TZC}\ns_lshl_b32 s{ST+2}, s{S_RHO}, 8\ns_add_u32 s{ST+1}, s{ST+1}, s{ST+2}\ns_add_u32 s{ST+1}, s{ST+1}, {TZ}\nv_add_u32 v{V_CA}, s{ST+1}, v{V_CA}")
        A(f"s_mul_i32 s{ST+1}, s{ST}, {UC}\ns_add_u32 s{ST+1}, s{ST+1}, s{ST+2}\ns_add_u32 s{ST+1}, s{ST+1}, {U+480}")
        A(f"v_lshlrev_b32 v{V_CB}, 4, v5\nv_lshlrev_b32 v2, 5, v4\nv_sub_u32 v{V_CB}, v{V_CB}, v2\nv_add_u32 v{V_CB}, s{ST+1}, v{V_CB}")
        A(f"v_lshrrev_b32 v2, 5, v1\nv_mul_u32_u24 v2, 17, v2\nv_and_b32 v3, 31, v1\nv_add_u32 v2, v2, v3\nv_lshlrev_b32 v{V_VV}, 4, v2\nv_sub_u32 v3, 16, v3\nv_ashrrev_i32 v3, 31, v3\nv_and_b32 v3, {hex(OOB)}, v3\nv_or_b32 v{V_VV}, v{V_VV}, v3")
        A(f"v_bfe_u32 v{V_OF}, v1, 4, 1\nv_lshlrev_b32 v{V_OF}, 14, v{V_OF}\nv_lshrrev_b32 v2, 5, v1\nv_lshl_add_u32 v{V_OF}, v2, 8, v{V_OF}\nv_and_b32 v2, 15, v1\nv_lshl_add_u32 v{V_OF}, v2, 4, v{V_OF}")
        A(f"s_lshl_b32 s{S_OFS}, s{S_J}, 16\ns_lshr_b32 s{ST+1}, s{S_HEAD}, 1\ns_lshl_b32 s{ST+1}, s{ST+1}, 10\ns_add_u32 s{S_OFS}, s{S_OFS}, s{ST+1}\ns_and_b32 s{ST+1}, s{S_HEAD}, 1\ns_lshl_b32 s{ST+1}, s{ST+1}, 9\ns_add_u32 s{S_OFS}, s{S_OFS}, s{ST+1}\ns_add_u32 s{S_OFS}, s{S_OFS}, {WS_OF}")
        A("v_mov_b32 v128, -1\nv_mov_b32 v129, -1\nv_mov_b32 v130, -1\nv_mov_b32 v131, -1")
        A(f"s_lshl_b32 s{S_NHM}, 1, s{S_NH}\ns_sub_u32 s{S_NHM}, s{S_NHM}, 1")
        A(f"s_lshl_b32 s{ST}, s{S_HEAD}, 6\ns_lshl_b32 s{ST+1}, s{S_J}, 1\ns_add_u32 s{ST}, s{ST}, s{ST+1}\ns_mul_i32 s{S_KVO}, s{ST}, {KVS}\ns_add_u32 s{S_KVO}, s{S_KVO}, {WS_KV}")
        A(f"s_lshl_b32 s{S_ZTO}, s{S_CH}, 12\ns_lshl_b32 s{ST}, s{S_RHO}, 11\ns_add_u32 s{S_ZTO}, s{S_ZTO}, s{ST}\ns_add_u32 s{S_ZTO}, s{S_ZTO}, {WS_ZT}")
        A(f"s_lshl_b32 s{ST}, s{S_XCD}, 6\ns_lshl_b32 s{ST+1}, s{S_WAVE}, 4\ns_add_u32 s{ST}, s{ST}, s{ST+1}\ns_lshl_b32 s{ST}, s{ST}, 12\ns_lshl_b32 s{ST+2}, s{S_I}, 7\ns_add_u32 s{ST}, s{ST}, s{ST+2}\ns_add_u32 s{S_ZLD}, s{ST}, {WS_ZT}")
        A(f"s_lshl_b32 s{ST}, s{S_I}, 6\ns_add_u32 s{ST}, s{ST}, s{ST+1}\ns_lshl_b32 s{ST+2}, s{S_XCD}, 7\ns_lshl_b32 s{S_QO}, s{ST}, 10\ns_add_u32 s{S_QO}, s{S_QO}, s{ST+2}\ns_lshl_b32 s{S_BOUT}, s{ST}, 11\ns_add_u32 s{S_BOUT}, s{S_BOUT}, s{ST+2}\ns_add_u32 s{S_BOUT}, s{S_BOUT}, 1024")
        A(f"s_lshl_b32 s{ST}, s{S_J}, 6\ns_add_u32 s{ST}, s{ST}, s{ST+1}\ns_lshl_b32 s{S_AOUT}, s{ST}, 11\ns_lshl_b32 s{ST+2}, s{S_P}, 7\ns_add_u32 s{S_AOUT}, s{S_AOUT}, s{ST+2}")
        A(f"s_lshl_b32 s{S_OFL}, s{S_J}, 2\ns_add_u32 s{S_OFL}, s{S_OFL}, s{S_WAVE}\ns_lshl_b32 s{S_OFL}, s{S_OFL}, 14\ns_add_u32 s{S_OFL}, s{S_OFL}, {WS_OF}")
        A(f"s_lshl_b32 s{S_WOO}, s{S_WAVE}, 17\ns_add_u32 s{S_WOO}, s{S_WOO}, s{ST+2}\ns_lshl_b32 s{S_WOM}, s{S_WAVE}, 14")
        return o
    def scalar_dep(self):
        o = ["s_waitcnt lgkmcnt(0)"]
        A = lambda t: o.extend(split_instrs(t))
        A(J([f"v_mov_b32 v{116+i}, s{S_HT+i}" for i in range(8)]) + "\nv_mov_b32 v124, 0\nv_mov_b32 v125, 0")
        A(J(self.toep_valu(list(range(116, 126)), 224, 232, 240)))
        o.append("ds_write_b128 v152, v[148:151]")
        o.append("s_mov_b64 exec, 1"); o.extend(self.toep_writes(list(range(116, 126)), 224, 232, 240, 139)); o.append("s_mov_b64 exec, -1")
        A(f"s_lshl_b32 s{ST}, s{S_D}, 16\ns_and_b32 s{ST+1}, s{S_D}, 0xffff0000\ns_cmp_lt_u32 s{S_WAVE}, 2\ns_cselect_b32 s{S_DV}, s{ST}, s{ST+1}")
        return o
    def flag_scalars(self):
        o = []
        A = lambda t: o.extend(split_instrs(t))
        A(f"s_lshl_b32 s{ST}, s{S_XCD}, 2\ns_add_u32 s{ST}, s{ST}, s{S_WAVE}\ns_lshl_b32 s{ST}, s{ST}, 5\ns_add_u32 s{ST}, s{ST}, s{S_I}\ns_lshl_b32 s{S_F1P}, s{ST}, {FS}")
        A(f"s_lshl_b32 s{ST}, s{S_XCD}, 2\ns_lshr_b32 s{ST+1}, s{S_I}, 3\ns_add_u32 s{ST}, s{ST}, s{ST+1}\ns_lshl_b32 s{S_PF1}, s{ST}, {5+FS}")
        F2MUL = next((int(x[2:]) for x in self.exp if x.startswith("fm")), 32)
        A(f"s_mul_i32 s{ST}, s{S_HEAD}, {F2MUL}\ns_add_u32 s{ST}, s{ST}, s{S_J}\ns_lshl_b32 s{S_F2P}, s{ST}, {FS}\ns_add_u32 s{S_F2P}, s{S_F2P}, {WS_F2}\ns_lshl_b32 s{ST+1}, s{S_NH}, {FS}\ns_sub_u32 s{S_PF2}, s{S_F2P}, s{ST+1}")
        A(f"s_lshl_b32 s{ST}, s{S_J}, 5\ns_add_u32 s{ST+1}, s{ST}, s{S_HEAD}\ns_lshl_b32 s{S_F5P}, s{ST+1}, {FS}\ns_add_u32 s{S_F5P}, s{S_F5P}, {WS_F5}\ns_lshl_b32 s{S_PF5}, s{ST}, {FS}\ns_add_u32 s{S_PF5}, s{S_PF5}, {WS_F5}")
        A(f"s_lshl_b32 s{ST}, s{S_XCD}, 1\ns_add_u32 s{ST+1}, s{ST}, s{S_RHO}\ns_lshl_b32 s{ST+1}, s{ST+1}, 6\ns_and_b32 s{ST+2}, s{S_CH}, 63\ns_add_u32 s{ST+1}, s{ST+1}, s{ST+2}\ns_lshl_b32 s{S_F3P}, s{ST+1}, {FS}\ns_add_u32 s{S_F3P}, s{S_F3P}, {WS_F3}")
        A(f"s_lshr_b32 s{ST+1}, s{S_I}, 4\ns_add_u32 s{ST}, s{ST}, s{ST+1}\ns_lshl_b32 s{ST}, s{ST}, 6\ns_lshl_b32 s{ST+1}, s{S_WAVE}, 4\ns_add_u32 s{ST}, s{ST}, s{ST+1}\ns_lshl_b32 s{S_PF3}, s{ST}, {FS}\ns_add_u32 s{S_PF3}, s{S_PF3}, {WS_F3}")
        return o

    def qkv(self):
        a = self.a
        DA = list(range(116, 126)); H = S4(SRD_H)
        tzA = self.toep_valu(DA, 136, 24, 92)
        tzW = self.toep_writes(DA, 136, 24, 92, 132)
        pend = self.dma_groups(2); vfill = []
        def emit_mfma(st, first=False, nv=3):
            nonlocal pend
            for i, ins in enumerate(self.qkv_mfma(st, first)):
                a(ins)
                if i % 2 == 1 and pend: a(J(pend.pop(0)))
                for _ in range(nv):
                    if vfill: a(vfill.pop(0))
        def reads_wait(s, kk, st):
            self.qkv_reads(s, kk, st)
            extra = []
            if (s == 6 and kk >= 2) or (s == 7 and kk in (1, 2)): extra = [tzW.pop(0), tzW.pop(0)]
            for x in extra: a(x)
            a(f"s_waitcnt lgkmcnt({6+len(extra)})")
        for s in range(8):
            reads_wait(s, 1, 1)
            emit_mfma(0, first=(s == 0))
            reads_wait(s, 2, 0)
            emit_mfma(1)
            reads_wait(s, 3, 1)
            emit_mfma(0)
            if s == 0:
                while pend: a(J(pend.pop(0)))
                a(f"buffer_store_dwordx4 v[16:19], v158, {WS}, 0 offen sc1 ; @st0")
                a(f"buffer_store_dwordx4 v[20:23], v159, {WS}, 0 offen sc1 ; @st0")
            if s < 7:
                while pend: a(J(pend.pop(0)))
                if s == 5 and 'pf1e5' in self.exp: a(self.poll_ld(S_PF1, 'pf1'))
                a(f"s_waitcnt vmcnt(@dma{s+1}) lgkmcnt(0)")
                a("s_barrier")
                if s == 2:
                    self.nonce_fix()
                    a(self.flag(S_F1P))
                if s + 3 < 8: pend = self.dma_groups(s + 3)
                if s == 3:
                    hl = [f"buffer_load_dwordx4 v[116:119], v136, {H}, 0 offen {self.NT}; @h", f"buffer_load_dwordx4 v[120:123], v137, {H}, 0 offen {self.NT}; @h", f"buffer_load_dwordx2 v[124:125], v138, {H}, 0 offen {self.NT}; @h"]
                    d = pend
                    pend = [[hl[0]] + d[0], [hl[1]] + d[1], [hl[2]] + d[2], d[3], d[4], d[5], d[6], d[7]]
                if s == 5:
                    pend = ([[self.poll_ld(S_PF1, 'pf1')]] if 'pf1e5' not in self.exp else []) + [
                            [f"s_getpc_b64 s[{ST+4}:{ST+5}]", "L_tabpc:", f"s_add_u32 s{ST+4}, s{ST+4}, (L_masktab - L_tabpc)", f"s_addc_u32 s{ST+5}, s{ST+5}, 0", f"s_mov_b32 s{ST+6}, 6144", f"s_mov_b32 s{ST+7}, 0x20000",
                             f"buffer_load_dwordx4 v[{A_MD}:{A_MD+3}], v{V_L16}, s[{ST+4}:{ST+7}], 0 offen ; @md", f"buffer_load_dwordx4 v[{A_MD+4}:{A_MD+7}], v{V_L16}, s[{ST+4}:{ST+7}], 0 offen offset:1024 ; @md"],
                            [f"buffer_load_dwordx4 v[{A_MD+8}:{A_MD+11}], v{V_L16}, s[{ST+4}:{ST+7}], 0 offen offset:2048 ; @md", f"buffer_load_dwordx4 v[{A_MD+12}:{A_MD+15}], v{V_L16}, s[{ST+4}:{ST+7}], 0 offen offset:3072 ; @md"]]
                    vfill = list(tzA)
                if s == 6:
                    a("s_waitcnt vmcnt(@pf1)")
                    a(J(self.cmp_flags("-1"))); a(f"s_cselect_b32 s{S_SPEC}, 1, 0")
                    a(f"buffer_load_dwordx4 v[16:19], v{V_L16}, {WS}, s{S_UO} offen sc1 ; @u\nbuffer_load_dwordx4 v[20:23], v{V_L16}, {WS}, s{S_UO} offen offset:2048 sc1 ; @u")
                    pend = [[f"buffer_store_dwordx4 v[128:131], v{V_OF}, {WS}, s{S_OFS} offen sc1 ; @sent"], [f"s_add_u32 s{ST+2}, s{S_OFS}, 32768", f"buffer_store_dwordx4 v[128:131], v{V_OF}, {WS}, s{ST+2} offen sc1 ; @sent"]]
                if 'ilv' in self.exp:
                    with Cap(a) as c1: self.qkv_reads(s+1, 0, 0)
                    with Cap(a) as c2: emit_mfma(1, nv=(6 if s == 5 else 3))
                    rd_ = c1.out; mm = c2.out
                    out = []; k = 0
                    for x in mm:
                        out.append(x)
                        if x.startswith('v_mfma') and k < 2:
                            out += rd_[3*k:3*k+3]; k += 1
                    a(J(out))
                    self.stamp(f'b{s}')
                else:
                    self.qkv_reads(s+1, 0, 0)
                    self.stamp(f'b{s}')
                    emit_mfma(1, nv=(6 if s == 5 else 3))
            else:
                assert not tzW
                a("s_waitcnt lgkmcnt(0)")
                emit_mfma(1)
        assert not vfill and not pend
        self.stamp('b7')
        a("s_waitcnt vmcnt(@md)\ns_nop 7\ns_nop 1")
        F = self.conv_fillers()
        iq = next(i for i, g in enumerate(F) if isinstance(g, list) and g[0].startswith(f"s_mov_b32 s{ST+2}, {hex(f2u(QSCALE))}"))
        for g in F[:iq]:
            if g is None: continue
            a(J(g))
        self.F1 = F[iq:]
        self.stamp('epi')
        a("s_waitcnt vmcnt(@u)")
        Lu = a.label('u_slow'); Lub = a.label('u_back')
        a(f"s_cmp_lg_u32 s{S_SPEC}, 0\ns_cbranch_scc1 {Lu}\n{Lub}:")
        with Cap(a) as cap:
            a(f"{Lu}:"); self.poll_check(S_PF1, "-1", 'f1', cnt=201)
            a(f"buffer_load_dwordx4 v[16:19], v{V_L16}, {WS}, s{S_UO} offen sc1\nbuffer_load_dwordx4 v[20:23], v{V_L16}, {WS}, s{S_UO} offen offset:2048 sc1\ns_waitcnt vmcnt(0)\ns_branch {Lub}")
        self.tail_blocks.append(cap.out)
        a("ds_write_b128 v127, v[16:19]\nds_write_b128 v127, v[20:23] offset:2048")
        a("s_waitcnt lgkmcnt(0)\ns_barrier")
        a(J(self.conv_reads(0, 0)))

    def conv_reads(self, st, n):
        A = 16 + 64*st; B = 48 + 64*st; o = []
        for i in range(8):
            o.append(f"ds_read_b128 v[{B+4*i}:{B+4*i+3}], v{V_CB} offset:{512*(7-i) + 64*n}")
            o.append(f"ds_read_b64 v[{A+4*i}:{A+4*i+1}], v{V_CA} offset:{512*i + 64*n}")
            o.append(f"ds_read_b64 v[{A+4*i+2}:{A+4*i+3}], v{V_CA} offset:{512*i + 64*n + 8}")
        return o
    def conv_reads_mixed_first(self):
        o = self.conv_reads(0, 0)
        self.deferred = [x for x in o if 'v[76:79]' in x]
        return [x for x in o if 'v[76:79]' not in x]
    def conv_mfmas(self, st, first):
        A = 16 + 64*st; B = 48 + 64*st; o = []
        for i in range(8):
            for t in range(i, 8):
                acc = CACC + 4*t
                c = "0" if (first and i == 0) else f"a[{acc}:{acc+3}]"
                o.append(f"{MF16} a[{acc}:{acc+3}], v[{A+4*i}:{A+4*i+3}], v[{B+4*(t-i)}:{B+4*(t-i)+3}], {c}")
        return o
    def Kf(self, t): return f"a[{4*t}:{4*t+3}]" if t < 8 else f"v[{232+4*(t-8)}:{235+4*(t-8)}]"
    def Vf(self, t, h): return f"a[{32+8*t+4*h}:{35+8*t+4*h}]" if t < 8 else f"v[{240+8*(t-8)+4*h}:{243+8*(t-8)+4*h}]"
    def maxreduce(self, src, dst, init=None):
        o = []
        if init is None: o.append(f"v_max3_f32 v{dst}, v{src}, v{src+1}, v{src+2}"); rest = list(range(src+3, src+16))
        else: rest = list(range(src, src+16))
        while len(rest) >= 2: o.append(f"v_max3_f32 v{dst}, v{dst}, v{rest[0]}, v{rest[1]}"); rest = rest[2:]
        if rest: o.append(f"v_max_f32 v{dst}, v{dst}, v{rest[0]}")
        return o
    def finish_max(self, m, b, bias, tmp):
        o = [[f"v_mov_b32 v{tmp}, v{m}", "s_nop 1", f"v_permlane32_swap_b32 v{m}, v{tmp}", "s_nop 1", f"v_max_f32 v{m}, v{m}, v{tmp}"]]
        if bias: o.append([f"v_add_f32 v{m}, {bias}, v{m}"])
        o.append([f"v_sub_f32 v{m}, 0, v{m}"])
        return o + [[f"v_mov_b32 v{A_CN[b]+r}, v{m}"] for r in range(16)]
    VM = ["s_mov_b32 exec_lo, 0x1ffff", "s_mov_b32 exec_hi, 0x1ffff"]
    def conv_fillers(self):
        F = []
        one = lambda l: F.extend([[x] for x in l])
        QF, MD, MK = A_QF, A_MD, A_MK
        F += [None]*3
        F.append([f"s_add_u32 s{ST+1}, s{S_KVO}, {KVS}"])
        for b in range(2): one([f"v_cvt_pk_bf16_f32 v{232+4*b+p}, v{160+16*b+8+2*p}, v{160+16*b+8+2*p+1}" for p in range(4)])
        F.append([f"buffer_store_dwordx4 v[232:235], v{V_L16}, {WS}, s{S_KVO} offen sc1 ; @kvst"])
        one([f"v_cvt_pk_bf16_f32 v{240+p}, v{192+2*p}, v{192+2*p+1}" for p in range(8)])
        F.append([f"buffer_store_dwordx4 v[236:239], v{V_L16}, {WS}, s{ST+1} offen sc1 ; @kvst"])
        one([f"v_cvt_pk_bf16_f32 v{248+p}, v{208+2*p}, v{208+2*p+1}" for p in range(8)])
        ones = lambda r0: ["s_mov_b32 exec_lo, 0x10000", "s_mov_b32 exec_hi, 0x10000"] + [f"v_mov_b32 v{r}, 0x3f803f80" for r in range(r0, r0+8)]
        F.append(ones(240) + ["s_mov_b64 exec, -1", "s_nop 0"] + [f"buffer_store_dwordx4 v[{240+4*h}:{243+4*h}], v{V_VV}, {WS}, s{S_KVO} offen offset:{1024+640*h} sc1 ; @kvst" for h in range(2)])
        F.append(None)
        F.append(ones(248) + ["s_mov_b64 exec, -1", "s_nop 0"] + [f"buffer_store_dwordx4 v[{248+4*h}:{251+4*h}], v{V_VV}, {WS}, s{ST+1} offen offset:{1024+640*h} sc1 ; @kvst" for h in range(2)])
        F.append([f"s_mov_b32 s{ST+3}, 4096", f"buffer_load_dwordx4 v[{MK}:{MK+3}], v{V_L16}, s[{ST+4}:{ST+7}], s{ST+3} offen ; @mk", f"buffer_load_dwordx4 v[{MK+4}:{MK+7}], v{V_L16}, s[{ST+4}:{ST+7}], s{ST+3} offen offset:1024 ; @mk"])
        F.append([f"s_mov_b32 s{ST+2}, {hex(f2u(QSCALE))}"])
        for b in range(2):
            one([f"v_mul_f32 v{160+16*b+r}, s{ST+2}, v{160+16*b+r}" for r in range(8)])
            one([f"v_cvt_pk_bf16_f32 v{224+4*b+p}, v{160+16*b+2*p}, v{160+16*b+2*p+1}" for p in range(4)])
        one(["v_lshrrev_b32 v2, 4, v1", "v_and_b32 v3, 7, v1", "v_lshrrev_b32 v6, 1, v3", "v_xor_b32 v6, v6, v2", "v_lshlrev_b32 v6, 5, v6", "v_and_b32 v3, 1, v3", "v_lshl_add_u32 v6, v3, 4, v6",
             "v_lshrrev_b32 v3, 3, v1", "v_lshl_add_u32 v176, v3, 10, v6", "v_add_u32 v177, 7168, v176", "v_add_u32 v178, 14336, v176", "v_add_u32 v179, 21504, v176"])
        F.append('WO')
        T = 208
        F.append([f"{MF32} v[{T}:{T+15}], {self.Kf(8)}, v[{QF[0]}:{QF[0]+3}], v[{MD}:{MD+15}]"]); F.append(13)
        one(self.maxreduce(T, 2))
        F.append([f"{MF32} v[{T}:{T+15}], {self.Kf(8)}, v[{QF[1]}:{QF[1]+3}], 0"])
        F.append([f"s_mov_b32 s{ST+2}, 0x42800000"])
        F += self.finish_max(2, 0, f"s{ST+2}", 3)
        one(self.maxreduce(T, 2))
        F.append([f"{MF32} v[{T}:{T+15}], {self.Kf(9)}, v[{QF[1]}:{QF[1]+3}], v[{MD}:{MD+15}]"]); F.append(13)
        one(self.maxreduce(T, 2, init=2))
        F += self.finish_max(2, 1, f"s{ST+2}", 3)
        return F
    def halo_groups(self, p):
        g = []
        for tau in (7-2*p, 6-2*p):
            off = (tau - 8) * KVS
            g.append([f"s_sub_u32 s{ST+6}, s{S_KVO}, {-off}", f"buffer_load_dwordx4 a[{4*tau}:{4*tau+3}], v{V_L16}, {WS}, s{ST+6} offen sc1 ; @pair{p}"])
            g.append([f"buffer_load_dwordx4 a[{32+8*tau}:{35+8*tau}], v{V_VV}, {WS}, s{ST+6} offen offset:1024 sc1 ; @pair{p}",
                      f"buffer_load_dwordx4 a[{36+8*tau}:{39+8*tau}], v{V_VV}, {WS}, s{ST+6} offen offset:1664 sc1 ; @pair{p}"])
        return g
    def conv(self):
        a = self.a
        wo = []
        for n in range(16):
            pre = [f"s_add_u32 m0, s{S_WOM}, {(n//4)*4096}", f"s_add_u32 s{ST+9}, s{S_WOO}, {(n//4)*32768}"] if n % 4 == 0 else []
            wo.append(pre + [f"buffer_load_dwordx4 v{176 + n%4}, {S4(SRD_WO)}, s{ST+9} offen offset:{(n%4)*1024} lds ; @wo"])
        a("s_waitcnt lgkmcnt(0)")
        self.stamp('convstart')
        nwo = 0; wo_on = False; since = 99; wo_at = 0
        F = self.F1
        WOEV = next((int(x[2:]) for x in self.exp if x.startswith('we')), 5)
        GPOST = next((int(x[2:]) for x in self.exp if x.startswith('gp')), 40)
        GPOLL = next((int(x[2:]) for x in self.exp if x.startswith('gq')), 110)
        for n in range(4):
            m = self.conv_mfmas(n & 1, n == 0)
            rd = self.conv_reads((n+1) & 1, n+1) if n < 3 else []
            for i, ins in enumerate(m):
                gi = 36*n + i
                a(ins); since += 1
                slots = 1 if rd else 2
                if rd: a(rd.pop(0)); since += 1
                for _ in range(slots):
                    while F and F[0] == 'WO': wo_on = True; wo_at = gi; F.pop(0)
                    if F and isinstance(F[0], int):
                        if since >= F[0]: F.pop(0)
                        else: continue
                    if F:
                        g = F.pop(0)
                        if g:
                            a(J(g))
                            if any(x.startswith('v_mfma') for x in g): since = 0
                            else: since += len(g)
                if wo_on and nwo < 16 and (gi - wo_at) % WOEV == 1: a(J(wo[nwo])); since += len(wo[nwo]); nwo += 1
                if gi == GPOST: a("s_waitcnt vmcnt(@kvst)"); a(self.flag(S_F2P, 'f2f')); a(self.flag(S_F5P, 'f5f'))
                if gi == GPOLL: a(self.poll_ld(S_PF2, 'pf2', 4))
            if n < 3: a("s_waitcnt lgkmcnt(0)")
        while nwo < 16: a(J(wo[nwo])); nwo += 1
        self.wo_groups = wo
        for g in F:
            if isinstance(g, int): a("s_nop 7\ns_nop 4")
            elif g == 'WO': pass
            elif g: a(J(g))
        print('conv leftover', len(F), 'wo_at', wo_at, file=sys.stderr)
        self.stamp('convmfma')
        a("s_waitcnt vmcnt(@pf2)")
        self.poll_check(S_PF2, f"s{S_NHM}", 'f2', vt=4, cnt=202)
        self.stamp('f2seen')
        for g in self.halo_groups(0): a(J(g))
        with Cap(a) as cap: self.conv_epilogue()
        body = cap.out
        out = []
        for x in body:
            if x.startswith('s_cmp_lg_u32 s71'): out.append(';#noint')
            out.append(x)
            if x.startswith('L_rhojoin'): out.append(';#int')
        a(J(safe_interleave(out, self.halo_groups(1), every=14, start=10)))
    def conv_epilogue(self):
        a = self.a
        Lr1 = a.label('rho1'); Lj = a.label('rhojoin')
        a(f"s_lshl_b32 s{ST}, s{S_WAVE}, 12\ns_add_u32 s{ST}, s{ST}, {EX}\nv_add_u32 v5, s{ST}, v{V_L16}\nv_xor_b32 v6, 0x1000, v5")
        a(f"s_cmp_lg_u32 s{S_RHO}, 0\ns_cbranch_scc1 {Lr1}")
        for t in range(4): a(f"ds_write_b128 v5, a[{CACC+16+4*t}:{CACC+19+4*t}] offset:{1024*t}")
        for r in range(16): a(f"v_accvgpr_read_b32 v{32+r}, a{CACC+r}")
        a(f"s_branch {Lj}\n{Lr1}:")
        for t in range(4): a(f"ds_write_b128 v5, a[{CACC+4*t}:{CACC+4*t+3}] offset:{1024*t}")
        for r in range(16): a(f"v_accvgpr_read_b32 v{32+r}, a{CACC+16+r}")
        a(f"{Lj}:")
        a(f"s_lshr_b32 s{ST}, s{S_WAVE}, 1\ns_mul_i32 s{ST}, s{ST}, {UC}\ns_lshl_b32 s{ST+2}, s{S_RHO}, 11\ns_sub_u32 s{ST}, s{ST}, s{ST+2}\ns_add_u32 s{ST}, s{ST}, {U + 4088 - 1536}")
        a(f"v_and_b32 v2, 15, v1\nv_lshrrev_b32 v3, 4, v1\nv_lshlrev_b32 v2, 5, v2\nv_lshl_add_u32 v2, v3, 3, v2\nv_sub_u32 v3, s{ST}, v2")
        for tl in range(4): a(f"ds_read_b64 v[{48+2*tl}:{49+2*tl}], v3 offset:{512*(3-tl)}")
        a(f"s_lshl_b32 s{ST+1}, s{S_WAVE}, 11\ns_add_u32 s{ST+1}, s{ST+1}, {TP}\nv_add_u32 v2, s{ST+1}, v2\nv_add_u32 v3, s{ST+1}, v{V_L16}")
        a("s_waitcnt lgkmcnt(0)\ns_barrier")
        for t in range(4): a(f"ds_read_b128 v[{16+4*t}:{19+4*t}], v6 offset:{1024*t}")
        for tl in range(4):
            lo, hi = 48+2*tl, 49+2*tl
            a(f"v_and_b32 v56, 0xffff0000, v{hi}\nv_lshlrev_b32 v57, 16, v{hi}\nv_and_b32 v58, 0xffff0000, v{lo}\nv_lshlrev_b32 v59, 16, v{lo}")
            for r in range(4): a(f"v_fmac_f32 v{32+4*tl+r}, s{S_DV}, v{56+r}")
        a("s_waitcnt lgkmcnt(0)")
        for tl in range(4):
            acc = 32 + 4*tl; px = 16 + 4*tl
            for r in range(4): a(f"v_add_f32 v{acc+r}, v{acc+r}, v{px+r}")
            a(f"v_cvt_pk_bf16_f32 v{60+2*tl}, v{acc}, v{acc+1}\nv_cvt_pk_bf16_f32 v{61+2*tl}, v{acc+2}, v{acc+3}")
            a(f"ds_write_b64 v2, v[{60+2*tl}:{61+2*tl}] offset:{512*tl}")
        a("s_waitcnt lgkmcnt(0)")
        a("ds_read_b128 v[208:211], v3\nds_read_b128 v[212:215], v3 offset:1024")

    def attention(self):
        a = self.a
        S, P, CN, O, MD, MK, QF = A_S, A_P, A_CN, A_O, A_MD, A_MK, A_QF
        Kf, Vf = self.Kf, self.Vf
        items = [(0, 8, 'D'), (1, 9, 'D'), (1, 8, None)]
        pairs = [[(0,7,None),(1,7,None),(0,6,None),(1,6,None)], [(0,5,None),(1,5,None),(0,4,None),(1,4,None)],
                 [(0,3,None),(1,3,None),(0,2,None),(1,2,None)], [(0,1,None),(1,1,'F'),(0,0,'F')]]
        allitems = items + [x for p in pairs for x in p]
        def smfma(n):
            b, t, m = allitems[n]
            return f"{MF32} v[{S[n&1]}:{S[n&1]+15}], {Kf(t)}, v[{QF[b]}:{QF[b]+3}], v[{CN[b]}:{CN[b]+15}]"
        a("s_waitcnt lgkmcnt(0)")
        a(f"buffer_store_dwordx4 v[208:211], v{V_L16}, {WS}, s{S_ZTO} offen sc1 ; @zst")
        a(f"buffer_store_dwordx4 v[212:215], v{V_L16}, {WS}, s{S_ZTO} offen offset:1024 sc1 ; @zst")
        Lmain = a.label('attn_main'); Ldone = a.label('attn_done'); Lfb = a.label('attn_fallback'); Lok = a.label('attn_ok'); Lj0 = a.label('attn_j0')
        self.stamp('attnstart')
        a(f"{Lmain}:")
        first_pv = {0: True, 1: True}
        pair_start = {}; n = len(items)
        for pi, p in enumerate(pairs): pair_start[n] = pi; n += len(p)
        late = {0: self.halo_groups(2)[:2], 1: self.halo_groups(2)[2:], 3: self.halo_groups(3)[:2], 4: self.halo_groups(3)[2:],
                2: [[f"buffer_load_dwordx4 v[{self.QR}:{self.QR+3}], v222, {S4(SRD_Q)}, s{S_QO} offen {self.NT}; @q"], [f"buffer_load_dwordx4 v[{self.QR+4}:{self.QR+7}], v222, {S4(SRD_Q)}, s{S_QO} offen offset:16 {self.NT}; @q"]],
                15: [[self.poll_ld(S_PF3, 'pf3', 218)], [self.poll_ld(S_PF5, 'pf5', 220)]]}
        if 'wolate' in self.exp:
            w = self.wo_groups
            for k, it in enumerate(range(5, 13)):
                late[it] = late.get(it, []) + [w[2*k], w[2*k+1]]
        if 'f5early' in self.exp:
            late[15] = [[self.poll_ld(S_PF3, 'pf3', 218)]]
            late[5] = [[self.poll_ld(S_PF5, 'pf5', 220)]]
        if 'f3early' in self.exp:
            late[13] = late[15]; del late[15]
        a(smfma(0))
        a("v_and_b32 v4, 15, v1\nv_lshrrev_b32 v5, 4, v1\nv_lshlrev_b32 v4, 10, v4\nv_lshl_add_u32 v222, v5, 5, v4")
        a(f"v_mov_b32 v218, 0\nv_mov_b32 v219, 0\nv_mov_b32 v220, 0\nv_mov_b32 v221, 0")
        a("v_lshrrev_b32 v4, 3, v1\nv_and_b32 v5, 7, v1\nv_lshlrev_b32 v223, 12, v4\nv_lshl_add_u32 v223, v5, 4, v223")
        pvp = []; N = len(allitems)
        for n, (b, t, m) in enumerate(allitems):
            s = S[n & 1]; p = P[n & 1]; nxt = n + 1
            lg = list(late.get(n, []))
            ex = lambda r0, r1: [a(f"v_exp_f32 v{s+r}, v{s+r}") for r in range(r0, r1)]
            cut = (6, 10) if 'sp4' in self.exp else (5, 9)
            ex(0, 2)
            if pvp: a(pvp[0])
            ex(2, cut[0])
            if pvp: a(pvp[1])
            pvp = []
            if lg: a(J(lg.pop(0)))
            ex(cut[0], cut[1])
            if nxt < N:
                if nxt in pair_start:
                    pi = pair_start[nxt]
                    self.stamp(f'pre_pair{pi}')
                    a(f"s_waitcnt vmcnt(@pair{pi})" if pi != 1 else "s_waitcnt vmcnt(@zst)")
                    self.stamp(f'w_pair{pi}')
                    if pi == 1: a(self.flag(S_F3P))
                a(smfma(nxt))
            ex(cut[1], 13)
            if lg: a(J(lg.pop(0)))
            ex(13, 16)
            for r in range(8): a(f"v_cvt_pk_bf16_f32 v{p+r}, v{s+2*r}, v{s+2*r+1}")
            if m == 'D':
                for r in range(8): a(f"v_and_b32 v{p+r}, v{MK+r}, v{p+r}")
            elif m == 'F':
                for r in range(8): a(f"v_bfi_b32 v{p+r}, v{MK+r}, 0, v{p+r}")
            c = "0" if first_pv[b] else f"v[{O[b]}:{O[b]+15}]"
            first_pv[b] = False
            pv = [f"{MF32} v[{O[b]}:{O[b]+15}], {Vf(t,0)}, v[{p}:{p+3}], {c}", f"{MF32} v[{O[b]}:{O[b]+15}], {Vf(t,1)}, v[{p+4}:{p+7}], v[{O[b]}:{O[b]+15}]"]
            if nxt in pair_start or nxt == N:
                a("s_nop 1"); a(pv[0]); a(pv[1])
                if nxt in pair_start:
                    pi = pair_start[nxt]
                    a(f"s_cmp_le_u32 s{S_NH}, {pi}\ns_cbranch_scc1 {Lj0 if pi == 0 else Ldone}")
            else: pvp = pv
        a(f"{Ldone}:")
        self.stamp('attndone')
        a("s_nop 7\ns_nop 3")
        for b in range(2): a(f"v_mov_b32 v{2+b}, v{O[b]+8}\nv_mov_b32 v4, v{O[b]+8}\ns_nop 1\nv_permlane32_swap_b32 v{2+b}, v4")
        a(f"s_mov_b32 s{ST}, {'0x00000000' if 'forcefb' in self.exp else '0x71800000'}")
        a(f"v_max_f32 v4, v2, v3\ns_nop 0\nv_cmp_gt_f32 vcc, s{ST}, v4")
        a(f"s_nop 3\ns_mov_b64 s[{ST+2}:{ST+3}], vcc\nv_cmp_o_f32 vcc, v2, v3\ns_nop 4\ns_and_b64 s[{ST+2}:{ST+3}], s[{ST+2}:{ST+3}], vcc")
        a(f"s_cmp_lg_u32 s{S_FB}, 0\ns_cbranch_scc1 {Lok}")
        a(f"s_cmp_eq_u64 s[{ST+2}:{ST+3}], -1\ns_cbranch_scc0 {Lfb}\n{Lok}:")
        with Cap(a) as cap:
            a(f"{Lj0}:")
            a("s_waitcnt vmcnt(0)"); a(self.flag(S_F3P)); a(f"s_branch {Ldone}")
            a(f"{Lfb}:")
            a(f"s_mov_b32 s{ST}, {hex(NEG)}")
            for r in range(16): a(f"v_sub_f32 v{128+r}, s{ST}, v{MD+r}")
            a(f"v_mov_b32 v2, s{ST}\nv_mov_b32 v3, s{ST}\ns_waitcnt vmcnt(0)")
            Lf = a.label('fb_done')
            for (b, t, m) in sorted(allitems, key=lambda x: -x[1]):
                if t < 8 and (t % 2 == 1) and b == 0: a(f"s_cmp_le_u32 s{S_NH}, {(7-t)//2}\ns_cbranch_scc1 {Lf}")
                c = {None: "0", 'D': f"v[{MD}:{MD+15}]", 'F': "v[128:143]"}[m]
                a(f"{MF32} v[16:31], {Kf(t)}, v[{QF[b]}:{QF[b]+3}], {c}\ns_nop 7\ns_nop 3")
                a(J(self.maxreduce(16, 2+b, init=2+b))); a("s_nop 7")
            a(f"{Lf}:")
            for g in self.finish_max(2, 0, None, 4) + self.finish_max(3, 1, None, 4): a(J(g))
            a(f"s_mov_b32 s{S_FB}, 1\ns_branch {Lmain}")
        self.tail_blocks.append(cap.out)

    def tail(self):
        a = self.a
        O = A_O
        if 'wolate' in self.exp:
            Lw = a.label('wo_done')
            a(f"s_cmp_ge_u32 s{S_NH}, 3\ns_cbranch_scc1 {Lw}")
            for g in self.wo_groups: a(J([x.replace('; @wo', '; @cond') for x in g]))
            a(f"s_waitcnt vmcnt(0)\n{Lw}:")
        a("v_rcp_f32 v2, v2\nv_rcp_f32 v3, v3")
        for b in range(2):
            for r in range(8): a(f"v_mul_f32 v{O[b]+r}, v{O[b]+r}, v{2+b}")
            for p in range(4): a(f"v_cvt_pk_bf16_f32 v{16+4*b+p}, v{O[b]+2*p}, v{O[b]+2*p+1}")
            if b == 1: a(f"s_add_u32 s{ST+1}, s{S_OFS}, 32768")
            if b == 0 and 'zfirst' in self.exp: continue
            if b == 1 and 'zfirst' in self.exp: continue
            a(f"buffer_store_dwordx4 v[{16+4*b}:{19+4*b}], v{V_OF}, {WS}, s{S_OFS if b == 0 else ST+1} offen sc1 ; @ost")
        zf = 'zfirst' in self.exp
        a("s_waitcnt vmcnt(0)" if zf else "s_waitcnt vmcnt(2)")
        self.poll_check(S_PF3, "0xffff", 'f3', vt=218, cnt=203)
        a(f"s_add_u32 s{ST+6}, s{S_ZLD}, {8*4096}")
        a(f"buffer_load_dwordx4 v[64:67], v223, {WS}, s{S_ZLD} offen sc1 ; @z")
        a(f"buffer_load_dwordx4 v[68:71], v223, {WS}, s{ST+6} offen sc1 ; @z")
        if zf:
            a(f"buffer_store_dwordx4 v[16:19], v{V_OF}, {WS}, s{S_OFS} offen sc1 ; @ost")
            a(f"buffer_store_dwordx4 v[20:23], v{V_OF}, {WS}, s{ST+1} offen sc1 ; @ost")
        self.stamp('ostored')
        self.poll_check(S_PF5, "-1", 'f5', vt=220, cnt=204)
        a(f"s_lshl_b32 s{ST}, s{S_WAVE}, 11\ns_add_u32 s{ST}, s{ST}, {TP}\nv_add_u32 v25, s{ST}, v{V_L16}")
        a(f"v_lshrrev_b32 v6, 4, v1\nv_bfe_u32 v3, v1, 2, 2\nv_lshl_add_u32 v4, v6, 4, v3\nv_lshlrev_b32 v4, 7, v4\nv_and_b32 v5, 3, v1\nv_lshl_add_u32 v4, v5, 3, v4\ns_lshl_b32 s{ST}, s{S_WAVE}, 5\ns_add_u32 s{ST}, s{ST}, {TP}\nv_add_u32 v26, s{ST}, v4")
        a(f"v_and_b32 v4, 15, v1\nv_lshlrev_b32 v4, 11, v4\nv_lshl_add_u32 v27, v6, 5, v4")
        for i in range(8): a(f"v_lshlrev_b32 v{32+2*i}, 16, v{self.QR+i}\nv_and_b32 v{33+2*i}, 0xffff0000, v{self.QR+i}")
        a("v_lshrrev_b32 v2, 5, v1\nv_bfe_u32 v4, v1, 4, 1\nv_lshlrev_b32 v6, 4, v2\nv_lshl_add_u32 v6, v4, 2, v6\nv_add_u32 v6, v6, v3\nv_lshlrev_b32 v6, 7, v6\nv_lshl_add_u32 v6, v5, 3, v6")
        a("v_lshrrev_b32 v3, 1, v3\nv_lshl_add_u32 v3, v4, 1, v3")
        for t in range(4): a(f"v_xor_b32 v5, {t}, v3\nv_lshl_add_u32 v{84+t}, v5, 5, v6")
        a("v_and_b32 v5, 15, v1\nv_lshlrev_b32 v30, 11, v5\nv_lshl_add_u32 v30, v4, 5, v30\nv_lshl_add_u32 v30, v2, 4, v30")
        OF = 96
        def ofld(m, tag=True, force=False):
            pre = [f"s_add_u32 s{ST+6}, s{S_OFL}, {(m//4)*4096}"] if (m % 4 == 0 or force) else []
            return pre + [f"buffer_load_dwordx4 v[{OF+4*m}:{OF+4*m+3}], v{V_L16}, {WS}, s{ST+6} offen offset:{1024*(m%4)} sc1" + (f" ; @of{m}" if tag else " ; @cond")]
        rd = [f"ds_read_b64_tr_b16 a[{16*m+4*t_+2*e}:{16*m+4*t_+2*e+1}], v{84+t_} offset:{m*4096 + e*1024}" for m in range(16) for t_ in range(4) for e in range(2)]
        if 'ofearly' in self.exp:
            a(J(interleave(rd, [ofld(m) for m in range(16)], every=4, start=64)))
        else:
            a(J(rd))
        a("s_waitcnt vmcnt(@z)")
        a("ds_write_b128 v25, v[64:67]\nds_write_b128 v25, v[68:71] offset:1024")
        if 'ofmid' in self.exp:
            for m in range(16): a(J(ofld(m)))
        a("s_waitcnt lgkmcnt(0)\ns_barrier")
        self.stamp('zlds')
        for n in range(4): a(f"ds_read_b64_tr_b16 v[{48+2*n}:{49+2*n}], v26 offset:{512*n}")
        a("s_waitcnt lgkmcnt(0)")
        comp = []
        for i in range(8): comp += [f"v_lshlrev_b32 v{64+2*i}, 16, v{48+i}", f"v_and_b32 v{65+2*i}, 0xffff0000, v{48+i}"]
        comp += [f"v_mul_f32 v{32+i}, v{32+i}, v{64+i}" for i in range(16)]
        comp += [f"v_cvt_pk_bf16_f32 v{16+i}, v{32+2*i}, v{33+2*i}" for i in range(8)]
        a(J(interleave(comp, [ofld(m) for m in range(16)], every=3) if ('ofearly' not in self.exp and 'ofmid' not in self.exp) else comp))
        a(f"buffer_store_dwordx4 v[16:19], v27, {S4(SRD_OUT)}, s{S_BOUT} offen{self.OUTF} ; @bst")
        a(f"buffer_store_dwordx4 v[20:23], v27, {S4(SRD_OUT)}, s{S_BOUT} offen offset:16{self.OUTF} ; @bst")
        self.stamp('ofissued')
        a(f"s_mov_b32 s{S_TMO}, 0")
        Lrl = [a.label(f'of_reload{k}') for k in range(4)]
        for m in range(16):
            r = OF + 4*m
            Lc = a.label(f'ofchk{m}'); Lk = a.label(f'ofok{m}')
            a(f"s_waitcnt vmcnt(@of{m})")
            a(f"v_max3_u32 v31, v{r}, v{r+1}, v{r+2}\nv_max_u32 v31, v31, v{r+3}\nv_cmp_eq_u32 vcc, -1, v31")
            if m > 0:
                for t_ in range(4):
                    c = "0" if m-1 == 0 else f"v[{64+4*t_}:{67+4*t_}]"
                    a(f"{MF16} v[{64+4*t_}:{67+4*t_}], a[{16*(m-1)+4*t_}:{16*(m-1)+4*t_+3}], v[{r-4}:{r-1}], {c}")
            else: a("s_nop 3")
            a(f"s_cbranch_vccnz {Lc}_r\n{Lk}:")
            with Cap(a) as cap:
                a(f"{Lc}_r:")
                if 'retry1' in self.exp:
                    a(f"s_add_u32 s{ST+6}, s{S_OFL}, {(m//4)*4096}")
                    a(f"buffer_load_dwordx4 v[{r}:{r+3}], v{V_L16}, {WS}, s{ST+6} offen offset:{1024*(m%4)} sc1\ns_waitcnt vmcnt(0)")
                    a(f"s_add_u32 s{S_TMO}, s{S_TMO}, 1\ns_cmp_gt_u32 s{S_TMO}, 0x8000\ns_cbranch_scc1 {Lk}")
                    a(f"v_max3_u32 v31, v{r}, v{r+1}, v{r+2}\nv_max_u32 v31, v31, v{r+3}\nv_cmp_eq_u32 vcc, -1, v31\ns_nop 3\ns_cbranch_vccnz {Lc}_r")
                    if m < 15: a(f"s_call_b64 s[30:31], {Lrl[(m+1)//4]}")
                    a(f"s_branch {Lk}")
                else:
                    a(f"s_call_b64 s[30:31], {Lrl[m//4]}")
                    a(f"s_cbranch_scc1 {Lk}")
                    a(f"v_max3_u32 v31, v{r}, v{r+1}, v{r+2}\nv_max_u32 v31, v31, v{r+3}\nv_cmp_eq_u32 vcc, -1, v31\ns_nop 3\ns_cbranch_vccnz {Lc}_r\ns_branch {Lk}")
            self.tail_blocks.append(cap.out)
        for t_ in range(4): a(f"{MF16} v[{64+4*t_}:{67+4*t_}], a[{16*15+4*t_}:{16*15+4*t_+3}], v[{OF+60}:{OF+63}], v[{64+4*t_}:{67+4*t_}]")
        with Cap(a) as cap:
            for k in range(4):
                a(f"{Lrl[k]}:")
                if self.SLEEP: a(f"s_sleep {self.SLEEP}")
                for m in range(4*k, 16): a(J(ofld(m, False)))
                a("s_waitcnt vmcnt(0)")
                a(f"s_add_u32 s{S_TMO}, s{S_TMO}, 1\ns_cmp_gt_u32 s{S_TMO}, 0x8000\ns_setpc_b64 s[30:31]")
        self.tail_blocks.append(cap.out)
        self.count(206)

        a("s_nop 7")
        for t in range(4): a(f"v_cvt_pk_bf16_f32 v{88+2*t}, v{64+4*t}, v{65+4*t}\nv_cvt_pk_bf16_f32 v{89+2*t}, v{66+4*t}, v{67+4*t}")
        a("s_nop 1\nv_permlane16_swap_b32 v88, v90\nv_permlane16_swap_b32 v89, v91\nv_permlane16_swap_b32 v92, v94\nv_permlane16_swap_b32 v93, v95\ns_nop 1")
        a(f"buffer_store_dwordx4 v[88:91], v30, {S4(SRD_OUT)}, s{S_AOUT} offen{self.OUTF}")
        a(f"buffer_store_dwordx4 v[92:95], v30, {S4(SRD_OUT)}, s{S_AOUT} offen offset:64{self.OUTF}")
        self.stamp('end')

    def mask_table(self):
        rows = []
        for blk in range(6):
            for l in range(64):
                q = l & 31; hi = l >> 5; vals = []
                for e in range(4):
                    r = 4*blk + e
                    if r < 16:
                        key = 8*(r // 4) + 4*hi + (r % 4)
                        vals.append(0 if key <= q else NEG)
                    else:
                        p = r - 16; k = 8*(p // 2) + 4*hi + 2*(p % 2)
                        vals.append((0xffff if k <= q else 0) | (0xffff0000 if k + 1 <= q else 0))
                rows.append(".long " + ", ".join(hex(v) for v in vals))
        return rows

    def build(self):
        a = self.a
        self.startup(); self.pre(); self.qkv(); self.conv(); self.attention(); self.tail()
        self.dump_stamps()
        a("L_end:\ns_endpgm")
        a.lines = resolve_vmcnt(a.lines)
        for blk in self.tail_blocks: a.lines += blk
        probs = check_hazards(a.lines)
        for p in probs[:12]: print(p, file=sys.stderr)
        a(".p2align 6\nL_masktab:")
        a.lines += self.mask_table()
        a("L_codeend:")
        hdr = open('cdna_kernels/' + NAME + '.s.ref').read().split('\n')
        cm = [l for l in hdr if l.startswith(';') and '@launch' not in l and 'Override' not in l and 'grid=ceil' not in l][:13]
        head = J(cm) + f"\n; @launch grid=(256,1,1) block=(256,1,1) lds={LDS_BYTES}\n"
        head += f'.amdgcn_target "amdgcn-amd-amdhsa--gfx950"\n.text\n.globl {NAME}_kernel\n.p2align 8\n.type {NAME}_kernel,@function\n{NAME}_kernel:\n'
        tail = f'''.section .rodata,"a"
.p2align 6
.amdhsa_kernel {NAME}_kernel
  .amdhsa_next_free_vgpr 512
  .amdhsa_next_free_sgpr 102
  .amdhsa_accum_offset 256
  .amdhsa_group_segment_fixed_size 0
  .amdhsa_kernarg_size 96
  .amdhsa_user_sgpr_count 2
  .amdhsa_user_sgpr_kernarg_segment_ptr 1
  .amdhsa_system_sgpr_workgroup_id_x 1
.end_amdhsa_kernel
'''
        return head + a.text() + tail, len(probs), self.stamp_slots

if __name__ == '__main__':
    ap = argparse.ArgumentParser()
    ap.add_argument('-o', default='cdna_kernels/' + NAME + '.s')
    ap.add_argument('--stamps', default=''); ap.add_argument('--exp', default='')
    args = ap.parse_args()
    g = Gen(stamps=[x for x in args.stamps.split(',') if x], exp=args.exp)
    txt, np_, slots = g.build()
    open(args.o, 'w').write(txt)
    print('wrote', args.o, 'lines', txt.count('\n'), 'hazards', np_, 'stamps', slots)
```
